```python
import torch

def _softmax(x, axis=-1):
    return torch.softmax(x, dim=axis)
def _gelu(x):
    return torch.nn.functional.gelu(x, approximate="tanh")
def _silu(x):
    return torch.nn.functional.silu(x)
def _sigmoid(x):
    return torch.sigmoid(x)
def _layernorm(x, axis=-1, eps=1e-5):
    m = x.mean(dim=axis, keepdim=True)
    v = x.var(dim=axis, keepdim=True, unbiased=False)
    return (x - m) / torch.sqrt(v + eps)
def _scatter_add(tgt, idx, src, axis=0):
    return tgt.clone().index_add_(axis, idx, src)
def _segment_sum(src, seg, n):
    out = torch.zeros((n,) + src.shape[1:], dtype=src.dtype)
    return out.index_add_(0, seg, src)
def _pad(x, pw):
    flat = tuple(v for pair in reversed(pw) for v in pair)
    return torch.nn.functional.pad(x, flat)

kernel_name = 'standalone__gqa_softmax__near_ridge'

def setup_inputs():

    _w = (lambda a: (lambda t: t.to(torch.bfloat16) if t.is_floating_point() else t)(torch.as_tensor(a)))
    B, Hq, Hkv, Sq, Sk, D = 16, 32, 32, 848, 512, 128
    return {
        "q": _w((lambda *s: torch.randn(*s, dtype=torch.bfloat16) * 0.8)(B, Hq, Sq, D)),
        "k": _w((lambda *s: torch.randn(*s, dtype=torch.bfloat16) * 0.8)(B, Hkv, Sk, D)),
        "v": _w((lambda *s: torch.randn(*s, dtype=torch.bfloat16) * 0.05)(B, Hkv, Sk, D)),
    }

def reference(q, k, v):
    B, Hq, Sq, D = q.shape
    Hkv = k.shape[1]
    rep = Hq // Hkv
    k = (lambda x, n, axis: torch.repeat_interleave(x, n, dim=axis))(k, rep, axis=1)
    v = (lambda x, n, axis: torch.repeat_interleave(x, n, dim=axis))(v, rep, axis=1)
    scale = D ** -0.5
    scores = torch.einsum("bhqd,bhkd->bhqk", q, k) * scale
    p = _softmax(scores, axis=-1)
    return torch.einsum("bhqk,bhkd->bhqd", p, v)
```

```python
import re

def R(kind, a, n=1):
    return [(kind, a + i) for i in range(n)]

def rs(kind, a, n=1):
    return f"{kind}{a}" if n == 1 else f"{kind}[{a}:{a+n-1}]"

class I:
    __slots__ = ("t", "k", "rd", "wr", "c", "tag")
    def __init__(self, t, k, rd=(), wr=(), c=(), tag=None):
        self.t = t; self.k = k; self.rd = list(rd); self.wr = list(wr); self.c = list(c); self.tag = tag
    def __repr__(self): return self.t

def mfma(d, a, b, c0=False, tag=None):
    dk, dn = d; ak, an = a; bk, bn = b
    cs = "0" if c0 else rs(dk, dn, 4)
    return I(f"v_mfma_f32_16x16x32_bf16 {rs(dk,dn,4)}, {rs(ak,an,4)}, {rs(bk,bn,4)}, {cs}", "M",
             rd=R(ak, an, 4) + R(bk, bn, 4), wr=R(dk, dn, 4), c=([] if c0 else R(dk, dn, 4)), tag=tag)

def states(ins):
    if ins.k == "#": return 0
    m = re.match(r"s_nop (\d+)", ins.t)
    return int(m.group(1)) + 1 if m else 1

VALU = "VEK"
def need(p, q):
    n = 0
    pw = set(p.wr)
    if p.k == "M":
        if q.k == "M":
            if pw & set(q.rd): n = max(n, 8)
            ov = pw & set(q.c)
            if ov and p.wr != q.c: n = max(n, 6)
            if (pw & set(q.wr)) and not q.c: n = max(n, 6)
        elif q.k in VALU or q.k in "DWLXS":
            if pw & (set(q.rd) | set(q.wr)): n = max(n, 8)
        if q.k in VALU and set(p.c) & set(q.wr): n = max(n, 3)
    elif p.k in VALU:
        if q.k == "M" and pw & (set(q.rd) | set(q.c)): n = max(n, 2)
        if p.k == "E" and q.k in "VK" and pw & set(q.rd): n = max(n, 1)
        if q.k == "K" and pw & set(q.rd): n = max(n, 2)
        sw = {r for r in pw if r[0] == "s"}
        if sw & set(q.rd):
            if q.k in "LXS": n = max(n, 5)
            elif q.k in VALU: n = max(n, 2)
        if "readfirstlane" in q.t and pw & set(q.rd): n = max(n, 1)
    elif p.k == "S":
        if q.k in VALU and set(p.rd) & set(q.wr): n = max(n, 2)
        elif set(p.rd) & set(q.wr): n = max(n, 1)
    elif p.k == "s":
        if ("m", 0) in pw and q.k == "X": n = max(n, 1)
    return n

def hazards(seq, start=0):
    bad = []
    for j in range(start, len(seq)):
        q = seq[j]
        if q.k in "#wB": continue
        dist = 0
        for i in range(j - 1, -1, -1):
            n = need(seq[i], q)
            if n > dist: bad.append((j, n - dist, seq[i].t, q.t))
            dist += states(seq[i])
            if dist >= 8: break
    return bad

def fix_hazards(seq, prefix=()):
    out = list(prefix); n0 = len(out)
    for q in seq:
        if q.k not in "#wB":
            dist = 0; miss = 0
            for p in reversed(out):
                n = need(p, q)
                miss = max(miss, n - dist)
                dist += states(p)
                if dist >= 8: break
            if miss > 0: out.append(I(f"s_nop {miss-1}", "s"))
        out.append(q)
    return out[n0:]

def check_lgkm(seq, pending=None):
    pend = list(pending or [])
    for q in seq:
        if q.k == "w":
            m = re.search(r"lgkmcnt\((\d+)\)", q.t)
            if m:
                n = int(m.group(1))
                if n < len(pend): pend = pend[len(pend) - n:] if n else []
            continue
        if q.k == "#": continue
        touched = set(q.rd) | set(q.c) | set(q.wr)
        for p in pend:
            if set(p.wr) & touched:
                raise AssertionError(f"lgkm hazard: {q.t} touches result of pending {p.t}")
        if q.k in "DW": pend.append(q)
    return pend

def cycles(seq):
    t = 0; mf = -100; vec_free = 0; last_valu_end = -100
    for q in seq:
        if q.k == "#": continue
        if q.k == "M":
            t = max(t, mf + 16, vec_free); mf = t; vec_free = t + 8; t += 4
        elif q.k in VALU:
            t = max(t, vec_free)
            if q.t.startswith("v_pk_"): t = max(t, mf + 28)
            d = 8 if q.k in "EK" else 4
            t += d; vec_free = t; last_valu_end = t
        elif q.k in "DWLXS":
            t = max(t, vec_free, last_valu_end + 8)
            d = {"D": 4, "W": 20, "L": 8, "X": 8, "S": 20}[q.k]
            t += d; vec_free = t
        elif q.k == "B": t += 12
        else: t += 4 * states(q)
    return t
```

```python
import sys, math, struct, re
from asmlib import *

NAME = "standalone__gqa_softmax__near_ridge"
CFG = dict(kv="nt", q="nt", o="", q6="", o6="", ones_all=0, stamp=0)
for a in sys.argv[2:]:
    k, v = a.split("=", 1)
    CFG[k] = int(v) if re.fullmatch(r"-?\d+", v) else v.replace("+", " ")

QH, KH = 217088, 131072
SCALE = math.log2(math.e) / math.sqrt(128.0)
def f2u(x): return struct.unpack("<I", struct.pack("<f", x))[0]

vK0, vK1, vV0, vV1, vDKV, vQO0, vQO1, vLin, vSt0, vSt1, vDir = range(1, 12)
vTmp = 12
vS = 20
vP = 36
vO = 92
vX = 252
aQ, aK, aV, aL, aO, aOne = 0, 112, 144, 160, 188, 252
sQ, sK, sV, sO = 4, 8, 12, 16
(sC, sW, sJob, sKoff, sVoff, sM, sQn, sOp, sStg, sLoop, sCurO, sNxt, sNT7c, sNT7n, sFlag, sRole,
 sT0, sT1, sWoff, sStgB, sOffA, sOffB, sLo, sHi, sT2, sT3) = range(20, 46)
sPair = 46
sDbg = 48
sStampOff = 52
sTm = 54
OOB = 0x100000

def Oreg(t, dj):
    return ("v", vO + t * 32 + dj * 4) if t < 5 else ("a", aO + (t - 5) * 32 + dj * 4)
def Preg(p, t): return vP + (p & 1) * 28 + t * 4
def sc(t, rd=(), wr=()): return I(t, "s", rd=rd, wr=wr)
def fl(x): return (" " + x) if x else ""

class Op:
    def __init__(self, key, ins, deps=(), target=None):
        self.key = key; self.ins = ins; self.deps = list(deps); self.target = target

class Sched:
    def __init__(self, NT):
        self.NT = NT
        self.out = []; self.done = set(); self.pend = []
        self.valu = []; self.fixed = []; self.scal = []
        self.forbid = set(); self.gap = 0
        self.bykey = {}
    def add(self, q, op):
        q.append(op); self.bykey[op.key] = op
    def emit(self, ins, key=None):
        if ins.k == "w":
            m = re.search(r"lgkmcnt\((\d+)\)", ins.t)
            if m:
                n = int(m.group(1)); self.pend = self.pend[len(self.pend) - n:] if n else []
        self.out.append(ins)
        if ins.k in "DW": self.pend.append(ins)
        if key is not None: self.done.add(key)
    def haz(self, ins):
        dist = 0; miss = 0
        for p in reversed(self.out):
            miss = max(miss, need(p, ins) - dist)
            dist += states(p)
            if dist >= 8: break
        return miss
    def lgkm_need(self, inss):
        idx = -1
        for ins in inss:
            t = set(ins.rd) | set(ins.c) | set(ins.wr)
            for i, p in enumerate(self.pend):
                if set(p.wr) & t: idx = max(idx, i)
        return None if idx < 0 else min(15, len(self.pend) - 1 - idx)
    def ready(self, op):
        return op.key not in self.forbid and all(d in self.done for d in op.deps) and \
            (op.target is None or op.target <= self.gap) and self.haz(op.ins) <= 0
    def put(self, op):
        for q in (self.valu, self.fixed, self.scal):
            if op in q: q.remove(op)
        n = self.lgkm_need([op.ins])
        if n is not None: self.emit(I(f"s_waitcnt lgkmcnt({n})", "w"))
        m = self.haz(op.ins)
        if m > 0: self.emit(I(f"s_nop {m-1}", "s"))
        self.emit(op.ins, op.key)
    def force(self, key):
        if key in self.done: return
        op = self.bykey[key]
        assert key not in self.forbid, key
        for d in op.deps: self.force(d)
        self.put(op)
    def pick(self, kinds, n):
        r = []
        for op in self.valu[:40]:
            if op.ins.k in kinds and self.ready(op):
                r.append(op)
                if len(r) == n: break
        return r
    def run(self, mf, look=()):
        allm = list(mf) + list(look)
        for i, (key, ins, deps) in enumerate(mf):
            for d in deps: self.force(d)
            n = self.lgkm_need([ins])
            if n is not None: self.emit(I(f"s_waitcnt lgkmcnt({n})", "w"))
            m = self.haz(ins)
            if m > 0: self.emit(I(f"s_nop {m-1}", "s"))
            self.emit(ins, key)
            fx = next((o for o in self.fixed if self.ready(o)), None)
            slot1 = False
            nxt = [x[1] for x in allm[i + 1:i + 2]]
            if self.lgkm_need(nxt) is not None:
                nxt = [x[1] for x in allm[i + 1:i + 5]]
            if fx is not None and fx.ins.k != "B": nxt = nxt + [fx.ins]
            n = self.lgkm_need(nxt)
            if n is not None:
                self.emit(I(f"s_waitcnt lgkmcnt({n})", "w")); slot1 = True
                if fx is not None and fx.ins.k == "B": fx = None
            if fx is not None and fx.ins.k == "B":
                self.put(fx)
            else:
                if not slot1 and self.scal and self.ready(self.scal[0]): self.put(self.scal[0])
                if fx is not None:
                    self.put(fx)
                    if fx.ins.k == "D":
                        for o in self.pick("V", 1): self.put(o)
                else:
                    e = self.pick("E", 1); v = self.pick("V", 2)
                    if e and (len(v) < 2 or self.valu.index(e[0]) < self.valu.index(v[0])):
                        self.put(e[0])
                    else:
                        for _ in range(2):
                            for o in self.pick("V", 1): self.put(o)
            self.gap += 1
    def flush(self):
        for q in (self.fixed, self.scal, self.valu):
            for op in list(q):
                if op.key not in self.forbid and op.key not in self.done: self.force(op.key)

def k_read(p, kt, ds):
    off = ((p - 1) & 1) * 16384 + kt * 4096 + (ds >> 1) * 2048
    r = aK + kt * 16 + ds * 4; ad = vK0 + (ds & 1)
    return I(f"ds_read_b128 {rs('a', r, 4)}, v{ad} offset:{off}", "D", rd=[("v", ad)], wr=R("a", r, 4), tag=("ring", p - 1))
def v_read(p, dj, kt):
    J, h = dj >> 1, dj & 1
    off = (p & 1) * 16384 + 8192 + kt * 4096 + (J >> 1) * 2048 + 8 * h
    r = aV + (dj & 3) * 4 + 2 * kt; ad = vV0 + (J & 1)
    return I(f"ds_read_b64_tr_b16 {rs('a', r, 2)}, v{ad} offset:{off}", "D", rd=[("v", ad)], wr=R("a", r, 2), tag=("ring", p))
def dma(vo, srd, so, off, flags, tag):
    o = f" offset:{off}" if off else ""
    return I(f"buffer_load_dwordx4 v{vo}, s[{srd}:{srd+3}], s{so} offen{o}{fl(flags)} lds", "X", rd=[("v", vo), ("m", 0), ("s", so)], tag=tag)
M0 = [("m", 0)]

def pv_list(NT, p):
    L = []
    for dj in range(8):
        for t in range(NT):
            deps = [("cvt", p, kt, t, h) for kt in (0, 1) for h in (0, 1)] + [("vr", p, dj, 0), ("vr", p, dj, 1)]
            L.append((("pv", p, dj, t), mfma(Oreg(t, dj), ("a", aV + (dj & 3) * 4), ("v", Preg(p, t)), c0=(p == 0)), deps))
        if dj < NT: L.append(sum_m(p, dj))
    return L
def sum_m(p, t):
    return (("sum", p, t), mfma(("a", aL + t * 4), ("a", aOne), ("v", Preg(p, t)), c0=(p == 0)),
            [("cvt", p, kt, t, h) for kt in (0, 1) for h in (0, 1)])

def phase_mf(NT, p, with_pv):
    pv = pv_list(NT, p - 1) if with_pv else []
    L = []; n = 0
    back = 4 if with_pv else 2
    for c in range(2 * NT):
        kt, t = divmod(c, NT)
        g = p * 2 * NT + c; sb = vS + (g & 3) * 4
        for ds in range(4):
            deps = [("kr", p, kt, ds)]
            if ds == 0 and g - back >= 0:
                pp, cc = divmod(g - back, 2 * NT)
                deps += [("cvt", pp, cc // NT, cc % NT, h) for h in (0, 1)]
            L.append((("qk", p, kt, t, ds), mfma(("v", sb), ("a", aK + kt * 16 + ds * 4), ("a", aQ + (t * 4 + ds) * 4), c0=(ds == 0)), deps))
        upto = (9 * (c + 1)) // 2 if with_pv else 0
        L += pv[n:upto]; n = upto
    return L

def add_softmax(S, p):
    NT = S.NT
    for c in range(2 * NT):
        kt, t = divmod(c, NT)
        sb = vS + ((p * 2 * NT + c) & 3) * 4
        mul = lambda r: Op(("mul", p, kt, t, r), I(f"v_mul_f32 v{sb+r}, s{sC}, v{sb+r}", "V", rd=[("v", sb + r)], wr=[("v", sb + r)]), [("qk", p, kt, t, 3)])
        ex = lambda r: Op(("exp", p, kt, t, r), I(f"v_exp_f32 v{sb+r}, v{sb+r}", "E", rd=[("v", sb + r)], wr=[("v", sb + r)]), [("mul", p, kt, t, r)])
        def cv(h):
            d = Preg(p, t) + 2 * kt + h
            return Op(("cvt", p, kt, t, h), I(f"v_cvt_pk_bf16_f32 v{d}, v{sb+2*h}, v{sb+2*h+1}", "V", rd=R("v", sb + 2 * h, 2), wr=[("v", d)]),
                      [("exp", p, kt, t, 2 * h), ("exp", p, kt, t, 2 * h + 1)])
        for o in (mul(0), mul(1), ex(0), ex(1), mul(2), mul(3), ex(2), ex(3), cv(0), cv(1)): S.add(S.valu, o)

VPOS = {dj: (4 + 14.875 * dj - 24, 4 + 14.875 * dj - 20) for dj in range(2, 8)}

def add_phase_ops(S, p, mf, with_pv, qo):
    NT = S.NT; g0 = S.gap; n = len(mf)
    T = lambda x: g0 + int(x * n / 119.0)
    add_softmax(S, p)
    fx = []; scal = []
    new = lambda lst, key, ins, deps=(), x=0: lst.append(Op(key, ins, deps, T(x)))
    known = lambda k: [k] if (k in S.bykey or k in S.done) else []
    lastqk = lambda pp, kt, ds: [("qk", pp, kt, NT - 1, ds)] if pp >= 0 else []
    for ds in range(4):
        new(fx, ("kr", p, 1, ds), k_read(p, 1, ds), [], 32 + 4 * ds + (4 if ds >= 2 else 0))
    if with_pv:
        for dj in range(2, 8):
            for kt in (0, 1):
                war = [("pv", p - 1, dj - 4, NT - 1)] if dj >= 4 else []
                xo = known(("xv", p - 1, 1)) if dj == 2 else []
                new(fx, ("vr", p - 1, dj, kt), v_read(p - 1, dj, kt), war + xo, VPOS[dj][kt])
    rd_before = [("kr", p, 1, ds) for ds in range(4)] + ([("vr", p - 1, 7, kt) for kt in (0, 1)] if with_pv else [])
    dm = [(sK, sKoff, 0, 0), (sK, sKoff, 2048 - 128, 128), (sV, sVoff, 8192, 0), (sV, sVoff, 8192 + 2048 - 128, 128)]
    prev = known(("m0last", p - 1))
    for k, (srd, so, md, off) in enumerate(dm):
        x = (2, 6, 17, 21)[k]
        new(scal, ("m0", p, k), sc(f"s_add_u32 m0, s{sM}, {md}", wr=M0), prev, x - 2)
        new(fx, ("dma", p, k), dma(vDKV, srd, so, off, CFG["kv"], ("grp", p + 2)), [("m0", p, k)], x)
        prev = [("dma", p, k)]
    new(scal, ("u1", p), sc(f"s_add_u32 s{sM}, s{sM}, 16384"), prev, 22)
    new(scal, ("u2", p), sc(f"s_and_b32 s{sM}, s{sM}, 0xffff"), prev, 22)
    new(scal, ("u3", p), sc(f"s_add_u32 s{sKoff}, s{sKoff}, 8192"), prev, 22)
    new(scal, ("u4", p), sc(f"s_add_u32 s{sVoff}, s{sVoff}, 8192"), prev, 22)
    if qo:
        for i in range(2):
            k = 2 * (p & 1) + i; a, nn = k & 1, k >> 1
            tmp = vTmp + 4 * i; lo = a * 2048 + nn * 1024
            x = (52, 64)[i]
            new(fx, ("or", p, i), I(f"ds_read_b128 {rs('v', tmp, 4)}, v{vLin} offset:{lo}", "D", rd=[("v", vLin)], wr=R("v", tmp, 4)), known(("ul", p - 1)), x)
            o = f" offset:{a*128}" if a else ""
            new(fx, ("os", p, i), I(f"buffer_store_dwordx4 {rs('v', tmp, 4)}, v{vQO0+nn}, s[{sO}:{sO+3}], s{sOp} offen{o}{fl(CFG['o'])}", "S",
                                    rd=R("v", tmp, 4) + [("v", vQO0 + nn), ("s", sOp)]), [("or", p, i)], x + 10)
            new(scal, ("qm", p, i), sc(f"s_add_u32 m0, s{sStg}, {lo - a*128}", wr=M0), prev, x + 10)
            new(fx, ("qd", p, i), dma(vQO0 + nn, sQ, sQn, a * 128, CFG["q"], ("q",)), [("os", p, i), ("qm", p, i)], x + 14)
            prev = [("qd", p, i)]
        if p & 1:
            new(scal, ("u5", p), sc(f"s_add_u32 s{sOp}, s{sOp}, 4096"), prev, 80)
            new(scal, ("u6", p), sc(f"s_add_u32 s{sQn}, s{sQn}, 4096"), prev, 80)
            new(scal, ("u7", p), sc(f"s_add_u32 s{sStg}, s{sStg}, 4096"), prev, 80)
            S.add(S.valu, Op(("ul", p), I(f"v_add_u32 v{vLin}, 4096, v{vLin}", "V", rd=[("v", vLin)], wr=[("v", vLin)]), [("or", p, 1)]))
    new(scal, ("wb", p), I("s_waitcnt vmcnt(?) lgkmcnt(0)", "w", tag=("needgrp", p)), rd_before + prev, 94)
    new(fx, ("bar", p), I("s_barrier", "B", tag=("bar", p)), [("wb", p)], 95)
    xk = []; xv0 = []
    if not (p & 1):
        xor = lambda r: I(f"v_xor_b32 v{r}, 0x8000, v{r}", "V", rd=[("v", r)], wr=[("v", r)])
        for b in (0, 1):
            S.add(S.valu, Op(("xk", p, b), xor(vK0 + b), [("kr", p, 1, b), ("kr", p, 1, b + 2)]))
            dv = [("vr", p - 1, 4 + 2 * b + h, kt) for h in (0, 1) for kt in (0, 1)] if with_pv else []
            S.add(S.valu, Op(("xv", p, b), xor(vV0 + b), dv))
        xv0 = [("xv", p, 0)]
    for ds in range(4):
        xk = [("xk", p, ds & 1)] if not (p & 1) else []
        new(fx, ("kr", p + 1, 0, ds), k_read(p + 1, 0, ds), [("bar", p), ("qk", p, 0, NT - 1, ds)] + xk, 97 + 4 * ds)
    for dj in (0, 1):
        for kt in (0, 1):
            war = [("pv", p - 1, dj + 4, NT - 1)] if with_pv else []
            new(fx, ("vr", p, dj, kt), v_read(p, dj, kt), [("bar", p)] + war + xv0, (99, 103, 112, 115)[dj * 2 + kt])
    fx.sort(key=lambda o: o.target); scal.sort(key=lambda o: o.target)
    for o in fx: S.add(S.fixed, o)
    for o in scal: S.add(S.scal, o)
    misc = [o for o in S.valu if o.key[0] in ("xk", "xv", "ul")]
    S.valu = misc + [o for o in S.valu if o not in misc]

def rel(key, p): return (key[0], key[1] - p) + tuple(key[2:])

def run_phases(S, phases, carry, qo_of, extra=None):
    starts = {}
    for p in phases:
        starts[p] = len(S.out)
        mf = phase_mf(S.NT, p, p > 0)
        S.forbid = set()
        add_phase_ops(S, p, mf, p > 0, qo_of(p))
        if extra: extra(S, p, mf)
        if carry is not None and (p & 1):
            S.forbid = {(k[0], k[1] + p) + tuple(k[2:]) for k in carry}
        look = phase_mf(S.NT, p + 1, True)[:4] if p < 15 else []
        S.run(mf, look)
        if carry is not None and (p & 1): S.flush()
    return starts

def find_carry(NT):
    S = Sched(NT)
    for ds in range(4): S.done.add(("kr", 0, 0, ds))
    run_phases(S, range(0, 8), None, lambda p: p >= 2)
    return [rel(o.key, 7) for o in S.valu if o.key[0] in ("mul", "exp", "cvt")]

def build_tail(S):
    NT = S.NT; p = 15; g0 = S.gap; S.forbid = set()
    pv = [m for m in pv_list(NT, p) if m[0][0] == "pv"]
    mf = [sum_m(p, t) for t in range(NT - 2)] + pv[:NT - 2] + [sum_m(p, NT - 2), pv[NT - 2], sum_m(p, NT - 1), pv[NT - 1]] + pv[NT:]
    for dj in range(2, 8):
        for kt in (0, 1):
            war = [("pv", p, dj - 4, NT - 1)] if dj >= 4 else []
            S.add(S.fixed, Op(("vr", p, dj, kt), v_read(p, dj, kt), war, g0 + max(0, NT * (dj + 1) - 14 + 2 * kt)))
    S.add(S.scal, Op(("wq",), I("s_waitcnt vmcnt(?)", "w", tag=("needq",)), [], g0))
    S.add(S.scal, Op(("t6a",), sc(f"s_add_u32 s{sT0}, s{sNxt}, 24576"), [], g0))
    S.add(S.scal, Op(("t6b",), sc(f"s_cmp_lg_u32 s{sNT7n}, 0"), [], g0))
    S.add(S.scal, Op(("t6c",), sc(f"s_cselect_b32 s{sT0}, s{sT0}, {OOB:#x}"), [("t6a",), ("t6b",)], g0))
    S.add(S.scal, Op(("t6d",), sc(f"s_add_u32 s{sT1}, s{sCurO}, 24576"), [("t6c",)], g0))
    fx = []
    for ds in range(4):
        r = aQ + (6 * 4 + ds) * 4
        o = f" offset:{ds*64}" if ds else ""
        fx.append(Op(("q6", ds), I(f"buffer_load_dwordx4 {rs('a', r, 4)}, v{vDir}, s[{sQ}:{sQ+3}], s{sT0} offen{o}{fl(CFG['q6'])}", "L",
                                   rd=[("v", vDir), ("s", sT0)], wr=R("a", r, 4), tag=("q6",)), [("t6c",), ("wq",)], g0 + 6 + ds))
    for t in range(6):
        for ds in range(4):
            fx.append(Op(("qr", t, ds), q_read(t, ds), [("wq",)], g0 + 10 + (t * 4 + ds) * 3 // 2))
    for o in fx: S.add(S.fixed, o)
    S.fixed.sort(key=lambda o: o.target)
    vL = vP + 14; vR = vP; vmx, vmn = vP + 22, vP + 23
    for t in range(NT):
        S.add(S.valu, Op(("lr", t), I(f"v_accvgpr_read_b32 v{vL+t}, a{aL+t*4}", "V", rd=[("a", aL + t * 4)], wr=[("v", vL + t)]), [("sum", p, t)]))
        S.add(S.valu, Op(("rc", t), I(f"v_rcp_f32 v{vR+2*t}, v{vL+t}", "E", rd=[("v", vL + t)], wr=[("v", vR + 2 * t)]), [("lr", t)]))
    alll = [("lr", t) for t in range(NT)]
    for nm, d in (("max", vmx), ("min", vmn)):
        src = [vL + t for t in range(NT)]
        S.add(S.valu, Op((nm, 0), I(f"v_{nm}3_f32 v{d}, v{src[0]}, v{src[1]}, v{src[2]}", "V", rd=[("v", x) for x in src[:3]], wr=[("v", d)]), alll))
        S.add(S.valu, Op((nm, 1), I(f"v_{nm}3_f32 v{d}, v{d}, v{src[3]}, v{src[4]}", "V", rd=[("v", x) for x in (d, src[3], src[4])], wr=[("v", d)]), [(nm, 0)]))
        S.add(S.valu, Op((nm, 2), I(f"v_{nm}3_f32 v{d}, v{d}, v{src[5]}, v{src[-1]}", "V", rd=[("v", x) for x in (d, src[5], src[-1])], wr=[("v", d)]), [(nm, 1)]))
    S.add(S.valu, Op(("c1",), I(f"v_cmp_lt_f32 vcc, s{sHi}, v{vmx}", "V", rd=[("v", vmx)], wr=[("s", "vcc")]), [("max", 2)]))
    S.add(S.valu, Op(("c2",), I(f"v_cmp_gt_f32_e64 s[{sPair}:{sPair+1}], s{sLo}, v{vmn}", "V", rd=[("v", vmn)], wr=R("s", sPair, 2)), [("min", 2)]))
    S.run(mf)
    S.flush()
    E = []
    E.append(sc(f"s_or_b64 vcc, vcc, s[{sPair}:{sPair+1}]"))
    E.append(sc(f"s_cselect_b32 s{sT2}, 1, 0"))
    E.append(sc(f"s_lshl_b32 s{sT2}, s{sT2}, s{sJob}"))
    E.append(sc(f"s_or_b32 s{sFlag}, s{sFlag}, s{sT2}"))
    order = ([6] if NT == 7 else []) + [5, 0, 1, 2, 3, 4]
    nb = 0
    for t in order:
        for Jp in (0, 2):
            outs = []
            for J in (Jp, Jp + 1):
                k, b = Oreg(t, 2 * J)
                if k == "a":
                    vb = vS + 8 * (nb & 1); nb += 1
                    for i in range(8): E.append(I(f"v_accvgpr_read_b32 v{vb+i}, a{b+i}", "V", rd=[("a", b + i)], wr=[("v", vb + i)]))
                    b = vb
                for i in range(4):
                    E.append(I(f"v_pk_mul_f32 {rs('v', b+2*i, 2)}, {rs('v', b+2*i, 2)}, {rs('v', vR+2*t, 2)} op_sel_hi:[1,0]", "V",
                               rd=R("v", b + 2 * i, 2) + [("v", vR + 2 * t)], wr=R("v", b + 2 * i, 2)))
                for i in range(4):
                    E.append(I(f"v_cvt_pk_bf16_f32 v{b+i}, v{b+2*i}, v{b+2*i+1}", "V", rd=R("v", b + 2 * i, 2), wr=[("v", b + i)]))
                if t == 6:
                    o = f" offset:{J*64}" if J else ""
                    outs.append(I(f"buffer_store_dwordx4 {rs('v', b, 4)}, v{vDir}, s[{sO}:{sO+3}], s{sT1} offen{o}{fl(CFG['o6'])}", "S", rd=R("v", b, 4) + [("v", vDir), ("s", sT1)]))
                else:
                    ad = vSt0 + (J & 1)
                    outs.append(I(f"ds_write_b128 v{ad}, {rs('v', b, 4)} offset:{t*4096 + (J >> 1)*2048}", "W", rd=R("v", b, 4) + [("v", ad)]))
            E += outs
    E.append(I(f"v_add_u32 v{vLin}, {(-24576) & 0xffffffff:#x}, v{vLin}", "V", rd=[("v", vLin)], wr=[("v", vLin)]))
    E.append(I("s_waitcnt vmcnt(?) lgkmcnt(0)", "w", tag=("needq6",)))
    for ins in fix_hazards(E, S.out[-10:]): S.emit(ins)

def q_read(t, ds):
    r = aQ + (t * 4 + ds) * 4; ad = vSt0 + (ds & 1)
    return I(f"ds_read_b128 {rs('a', r, 4)}, v{ad} offset:{t*4096 + (ds >> 1)*2048}", "D", rd=[("v", ad)], wr=R("a", r, 4))

class Job: pass
def build_job(NT):
    carry = find_carry(NT)
    S = Sched(NT)
    for ds in range(4): S.done.add(("kr", 0, 0, ds))
    qo = lambda p: 2 <= p <= 13
    def extra(S, p, mf):
        if qo(p) and (p & 1):
            S.add(S.scal, Op(("lp", p), sc(f"s_sub_u32 s{sLoop}, s{sLoop}, 1"), [("u7", p), ("wb", p)], S.gap + len(mf) - 6))
    st = run_phases(S, range(16), carry, qo, extra)
    tail0 = len(S.out)
    build_tail(S)
    seg = lambda a, b: S.out[a:b]
    bodies = [seg(st[p], st[p + 2]) for p in range(2, 14, 2)]
    for b in bodies[1:]:
        assert [x.t for x in b] == [x.t for x in bodies[0]], "loop body not periodic"
    J = Job(); J.NT = NT
    J.head = seg(0, st[2]); J.body = bodies[0]; J.final = seg(st[14], tail0); J.tail = seg(tail0, len(S.out))
    last = max(i for i, x in enumerate(J.body) if x.k == "M")
    assert not any(x.k == "s" and not x.t.startswith("s_nop") for x in J.body[[x.t for x in J.body].index(f"s_sub_u32 s{sLoop}, s{sLoop}, 1") + 1:])
    J.body.append(sc(f"s_cbranch_scc0 L_body{NT}"))
    J.carry = carry
    return J

def params_next():
    return [sc(x) for x in (
        f"s_add_u32 s{sT2}, s{sJob}, 1",
        f"s_xor_b32 s{sT3}, s{sT2}, s{sRole}",
        f"s_and_b32 s{sT3}, s{sT3}, 1",
        f"s_cselect_b32 s{sNxt}, s{sOffB}, s{sOffA}",
        f"s_cselect_b32 s{sT3}, s{sW}, 0",
        f"s_cmp_eq_u32 s{sT3}, 0",
        f"s_cselect_b32 s{sNT7n}, 1, 0",
        f"s_mul_i32 s{sT2}, s{sT2}, {QH}",
        f"s_add_u32 s{sNxt}, s{sNxt}, s{sT2}")]

def sigma(x, d, t):
    return [f"v_bfe_u32 v{d}, v{x}, 1, 1", f"v_lshrrev_b32 v{t}, 3, v{x}", f"v_xor_b32 v{t}, v{t}, v{x}", f"v_and_b32 v{t}, 1, v{t}",
            f"v_lshl_or_b32 v{d}, v{t}, 1, v{d}", f"v_and_b32 v{t}, 4, v{x}", f"v_or_b32 v{d}, v{d}, v{t}"]

def stamp(i):
    if not CFG["stamp"]: return []
    return [sc(x) for x in (f"s_memtime s[{sTm}:{sTm+1}]", f"s_memrealtime s[{sTm+2}:{sTm+3}]", "s_waitcnt lgkmcnt(0)",
            f"v_mov_b32 v{vX}, s{sTm}", f"v_mov_b32 v{vX+1}, s{sTm+2}", f"v_mov_b32 v{vX+2}, 0", "s_mov_b64 exec, 1")] + \
           [I(f"buffer_store_dwordx2 v[{vX}:{vX+1}], v{vX+2}, s[{sDbg}:{sDbg+3}], s{sStampOff} offen", "S")] + \
           [sc("s_mov_b64 exec, -1"), sc(f"s_add_u32 s{sStampOff}, s{sStampOff}, 8"), sc("s_nop 3")]

def prologue():
    P = []
    A = lambda t: P.append(sc(t))
    A("s_cmp_ge_u32 s2, 256"); A("s_cbranch_scc1 L_exit")
    A("s_load_dwordx4 s[60:63], s[0:1], 0"); A("s_load_dwordx4 s[64:67], s[0:1], 16")
    if CFG["stamp"]: A("s_load_dwordx2 s[68:69], s[0:1], 40")
    A("v_lshrrev_b32 v20, 6, v0"); A("v_and_b32 v21, 63, v0"); A(f"v_readfirstlane_b32 s{sW}, v20")
    A(f"s_and_b32 s{sT0}, s2, 7"); A(f"s_lshr_b32 s{sT1}, s2, 3"); A(f"s_and_b32 s{sRole}, s{sT1}, 1"); A(f"s_lshr_b32 s{sT1}, s{sT1}, 1")
    A(f"s_lshl_b32 s{sT0}, s{sT0}, 4"); A(f"s_add_u32 s{sT0}, s{sT0}, s{sT1}")
    A(f"s_mul_i32 s{sT1}, s{sT0}, {4*QH}"); A(f"s_lshl_b32 s{sT0}, s{sT0}, 19")
    A("v_and_b32 v22, 15, v21"); A("v_lshrrev_b32 v23, 4, v21")
    for x in sigma(22, 24, 25): A(x)
    A("v_xor_b32 v24, v24, v23"); A("v_lshlrev_b32 v24, 4, v24"); A("v_lshl_add_u32 v24, v22, 7, v24")
    A(f"v_lshlrev_b32 v{vDir}, 8, v22"); A(f"v_lshl_add_u32 v{vDir}, v23, 4, v{vDir}")
    A(f"v_add_u32 v{vK0}, 0x8000, v24"); A(f"v_xor_b32 v{vK1}, 64, v{vK0}")
    A(f"s_mul_i32 s{sStgB}, s{sW}, 24576"); A(f"s_add_u32 s{sStgB}, s{sStgB}, 65536")
    A(f"v_add_u32 v{vSt0}, s{sStgB}, v24"); A(f"v_xor_b32 v{vSt1}, 64, v{vSt0}")
    A(f"v_lshl_add_u32 v{vLin}, v21, 4, s{sStgB}")
    A("v_lshrrev_b32 v22, 2, v21"); A("v_and_b32 v23, 3, v21")
    for x in sigma(22, 24, 25): A(x)
    A("v_xor_b32 v24, v24, v23"); A("v_lshlrev_b32 v24, 4, v24"); A("v_lshl_add_u32 v24, v22, 7, v24")
    A(f"v_add_u32 v{vV0}, 0x8000, v24"); A(f"v_xor_b32 v{vV1}, 64, v{vV0}")
    A("v_lshrrev_b32 v22, 3, v21"); A("v_and_b32 v23, 7, v21")
    for x in sigma(22, 24, 25): A(x)
    A("v_xor_b32 v24, v24, v23"); A("v_lshlrev_b32 v24, 4, v24"); A(f"v_lshl_add_u32 v{vQO0}, v22, 8, v24")
    A(f"v_xor_b32 v{vQO1}, 32, v{vQO0}"); A(f"v_add_u32 v{vQO1}, 2048, v{vQO1}")
    A(f"s_and_b32 s{sT2}, s{sW}, 1"); A(f"s_lshr_b32 s{sT3}, s{sW}, 1")
    A(f"s_lshl_b32 s{sWoff}, s{sT3}, 12"); A(f"s_lshl_b32 s{sT3}, s{sT2}, 10"); A(f"s_add_u32 s{sWoff}, s{sWoff}, s{sT3}")
    A(f"s_lshl_b32 s{sT2}, s{sT2}, 5"); A(f"s_lshl_b32 s{sT3}, s{sW}, 11")
    A(f"v_xor_b32 v{vDKV}, s{sT2}, v{vQO0}"); A(f"v_add_u32 v{vDKV}, s{sT3}, v{vDKV}")
    A(f"s_mul_i32 s{sOffA}, s{sW}, {112*256}"); A(f"s_mul_i32 s{sOffB}, s{sW}, {96*256}"); A(f"s_add_u32 s{sOffB}, s{sOffB}, {464*256}")
    A(f"s_cmp_eq_u32 s{sW}, 0"); A(f"s_cselect_b32 s{sOffB}, {448*256}, s{sOffB}")
    A(f"s_mov_b32 s{sC}, {f2u(SCALE):#x}"); A(f"s_mov_b32 s{sLo}, {f2u(2.0**-30):#x}"); A(f"s_mov_b32 s{sHi}, {f2u(2.0**30):#x}")
    A(f"s_mov_b32 s{sFlag}, 0"); A(f"s_mov_b32 s{sJob}, -1")
    P += params_next()
    A("s_waitcnt lgkmcnt(0)")
    for srd, src, off, n in ((sQ, 60, sT1, 4 * QH), (sK, 62, sT0, 4 * KH), (sV, 64, sT0, 4 * KH), (sO, 66, sT1, 4 * QH)):
        A(f"s_add_u32 s{srd}, s{src}, s{off}"); A(f"s_addc_u32 s{srd+1}, s{src+1}, 0"); A(f"s_mov_b32 s{srd+2}, {n}"); A(f"s_mov_b32 s{srd+3}, 0x20000")
    if CFG["stamp"]:
        A(f"s_mov_b32 s{sDbg}, s68"); A(f"s_mov_b32 s{sDbg+1}, s69"); A(f"s_mov_b32 s{sDbg+2}, 0x1000000"); A(f"s_mov_b32 s{sDbg+3}, 0x20000")
        A(f"s_lshl_b32 s{sStampOff}, s2, 2"); A(f"s_add_u32 s{sStampOff}, s{sStampOff}, s{sW}"); A(f"s_lshl_b32 s{sStampOff}, s{sStampOff}, 10")
    P += stamp(0)
    def kv(srd, blk, ldsbase, tag):
        A(f"s_mov_b32 s{sT0}, {blk*8192}")
        for a in (0, 1):
            P.append(sc(f"s_add_u32 m0, s{sWoff}, {ldsbase + a*(2048-128)}", wr=M0)); A("s_nop 0")
            P.append(dma(vDKV, srd, sT0, a * 128, CFG["kv"], tag))
    kv(sK, 0, 3 * 16384, ("grp", -1))
    A(f"s_mov_b32 s{sT1}, s{sNxt}")
    for t in range(6):
        for k in range(4):
            a, nn = k & 1, k >> 1
            P.append(sc(f"s_add_u32 m0, s{sStgB}, {t*4096 + a*2048 + nn*1024 - a*128}", wr=M0)); A("s_nop 0")
            P.append(dma(vQO0 + nn, sQ, sT1, a * 128, CFG["q"], ("q",)))
        A(f"s_add_u32 s{sT1}, s{sT1}, 4096")
    A(f"s_cmp_lg_u32 s{sNT7n}, 0"); A(f"s_cselect_b32 s{sT1}, s{sT1}, {OOB:#x}")
    for ds in range(4):
        r = aQ + (6 * 4 + ds) * 4
        o = f" offset:{ds*64}" if ds else ""
        P.append(I(f"buffer_load_dwordx4 {rs('a', r, 4)}, v{vDir}, s[{sQ}:{sQ+3}], s{sT1} offen{o}{fl(CFG['q6'])}", "L", tag=("q6",)))
    kv(sK, 1, 0, ("grp", 0)); kv(sV, 0, 8192, ("grp", 0))
    kv(sK, 2, 16384, ("grp", 1)); kv(sV, 1, 16384 + 8192, ("grp", 1))
    A(f"s_mov_b32 s{sKoff}, {3*8192}"); A(f"s_mov_b32 s{sVoff}, {2*8192}"); A(f"s_add_u32 s{sM}, s{sWoff}, 32768")
    A(f"s_mov_b32 s{sCurO}, {OOB:#x}")
    if CFG["ones_all"]:
        A("v_mov_b32 v22, 0x3f803f80")
    else:
        A("v_and_b32 v22, 3, v21"); A("v_cmp_eq_u32 vcc, 0, v22"); A("v_mov_b32 v23, 0x3f803f80"); A("s_nop 0"); A("v_cndmask_b32 v22, 0, v23, vcc")
    for i in range(4): A(f"v_accvgpr_write_b32 a{aOne+i}, v22")
    P.append(I("s_waitcnt vmcnt(8)", "w")); P.append(I("s_barrier", "B"))
    for ds in range(4): P.append(k_read(0, 0, ds))
    for t in range(6):
        for ds in range(4): P.append(q_read(t, ds))
    P.append(I("s_waitcnt lgkmcnt(0)", "w"))
    return P

def job_switch():
    L = [I("L_next:", "#")]
    L += stamp(1)
    L += [sc(x) for x in (f"s_add_u32 s{sJob}, s{sJob}, 1", f"s_mov_b32 s{sOp}, s{sCurO}", f"s_cmp_eq_u32 s{sJob}, 4", "s_cbranch_scc1 L_final",
                          f"s_mov_b32 s{sCurO}, s{sNxt}", f"s_mov_b32 s{sNT7c}, s{sNT7n}")]
    L += params_next()
    L += [sc(x) for x in (f"s_mov_b32 s{sQn}, s{sNxt}", f"s_mov_b32 s{sStg}, s{sStgB}", f"s_mov_b32 s{sLoop}, 5",
                          f"s_cmp_lg_u32 s{sNT7c}, 0", "s_cbranch_scc0 L_job6")]
    return L

def final_drain():
    L = [I("L_final:", "#")]
    ops = [(t, k) for t in range(6) for k in range(4)]
    def rd(i):
        t, k = ops[i]; a, nn = k & 1, k >> 1
        return I(f"ds_read_b128 {rs('v', vO + 4*i, 4)}, v{vLin} offset:{t*4096 + a*2048 + nn*1024}", "D", rd=[("v", vLin)], wr=R("v", vO + 4 * i, 4))
    for i in range(8): L.append(rd(i))
    for i, (t, k) in enumerate(ops):
        a, nn = k & 1, k >> 1
        nout = min(24, i + 8) - i - 1
        L.append(I(f"s_waitcnt lgkmcnt({nout})", "w"))
        o = f" offset:{a*128}" if a else ""
        L.append(I(f"buffer_store_dwordx4 {rs('v', vO + 4*i, 4)}, v{vQO0+nn}, s[{sO}:{sO+3}], s{sOp} offen{o}{fl(CFG['o'])}", "S", rd=R("v", vO + 4 * i, 4)))
        if i + 8 < 24: L.append(rd(i + 8))
        if k == 3: L.append(sc(f"s_add_u32 s{sOp}, s{sOp}, 4096"))
    if CFG["stamp"]: L += stamp(2) + [I("s_waitcnt vmcnt(0)", "w")] + stamp(3)
    return L

def resolve_vm(pro, sw, jobs):
    best = {}
    for seqn in ([7, 7, 7, 7], [7, 6, 7, 6], [6, 7, 6, 7]):
        dyn = [(x, 0) for x in pro]
        for j, nt in enumerate(seqn):
            J = jobs[nt]; b = 16 * j
            dyn += [(x, b) for x in sw] + [(x, b) for x in J.head]
            for it in range(6): dyn += [(x, b + 2 * it) for x in J.body]
            dyn += [(x, b) for x in J.final + J.tail]
        vm = []; epoch = -2; lastrd = {}
        for x, b in dyn:
            if x.k == "B": epoch = (x.tag[1] + b) if x.tag else -1
            if x.k == "D" and x.tag and x.tag[0] == "ring":
                assert x.tag[1] + b == epoch, ("ring read outside its epoch", x.t, x.tag, b, epoch)
            if x.k in "XLS":
                tg = x.tag
                if tg and tg[0] == "grp":
                    tg = ("grp", tg[1] + b)
                    assert epoch == -2 or tg[1] - 4 < epoch, ("dma overwrites live group", x.t)
                vm.append(tg)
            if x.k == "w" and x.tag:
                want = {"needgrp": lambda: ("grp", x.tag[1] + b), "needq": lambda: ("q",), "needq6": lambda: ("q6",)}[x.tag[0]]()
                idx = max(i for i, t in enumerate(vm) if t == want)
                n = min(63, len(vm) - 1 - idx)
                best[id(x)] = (x, min(n, best.get(id(x), (x, 99))[1]))
        seq = [x for x, _ in dyn]
        check_lgkm(seq)
        bad = hazards(seq)
        assert not bad, bad[:5]
    for x, n in best.values(): x.t = x.t.replace("?", str(n))

def main():
    jobs = {nt: build_job(nt) for nt in (7, 6)}
    pro = prologue(); sw = job_switch(); fin = final_drain()
    resolve_vm(pro, sw, jobs)
    for nt in (7, 6):
        J = jobs[nt]
        nm = lambda s: sum(x.k == "M" for x in s)
        info = " ".join(f"{n}: {cycles(s)}c/{nm(s)*16} ({len(s)} ins)" for n, s in (("head", J.head), ("body", J.body), ("final", J.final), ("tail", J.tail)))
        tot = cycles(J.head) + 6 * cycles(J.body) + cycles(J.final) + cycles(J.tail)
        print(f"NT={nt} carry={len(J.carry)} {info} total={tot}", file=sys.stderr)
    o = []
    o.append("; @launch grid=(256,1,1) block=(256,1,1) lds=163840")
    o.append('.amdgcn_target "amdgcn-amd-amdhsa--gfx950"')
    o += [".text", f".globl {NAME}_kernel", ".p2align 8", f".type {NAME}_kernel,@function", f"{NAME}_kernel:"]
    put = lambda s: o.extend(("" if x.k == "#" else "    ") + x.t for x in s)
    put(pro); put(sw)
    for nt in (7, 6):
        J = jobs[nt]
        o.append(f"L_job{nt}:"); put(J.head)
        o.append(f"L_body{nt}:"); put(J.body); put(J.final); put(J.tail)
        o.append("    s_branch L_next")
    put(fin)
    o += ["L_exit:", "    s_endpgm", '.section .rodata,"a"', ".p2align 6", f".amdhsa_kernel {NAME}_kernel",
          "  .amdhsa_next_free_vgpr 512", "  .amdhsa_next_free_sgpr 102", "  .amdhsa_accum_offset 256",
          "  .amdhsa_group_segment_fixed_size 0", "  .amdhsa_kernarg_size 48", "  .amdhsa_user_sgpr_count 2",
          "  .amdhsa_user_sgpr_kernarg_segment_ptr 1", "  .amdhsa_system_sgpr_workgroup_id_x 1", ".end_amdhsa_kernel"]
    open(sys.argv[1], "w").write("\n".join(o) + "\n")

main()
```

```python
import sys, math, struct, re
from asmlib import *

NAME = "standalone__gqa_softmax__near_ridge"
CFG = dict(kv="nt", q="nt", o="", q6="", o6="", ones_all=0, stamp=0, samehead=0, nostore=0, nomul=0, nosum=0, noexp=0, zeroones=0, again=0)
for a in sys.argv[2:]:
    k, v = a.split("=", 1)
    CFG[k] = int(v) if re.fullmatch(r"-?\d+", v) else v.replace("+", " ")

QH, KH = 217088, 131072
SCALE = math.log2(math.e) / math.sqrt(128.0)
def f2u(x): return struct.unpack("<I", struct.pack("<f", x))[0]

vK0, vK1, vV0, vV1, vDKV, vQO0, vQO1, vLin, vSt0, vSt1, vDir = range(1, 12)
vTmp = 12
vS = 20
vP = 36
vO = 92
vX = 252
aQ, aK, aV, aL, aO, aOne = 0, 112, 144, 160, 188, 252
sQ, sK, sV, sO = 4, 8, 12, 16
(sC, sW, sJob, sKoff, sVoff, sM, sQn, sOp, sStg, sLoop, sCurO, sNxt, sNT7c, sNT7n, sFlag, sRole,
 sT0, sT1, sWoff, sStgB, sOffA, sOffB, sLo, sHi, sT2, sT3) = range(20, 46)
sPair = 46
sDbg = 48
sStampOff = 52
sTm = 54
OOB = 0x100000

def Oreg(t, dj):
    return ("v", vO + t * 32 + dj * 4) if t < 5 else ("a", aO + (t - 5) * 32 + dj * 4)
def Preg(p, t): return vP + (p & 1) * 28 + t * 4
def sc(t, rd=(), wr=()): return I(t, "s", rd=rd, wr=wr)
def fl(x): return (" " + x) if x else ""

class Op:
    def __init__(self, key, ins, deps=(), target=None):
        self.key = key; self.ins = ins; self.deps = list(deps); self.target = target

class Sched:
    def __init__(self, NT):
        self.NT = NT
        self.out = []; self.done = set(); self.pend = []
        self.valu = []; self.fixed = []; self.scal = []
        self.forbid = set(); self.gap = 0
        self.bykey = {}
    def add(self, q, op):
        q.append(op); self.bykey[op.key] = op
    def emit(self, ins, key=None):
        if ins.k == "w":
            m = re.search(r"lgkmcnt\((\d+)\)", ins.t)
            if m:
                n = int(m.group(1)); self.pend = self.pend[len(self.pend) - n:] if n else []
        self.out.append(ins)
        if ins.k in "DW": self.pend.append(ins)
        if key is not None: self.done.add(key)
    def haz(self, ins):
        dist = 0; miss = 0
        for p in reversed(self.out):
            miss = max(miss, need(p, ins) - dist)
            dist += states(p)
            if dist >= 8: break
        return miss
    def lgkm_need(self, inss):
        idx = -1
        for ins in inss:
            t = set(ins.rd) | set(ins.c) | set(ins.wr)
            for i, p in enumerate(self.pend):
                if set(p.wr) & t: idx = max(idx, i)
        return None if idx < 0 else min(15, len(self.pend) - 1 - idx)
    def ready(self, op):
        return op.key not in self.forbid and all(d in self.done for d in op.deps) and \
            (op.target is None or op.target <= self.gap) and self.haz(op.ins) <= 0
    def put(self, op):
        for q in (self.valu, self.fixed, self.scal):
            if op in q: q.remove(op)
        n = self.lgkm_need([op.ins])
        if n is not None: self.emit(I(f"s_waitcnt lgkmcnt({n})", "w"))
        m = self.haz(op.ins)
        if m > 0: self.emit(I(f"s_nop {m-1}", "s"))
        self.emit(op.ins, op.key)
    def force(self, key):
        if key in self.done: return
        op = self.bykey[key]
        assert key not in self.forbid, key
        for d in op.deps: self.force(d)
        self.put(op)
    def pick(self, kinds, n):
        r = []
        for op in self.valu[:40]:
            if op.ins.k in kinds and self.ready(op):
                r.append(op)
                if len(r) == n: break
        return r
    def run(self, mf, look=()):
        allm = list(mf) + list(look)
        for i, (key, ins, deps) in enumerate(mf):
            for d in deps: self.force(d)
            n = self.lgkm_need([ins])
            if n is not None: self.emit(I(f"s_waitcnt lgkmcnt({n})", "w"))
            m = self.haz(ins)
            if m > 0: self.emit(I(f"s_nop {m-1}", "s"))
            self.emit(ins, key)
            fx = next((o for o in self.fixed if self.ready(o)), None)
            slot1 = False
            nxt = [x[1] for x in allm[i + 1:i + 2]]
            if self.lgkm_need(nxt) is not None:
                nxt = [x[1] for x in allm[i + 1:i + 5]]
            if fx is not None and fx.ins.k != "B": nxt = nxt + [fx.ins]
            n = self.lgkm_need(nxt)
            if n is not None:
                self.emit(I(f"s_waitcnt lgkmcnt({n})", "w")); slot1 = True
                if fx is not None and fx.ins.k == "B": fx = None
            if fx is not None and fx.ins.k == "B":
                self.put(fx)
            else:
                if not slot1 and self.scal and self.ready(self.scal[0]): self.put(self.scal[0])
                if fx is not None:
                    self.put(fx)
                    if fx.ins.k == "D":
                        for o in self.pick("V", 1): self.put(o)
                else:
                    e = self.pick("E", 1); v = self.pick("V", 2)
                    if e and (len(v) < 2 or self.valu.index(e[0]) < self.valu.index(v[0])):
                        self.put(e[0])
                    else:
                        for _ in range(2):
                            for o in self.pick("V", 1): self.put(o)
            self.gap += 1
    def flush(self):
        for q in (self.fixed, self.scal, self.valu):
            for op in list(q):
                if op.key not in self.forbid and op.key not in self.done: self.force(op.key)

def k_read(p, kt, ds):
    off = ((p - 1) & 1) * 16384 + kt * 4096 + (ds >> 1) * 2048
    r = aK + kt * 16 + ds * 4; ad = vK0 + (ds & 1)
    return I(f"ds_read_b128 {rs('a', r, 4)}, v{ad} offset:{off}", "D", rd=[("v", ad)], wr=R("a", r, 4), tag=("ring", p - 1))
def v_read(p, dj, kt):
    J, h = dj >> 1, dj & 1
    off = (p & 1) * 16384 + 8192 + kt * 4096 + (J >> 1) * 2048 + 8 * h
    r = aV + (dj & 3) * 4 + 2 * kt; ad = vV0 + (J & 1)
    return I(f"ds_read_b64_tr_b16 {rs('a', r, 2)}, v{ad} offset:{off}", "D", rd=[("v", ad)], wr=R("a", r, 2), tag=("ring", p))
def dma(vo, srd, so, off, flags, tag):
    o = f" offset:{off}" if off else ""
    return I(f"buffer_load_dwordx4 v{vo}, s[{srd}:{srd+3}], s{so} offen{o}{fl(flags)} lds", "X", rd=[("v", vo), ("m", 0), ("s", so)], tag=tag)
M0 = [("m", 0)]

def pv_list(NT, p):
    L = []
    for dj in range(8):
        for t in range(NT):
            deps = [("cvt", p, kt, t, h) for kt in (0, 1) for h in (0, 1)] + [("vr", p, dj, 0), ("vr", p, dj, 1)]
            L.append((("pv", p, dj, t), mfma(Oreg(t, dj), ("a", aV + (dj & 3) * 4), ("v", Preg(p, t)), c0=(p == 0)), deps))
        if dj < NT: L.append(sum_m(p, dj))
    return L
def sum_m(p, t):
    return (("sum", p, t), mfma(("a", aL + t * 4), ("a", aOne), ("v", Preg(p, t)), c0=(p == 0)),
            [("cvt", p, kt, t, h) for kt in (0, 1) for h in (0, 1)])

def phase_mf(NT, p, with_pv):
    pv = pv_list(NT, p - 1) if with_pv else []
    L = []; n = 0
    back = 4 if with_pv else 2
    for c in range(2 * NT):
        kt, t = divmod(c, NT)
        g = p * 2 * NT + c; sb = vS + (g & 3) * 4
        for ds in range(4):
            deps = [("kr", p, kt, ds)]
            if ds == 0 and g - back >= 0:
                pp, cc = divmod(g - back, 2 * NT)
                deps += [("cvt", pp, cc // NT, cc % NT, h) for h in (0, 1)]
            L.append((("qk", p, kt, t, ds), mfma(("v", sb), ("a", aK + kt * 16 + ds * 4), ("a", aQ + (t * 4 + ds) * 4), c0=(ds == 0)), deps))
        upto = (9 * (c + 1)) // 2 if with_pv else 0
        L += pv[n:upto]; n = upto
    return L

def add_softmax(S, p):
    NT = S.NT
    for c in range(2 * NT):
        kt, t = divmod(c, NT)
        sb = vS + ((p * 2 * NT + c) & 3) * 4
        mul = lambda r: Op(("mul", p, kt, t, r), I(f"v_mul_f32 v{sb+r}, s{sC}, v{sb+r}", "V", rd=[("v", sb + r)], wr=[("v", sb + r)]), [("qk", p, kt, t, 3)])
        ex = lambda r: Op(("exp", p, kt, t, r), I(f"v_exp_f32 v{sb+r}, v{sb+r}", "E", rd=[("v", sb + r)], wr=[("v", sb + r)]), [("mul", p, kt, t, r)])
        def cv(h):
            d = Preg(p, t) + 2 * kt + h
            return Op(("cvt", p, kt, t, h), I(f"v_cvt_pk_bf16_f32 v{d}, v{sb+2*h}, v{sb+2*h+1}", "V", rd=R("v", sb + 2 * h, 2), wr=[("v", d)]),
                      [("exp", p, kt, t, 2 * h), ("exp", p, kt, t, 2 * h + 1)])
        for o in (mul(0), mul(1), ex(0), ex(1), mul(2), mul(3), ex(2), ex(3), cv(0), cv(1)): S.add(S.valu, o)

VPOS = {dj: (4 + 14.875 * dj - 24, 4 + 14.875 * dj - 20) for dj in range(2, 8)}

def add_phase_ops(S, p, mf, with_pv, qo):
    NT = S.NT; g0 = S.gap; n = len(mf)
    T = lambda x: g0 + int(x * n / 119.0)
    add_softmax(S, p)
    fx = []; scal = []
    new = lambda lst, key, ins, deps=(), x=0: lst.append(Op(key, ins, deps, T(x)))
    known = lambda k: [k] if (k in S.bykey or k in S.done) else []
    lastqk = lambda pp, kt, ds: [("qk", pp, kt, NT - 1, ds)] if pp >= 0 else []
    for ds in range(4):
        new(fx, ("kr", p, 1, ds), k_read(p, 1, ds), [], 32 + 4 * ds + (4 if ds >= 2 else 0))
    if with_pv:
        for dj in range(2, 8):
            for kt in (0, 1):
                war = [("pv", p - 1, dj - 4, NT - 1)] if dj >= 4 else []
                xo = known(("xv", p - 1, 1)) if dj == 2 else []
                new(fx, ("vr", p - 1, dj, kt), v_read(p - 1, dj, kt), war + xo, VPOS[dj][kt])
    rd_before = [("kr", p, 1, ds) for ds in range(4)] + ([("vr", p - 1, 7, kt) for kt in (0, 1)] if with_pv else [])
    dm = [(sK, sKoff, 0, 0), (sK, sKoff, 2048 - 128, 128), (sV, sVoff, 8192, 0), (sV, sVoff, 8192 + 2048 - 128, 128)]
    prev = known(("m0last", p - 1))
    for k, (srd, so, md, off) in enumerate(dm):
        x = (2, 6, 17, 21)[k]
        new(scal, ("m0", p, k), sc(f"s_add_u32 m0, s{sM}, {md}", wr=M0), prev, x - 2)
        new(fx, ("dma", p, k), dma(vDKV, srd, so, off, CFG["kv"], ("grp", p + 2)), [("m0", p, k)], x)
        prev = [("dma", p, k)]
    new(scal, ("u1", p), sc(f"s_add_u32 s{sM}, s{sM}, 16384"), prev, 22)
    new(scal, ("u2", p), sc(f"s_and_b32 s{sM}, s{sM}, 0xffff"), prev, 22)
    new(scal, ("u3", p), sc(f"s_add_u32 s{sKoff}, s{sKoff}, 8192"), prev, 22)
    new(scal, ("u4", p), sc(f"s_add_u32 s{sVoff}, s{sVoff}, 8192"), prev, 22)
    if qo:
        for i in range(2):
            k = 2 * (p & 1) + i; a, nn = k & 1, k >> 1
            tmp = vTmp + 4 * i; lo = a * 2048 + nn * 1024
            x = (52, 64)[i]
            new(fx, ("or", p, i), I(f"ds_read_b128 {rs('v', tmp, 4)}, v{vLin} offset:{lo}", "D", rd=[("v", vLin)], wr=R("v", tmp, 4)), known(("ul", p - 1)), x)
            o = f" offset:{a*128}" if a else ""
            new(fx, ("os", p, i), I(f"buffer_store_dwordx4 {rs('v', tmp, 4)}, v{vQO0+nn}, s[{sO}:{sO+3}], s{sOp} offen{o}{fl(CFG['o'])}", "S",
                                    rd=R("v", tmp, 4) + [("v", vQO0 + nn), ("s", sOp)]), [("or", p, i)], x + 10)
            new(scal, ("qm", p, i), sc(f"s_add_u32 m0, s{sStg}, {lo - a*128}", wr=M0), prev, x + 10)
            new(fx, ("qd", p, i), dma(vQO0 + nn, sQ, sQn, a * 128, CFG["q"], ("q",)), [("os", p, i), ("qm", p, i)], x + 14)
            prev = [("qd", p, i)]
        if p & 1:
            new(scal, ("u5", p), sc(f"s_add_u32 s{sOp}, s{sOp}, 4096"), prev, 80)
            new(scal, ("u6", p), sc(f"s_add_u32 s{sQn}, s{sQn}, 4096"), prev, 80)
            new(scal, ("u7", p), sc(f"s_add_u32 s{sStg}, s{sStg}, 4096"), prev, 80)
            S.add(S.valu, Op(("ul", p), I(f"v_add_u32 v{vLin}, 4096, v{vLin}", "V", rd=[("v", vLin)], wr=[("v", vLin)]), [("or", p, 1)]))
    new(scal, ("wb", p), I("s_waitcnt vmcnt(?) lgkmcnt(0)", "w", tag=("needgrp", p)), rd_before + prev, 94)
    new(fx, ("bar", p), I("s_barrier", "B", tag=("bar", p)), [("wb", p)], 95)
    xk = []; xv0 = []
    if not (p & 1):
        xor = lambda r: I(f"v_xor_b32 v{r}, 0x8000, v{r}", "V", rd=[("v", r)], wr=[("v", r)])
        for b in (0, 1):
            S.add(S.valu, Op(("xk", p, b), xor(vK0 + b), [("kr", p, 1, b), ("kr", p, 1, b + 2)]))
            dv = [("vr", p - 1, 4 + 2 * b + h, kt) for h in (0, 1) for kt in (0, 1)] if with_pv else []
            S.add(S.valu, Op(("xv", p, b), xor(vV0 + b), dv))
        xv0 = [("xv", p, 0)]
    for ds in range(4):
        xk = [("xk", p, ds & 1)] if not (p & 1) else []
        new(fx, ("kr", p + 1, 0, ds), k_read(p + 1, 0, ds), [("bar", p), ("qk", p, 0, NT - 1, ds)] + xk, 97 + 4 * ds)
    for dj in (0, 1):
        for kt in (0, 1):
            war = [("pv", p - 1, dj + 4, NT - 1)] if with_pv else []
            new(fx, ("vr", p, dj, kt), v_read(p, dj, kt), [("bar", p)] + war + xv0, (99, 103, 112, 115)[dj * 2 + kt])
    fx.sort(key=lambda o: o.target); scal.sort(key=lambda o: o.target)
    for o in fx: S.add(S.fixed, o)
    for o in scal: S.add(S.scal, o)
    misc = [o for o in S.valu if o.key[0] in ("xk", "xv", "ul")]
    S.valu = misc + [o for o in S.valu if o not in misc]

def rel(key, p): return (key[0], key[1] - p) + tuple(key[2:])

def run_phases(S, phases, carry, qo_of, extra=None):
    starts = {}
    for p in phases:
        starts[p] = len(S.out)
        mf = phase_mf(S.NT, p, p > 0)
        S.forbid = set()
        add_phase_ops(S, p, mf, p > 0, qo_of(p))
        if extra: extra(S, p, mf)
        if carry is not None and (p & 1):
            S.forbid = {(k[0], k[1] + p) + tuple(k[2:]) for k in carry}
        look = phase_mf(S.NT, p + 1, True)[:4] if p < 15 else []
        S.run(mf, look)
        if carry is not None and (p & 1): S.flush()
    return starts

def find_carry(NT):
    S = Sched(NT)
    for ds in range(4): S.done.add(("kr", 0, 0, ds))
    run_phases(S, range(0, 8), None, lambda p: p >= 2)
    return [rel(o.key, 7) for o in S.valu if o.key[0] in ("mul", "exp", "cvt")]

def build_tail(S):
    NT = S.NT; p = 15; g0 = S.gap; S.forbid = set()
    pv = [m for m in pv_list(NT, p) if m[0][0] == "pv"]
    mf = [sum_m(p, t) for t in range(NT - 2)] + pv[:NT - 2] + [sum_m(p, NT - 2), pv[NT - 2], sum_m(p, NT - 1), pv[NT - 1]] + pv[NT:]
    for dj in range(2, 8):
        for kt in (0, 1):
            war = [("pv", p, dj - 4, NT - 1)] if dj >= 4 else []
            S.add(S.fixed, Op(("vr", p, dj, kt), v_read(p, dj, kt), war, g0 + max(0, NT * (dj + 1) - 14 + 2 * kt)))
    S.add(S.scal, Op(("wq",), I("s_waitcnt vmcnt(?)", "w", tag=("needq",)), [], g0))
    S.add(S.scal, Op(("t6a",), sc(f"s_add_u32 s{sT0}, s{sNxt}, 24576"), [], g0))
    S.add(S.scal, Op(("t6b",), sc(f"s_cmp_lg_u32 s{sNT7n}, 0"), [], g0))
    S.add(S.scal, Op(("t6c",), sc(f"s_cselect_b32 s{sT0}, s{sT0}, {OOB:#x}"), [("t6a",), ("t6b",)], g0))
    S.add(S.scal, Op(("t6d",), sc(f"s_add_u32 s{sT1}, s{sCurO}, 24576"), [("t6c",)], g0))
    fx = []
    for ds in range(4):
        r = aQ + (6 * 4 + ds) * 4
        o = f" offset:{ds*64}" if ds else ""
        fx.append(Op(("q6", ds), I(f"buffer_load_dwordx4 {rs('a', r, 4)}, v{vDir}, s[{sQ}:{sQ+3}], s{sT0} offen{o}{fl(CFG['q6'])}", "L",
                                   rd=[("v", vDir), ("s", sT0)], wr=R("a", r, 4), tag=("q6",)), [("t6c",), ("wq",)], g0 + 6 + ds))
    for t in range(6):
        for ds in range(4):
            fx.append(Op(("qr", t, ds), q_read(t, ds), [("wq",)], g0 + 10 + (t * 4 + ds) * 3 // 2))
    for o in fx: S.add(S.fixed, o)
    S.fixed.sort(key=lambda o: o.target)
    vL = vP + 14; vR = vP; vmx, vmn = vP + 22, vP + 23
    for t in range(NT):
        S.add(S.valu, Op(("lr", t), I(f"v_accvgpr_read_b32 v{vL+t}, a{aL+t*4}", "V", rd=[("a", aL + t * 4)], wr=[("v", vL + t)]), [("sum", p, t)]))
        S.add(S.valu, Op(("rc", t), I(f"v_rcp_f32 v{vR+2*t}, v{vL+t}", "E", rd=[("v", vL + t)], wr=[("v", vR + 2 * t)]), [("lr", t)]))
    alll = [("lr", t) for t in range(NT)]
    for nm, d in (("max", vmx), ("min", vmn)):
        src = [vL + t for t in range(NT)]
        S.add(S.valu, Op((nm, 0), I(f"v_{nm}3_f32 v{d}, v{src[0]}, v{src[1]}, v{src[2]}", "V", rd=[("v", x) for x in src[:3]], wr=[("v", d)]), alll))
        S.add(S.valu, Op((nm, 1), I(f"v_{nm}3_f32 v{d}, v{d}, v{src[3]}, v{src[4]}", "V", rd=[("v", x) for x in (d, src[3], src[4])], wr=[("v", d)]), [(nm, 0)]))
        S.add(S.valu, Op((nm, 2), I(f"v_{nm}3_f32 v{d}, v{d}, v{src[5]}, v{src[-1]}", "V", rd=[("v", x) for x in (d, src[5], src[-1])], wr=[("v", d)]), [(nm, 1)]))
    S.add(S.valu, Op(("c1",), I(f"v_cmp_lt_f32 vcc, s{sHi}, v{vmx}", "V", rd=[("v", vmx)], wr=[("s", "vcc")]), [("max", 2)]))
    S.add(S.valu, Op(("c2",), I(f"v_cmp_gt_f32_e64 s[{sPair}:{sPair+1}], s{sLo}, v{vmn}", "V", rd=[("v", vmn)], wr=R("s", sPair, 2)), [("min", 2)]))
    S.run(mf)
    S.flush()
    E = []
    E.append(sc(f"s_or_b64 vcc, vcc, s[{sPair}:{sPair+1}]"))
    E.append(sc(f"s_cselect_b32 s{sT2}, 1, 0"))
    E.append(sc(f"s_lshl_b32 s{sT2}, s{sT2}, s{sJob}"))
    E.append(sc(f"s_or_b32 s{sFlag}, s{sFlag}, s{sT2}"))
    order = ([6] if NT == 7 else []) + [5, 0, 1, 2, 3, 4]
    nb = 0
    for t in order:
        for Jp in (0, 2):
            outs = []
            for J in (Jp, Jp + 1):
                k, b = Oreg(t, 2 * J)
                if k == "a":
                    vb = vS + 8 * (nb & 1); nb += 1
                    for i in range(8): E.append(I(f"v_accvgpr_read_b32 v{vb+i}, a{b+i}", "V", rd=[("a", b + i)], wr=[("v", vb + i)]))
                    b = vb
                for i in range(4):
                    E.append(I(f"v_pk_mul_f32 {rs('v', b+2*i, 2)}, {rs('v', b+2*i, 2)}, {rs('v', vR+2*t, 2)} op_sel_hi:[1,0]", "V",
                               rd=R("v", b + 2 * i, 2) + [("v", vR + 2 * t)], wr=R("v", b + 2 * i, 2)))
                for i in range(4):
                    E.append(I(f"v_cvt_pk_bf16_f32 v{b+i}, v{b+2*i}, v{b+2*i+1}", "V", rd=R("v", b + 2 * i, 2), wr=[("v", b + i)]))
                if t == 6:
                    o = f" offset:{J*64}" if J else ""
                    outs.append(I(f"buffer_store_dwordx4 {rs('v', b, 4)}, v{vDir}, s[{sO}:{sO+3}], s{sT1} offen{o}{fl(CFG['o6'])}", "S", rd=R("v", b, 4) + [("v", vDir), ("s", sT1)]))
                else:
                    ad = vSt0 + (J & 1)
                    outs.append(I(f"ds_write_b128 v{ad}, {rs('v', b, 4)} offset:{t*4096 + (J >> 1)*2048}", "W", rd=R("v", b, 4) + [("v", ad)]))
            E += outs
    E.append(I(f"v_add_u32 v{vLin}, {(-24576) & 0xffffffff:#x}, v{vLin}", "V", rd=[("v", vLin)], wr=[("v", vLin)]))
    E.append(I("s_waitcnt vmcnt(?) lgkmcnt(0)", "w", tag=("needq6",)))
    for ins in fix_hazards(E, S.out[-10:]): S.emit(ins)

def q_read(t, ds):
    r = aQ + (t * 4 + ds) * 4; ad = vSt0 + (ds & 1)
    return I(f"ds_read_b128 {rs('a', r, 4)}, v{ad} offset:{t*4096 + (ds >> 1)*2048}", "D", rd=[("v", ad)], wr=R("a", r, 4))

class Job: pass
def build_job(NT):
    carry = find_carry(NT)
    S = Sched(NT)
    for ds in range(4): S.done.add(("kr", 0, 0, ds))
    qo = lambda p: 2 <= p <= 13
    def extra(S, p, mf):
        if qo(p) and (p & 1):
            S.add(S.scal, Op(("lp", p), sc(f"s_sub_u32 s{sLoop}, s{sLoop}, 1"), [("u7", p), ("wb", p)], S.gap + len(mf) - 6))
    st = run_phases(S, range(16), carry, qo, extra)
    tail0 = len(S.out)
    build_tail(S)
    seg = lambda a, b: S.out[a:b]
    bodies = [seg(st[p], st[p + 2]) for p in range(2, 14, 2)]
    for b in bodies[1:]:
        assert [x.t for x in b] == [x.t for x in bodies[0]], "loop body not periodic"
    J = Job(); J.NT = NT
    J.head = seg(0, st[2]); J.body = bodies[0]; J.final = seg(st[14], tail0); J.tail = seg(tail0, len(S.out))
    last = max(i for i, x in enumerate(J.body) if x.k == "M")
    assert not any(x.k == "s" and not x.t.startswith("s_nop") for x in J.body[[x.t for x in J.body].index(f"s_sub_u32 s{sLoop}, s{sLoop}, 1") + 1:])
    J.body.append(sc(f"s_cbranch_scc0 L_body{NT}"))
    J.carry = carry
    return J

def params_next():
    return [sc(x) for x in (
        f"s_add_u32 s{sT2}, s{sJob}, 1",
        f"s_xor_b32 s{sT3}, s{sT2}, s{sRole}",
        f"s_and_b32 s{sT3}, s{sT3}, 1",
        f"s_cselect_b32 s{sNxt}, s{sOffB}, s{sOffA}",
        f"s_cselect_b32 s{sT3}, s{sW}, 0",
        f"s_cmp_eq_u32 s{sT3}, 0",
        f"s_cselect_b32 s{sNT7n}, 1, 0",
        f"s_mul_i32 s{sT2}, s{sT2}, {QH}",
        f"s_add_u32 s{sNxt}, s{sNxt}, s{sT2}")]

def sigma(x, d, t):
    return [f"v_bfe_u32 v{d}, v{x}, 1, 1", f"v_lshrrev_b32 v{t}, 3, v{x}", f"v_xor_b32 v{t}, v{t}, v{x}", f"v_and_b32 v{t}, 1, v{t}",
            f"v_lshl_or_b32 v{d}, v{t}, 1, v{d}", f"v_and_b32 v{t}, 4, v{x}", f"v_or_b32 v{d}, v{d}, v{t}"]

def stamp(i):
    if not CFG["stamp"]: return []
    L = [sc(x) for x in (f"s_memtime s[{sTm}:{sTm+1}]", f"s_memrealtime s[{sTm+2}:{sTm+3}]", "s_waitcnt lgkmcnt(0)",
         f"v_mov_b32 v{vX+2}, 0", "s_mov_b64 exec, 1")]
    for n, (a, b) in enumerate(((sTm, sTm + 2), (70, 72), (74, 76))):
        L += [sc(f"v_mov_b32 v{vX}, s{a}"), sc(f"v_mov_b32 v{vX+1}, s{b}"),
              I(f"buffer_store_dwordx2 v[{vX}:{vX+1}], v{vX+2}, s[{sDbg}:{sDbg+3}], s{sStampOff} offen offset:{8*n}", "S"), sc("s_nop 1")]
    return L + [sc("s_mov_b64 exec, -1"), sc(f"s_add_u32 s{sStampOff}, s{sStampOff}, 32"), sc("s_nop 3")]

def prologue():
    P = []
    A = lambda t: P.append(sc(t))
    A("s_cmp_ge_u32 s2, 256"); A("s_cbranch_scc1 L_exit")
    if CFG["again"]:
        A(f"s_mov_b32 s90, {CFG['again']}"); P.append(I("L_again:", "#"))
    A("s_load_dwordx4 s[60:63], s[0:1], 0"); A("s_load_dwordx4 s[64:67], s[0:1], 16")
    if CFG["stamp"]: A("s_load_dwordx2 s[68:69], s[0:1], 40")
    A("v_lshrrev_b32 v20, 6, v0"); A("v_and_b32 v21, 63, v0"); A(f"v_readfirstlane_b32 s{sW}, v20")
    A(f"s_and_b32 s{sT0}, s2, 7"); A(f"s_lshr_b32 s{sT1}, s2, 3"); A(f"s_and_b32 s{sRole}, s{sT1}, 1"); A(f"s_lshr_b32 s{sT1}, s{sT1}, 1")
    A(f"s_lshl_b32 s{sT0}, s{sT0}, 4"); A(f"s_add_u32 s{sT0}, s{sT0}, s{sT1}")
    if CFG["samehead"]: A(f"s_mov_b32 s{sT0}, 0")
    A(f"s_mul_i32 s{sT1}, s{sT0}, {4*QH}"); A(f"s_lshl_b32 s{sT0}, s{sT0}, 19")
    A("v_and_b32 v22, 15, v21"); A("v_lshrrev_b32 v23, 4, v21")
    for x in sigma(22, 24, 25): A(x)
    A("v_xor_b32 v24, v24, v23"); A("v_lshlrev_b32 v24, 4, v24"); A("v_lshl_add_u32 v24, v22, 7, v24")
    A(f"v_lshlrev_b32 v{vDir}, 8, v22"); A(f"v_lshl_add_u32 v{vDir}, v23, 4, v{vDir}")
    A(f"v_add_u32 v{vK0}, 0x8000, v24"); A(f"v_xor_b32 v{vK1}, 64, v{vK0}")
    A(f"s_mul_i32 s{sStgB}, s{sW}, 24576"); A(f"s_add_u32 s{sStgB}, s{sStgB}, 65536")
    A(f"v_add_u32 v{vSt0}, s{sStgB}, v24"); A(f"v_xor_b32 v{vSt1}, 64, v{vSt0}")
    A(f"v_lshl_add_u32 v{vLin}, v21, 4, s{sStgB}")
    A("v_lshrrev_b32 v22, 2, v21"); A("v_and_b32 v23, 3, v21")
    for x in sigma(22, 24, 25): A(x)
    A("v_xor_b32 v24, v24, v23"); A("v_lshlrev_b32 v24, 4, v24"); A("v_lshl_add_u32 v24, v22, 7, v24")
    A(f"v_add_u32 v{vV0}, 0x8000, v24"); A(f"v_xor_b32 v{vV1}, 64, v{vV0}")
    A("v_lshrrev_b32 v22, 3, v21"); A("v_and_b32 v23, 7, v21")
    for x in sigma(22, 24, 25): A(x)
    A("v_xor_b32 v24, v24, v23"); A("v_lshlrev_b32 v24, 4, v24"); A(f"v_lshl_add_u32 v{vQO0}, v22, 8, v24")
    A(f"v_xor_b32 v{vQO1}, 32, v{vQO0}"); A(f"v_add_u32 v{vQO1}, 2048, v{vQO1}")
    A(f"s_and_b32 s{sT2}, s{sW}, 1"); A(f"s_lshr_b32 s{sT3}, s{sW}, 1")
    A(f"s_lshl_b32 s{sWoff}, s{sT3}, 12"); A(f"s_lshl_b32 s{sT3}, s{sT2}, 10"); A(f"s_add_u32 s{sWoff}, s{sWoff}, s{sT3}")
    A(f"s_lshl_b32 s{sT2}, s{sT2}, 5"); A(f"s_lshl_b32 s{sT3}, s{sW}, 11")
    A(f"v_xor_b32 v{vDKV}, s{sT2}, v{vQO0}"); A(f"v_add_u32 v{vDKV}, s{sT3}, v{vDKV}")
    A(f"s_mul_i32 s{sOffA}, s{sW}, {112*256}"); A(f"s_mul_i32 s{sOffB}, s{sW}, {96*256}"); A(f"s_add_u32 s{sOffB}, s{sOffB}, {464*256}")
    A(f"s_cmp_eq_u32 s{sW}, 0"); A(f"s_cselect_b32 s{sOffB}, {448*256}, s{sOffB}")
    A(f"s_mov_b32 s{sC}, {f2u(SCALE):#x}"); A(f"s_mov_b32 s{sLo}, {f2u(2.0**-30):#x}"); A(f"s_mov_b32 s{sHi}, {f2u(2.0**30):#x}")
    A(f"s_mov_b32 s{sFlag}, 0"); A(f"s_mov_b32 s{sJob}, -1")
    P += params_next()
    A("s_waitcnt lgkmcnt(0)")
    for srd, src, off, n in ((sQ, 60, sT1, 4 * QH), (sK, 62, sT0, 4 * KH), (sV, 64, sT0, 4 * KH), (sO, 66, sT1, 0 if CFG["nostore"] else 4 * QH)):
        A(f"s_add_u32 s{srd}, s{src}, s{off}"); A(f"s_addc_u32 s{srd+1}, s{src+1}, 0"); A(f"s_mov_b32 s{srd+2}, {n}"); A(f"s_mov_b32 s{srd+3}, 0x20000")
    if CFG["stamp"]:
        A(f"s_mov_b32 s{sDbg}, s68"); A(f"s_mov_b32 s{sDbg+1}, s69"); A(f"s_mov_b32 s{sDbg+2}, 0x1000000"); A(f"s_mov_b32 s{sDbg+3}, 0x20000")
        A(f"s_lshl_b32 s{sStampOff}, s2, 2"); A(f"s_add_u32 s{sStampOff}, s{sStampOff}, s{sW}"); A(f"s_lshl_b32 s{sStampOff}, s{sStampOff}, 10")
    P += stamp(0)
    def kv(srd, blk, ldsbase, tag):
        A(f"s_mov_b32 s{sT0}, {blk*8192}")
        for a in (0, 1):
            P.append(sc(f"s_add_u32 m0, s{sWoff}, {ldsbase + a*(2048-128)}", wr=M0)); A("s_nop 0")
            P.append(dma(vDKV, srd, sT0, a * 128, CFG["kv"], tag))
    kv(sK, 0, 3 * 16384, ("grp", -1))
    A(f"s_mov_b32 s{sT1}, s{sNxt}")
    for t in range(6):
        for k in range(4):
            a, nn = k & 1, k >> 1
            P.append(sc(f"s_add_u32 m0, s{sStgB}, {t*4096 + a*2048 + nn*1024 - a*128}", wr=M0)); A("s_nop 0")
            P.append(dma(vQO0 + nn, sQ, sT1, a * 128, CFG["q"], ("q",)))
        A(f"s_add_u32 s{sT1}, s{sT1}, 4096")
    A(f"s_cmp_lg_u32 s{sNT7n}, 0"); A(f"s_cselect_b32 s{sT1}, s{sT1}, {OOB:#x}")
    for ds in range(4):
        r = aQ + (6 * 4 + ds) * 4
        o = f" offset:{ds*64}" if ds else ""
        P.append(I(f"buffer_load_dwordx4 {rs('a', r, 4)}, v{vDir}, s[{sQ}:{sQ+3}], s{sT1} offen{o}{fl(CFG['q6'])}", "L", tag=("q6",)))
    kv(sK, 1, 0, ("grp", 0)); kv(sV, 0, 8192, ("grp", 0))
    kv(sK, 2, 16384, ("grp", 1)); kv(sV, 1, 16384 + 8192, ("grp", 1))
    A(f"s_mov_b32 s{sKoff}, {3*8192}"); A(f"s_mov_b32 s{sVoff}, {2*8192}"); A(f"s_add_u32 s{sM}, s{sWoff}, 32768")
    A(f"s_mov_b32 s{sCurO}, {OOB:#x}")
    if CFG["zeroones"]:
        A("v_mov_b32 v22, 0")
    elif CFG["ones_all"]:
        A("v_mov_b32 v22, 0x3f803f80")
    else:
        A("v_and_b32 v22, 3, v21"); A("v_cmp_eq_u32 vcc, 0, v22"); A("v_mov_b32 v23, 0x3f803f80"); A("s_nop 0"); A("v_cndmask_b32 v22, 0, v23, vcc")
    for i in range(4): A(f"v_accvgpr_write_b32 a{aOne+i}, v22")
    P.append(I("s_waitcnt vmcnt(8)", "w")); P.append(I("s_barrier", "B"))
    for ds in range(4): P.append(k_read(0, 0, ds))
    for t in range(6):
        for ds in range(4): P.append(q_read(t, ds))
    P.append(I("s_waitcnt lgkmcnt(0)", "w"))
    return P

def job_switch():
    L = [I("L_next:", "#")]
    L += stamp(1)
    L += [sc(x) for x in (f"s_add_u32 s{sJob}, s{sJob}, 1", f"s_mov_b32 s{sOp}, s{sCurO}", f"s_cmp_eq_u32 s{sJob}, 4", "s_cbranch_scc1 L_final",
                          f"s_mov_b32 s{sCurO}, s{sNxt}", f"s_mov_b32 s{sNT7c}, s{sNT7n}")]
    L += params_next()
    L += [sc(x) for x in (f"s_mov_b32 s{sQn}, s{sNxt}", f"s_mov_b32 s{sStg}, s{sStgB}", f"s_mov_b32 s{sLoop}, 5",
                          f"s_cmp_lg_u32 s{sNT7c}, 0", "s_cbranch_scc0 L_job6")]
    return L

def final_drain():
    L = [I("L_final:", "#")]
    ops = [(t, k) for t in range(6) for k in range(4)]
    def rd(i):
        t, k = ops[i]; a, nn = k & 1, k >> 1
        return I(f"ds_read_b128 {rs('v', vO + 4*i, 4)}, v{vLin} offset:{t*4096 + a*2048 + nn*1024}", "D", rd=[("v", vLin)], wr=R("v", vO + 4 * i, 4))
    for i in range(8): L.append(rd(i))
    for i, (t, k) in enumerate(ops):
        a, nn = k & 1, k >> 1
        nout = min(24, i + 8) - i - 1
        L.append(I(f"s_waitcnt lgkmcnt({nout})", "w"))
        o = f" offset:{a*128}" if a else ""
        L.append(I(f"buffer_store_dwordx4 {rs('v', vO + 4*i, 4)}, v{vQO0+nn}, s[{sO}:{sO+3}], s{sOp} offen{o}{fl(CFG['o'])}", "S", rd=R("v", vO + 4 * i, 4)))
        if i + 8 < 24: L.append(rd(i + 8))
        if k == 3: L.append(sc(f"s_add_u32 s{sOp}, s{sOp}, 4096"))
    if CFG["stamp"]: L += stamp(2) + [I("s_waitcnt vmcnt(0)", "w")] + stamp(3)
    return L

def resolve_vm(pro, sw, jobs):
    best = {}
    for seqn in ([7, 7, 7, 7], [7, 6, 7, 6], [6, 7, 6, 7]):
        dyn = [(x, 0) for x in pro]
        for j, nt in enumerate(seqn):
            J = jobs[nt]; b = 16 * j
            dyn += [(x, b) for x in sw] + [(x, b) for x in J.head]
            for it in range(6): dyn += [(x, b + 2 * it) for x in J.body]
            dyn += [(x, b) for x in J.final + J.tail]
        vm = []; epoch = -2; lastrd = {}
        for x, b in dyn:
            if x.k == "B": epoch = (x.tag[1] + b) if x.tag else -1
            if x.k == "D" and x.tag and x.tag[0] == "ring":
                assert x.tag[1] + b == epoch, ("ring read outside its epoch", x.t, x.tag, b, epoch)
            if x.k in "XLS":
                tg = x.tag
                if tg and tg[0] == "grp":
                    tg = ("grp", tg[1] + b)
                    assert epoch == -2 or tg[1] - 4 < epoch, ("dma overwrites live group", x.t)
                vm.append(tg)
            if x.k == "w" and x.tag:
                want = {"needgrp": lambda: ("grp", x.tag[1] + b), "needq": lambda: ("q",), "needq6": lambda: ("q6",)}[x.tag[0]]()
                idx = max(i for i, t in enumerate(vm) if t == want)
                n = min(63, len(vm) - 1 - idx)
                best[id(x)] = (x, min(n, best.get(id(x), (x, 99))[1]))
        seq = [x for x, _ in dyn]
        check_lgkm(seq)
        bad = hazards(seq)
        assert not bad, bad[:5]
    for x, n in best.values(): x.t = x.t.replace("?", str(n))

def main():
    jobs = {nt: build_job(nt) for nt in (7, 6)}
    pro = prologue(); sw = job_switch(); fin = final_drain()
    resolve_vm(pro, sw, jobs)
    for nt in (7, 6):
        J = jobs[nt]
        nm = lambda s: sum(x.k == "M" for x in s)
        info = " ".join(f"{n}: {cycles(s)}c/{nm(s)*16} ({len(s)} ins)" for n, s in (("head", J.head), ("body", J.body), ("final", J.final), ("tail", J.tail)))
        tot = cycles(J.head) + 6 * cycles(J.body) + cycles(J.final) + cycles(J.tail)
        print(f"NT={nt} carry={len(J.carry)} {info} total={tot}", file=sys.stderr)
    o = []
    o.append("; @launch grid=(256,1,1) block=(256,1,1) lds=163840")
    o.append('.amdgcn_target "amdgcn-amd-amdhsa--gfx950"')
    o += [".text", f".globl {NAME}_kernel", ".p2align 8", f".type {NAME}_kernel,@function", f"{NAME}_kernel:"]
    def keep(x):
        if CFG["nomul"] and x.t.startswith("v_mul_f32"): return "s_nop 0"
        if CFG["noexp"] and x.t.startswith("v_exp_f32"): return "s_nop 0"
        if CFG["nosum"] and x.k == "M" and f"a[{aOne}:" in x.t: return "s_nop 0"
        return x.t
    put = lambda s: o.extend(("" if x.k == "#" else "    ") + keep(x) for x in s)
    mt = lambda i: [sc(f"s_memtime s[{70+2*i}:{71+2*i}]")] if CFG["stamp"] else []
    put(pro); put(sw)
    for nt in (7, 6):
        J = jobs[nt]
        o.append(f"L_job{nt}:"); put(mt(0)); put(J.head); put(mt(1))
        o.append(f"L_body{nt}:"); put(J.body); put(mt(2)); put(J.final); put(mt(3)); put(J.tail)
        o.append("    s_branch L_next")
    put(fin)
    if CFG["again"]:
        o += ["    s_waitcnt vmcnt(0) lgkmcnt(0)", "    s_barrier", "    s_sub_u32 s90, s90, 1", "    s_cbranch_scc0 L_again"]
    o += ["L_exit:", "    s_endpgm", '.section .rodata,"a"', ".p2align 6", f".amdhsa_kernel {NAME}_kernel",
          "  .amdhsa_next_free_vgpr 512", "  .amdhsa_next_free_sgpr 102", "  .amdhsa_accum_offset 256",
          "  .amdhsa_group_segment_fixed_size 0", "  .amdhsa_kernarg_size 48", "  .amdhsa_user_sgpr_count 2",
          "  .amdhsa_user_sgpr_kernarg_segment_ptr 1", "  .amdhsa_system_sgpr_workgroup_id_x 1", ".end_amdhsa_kernel"]
    open(sys.argv[1], "w").write("\n".join(o) + "\n")

main()
```

```python
import re

def R(kind, a, n=1):
    return [(kind, a + i) for i in range(n)]

def rs(kind, a, n=1):
    return f"{kind}{a}" if n == 1 else f"{kind}[{a}:{a+n-1}]"

class I:
    __slots__ = ("t", "k", "rd", "wr", "c", "tag")
    def __init__(self, t, k, rd=(), wr=(), c=(), tag=None):
        self.t = t; self.k = k; self.rd = list(rd); self.wr = list(wr); self.c = list(c); self.tag = tag
    def __repr__(self): return self.t

def mfma(d, a, b, c0=False, tag=None):
    dk, dn = d; ak, an = a; bk, bn = b
    cs = "0" if c0 else rs(dk, dn, 4)
    return I(f"v_mfma_f32_16x16x32_bf16 {rs(dk,dn,4)}, {rs(ak,an,4)}, {rs(bk,bn,4)}, {cs}", "M",
             rd=R(ak, an, 4) + R(bk, bn, 4), wr=R(dk, dn, 4), c=([] if c0 else R(dk, dn, 4)), tag=tag)

def states(ins):
    if ins.k == "#": return 0
    m = re.match(r"s_nop (\d+)", ins.t)
    return int(m.group(1)) + 1 if m else 1

VALU = "VEK"
def need(p, q):
    n = 0
    pw = set(p.wr)
    if p.k == "M":
        if q.k == "M":
            if pw & set(q.rd): n = max(n, 8)
            ov = pw & set(q.c)
            if ov and p.wr != q.c: n = max(n, 6)
            if (pw & set(q.wr)) and not q.c: n = max(n, 6)
        elif q.k in VALU or q.k in "DWLXS":
            if pw & (set(q.rd) | set(q.wr)): n = max(n, 8)
        if q.k in VALU and set(p.c) & set(q.wr): n = max(n, 3)
    elif p.k in VALU:
        if q.k == "M" and pw & (set(q.rd) | set(q.c)): n = max(n, 2)
        if p.k == "E" and q.k in "VK" and pw & set(q.rd): n = max(n, 1)
        if q.k == "K" and pw & set(q.rd): n = max(n, 2)
        sw = {r for r in pw if r[0] == "s"}
        if sw & set(q.rd):
            if q.k in "LXS": n = max(n, 5)
            elif q.k in VALU: n = max(n, 2)
        if "readfirstlane" in q.t and pw & set(q.rd): n = max(n, 1)
    elif p.k == "S":
        if q.k in VALU and set(p.rd) & set(q.wr): n = max(n, 2)
        elif set(p.rd) & set(q.wr): n = max(n, 1)
    elif p.k == "s":
        if ("m", 0) in pw and q.k == "X": n = max(n, 1)
    return n

def hazards(seq, start=0):
    bad = []
    for j in range(start, len(seq)):
        q = seq[j]
        if q.k in "#wB": continue
        dist = 0
        for i in range(j - 1, -1, -1):
            n = need(seq[i], q)
            if n > dist: bad.append((j, n - dist, seq[i].t, q.t))
            dist += states(seq[i])
            if dist >= 8: break
    return bad

def fix_hazards(seq, prefix=()):
    out = list(prefix); n0 = len(out)
    for q in seq:
        if q.k not in "#wB":
            dist = 0; miss = 0
            for p in reversed(out):
                n = need(p, q)
                miss = max(miss, n - dist)
                dist += states(p)
                if dist >= 8: break
            if miss > 0: out.append(I(f"s_nop {miss-1}", "s"))
        out.append(q)
    return out[n0:]

def check_lgkm(seq, pending=None):
    pend = list(pending or [])
    for q in seq:
        if q.k == "w":
            m = re.search(r"lgkmcnt\((\d+)\)", q.t)
            if m:
                n = int(m.group(1))
                if n < len(pend): pend = pend[len(pend) - n:] if n else []
            continue
        if q.k == "#": continue
        touched = set(q.rd) | set(q.c) | set(q.wr)
        for p in pend:
            if set(p.wr) & touched:
                raise AssertionError(f"lgkm hazard: {q.t} touches result of pending {p.t}")
        if q.k in "DW": pend.append(q)
    return pend

def cycles(seq, detail=None):
    t = 0; mf = -100; vec_free = 0; last_valu_end = -100
    for q in seq:
        if q.k == "#": continue
        if q.k == "M":
            t = max(t, mf + 16, vec_free); mf = t; vec_free = t + (12 if "smfmac" in q.t else 8); t += 4
        elif q.k in VALU:
            t = max(t, vec_free)
            if q.t.startswith("v_pk_"): t = max(t, mf + 28)
            d = 8 if q.k in "EK" else 4
            t += d; vec_free = t; last_valu_end = t
        elif q.k in "DWLXS":
            t = max(t, vec_free, last_valu_end + 8)
            d = {"D": 4, "W": 20, "L": 8, "X": 8, "S": 20}[q.k]
            t += d; vec_free = t
        elif q.k == "B" or q.t.startswith("s_cbranch") or q.t.startswith("s_branch"): t += 12
        else: t += 4 * states(q)
        if detail is not None: detail.append(t)
    return t

def issue_sum(seq):
    c = {"M": 8, "V": 4, "E": 8, "K": 8, "D": 4, "W": 20, "L": 8, "X": 8, "S": 20, "B": 8}
    return sum(c.get(q.k, 0) + (4 if "smfmac" in q.t else 0) for q in seq)
```

```python
import sys, math, struct, re
from asmlib import *

NAME = "standalone__gqa_softmax__near_ridge"
CFG = dict(kv="nt", q="nt", o="nt", q6="", o6="", stamp=0, samehead=0, nostore=0, again=0,
           th=28, cl=2, sp=11, sp2=11, pstamp=0, badpair=0, wgrp=2, lo=-30, hi=30, forcefb=0, codepf=1)
for a in sys.argv[2:]:
    k, v = a.split("=", 1)
    assert k in CFG, k
    CFG[k] = int(v) if re.fullmatch(r"-?\d+", v) else v.replace("+", " ")

QH, KH = 217088, 131072
SCALE = math.log2(math.e) / math.sqrt(128.0)
def f2u(x): return struct.unpack("<I", struct.pack("<f", x))[0]

vK0, vK1, vV0, vV1, vDKV, vQO0, vQO1, vLin, vSt0, vSt1, vDir = range(1, 12)
vTmp = 12
vS = 20
vP = 36
vO = 92
vX = 252
aQ, aK, aV, aL, aO, aOne = 0, 112, 144, 160, 188, 252
sQ, sK, sV, sO = 4, 8, 12, 16
(sC, sW, sJob, sK0, sK1, sV0, sV1, sM, sQn, sQn1, sOp, sStg, sLoop, sCurO, sNxt, sNT7c, sNT7n, sFlag, sRole,
 sT0, sT1, sT2, sT3, sWoff, sStgB, sOffA, sOffB, sLo, sHi, sBit) = range(20, 50)
sPair = 50
sDbg = 52
sStampOff = 56
sTm = 58
OOB = 0x100000

def Oreg(t, dj):
    return ("v", vO + t * 32 + dj * 4) if t < 5 else ("a", aO + (t - 5) * 32 + dj * 4)
def Preg(p, t): return vP + (p & 1) * 28 + t * 4
def sc(t, rd=(), wr=()): return I(t, "s", rd=rd, wr=wr)
def fl(x): return (" " + x) if x else ""
def off(x): return f" offset:{x}" if x else ""
def V(t, rd, wr, k="V"): return I(t, k, rd=[("v", r) if isinstance(r, int) else r for r in rd], wr=[("v", r) if isinstance(r, int) else r for r in wr])
COST = {"V": 1, "E": 2, "D": 1}

class Op:
    def __init__(self, key, ins, deps=(), target=None, rel=None):
        self.key = key; self.ins = ins; self.deps = list(deps); self.target = target; self.rel = rel

class Sched:
    def __init__(self, NT):
        self.NT = NT
        self.out = []; self.done = set(); self.pend = []
        self.valu = []; self.fixed = []; self.scal = []; self.flex = []
        self.forbid = set(); self.gap = 0
        self.bykey = {}; self.th = CFG["th"]
    def add(self, q, op):
        q.append(op); self.bykey[op.key] = op
    def emit(self, ins, key=None):
        if ins.k == "w":
            m = re.search(r"lgkmcnt\((\d+)\)", ins.t)
            if m:
                n = int(m.group(1))
                if n < len(self.pend): self.pend = self.pend[len(self.pend) - n:] if n else []
        self.out.append(ins)
        if ins.k in "DW": self.pend.append(ins)
        if key is not None: self.done.add(key)
    def haz(self, ins):
        dist = 0; miss = 0
        for p in reversed(self.out):
            miss = max(miss, need(p, ins) - dist)
            dist += states(p)
            if dist >= 8: break
        return miss
    def lgkm_need(self, inss):
        idx = -1
        for ins in inss:
            t = set(ins.rd) | set(ins.c) | set(ins.wr)
            for i, p in enumerate(self.pend):
                if set(p.wr) & t: idx = max(idx, i)
        return None if idx < 0 else min(15, len(self.pend) - 1 - idx)
    def ready(self, op):
        return op.key not in self.forbid and all(d in self.done for d in op.deps) and \
            (op.target is None or op.target <= self.gap) and self.haz(op.ins) <= 0
    def put(self, op):
        for q in (self.valu, self.fixed, self.scal, self.flex):
            if op in q: q.remove(op)
        n = self.lgkm_need([op.ins])
        if n is not None: self.emit(I(f"s_waitcnt lgkmcnt({n})", "w"))
        m = self.haz(op.ins)
        if m > 0: self.emit(I(f"s_nop {m-1}", "s"))
        self.emit(op.ins, op.key)
    def force(self, key):
        if key in self.done: return
        op = self.bykey[key]
        assert key not in self.forbid, key
        for d in op.deps: self.force(d)
        self.put(op)
    def pick(self, kinds, n):
        r = []
        for op in self.valu[:48]:
            if op.ins.k in kinds and self.ready(op):
                r.append(op)
                if len(r) == n: break
        return r
    def backlog(self):
        return sum(COST[o.ins.k] for o in self.valu if o.rel is not None and o.rel in self.done)
    def fill(self, room):
        while room > 0:
            e = self.pick("E", 1); v = self.pick("V", 2)
            if room >= 2 and e and (len(v) < 2 or self.valu.index(e[0]) < self.valu.index(v[0])):
                self.put(e[0]); room -= 2
            elif v:
                self.put(v[0]); room -= 1
            elif e and self.backlog() > self.th - 4:
                self.put(e[0]); room -= 2
            else: break
        while self.backlog() > self.th:
            c = self.pick("EV", 1)
            if not c: break
            self.put(c[0])
    def run(self, mf, look=()):
        allm = list(mf) + list(look)
        for i, (key, ins, deps) in enumerate(mf):
            for d in deps: self.force(d)
            n = self.lgkm_need([ins])
            if n is not None: self.emit(I(f"s_waitcnt lgkmcnt({n})", "w"))
            m = self.haz(ins)
            if m > 0: self.emit(I(f"s_nop {m-1}", "s"))
            self.emit(ins, key)
            fx = next((o for o in self.fixed if self.ready(o)), None)
            slot1 = False
            nxt = [x[1] for x in allm[i + 1:i + 2]]
            if self.lgkm_need(nxt) is not None:
                nxt = [x[1] for x in allm[i + 1:i + 5]]
            if fx is not None and fx.ins.k != "B": nxt = nxt + [fx.ins]
            n = self.lgkm_need(nxt)
            if n is not None:
                self.emit(I(f"s_waitcnt lgkmcnt({n})", "w")); slot1 = True
                if fx is not None and fx.ins.k == "B": fx = None
            if fx is not None and fx.ins.k == "B":
                self.put(fx); self.fill(1)
            else:
                if not slot1 and self.scal and self.ready(self.scal[0]):
                    if not (fx is not None and fx.ins.k == "X" and ("m", 0) in self.scal[0].ins.wr): self.put(self.scal[0])
                room = 2
                if fx is not None:
                    self.put(fx); room = 1 if fx.ins.k == "D" else 0
                if room == 2 and self.backlog() == 0 and not self.pick("E", 1):
                    f = next((o for o in self.flex if self.ready(o)), None)
                    if f is not None: self.put(f); room -= 1
                if room: self.fill(room)
            self.gap += 1
    def flush(self):
        for q in (self.fixed, self.flex, self.scal, self.valu):
            for op in list(q):
                if op.key not in self.forbid and op.key not in self.done: self.force(op.key)

def k_read(p, kt, ds):
    o = ((p - 1) & 1) * 16384 + kt * 8192 + (ds >> 1) * 1024
    r = aK + kt * 16 + ds * 4; ad = vK0 + (ds & 1)
    return I(f"ds_read_b128 {rs('a', r, 4)}, v{ad}{off(o)}", "D", rd=[("v", ad)], wr=R("a", r, 4), tag=("ring", p - 1))
def v_read(p, dj, kt):
    J, h = dj >> 1, dj & 1
    o = (p & 1) * 16384 + kt * 8192 + 2048 + (J >> 1) * 1024 + 8 * h
    r = aV + (dj & 3) * 4 + 2 * kt; ad = vV0 + (J & 1)
    return I(f"ds_read_b64_tr_b16 {rs('a', r, 2)}, v{ad}{off(o)}", "D", rd=[("v", ad)], wr=R("a", r, 2), tag=("ring", p))
def q_read(t, ds):
    r = aQ + (t * 4 + ds) * 4; ad = vSt0 + (ds & 1)
    return I(f"ds_read_b128 {rs('a', r, 4)}, v{ad}{off(t*4096 + (ds >> 1)*1024)}", "D", rd=[("v", ad)], wr=R("a", r, 4))
def dma(vo, srd, so, o, flags, tag):
    return I(f"buffer_load_dwordx4 v{vo}, s[{srd}:{srd+3}], s{so} offen{off(o)}{fl(flags)} lds", "X", rd=[("v", vo), ("m", 0), ("s", so)], tag=tag)
def o_store(r, k, so):
    a, nn = k & 1, k >> 1
    return I(f"buffer_store_dwordx4 {rs('v', r, 4)}, v{vQO0+nn}, s[{sO}:{sO+3}], s{so} offen{off(nn*2048 + a*128)}{fl(CFG['o'])}", "S",
             rd=R("v", r, 4) + [("v", vQO0 + nn), ("s", so)])
M0 = [("m", 0)]

def pv_list(NT, p):
    L = []
    for dj in range(8):
        for t in range(NT):
            deps = [("cvt", p, kt, t, h) for kt in (0, 1) for h in (0, 1)] + [("vr", p, dj, 0), ("vr", p, dj, 1)]
            L.append((("pv", p, dj, t), mfma(Oreg(t, dj), ("a", aV + (dj & 3) * 4), ("v", Preg(p, t)), c0=(p == 0)), deps))
        if dj < NT: L.append(sum_m(p, dj))
    return L
def sum_m(p, t):
    return (("sum", p, t), mfma(("a", aL + t * 4), ("a", aOne), ("v", Preg(p, t)), c0=(p == 0)),
            [("cvt", p, kt, t, h) for kt in (0, 1) for h in (0, 1)])

def phase_mf(NT, p, with_pv):
    pv = pv_list(NT, p - 1) if with_pv else []
    L = []; n = 0
    for c in range(2 * NT):
        kt, t = divmod(c, NT)
        g = p * 2 * NT + c; sb = vS + (g & 3) * 4
        for ds in range(4):
            deps = [("kr", p, kt, ds)]
            if ds == 0 and g - 4 >= 0:
                pp, cc = divmod(g - 4, 2 * NT)
                deps += [("cvt", pp, cc // NT, cc % NT, h) for h in (0, 1)]
            L.append((("qk", p, kt, t, ds), mfma(("v", sb), ("a", aK + kt * 16 + ds * 4), ("a", aQ + (t * 4 + ds) * 4), c0=(ds == 0)), deps))
        upto = (9 * (c + 1)) // 2 if with_pv else 0
        L += pv[n:upto]; n = upto
    return L

def add_softmax(S, p):
    NT = S.NT
    for c in range(2 * NT):
        kt, t = divmod(c, NT)
        sb = vS + ((p * 2 * NT + c) & 3) * 4
        rel = ("qk", p, kt, t, 3)
        mul = lambda r: Op(("mul", p, kt, t, r), V(f"v_mul_f32 v{sb+r}, s{sC}, v{sb+r}", [sb + r], [sb + r]), [rel], rel=rel)
        ex = lambda r: Op(("exp", p, kt, t, r), V(f"v_exp_f32 v{sb+r}, v{sb+r}", [sb + r], [sb + r], "E"), [("mul", p, kt, t, r)], rel=rel)
        def cv(h):
            d = Preg(p, t) + 2 * kt + h
            return Op(("cvt", p, kt, t, h), V(f"v_cvt_pk_bf16_f32 v{d}, v{sb+2*h}, v{sb+2*h+1}", [sb + 2 * h, sb + 2 * h + 1], [d]),
                      [("exp", p, kt, t, 2 * h), ("exp", p, kt, t, 2 * h + 1)], rel=rel)
        for o in (mul(0), mul(1), ex(0), ex(1), mul(2), mul(3), ex(2), ex(3), cv(0), cv(1)): S.add(S.valu, o)

VPOS = {2: (10, 13), 3: (30, 33), 4: (42, 45), 5: (56, 59), 6: (70, 73), 7: (83, 86)}

def add_phase_ops(S, p, mf, with_pv, qo):
    NT = S.NT; g0 = S.gap; n = len(mf)
    T = lambda x: g0 + int(x * n / 119.0)
    add_softmax(S, p)
    fx = []; scal = []
    new = lambda lst, key, ins, deps=(), x=0, g=None: lst.append(Op(key, ins, deps, T(x) if g is None else g))
    known = lambda k: [k] if (k in S.bykey or k in S.done) else []
    for ds in range(4):
        new(fx, ("kr", p, 1, ds), k_read(p, 1, ds), [], (36, 39, 48, 51)[ds])
    if with_pv:
        for dj in range(2, 8):
            for kt in (0, 1):
                war = [("pv", p - 1, dj - 4, NT - 1)] if dj >= 4 else []
                xo = known(("xv", p - 1, 1)) if dj == 2 else []
                new(fx, ("vr", p - 1, dj, kt), v_read(p - 1, dj, kt), war + xo, VPOS[dj][kt])
    rd_before = [("kr", p, 1, ds) for ds in range(4)] + ([("vr", p - 1, 7, kt) for kt in (0, 1)] if with_pv else [])
    gc = T(CFG["cl"]); sp = max(1, int(CFG["sp"] * n / 119.0 + 0.5)); g2 = gc + 4 * sp; sp2 = CFG["sp2"]
    new(scal, ("m0", p), sc(f"s_mov_b32 m0, s{sM}", wr=M0), [], 0)
    prev = [("m0", p)]
    for k, (srd, so) in enumerate(((sK, sK0), (sK, sK1), (sV, sV0), (sV, sV1))):
        new(fx, ("dma", p, k), dma(vDKV, srd, so, k * 1024, CFG["kv"], ("grp", p + 2)), prev, g=gc + k * sp)
        prev = [("dma", p, k)]
    kvlast = prev
    if qo:
        nn = p & 1
        for a in range(2):
            tmp = vTmp + 4 * a
            new(fx, ("or", p, a), I(f"ds_read_b128 {rs('v', tmp, 4)}, v{vLin}{off(nn*2048 + a*1024)}", "D", rd=[("v", vLin)], wr=R("v", tmp, 4)),
                known(("ul", p - 1)), g=g2 + a * sp2 - 9)
            new(fx, ("os", p, a), o_store(tmp, 2 * nn + a, sOp), [("or", p, a)] + prev, g=g2 + a * sp2)
            prev = [("os", p, a)]
        new(scal, ("qm", p), sc(f"s_mov_b32 m0, s{sStg}", wr=M0), kvlast, g=g2)
        for a in range(2):
            new(fx, ("qd", p, a), dma(vQO0 + nn, sQ, (sQn, sQn1)[a], nn * 2048 + a * 1024, CFG["q"], ("q",)), prev + [("qm", p)], g=g2 + (2 + a) * sp2)
            prev = [("qd", p, a)]
        if p & 1:
            for i, r in enumerate((sOp, sQn, sQn1, sStg)):
                new(scal, ("uq", p, i), sc(f"s_add_u32 s{r}, s{r}, 4096"), prev, g=g2 + 3 * sp2 + 1)
            S.add(S.valu, Op(("ul", p), V(f"v_add_u32 v{vLin}, 4096, v{vLin}", [vLin], [vLin]), [("or", p, 1)]))
    new(scal, ("u1", p), sc(f"s_add_u32 s{sM}, s{sM}, 16384"), kvlast, g=g2 + 1)
    new(scal, ("u2", p), sc(f"s_and_b32 s{sM}, s{sM}, 0xffff"), kvlast, g=g2 + 1)
    for i, r in enumerate((sK0, sK1, sV0, sV1)):
        new(scal, ("uk", p, i), sc(f"s_add_u32 s{r}, s{r}, 8192"), kvlast, g=g2 + 1)
    new(scal, ("wb", p), I("s_waitcnt vmcnt(?) lgkmcnt(0)", "w", tag=("needgrp", p)), rd_before + prev, 94)
    new(fx, ("bar", p), I("s_barrier", "B", tag=("bar", p)), [("wb", p)], 95)
    xv0 = []
    if not (p & 1):
        xor = lambda r: V(f"v_xor_b32 v{r}, 0x8000, v{r}", [r], [r])
        for b in (0, 1):
            S.add(S.valu, Op(("xk", p, b), xor(vK0 + b), [("kr", p, 1, b), ("kr", p, 1, b + 2)]))
            dv = [("vr", p - 1, 4 + 2 * b + h, kt) for h in (0, 1) for kt in (0, 1)] if with_pv else []
            S.add(S.valu, Op(("xv", p, b), xor(vV0 + b), dv))
        xv0 = [("xv", p, 0)]
    for ds in range(4):
        xk = [("xk", p, ds & 1)] if not (p & 1) else []
        new(fx, ("kr", p + 1, 0, ds), k_read(p + 1, 0, ds), [("bar", p), ("qk", p, 0, NT - 1, ds)] + xk, 97 + 3 * ds)
    for dj in (0, 1):
        for kt in (0, 1):
            war = [("pv", p - 1, dj + 4, NT - 1)] if with_pv else []
            new(fx, ("vr", p, dj, kt), v_read(p, dj, kt), [("bar", p)] + war + xv0, (108, 110, 113, 116)[dj * 2 + kt])
    fx.sort(key=lambda o: o.target); scal.sort(key=lambda o: o.target)
    for o in fx: S.add(S.fixed, o)
    for o in scal: S.add(S.scal, o)
    misc = [o for o in S.valu if o.key[0] in ("xk", "xv", "ul")]
    S.valu = misc + [o for o in S.valu if o not in misc]

def rel(key, p): return (key[0], key[1] - p) + tuple(key[2:])

def run_phases(S, phases, carry, qo_of, extra=None):
    starts = {}
    for p in phases:
        starts[p] = len(S.out)
        mf = phase_mf(S.NT, p, p > 0)
        S.forbid = set()
        add_phase_ops(S, p, mf, p > 0, qo_of(p))
        if extra: extra(S, p, mf)
        cut = carry is not None and (p & 1) and p < 15
        if cut: S.forbid = {(k[0], k[1] + p) + tuple(k[2:]) for k in carry}
        look = phase_mf(S.NT, p + 1, True)[:4] if p < 15 else []
        S.run(mf, look)
        if cut: S.flush()
    return starts

def find_carry(NT):
    S = Sched(NT)
    for ds in range(4): S.done.add(("kr", 0, 0, ds))
    run_phases(S, range(0, 8), None, lambda p: p >= 2)
    return [rel(o.key, 7) for o in S.valu if o.key[0] in ("mul", "exp", "cvt")]

def params_next():
    return [sc(x) for x in (
        f"s_add_u32 s{sT2}, s{sJob}, 1",
        f"s_xor_b32 s{sT3}, s{sT2}, s{sRole}",
        f"s_and_b32 s{sT3}, s{sT3}, 1",
        f"s_cselect_b32 s{sNxt}, s{sOffB}, s{sOffA}",
        f"s_cselect_b32 s{sT3}, s{sW}, 0",
        f"s_cmp_eq_u32 s{sT3}, 0",
        f"s_cselect_b32 s{sNT7n}, 1, 0",
        f"s_mul_i32 s{sT2}, s{sT2}, {QH}",
        f"s_add_u32 s{sNxt}, s{sNxt}, s{sT2}")]

def advance():
    return [sc(x) for x in (f"s_lshl_b32 s{sBit}, 1, s{sJob}", f"s_add_u32 s{sJob}, s{sJob}, 1", f"s_mov_b32 s{sOp}, s{sCurO}",
                            f"s_mov_b32 s{sCurO}, s{sNxt}", f"s_mov_b32 s{sNT7c}, s{sNT7n}")] + params_next() + \
           [sc(x) for x in (f"s_mov_b32 s{sQn}, s{sNxt}", f"s_sub_u32 s{sQn1}, s{sNxt}, 896", f"s_mov_b32 s{sStg}, s{sStgB}", f"s_mov_b32 s{sLoop}, 5")]

def build_tail(S):
    NT = S.NT; p = 15; g0 = S.gap; S.forbid = set()
    pv = [m for m in pv_list(NT, p) if m[0][0] == "pv"]
    mf = [sum_m(p, t) for t in range(NT - 2)] + pv[:NT - 2] + [sum_m(p, NT - 2), pv[NT - 2], sum_m(p, NT - 1), pv[NT - 1]] + pv[NT:]
    for dj in range(2, 8):
        for kt in (0, 1):
            war = [("pv", p, dj - 4, NT - 1)] if dj >= 4 else []
            S.add(S.fixed, Op(("vr", p, dj, kt), v_read(p, dj, kt), war, g0 + max(0, NT * (dj + 1) - 11 + kt)))
    chain = [I("s_waitcnt vmcnt(?)", "w", tag=("needq",)), sc(f"s_add_u32 s{sT0}, s{sNxt}, 24576"), sc(f"s_cmp_lg_u32 s{sNT7n}, 0"),
             sc(f"s_cselect_b32 s{sT0}, s{sT0}, {OOB:#x}"), sc(f"s_add_u32 s{sT1}, s{sCurO}, 24576")] + advance()
    for i, x in enumerate(chain): S.add(S.scal, Op(("ts", i), x, [("ts", i - 1)] if i else [], g0))
    for ds in range(4):
        r = aQ + (6 * 4 + ds) * 4
        S.add(S.fixed, Op(("q6", ds), I(f"buffer_load_dwordx4 {rs('a', r, 4)}, v{vDir}, s[{sQ}:{sQ+3}], s{sT0} offen{off(ds*64)}{fl(CFG['q6'])}", "L",
                                        rd=[("v", vDir), ("s", sT0)], wr=R("a", r, 4), tag=("q6",)), [("ts", 3)], g0 + 2 * NT + ds))
    S.fixed.sort(key=lambda o: o.target)
    for t in range(6):
        for ds in range(4): S.add(S.flex, Op(("qr", t, ds), q_read(t, ds), [("ts", 0)]))
    vL = vP + 14; vR = vP; vmx, vmn = vP + 22, vP + 23
    for t in range(NT):
        S.add(S.valu, Op(("lr", t), V(f"v_accvgpr_read_b32 v{vL+t}, a{aL+t*4}", [("a", aL + t * 4)], [vL + t]), [("sum", p, t)]))
        S.add(S.valu, Op(("rc", t), V(f"v_rcp_f32 v{vR+2*t}, v{vL+t}", [vL + t], [vR + 2 * t], "E"), [("lr", t)]))
    alll = [("lr", t) for t in range(NT)]
    for nm, d in (("max", vmx), ("min", vmn)):
        s_ = [vL + t for t in range(NT)]
        S.add(S.valu, Op((nm, 0), V(f"v_{nm}3_f32 v{d}, v{s_[0]}, v{s_[1]}, v{s_[2]}", s_[:3], [d]), alll))
        S.add(S.valu, Op((nm, 1), V(f"v_{nm}3_f32 v{d}, v{d}, v{s_[3]}, v{s_[4]}", [d, s_[3], s_[4]], [d]), [(nm, 0)]))
        S.add(S.valu, Op((nm, 2), V(f"v_{nm}3_f32 v{d}, v{d}, v{s_[5]}, v{s_[-1]}", [d, s_[5], s_[-1]], [d]), [(nm, 1)]))
    S.add(S.valu, Op(("c1",), V(f"v_cmp_lt_f32 vcc, s{sHi}, v{vmx}", [vmx], [("s", "vcc")]), [("max", 2)]))
    S.add(S.valu, Op(("c2",), V(f"v_cmp_gt_f32_e64 s[{sPair}:{sPair+1}], s{sLo}, v{vmn}", [vmn], R("s", sPair, 2)), [("min", 2)]))
    S.add(S.valu, Op(("vl",), V(f"v_add_u32 v{vLin}, {(-24576) & 0xffffffff:#x}, v{vLin}", [vLin], [vLin]), []))
    n0 = len(chain)
    for i, x in enumerate((f"s_or_b64 vcc, vcc, s[{sPair}:{sPair+1}]", f"s_cselect_b32 s{sT2}, s{sBit}, 0", f"s_or_b32 s{sFlag}, s{sFlag}, s{sT2}")):
        S.add(S.scal, Op(("ts", n0 + i), sc(x), [("ts", n0 + i - 1), ("c1",), ("c2",)], g0))
    softdone = [("cvt", p, 1, NT - 1, 0), ("cvt", p, 1, NT - 1, 1), ("cvt", p, 1, NT - 2, 1), ("cvt", p, 1, NT - 3, 1), ("cvt", p, 1, NT - 4, 1)]
    accJ = [(t, J) for J in range(4) for t in range(NT - 1, 4, -1)]
    early = dict(zip(accJ[:3], (vTmp, vS, vS + 8)))
    for (t, J), vb in early.items():
        b = Oreg(t, 2 * J)[1]
        for i in range(8):
            S.add(S.valu, Op(("ar", t, J, i), V(f"v_accvgpr_read_b32 v{vb+i}, a{b+i}", [("a", b + i)], [vb + i]), softdone + [("pv", p, 2 * J + (i >> 2), t)]))
    opt = []
    for J in range(3):
        for t in range(5):
            b = Oreg(t, 2 * J)[1]
            for i in range(8):
                opt.append(Op(("om", t, J, i), V(f"v_mul_f32 v{b+i}, v{vR+2*t}, v{b+i}", [b + i, vR + 2 * t], [b + i]),
                              [("rc", t), ("pv", p, 2 * J + (i >> 2), t)] + ([("om", t, J, i - 1)] if i else [])))
    for o in opt: S.add(S.valu, o)
    S.run(mf)
    S.valu = [o for o in S.valu if not (o.key[0] == "om" and not (o.key[3] & 1 and ("om",) + o.key[1:3] + (o.key[3] - 1,) in S.done))]
    S.flush()
    E = []
    order = list(early) + [(t, J) for t in range(5) for J in range(4)]
    late = [x for x in accJ if x not in early]
    for i, x in enumerate(late): order.insert(3 + 4 * (i + 1) + i, x)
    outs = []; free = [vTmp, vS, vS + 8]; nb = 0
    for (t, J) in order:
        k, b = Oreg(t, 2 * J)
        if k == "a":
            if (t, J) in early: b = early[(t, J)]
            else:
                vb = free[nb % 3]; nb += 1
                for i in range(8): E.append(V(f"v_accvgpr_read_b32 v{vb+i}, a{b+i}", [("a", b + i)], [vb + i]))
                b = vb
        for i in range(4):
            if ("om", t, J, 2 * i) in S.done: continue
            E.append(V(f"v_pk_mul_f32 {rs('v', b+2*i, 2)}, {rs('v', b+2*i, 2)}, {rs('v', vR+2*t, 2)} op_sel_hi:[1,0]",
                       [b + 2 * i, b + 2 * i + 1, vR + 2 * t], [b + 2 * i, b + 2 * i + 1]))
        for i in range(4):
            E.append(V(f"v_cvt_pk_bf16_f32 v{b+i}, v{b+2*i}, v{b+2*i+1}", [b + 2 * i, b + 2 * i + 1], [b + i]))
        if t == 6:
            outs.append(I(f"buffer_store_dwordx4 {rs('v', b, 4)}, v{vDir}, s[{sO}:{sO+3}], s{sT1} offen{off(J*64)}{fl(CFG['o6'])}", "S",
                          rd=R("v", b, 4) + [("v", vDir), ("s", sT1)]))
        else:
            ad = vSt0 + (J & 1)
            outs.append(I(f"ds_write_b128 v{ad}, {rs('v', b, 4)}{off(t*4096 + (J >> 1)*1024)}", "W", rd=R("v", b, 4) + [("v", ad)]))
        if len(outs) == CFG["wgrp"]: E += outs; outs = []
    nw = sum(x.k == "W" for x in E + outs)
    E += outs
    E.append(I(f"s_waitcnt vmcnt(?) lgkmcnt({min(nw, 15)})", "w", tag=("needq6",)))
    for ins in fix_hazards(E, S.out[-10:]): S.emit(ins)

class Job: pass
def build_job(NT):
    carry = find_carry(NT)
    S = Sched(NT)
    for ds in range(4): S.done.add(("kr", 0, 0, ds))
    qo = lambda p: 2 <= p <= 13
    def extra(S, p, mf):
        if qo(p) and (p & 1):
            S.add(S.scal, Op(("lp", p), sc(f"s_sub_u32 s{sLoop}, s{sLoop}, 1"), [("uq", p, 3), ("wb", p)], S.gap + len(mf) - 6))
    st = run_phases(S, range(16), carry, qo, extra)
    tail0 = len(S.out)
    build_tail(S)
    for p in range(2, 16, 2):
        assert S.out[st[p]].k == "M"
        st[p] += 1
    seg = lambda a, b: S.out[a:b]
    bodies = [seg(st[p], st[p + 2]) for p in range(2, 14, 2)]
    for b in bodies[1:]:
        assert [x.t for x in b] == [x.t for x in bodies[0]], "loop body not periodic"
    J = Job(); J.NT = NT
    J.head = seg(0, st[2]); J.body = bodies[0]; J.final = seg(st[14], tail0); J.tail = seg(tail0, len(S.out))
    k = [x.t for x in J.body].index(f"s_sub_u32 s{sLoop}, s{sLoop}, 1")
    assert not any(x.k == "s" and not x.t.startswith("s_nop") for x in J.body[k + 1:])
    J.body.append(sc(f"s_cbranch_scc0 L_body{NT}"))
    J.carry = carry
    return J

def sigma(x, d, t):
    return [f"v_bfe_u32 v{d}, v{x}, 1, 1", f"v_lshrrev_b32 v{t}, 3, v{x}", f"v_xor_b32 v{t}, v{t}, v{x}", f"v_and_b32 v{t}, 1, v{t}",
            f"v_lshl_or_b32 v{d}, v{t}, 1, v{d}", f"v_and_b32 v{t}, 4, v{x}", f"v_or_b32 v{d}, v{d}, v{t}"]
def swz_addr(row, col, d, t):
    return sigma(row, d, t) + [f"v_xor_b32 v{d}, v{d}, v{col}", f"v_lshlrev_b32 v{d}, 4, v{d}", f"v_and_b32 v{t}, 7, v{row}",
                               f"v_lshl_add_u32 v{d}, v{t}, 7, v{d}", f"v_lshrrev_b32 v{t}, 3, v{row}"]

def stamp(i):
    if not CFG["stamp"]: return []
    L = [sc(x) for x in (f"s_memtime s[{sTm}:{sTm+1}]", f"s_memrealtime s[{sTm+2}:{sTm+3}]", "s_waitcnt lgkmcnt(0)",
         f"v_mov_b32 v{vX+2}, 0", "s_mov_b64 exec, 1")]
    for n, (a, b) in enumerate(((sTm, sTm + 2), (80, 82), (84, 86))):
        L += [sc(f"v_mov_b32 v{vX}, s{a}"), sc(f"v_mov_b32 v{vX+1}, s{b}"),
              I(f"buffer_store_dwordx2 v[{vX}:{vX+1}], v{vX+2}, s[{sDbg}:{sDbg+3}], s{sStampOff} offen offset:{8*n}", "S"), sc("s_nop 1")]
    return L + [sc("s_mov_b64 exec, -1"), sc(f"s_add_u32 s{sStampOff}, s{sStampOff}, 32"), sc("s_nop 3")]

def prologue():
    P = []
    A = lambda t: P.append(sc(t))
    ps = lambda i: A(f"s_memrealtime s[{80+2*i}:{81+2*i}]") if CFG["pstamp"] else None
    ps(0)
    A("s_cmp_ge_u32 s2, 256"); A("s_cbranch_scc1 L_exit")
    if CFG["again"]:
        A(f"s_mov_b32 s90, {CFG['again']}"); P.append(I("L_again:", "#"))
    A("s_load_dwordx4 s[64:67], s[0:1], 0"); A("s_load_dwordx4 s[68:71], s[0:1], 16")
    if CFG["stamp"]: A("s_load_dwordx2 s[72:73], s[0:1], 40")
    if CFG["codepf"]:
        A("s_getpc_b64 s[74:75]"); P.append(I("L_pf:", "#")); A("v_lshlrev_b32 v20, 7, v0")
        for i in range(CFG["codepf"]):
            if i: A("v_add_u32 v20, 0x8000, v20")
            A("v_min_u32 v27, L_code_end-L_pf-4, v20")
            P.append(I("global_load_dword v26, v27, s[74:75]", "L"))
    A("v_lshrrev_b32 v20, 6, v0"); A("v_and_b32 v21, 63, v0"); A(f"v_readfirstlane_b32 s{sW}, v20")
    A(f"s_and_b32 s{sT0}, s2, 7"); A(f"s_lshr_b32 s{sT1}, s2, 3"); A(f"s_and_b32 s{sRole}, s{sT1}, 1"); A(f"s_lshr_b32 s{sT1}, s{sT1}, 1")
    A(f"s_lshl_b32 s{sT0}, s{sT0}, 4"); A(f"s_add_u32 s{sT0}, s{sT0}, s{sT1}")
    if CFG["samehead"]: A(f"s_mov_b32 s{sT0}, 0")
    if CFG["badpair"]: A(f"s_lshr_b32 s{sT0}, s2, 1"); A(f"s_and_b32 s{sRole}, s2, 1")
    A(f"s_mul_i32 s{sT1}, s{sT0}, {4*QH}"); A(f"s_lshl_b32 s{sT0}, s{sT0}, 19")
    A("v_lshrrev_b32 v22, 3, v21"); A("v_and_b32 v23, 7, v21")
    for x in sigma(22, 24, 25): A(x)
    A("v_xor_b32 v24, v24, v23"); A("v_lshlrev_b32 v24, 4, v24"); A(f"v_lshl_add_u32 v{vQO0}, v22, 8, v24")
    A(f"v_xor_b32 v{vQO1}, 32, v{vQO0}")
    A(f"s_and_b32 s{sT2}, s{sW}, 1"); A(f"s_lshl_b32 s{sT2}, s{sT2}, 5"); A(f"s_lshl_b32 s{sT3}, s{sW}, 11"); A(f"s_lshl_b32 s{sWoff}, s{sW}, 12")
    A(f"v_xor_b32 v{vDKV}, s{sT2}, v{vQO0}"); A(f"v_add_u32 v{vDKV}, s{sT3}, v{vDKV}")
    A(f"s_mul_i32 s{sStgB}, s{sW}, 24576"); A(f"s_add_u32 s{sStgB}, s{sStgB}, 65536")
    A(f"s_mul_i32 s{sOffA}, s{sW}, {112*256}"); A(f"s_mul_i32 s{sOffB}, s{sW}, {96*256}"); A(f"s_add_u32 s{sOffB}, s{sOffB}, {464*256}")
    A(f"s_cmp_eq_u32 s{sW}, 0"); A(f"s_cselect_b32 s{sOffB}, {448*256}, s{sOffB}")
    A(f"s_mov_b32 s{sJob}, -1")
    P += params_next()
    A("v_and_b32 v22, 15, v21"); A("v_lshrrev_b32 v23, 4, v21")
    A(f"v_lshlrev_b32 v{vDir}, 8, v22"); A(f"v_lshl_add_u32 v{vDir}, v23, 4, v{vDir}")
    A("s_waitcnt lgkmcnt(0)")
    for srd, src, o, n in ((sK, 66, sT0, 4 * KH), (sQ, 64, sT1, 4 * QH), (sV, 68, sT0, 4 * KH), (sO, 70, sT1, 0 if CFG["nostore"] else 4 * QH)):
        A(f"s_add_u32 s{srd}, s{src}, s{o}"); A(f"s_addc_u32 s{srd+1}, s{src+1}, 0"); A(f"s_mov_b32 s{srd+2}, {n}"); A(f"s_mov_b32 s{srd+3}, 0x20000")
    if CFG["stamp"]:
        A(f"s_mov_b32 s{sDbg}, s72"); A(f"s_mov_b32 s{sDbg+1}, s73"); A(f"s_mov_b32 s{sDbg+2}, 0x1000000"); A(f"s_mov_b32 s{sDbg+3}, 0x20000")
        A(f"s_lshl_b32 s{sStampOff}, s2, 2"); A(f"s_add_u32 s{sStampOff}, s{sStampOff}, s{sW}"); A(f"s_lshl_b32 s{sStampOff}, s{sStampOff}, 10")
    P += stamp(0)
    def kv(srd, blk, ldsbase, tag):
        for a in (0, 1):
            P.append(sc(f"s_add_u32 m0, s{sWoff}, {ldsbase + a*(1024-128)}", wr=M0)); A(f"s_mov_b32 s{sT0}, {blk*8192}")
            P.append(dma(vDKV, srd, sT0, a * 128, CFG["kv"], tag))
    kv(sK, 0, 3 * 16384, ("grp", -1))
    for t in range(6):
        for a in (0, 1):
            P.append(sc(f"s_add_u32 m0, s{sStgB}, {t*4096 + a*896}", wr=M0)); A(f"s_add_u32 s{sT1}, s{sNxt}, {t*4096}")
            for nn in (0, 1): P.append(dma(vQO0 + nn, sQ, sT1, nn * 2048 + a * 128, CFG["q"], ("q",)))
    A(f"s_add_u32 s{sT1}, s{sNxt}, 24576"); A(f"s_cmp_lg_u32 s{sNT7n}, 0"); A(f"s_cselect_b32 s{sT1}, s{sT1}, {OOB:#x}")
    for ds in range(4):
        r = aQ + (6 * 4 + ds) * 4
        P.append(I(f"buffer_load_dwordx4 {rs('a', r, 4)}, v{vDir}, s[{sQ}:{sQ+3}], s{sT1} offen{off(ds*64)}{fl(CFG['q6'])}", "L", tag=("q6",)))
    kv(sK, 1, 0, ("grp", 0)); kv(sV, 0, 2048, ("grp", 0))
    kv(sK, 2, 16384, ("grp", 1)); kv(sV, 1, 16384 + 2048, ("grp", 1))
    ps(1)
    for x in swz_addr(22, 23, 24, 25): A(x)
    A(f"v_lshl_add_u32 v{vK0}, v25, 12, v24"); A(f"v_add_u32 v{vK0}, 0x8000, v{vK0}"); A(f"v_xor_b32 v{vK1}, 64, v{vK0}")
    A(f"v_lshl_add_u32 v{vSt0}, v25, 11, v24"); A(f"v_add_u32 v{vSt0}, s{sStgB}, v{vSt0}"); A(f"v_xor_b32 v{vSt1}, 64, v{vSt0}")
    A(f"v_lshl_add_u32 v{vLin}, v21, 4, s{sStgB}")
    A("v_lshrrev_b32 v22, 2, v21"); A("v_and_b32 v23, 3, v21")
    for x in swz_addr(22, 23, 24, 25): A(x)
    A(f"v_lshl_add_u32 v{vV0}, v25, 12, v24"); A(f"v_add_u32 v{vV0}, 0x8000, v{vV0}"); A(f"v_xor_b32 v{vV1}, 64, v{vV0}")
    A(f"s_mov_b32 s{sC}, {f2u(SCALE):#x}"); A(f"s_mov_b32 s{sLo}, {f2u(2.0**CFG['lo']):#x}"); A(f"s_mov_b32 s{sHi}, {f2u(2.0**CFG['hi']):#x}")
    A(f"s_mov_b32 s{sFlag}, {CFG['forcefb']}")
    A(f"s_mov_b32 s{sK0}, {3*8192}"); A(f"s_mov_b32 s{sK1}, {3*8192 + 128 - 1024}")
    A(f"s_mov_b32 s{sV0}, {2*8192 - 2048}"); A(f"s_mov_b32 s{sV1}, {2*8192 + 128 - 3072}")
    A(f"s_add_u32 s{sM}, s{sWoff}, 32768"); A(f"s_mov_b32 s{sCurO}, {OOB:#x}")
    A("v_cmp_eq_u32 vcc, 0, v23"); A("v_mov_b32 v24, 0x3f803f80"); A("s_nop 0"); A("v_cndmask_b32 v22, 0, v24, vcc")
    for i in range(4): A(f"v_accvgpr_write_b32 a{aOne+i}, v22")
    P += advance()
    if CFG["pstamp"]:
        P.append(I(f"s_waitcnt vmcnt({CFG['pstamp']})", "w")); ps(2)
    P.append(I("s_waitcnt vmcnt(8)", "w")); ps(3); P.append(I("s_barrier", "B"))
    for ds in range(4): P.append(k_read(0, 0, ds))
    for t in range(6):
        for ds in range(4): P.append(q_read(t, ds))
    P.append(I("s_waitcnt lgkmcnt(0)", "w"))
    return P

def job_switch():
    return [I("L_next:", "#")] + stamp(1) + [sc(x) for x in (f"s_cmp_eq_u32 s{sJob}, 4", "s_cbranch_scc1 L_final", f"s_cmp_lg_u32 s{sNT7c}, 0", "s_cbranch_scc0 L_job6")]

def final_drain():
    L = [I("L_final:", "#")]
    rd = lambda i: I(f"ds_read_b128 {rs('v', vO + 4*i, 4)}, v{vLin}{off(i*1024)}", "D", rd=[("v", vLin)], wr=R("v", vO + 4 * i, 4))
    for i in range(8): L.append(rd(i))
    for i in range(24):
        L.append(I(f"s_waitcnt lgkmcnt({min(24, i + 8) - i - 1})", "w"))
        L.append(o_store(vO + 4 * i, i & 3, sOp))
        if i + 8 < 24: L.append(rd(i + 8))
        if i & 3 == 3: L.append(sc(f"s_add_u32 s{sOp}, s{sOp}, 4096"))
    if CFG["stamp"]: L += stamp(2) + [I("s_waitcnt vmcnt(0)", "w")] + stamp(3)
    return L

def fallback():
    L = []; A = L.append
    q, k, s0, pb, vf, o, lacc, m, t0, va, pa = 20, 36, 52, 60, 64, 72, 104, 108, 109, 112, 114
    sJ, sN, sRow, sKb, sI, sU = 76, 77, 78, 79, 88, 89
    MF = "v_mfma_f32_16x16x32_bf16"
    A(f"s_cmp_eq_u32 s{sFlag}, 0"); A("s_cbranch_scc1 L_done")
    A("s_waitcnt vmcnt(0) lgkmcnt(0)")
    A("v_and_b32 v21, 63, v0"); A("v_lshrrev_b32 v22, 2, v21"); A("v_and_b32 v23, 3, v21")
    L += swz_addr(22, 23, 24, 25)
    A(f"v_lshl_add_u32 v{va}, v25, 11, v24"); A(f"v_add_u32 v{va}, s{sStgB}, v{va}"); A(f"v_xor_b32 v{va+1}, 64, v{va}")
    A(f"v_xor_b32 v{pa}, 16, v21"); A(f"v_lshlrev_b32 v{pa}, 2, v{pa}"); A(f"v_xor_b32 v{pa+1}, 32, v21"); A(f"v_lshlrev_b32 v{pa+1}, 2, v{pa+1}")
    A(f"s_mov_b32 s{sJob}, -1")
    A("L_fb_job:")
    L += [x.t for x in params_next()]
    A(f"s_add_u32 s{sJob}, s{sJob}, 1"); A(f"s_cmp_eq_u32 s{sJob}, 4"); A("s_cbranch_scc1 L_done")
    A(f"s_lshr_b32 s{sJ}, s{sFlag}, s{sJob}"); A(f"s_and_b32 s{sJ}, s{sJ}, 1"); A("s_cbranch_scc0 L_fb_job")
    A(f"s_add_u32 s{sN}, s{sNT7n}, 6"); A(f"s_mov_b32 s{sRow}, s{sNxt}")
    A("L_fb_tile:")
    for ds in range(4): A(f"buffer_load_dwordx4 {rs('v', q+4*ds, 4)}, v{vDir}, s[{sQ}:{sQ+3}], s{sRow} offen{off(ds*64)}")
    def scores(dst):
        for ds in range(4): A(f"buffer_load_dwordx4 {rs('v', k+4*ds, 4)}, v{vDir}, s[{sK}:{sK+3}], s{sKb} offen{off(ds*64)}")
        A("s_waitcnt vmcnt(0)")
        for ds in range(4): A(f"{MF} {rs('v', dst, 4)}, {rs('v', k+4*ds, 4)}, {rs('v', q+4*ds, 4)}, {'0' if ds == 0 else rs('v', dst, 4)}")
        A(f"s_add_u32 s{sKb}, s{sKb}, 4096"); A("s_nop 7")
    A(f"v_mov_b32 v{m}, 0xff800000"); A(f"s_lshl_b32 s{sKb}, s{sJob}, 17"); A(f"s_mov_b32 s{sI}, 31")
    A("L_fb_max:")
    scores(s0)
    A(f"v_max3_f32 v{m}, v{m}, v{s0}, v{s0+1}"); A(f"v_max3_f32 v{m}, v{m}, v{s0+2}, v{s0+3}")
    A(f"s_sub_u32 s{sI}, s{sI}, 1"); A("s_cbranch_scc0 L_fb_max")
    for i in (0, 1):
        A(f"ds_bpermute_b32 v{t0}, v{pa+i}, v{m}"); A("s_waitcnt lgkmcnt(0)"); A(f"v_max_f32 v{m}, v{m}, v{t0}")
    for i in range(36): A(f"v_mov_b32 v{o+i}, 0")
    A(f"s_lshl_b32 s{sKb}, s{sJob}, 17"); A(f"s_mov_b32 s{sI}, 15")
    A("L_fb_pv:")
    for kt in (0, 1):
        for a in (0, 1):
            A(f"s_add_u32 m0, s{sStgB}, {kt*4096 + a*896}"); A(f"s_add_u32 s{sU}, s{sKb}, {kt*4096}")
            for nn in (0, 1): A(f"buffer_load_dwordx4 v{vQO0+nn}, s[{sV}:{sV+3}], s{sU} offen{off(nn*2048 + a*128)} lds")
    scores(s0); scores(s0 + 4)
    for r in range(8): A(f"v_sub_f32 v{s0+r}, v{s0+r}, v{m}")
    for r in range(8): A(f"v_mul_f32 v{s0+r}, s{sC}, v{s0+r}")
    for r in range(8): A(f"v_exp_f32 v{s0+r}, v{s0+r}")
    A("s_nop 0")
    for r in range(4): A(f"v_cvt_pk_bf16_f32 v{pb+r}, v{s0+2*r}, v{s0+2*r+1}")
    A("s_nop 1")
    A(f"{MF} {rs('v', lacc, 4)}, {rs('a', aOne, 4)}, {rs('v', pb, 4)}, {rs('v', lacc, 4)}")
    for dj in range(8):
        J, h = dj >> 1, dj & 1; f = vf + 4 * (dj & 1)
        for kt in (0, 1): A(f"ds_read_b64_tr_b16 {rs('v', f+2*kt, 2)}, v{va + (J & 1)}{off(kt*4096 + (J >> 1)*1024 + 8*h)}")
        A("s_waitcnt lgkmcnt(0)")
        A(f"{MF} {rs('v', o+4*dj, 4)}, {rs('v', f, 4)}, {rs('v', pb, 4)}, {rs('v', o+4*dj, 4)}")
    A(f"s_sub_u32 s{sI}, s{sI}, 1"); A("s_cbranch_scc0 L_fb_pv")
    A("s_nop 7"); A(f"v_rcp_f32 v{t0}, v{lacc}"); A("s_nop 0")
    for i in range(32): A(f"v_mul_f32 v{o+i}, v{t0}, v{o+i}")
    for J in range(4):
        for i in range(4): A(f"v_cvt_pk_bf16_f32 v{o+8*J+i}, v{o+8*J+2*i}, v{o+8*J+2*i+1}")
        A(f"buffer_store_dwordx4 {rs('v', o+8*J, 4)}, v{vDir}, s[{sO}:{sO+3}], s{sRow} offen{off(J*64)}")
    A("s_waitcnt vmcnt(0)")
    A(f"s_add_u32 s{sRow}, s{sRow}, 4096"); A(f"s_sub_u32 s{sN}, s{sN}, 1"); A(f"s_cmp_lg_u32 s{sN}, 0"); A("s_cbranch_scc1 L_fb_tile")
    A("s_branch L_fb_job")
    A("L_done:")
    return [I(x, "#" if x.endswith(":") else "s") for x in L]

def resolve_vm(pro, sw, jobs, fin):
    best = {}
    for seqn in ([7, 7, 7, 7], [7, 6, 7, 6], [6, 7, 6, 7]):
        dyn = [(x, 0) for x in pro]
        for j, nt in enumerate(seqn):
            J = jobs[nt]; b = 16 * j
            dyn += [(x, b) for x in sw] + [(x, b) for x in J.head]
            for it in range(6): dyn += [(x, b + 2 * it) for x in J.body]
            dyn += [(x, b) for x in J.final + J.tail]
        dyn += [(x, 64) for x in sw + fin]
        vm = []; epoch = -2
        for x, b in dyn:
            if x.k == "B": epoch = (x.tag[1] + b) if x.tag else -1
            if x.k == "D" and x.tag and x.tag[0] == "ring":
                assert x.tag[1] + b == epoch, ("ring read outside its epoch", x.t, x.tag, b, epoch)
            if x.k in "XLS":
                tg = x.tag
                if tg and tg[0] == "grp":
                    tg = ("grp", tg[1] + b)
                    assert epoch == -2 or tg[1] - 4 < epoch, ("dma overwrites live group", x.t)
                vm.append(tg)
            if x.k == "w" and x.tag:
                want = {"needgrp": lambda: ("grp", x.tag[1] + b), "needq": lambda: ("q",), "needq6": lambda: ("q6",)}[x.tag[0]]()
                idx = max(i for i, t in enumerate(vm) if t == want)
                n = min(63, len(vm) - 1 - idx)
                best[id(x)] = (x, min(n, best.get(id(x), (x, 99))[1]))
        seq = [x for x, _ in dyn]
        check_lgkm(seq)
        bad = hazards(seq)
        assert not bad, bad[:5]
    for x, n in best.values(): x.t = x.t.replace("?", str(n))

def main():
    jobs = {nt: build_job(nt) for nt in (7, 6)}
    pro = prologue(); sw = job_switch(); fin = final_drain()
    resolve_vm(pro, sw, jobs, fin)
    for nt in (7, 6):
        J = jobs[nt]
        nm = lambda s: sum(x.k == "M" for x in s)
        info = " ".join(f"{n}: {cycles(s)}c iss {issue_sum(s)} pipe {nm(s)*16} |" for n, s in (("head", J.head), ("body", J.body), ("final", J.final), ("tail", J.tail)))
        tot = cycles(J.head + 6 * J.body + J.final + J.tail + sw)
        print(f"NT={nt} carry={len(J.carry)} {info} total={tot}", file=sys.stderr)
    o = []
    o.append("; @launch grid=(256,1,1) block=(256,1,1) lds=163840")
    o.append('.amdgcn_target "amdgcn-amd-amdhsa--gfx950"')
    o += [".text", f".globl {NAME}_kernel", ".p2align 8", f".type {NAME}_kernel,@function", f"{NAME}_kernel:"]
    put = lambda s: o.extend(("" if x.k == "#" else "    ") + x.t for x in s)
    mt = lambda i: [sc(f"s_memtime s[{80+2*i}:{81+2*i}]")] if CFG["stamp"] else []
    put(pro); put(sw)
    for nt in (7, 6):
        J = jobs[nt]
        o.append(f"L_job{nt}:"); put(mt(0)); put(J.head); put(mt(1))
        o.append(f"L_body{nt}:"); put(J.body); put(mt(2)); put(J.final); put(mt(3)); put(J.tail)
        o.append("    s_branch L_next")
    put(fin); put(fallback())
    if CFG["again"]:
        o += ["    s_waitcnt vmcnt(0) lgkmcnt(0)", "    s_barrier", "    s_sub_u32 s90, s90, 1", "    s_cbranch_scc0 L_again"]
    o += ["L_exit:", "    s_endpgm", "L_code_end:"]
    o += ['.section .rodata,"a"', ".p2align 6", f".amdhsa_kernel {NAME}_kernel",
          "  .amdhsa_next_free_vgpr 512", "  .amdhsa_next_free_sgpr 102", "  .amdhsa_accum_offset 256",
          "  .amdhsa_group_segment_fixed_size 0", "  .amdhsa_kernarg_size 48", "  .amdhsa_user_sgpr_count 2",
          "  .amdhsa_user_sgpr_kernarg_segment_ptr 1", "  .amdhsa_system_sgpr_workgroup_id_x 1", ".end_amdhsa_kernel"]
    open(sys.argv[1], "w").write("\n".join(o) + "\n")

main()
```

```python
import sys, math, struct, re
from asmlib import *

NAME = "standalone__gqa_softmax__near_ridge"
CFG = dict(kv="", q="nt", o="nt", q6="", o6="", stamp=0, samehead=0, nostore=0, again=0,
           th=28, cl=2, sp=11, sp2=11, pstamp=0, badpair=0, diag_rt=0, diag_cyc=0, diag_tot=0, wgrp=2, lo=-30, hi=30, forcefb=0, codepf=1)
for a in sys.argv[2:]:
    k, v = a.split("=", 1)
    assert k in CFG, k
    CFG[k] = int(v) if re.fullmatch(r"-?\d+", v) else v.replace("+", " ")

QH, KH = 217088, 131072
SCALE = math.log2(math.e) / math.sqrt(128.0)
def f2u(x): return struct.unpack("<I", struct.pack("<f", x))[0]

vK0, vK1, vV0, vV1, vDKV, vQO0, vQO1, vLin, vSt0, vSt1, vDir = range(1, 12)
vTmp = 12
vS = 20
vP = 36
vO = 92
vX = 252
aQ, aK, aV, aL, aO, aOne = 0, 112, 144, 160, 188, 252
sQ, sK, sV, sO = 4, 8, 12, 16
(sC, sW, sJob, sK0, sK1, sV0, sV1, sM, sQn, sQn1, sOp, sStg, sLoop, sCurO, sNxt, sNT7c, sNT7n, sFlag, sRole,
 sT0, sT1, sT2, sT3, sWoff, sStgB, sOffA, sOffB, sLo, sHi, sBit) = range(20, 50)
sPair = 50
sDbg = 52
sStampOff = 56
sTm = 58
OOB = 0x100000

def Oreg(t, dj):
    return ("v", vO + t * 32 + dj * 4) if t < 5 else ("a", aO + (t - 5) * 32 + dj * 4)
def Preg(p, t): return vP + (p & 1) * 28 + t * 4
def sc(t, rd=(), wr=()): return I(t, "s", rd=rd, wr=wr)
def fl(x): return (" " + x) if x else ""
def off(x): return f" offset:{x}" if x else ""
def V(t, rd, wr, k="V"): return I(t, k, rd=[("v", r) if isinstance(r, int) else r for r in rd], wr=[("v", r) if isinstance(r, int) else r for r in wr])
COST = {"V": 1, "E": 2, "D": 1}

class Op:
    def __init__(self, key, ins, deps=(), target=None, rel=None):
        self.key = key; self.ins = ins; self.deps = list(deps); self.target = target; self.rel = rel

class Sched:
    def __init__(self, NT):
        self.NT = NT
        self.out = []; self.done = set(); self.pend = []
        self.valu = []; self.fixed = []; self.scal = []; self.flex = []
        self.forbid = set(); self.gap = 0
        self.bykey = {}; self.th = CFG["th"]
    def add(self, q, op):
        q.append(op); self.bykey[op.key] = op
    def emit(self, ins, key=None):
        if ins.k == "w":
            m = re.search(r"lgkmcnt\((\d+)\)", ins.t)
            if m:
                n = int(m.group(1))
                if n < len(self.pend): self.pend = self.pend[len(self.pend) - n:] if n else []
        self.out.append(ins)
        if ins.k in "DW": self.pend.append(ins)
        if key is not None: self.done.add(key)
    def haz(self, ins):
        dist = 0; miss = 0
        for p in reversed(self.out):
            miss = max(miss, need(p, ins) - dist)
            dist += states(p)
            if dist >= 8: break
        return miss
    def lgkm_need(self, inss):
        idx = -1
        for ins in inss:
            t = set(ins.rd) | set(ins.c) | set(ins.wr)
            for i, p in enumerate(self.pend):
                if set(p.wr) & t: idx = max(idx, i)
        return None if idx < 0 else min(15, len(self.pend) - 1 - idx)
    def ready(self, op):
        return op.key not in self.forbid and all(d in self.done for d in op.deps) and \
            (op.target is None or op.target <= self.gap) and self.haz(op.ins) <= 0
    def put(self, op):
        for q in (self.valu, self.fixed, self.scal, self.flex):
            if op in q: q.remove(op)
        n = self.lgkm_need([op.ins])
        if n is not None: self.emit(I(f"s_waitcnt lgkmcnt({n})", "w"))
        m = self.haz(op.ins)
        if m > 0: self.emit(I(f"s_nop {m-1}", "s"))
        self.emit(op.ins, op.key)
    def force(self, key):
        if key in self.done: return
        op = self.bykey[key]
        assert key not in self.forbid, key
        for d in op.deps: self.force(d)
        self.put(op)
    def pick(self, kinds, n):
        r = []
        for op in self.valu[:48]:
            if op.ins.k in kinds and self.ready(op):
                r.append(op)
                if len(r) == n: break
        return r
    def backlog(self):
        return sum(COST[o.ins.k] for o in self.valu if o.rel is not None and o.rel in self.done)
    def fill(self, room):
        while room > 0:
            e = self.pick("E", 1); v = self.pick("V", 2)
            if room >= 2 and e and (len(v) < 2 or self.valu.index(e[0]) < self.valu.index(v[0])):
                self.put(e[0]); room -= 2
            elif v:
                self.put(v[0]); room -= 1
            elif e and self.backlog() > self.th - 4:
                self.put(e[0]); room -= 2
            else: break
        while self.backlog() > self.th:
            c = self.pick("EV", 1)
            if not c: break
            self.put(c[0])
    def run(self, mf, look=()):
        allm = list(mf) + list(look)
        for i, (key, ins, deps) in enumerate(mf):
            for d in deps: self.force(d)
            n = self.lgkm_need([ins])
            if n is not None: self.emit(I(f"s_waitcnt lgkmcnt({n})", "w"))
            m = self.haz(ins)
            if m > 0: self.emit(I(f"s_nop {m-1}", "s"))
            self.emit(ins, key)
            fx = next((o for o in self.fixed if self.ready(o)), None)
            slot1 = False
            nxt = [x[1] for x in allm[i + 1:i + 2]]
            if self.lgkm_need(nxt) is not None:
                nxt = [x[1] for x in allm[i + 1:i + 5]]
            if fx is not None and fx.ins.k != "B": nxt = nxt + [fx.ins]
            n = self.lgkm_need(nxt)
            if n is not None:
                self.emit(I(f"s_waitcnt lgkmcnt({n})", "w")); slot1 = True
                if fx is not None and fx.ins.k == "B": fx = None
            if fx is not None and fx.ins.k == "B":
                self.put(fx); self.fill(1)
            else:
                if not slot1 and self.scal and self.ready(self.scal[0]):
                    if not (fx is not None and fx.ins.k == "X" and ("m", 0) in self.scal[0].ins.wr): self.put(self.scal[0])
                room = 2
                if fx is not None:
                    self.put(fx); room = 1 if fx.ins.k == "D" else 0
                if room == 2 and self.backlog() == 0 and not self.pick("E", 1):
                    f = next((o for o in self.flex if self.ready(o)), None)
                    if f is not None: self.put(f); room -= 1
                if room: self.fill(room)
            self.gap += 1
    def flush(self):
        for q in (self.fixed, self.flex, self.scal, self.valu):
            for op in list(q):
                if op.key not in self.forbid and op.key not in self.done: self.force(op.key)

def k_read(p, kt, ds):
    o = ((p - 1) & 1) * 16384 + kt * 8192 + (ds >> 1) * 1024
    r = aK + kt * 16 + ds * 4; ad = vK0 + (ds & 1)
    return I(f"ds_read_b128 {rs('a', r, 4)}, v{ad}{off(o)}", "D", rd=[("v", ad)], wr=R("a", r, 4), tag=("ring", p - 1))
def v_read(p, dj, kt):
    J, h = dj >> 1, dj & 1
    o = (p & 1) * 16384 + kt * 8192 + 2048 + (J >> 1) * 1024 + 8 * h
    r = aV + (dj & 3) * 4 + 2 * kt; ad = vV0 + (J & 1)
    return I(f"ds_read_b64_tr_b16 {rs('a', r, 2)}, v{ad}{off(o)}", "D", rd=[("v", ad)], wr=R("a", r, 2), tag=("ring", p))
def q_read(t, ds):
    r = aQ + (t * 4 + ds) * 4; ad = vSt0 + (ds & 1)
    return I(f"ds_read_b128 {rs('a', r, 4)}, v{ad}{off(t*4096 + (ds >> 1)*1024)}", "D", rd=[("v", ad)], wr=R("a", r, 4))
def dma(vo, srd, so, o, flags, tag):
    return I(f"buffer_load_dwordx4 v{vo}, s[{srd}:{srd+3}], s{so} offen{off(o)}{fl(flags)} lds", "X", rd=[("v", vo), ("m", 0), ("s", so)], tag=tag)
def o_store(r, k, so):
    a, nn = k & 1, k >> 1
    return I(f"buffer_store_dwordx4 {rs('v', r, 4)}, v{vQO0+nn}, s[{sO}:{sO+3}], s{so} offen{off(nn*2048 + a*128)}{fl(CFG['o'])}", "S",
             rd=R("v", r, 4) + [("v", vQO0 + nn), ("s", so)])
M0 = [("m", 0)]

def pv_list(NT, p):
    L = []
    for dj in range(8):
        for t in range(NT):
            deps = [("cvt", p, kt, t, h) for kt in (0, 1) for h in (0, 1)] + [("vr", p, dj, 0), ("vr", p, dj, 1)]
            L.append((("pv", p, dj, t), mfma(Oreg(t, dj), ("a", aV + (dj & 3) * 4), ("v", Preg(p, t)), c0=(p == 0)), deps))
        if dj < NT: L.append(sum_m(p, dj))
    return L
def sum_m(p, t):
    return (("sum", p, t), mfma(("a", aL + t * 4), ("a", aOne), ("v", Preg(p, t)), c0=(p == 0)),
            [("cvt", p, kt, t, h) for kt in (0, 1) for h in (0, 1)])

def phase_mf(NT, p, with_pv):
    pv = pv_list(NT, p - 1) if with_pv else []
    L = []; n = 0
    for c in range(2 * NT):
        kt, t = divmod(c, NT)
        g = p * 2 * NT + c; sb = vS + (g & 3) * 4
        for ds in range(4):
            deps = [("kr", p, kt, ds)]
            if ds == 0 and g - 4 >= 0:
                pp, cc = divmod(g - 4, 2 * NT)
                deps += [("cvt", pp, cc // NT, cc % NT, h) for h in (0, 1)]
            L.append((("qk", p, kt, t, ds), mfma(("v", sb), ("a", aK + kt * 16 + ds * 4), ("a", aQ + (t * 4 + ds) * 4), c0=(ds == 0)), deps))
        upto = (9 * (c + 1)) // 2 if with_pv else 0
        L += pv[n:upto]; n = upto
    return L

def add_softmax(S, p):
    NT = S.NT
    for c in range(2 * NT):
        kt, t = divmod(c, NT)
        sb = vS + ((p * 2 * NT + c) & 3) * 4
        rel = ("qk", p, kt, t, 3)
        mul = lambda r: Op(("mul", p, kt, t, r), V(f"v_mul_f32 v{sb+r}, s{sC}, v{sb+r}", [sb + r], [sb + r]), [rel], rel=rel)
        ex = lambda r: Op(("exp", p, kt, t, r), V(f"v_exp_f32 v{sb+r}, v{sb+r}", [sb + r], [sb + r], "E"), [("mul", p, kt, t, r)], rel=rel)
        def cv(h):
            d = Preg(p, t) + 2 * kt + h
            return Op(("cvt", p, kt, t, h), V(f"v_cvt_pk_bf16_f32 v{d}, v{sb+2*h}, v{sb+2*h+1}", [sb + 2 * h, sb + 2 * h + 1], [d]),
                      [("exp", p, kt, t, 2 * h), ("exp", p, kt, t, 2 * h + 1)], rel=rel)
        for o in (mul(0), mul(1), ex(0), ex(1), mul(2), mul(3), ex(2), ex(3), cv(0), cv(1)): S.add(S.valu, o)

VPOS = {2: (10, 13), 3: (30, 33), 4: (42, 45), 5: (56, 59), 6: (70, 73), 7: (83, 86)}

def add_phase_ops(S, p, mf, with_pv, qo):
    NT = S.NT; g0 = S.gap; n = len(mf)
    T = lambda x: g0 + int(x * n / 119.0)
    add_softmax(S, p)
    fx = []; scal = []
    new = lambda lst, key, ins, deps=(), x=0, g=None: lst.append(Op(key, ins, deps, T(x) if g is None else g))
    known = lambda k: [k] if (k in S.bykey or k in S.done) else []
    for ds in range(4):
        new(fx, ("kr", p, 1, ds), k_read(p, 1, ds), [], (36, 39, 48, 51)[ds])
    if with_pv:
        for dj in range(2, 8):
            for kt in (0, 1):
                war = [("pv", p - 1, dj - 4, NT - 1)] if dj >= 4 else []
                xo = known(("xv", p - 1, 1)) if dj == 2 else []
                new(fx, ("vr", p - 1, dj, kt), v_read(p - 1, dj, kt), war + xo, VPOS[dj][kt])
    rd_before = [("kr", p, 1, ds) for ds in range(4)] + ([("vr", p - 1, 7, kt) for kt in (0, 1)] if with_pv else [])
    gc = T(CFG["cl"]); sp = max(1, int(CFG["sp"] * n / 119.0 + 0.5)); g2 = gc + 4 * sp; sp2 = CFG["sp2"]
    new(scal, ("m0", p), sc(f"s_mov_b32 m0, s{sM}", wr=M0), [], 0)
    prev = [("m0", p)]
    for k, (srd, so) in enumerate(((sK, sK0), (sK, sK1), (sV, sV0), (sV, sV1))):
        new(fx, ("dma", p, k), dma(vDKV, srd, so, k * 1024, CFG["kv"], ("grp", p + 2)), prev, g=gc + k * sp)
        prev = [("dma", p, k)]
    kvlast = prev
    if qo:
        nn = p & 1
        for a in range(2):
            tmp = vTmp + 4 * a
            new(fx, ("or", p, a), I(f"ds_read_b128 {rs('v', tmp, 4)}, v{vLin}{off(nn*2048 + a*1024)}", "D", rd=[("v", vLin)], wr=R("v", tmp, 4)),
                known(("ul", p - 1)), g=g2 + a * sp2 - 9)
            new(fx, ("os", p, a), o_store(tmp, 2 * nn + a, sOp), [("or", p, a)] + prev, g=g2 + a * sp2)
            prev = [("os", p, a)]
        new(scal, ("qm", p), sc(f"s_mov_b32 m0, s{sStg}", wr=M0), kvlast, g=g2)
        for a in range(2):
            new(fx, ("qd", p, a), dma(vQO0 + nn, sQ, (sQn, sQn1)[a], nn * 2048 + a * 1024, CFG["q"], ("q",)), prev + [("qm", p)], g=g2 + (2 + a) * sp2)
            prev = [("qd", p, a)]
        if p & 1:
            for i, r in enumerate((sOp, sQn, sQn1, sStg)):
                new(scal, ("uq", p, i), sc(f"s_add_u32 s{r}, s{r}, 4096"), prev, g=g2 + 3 * sp2 + 1)
            S.add(S.valu, Op(("ul", p), V(f"v_add_u32 v{vLin}, 4096, v{vLin}", [vLin], [vLin]), [("or", p, 1)]))
    new(scal, ("u1", p), sc(f"s_add_u32 s{sM}, s{sM}, 16384"), kvlast, g=g2 + 1)
    new(scal, ("u2", p), sc(f"s_and_b32 s{sM}, s{sM}, 0xffff"), kvlast, g=g2 + 1)
    for i, r in enumerate((sK0, sK1, sV0, sV1)):
        new(scal, ("uk", p, i), sc(f"s_add_u32 s{r}, s{r}, 8192"), kvlast, g=g2 + 1)
    new(scal, ("wb", p), I("s_waitcnt vmcnt(?) lgkmcnt(0)", "w", tag=("needgrp", p)), rd_before + prev, 94)
    new(fx, ("bar", p), I("s_barrier", "B", tag=("bar", p)), [("wb", p)], 95)
    xv0 = []
    if not (p & 1):
        xor = lambda r: V(f"v_xor_b32 v{r}, 0x8000, v{r}", [r], [r])
        for b in (0, 1):
            S.add(S.valu, Op(("xk", p, b), xor(vK0 + b), [("kr", p, 1, b), ("kr", p, 1, b + 2)]))
            dv = [("vr", p - 1, 4 + 2 * b + h, kt) for h in (0, 1) for kt in (0, 1)] if with_pv else []
            S.add(S.valu, Op(("xv", p, b), xor(vV0 + b), dv))
        xv0 = [("xv", p, 0)]
    for ds in range(4):
        xk = [("xk", p, ds & 1)] if not (p & 1) else []
        new(fx, ("kr", p + 1, 0, ds), k_read(p + 1, 0, ds), [("bar", p), ("qk", p, 0, NT - 1, ds)] + xk, 97 + 3 * ds)
    for dj in (0, 1):
        for kt in (0, 1):
            war = [("pv", p - 1, dj + 4, NT - 1)] if with_pv else []
            new(fx, ("vr", p, dj, kt), v_read(p, dj, kt), [("bar", p)] + war + xv0, (108, 110, 113, 116)[dj * 2 + kt])
    fx.sort(key=lambda o: o.target); scal.sort(key=lambda o: o.target)
    for o in fx: S.add(S.fixed, o)
    for o in scal: S.add(S.scal, o)
    misc = [o for o in S.valu if o.key[0] in ("xk", "xv", "ul")]
    S.valu = misc + [o for o in S.valu if o not in misc]

def rel(key, p): return (key[0], key[1] - p) + tuple(key[2:])

def run_phases(S, phases, carry, qo_of, extra=None):
    starts = {}
    for p in phases:
        starts[p] = len(S.out)
        mf = phase_mf(S.NT, p, p > 0)
        S.forbid = set()
        add_phase_ops(S, p, mf, p > 0, qo_of(p))
        if extra: extra(S, p, mf)
        cut = carry is not None and (p & 1) and p < 15
        if cut: S.forbid = {(k[0], k[1] + p) + tuple(k[2:]) for k in carry}
        look = phase_mf(S.NT, p + 1, True)[:4] if p < 15 else []
        S.run(mf, look)
        if cut: S.flush()
    return starts

def find_carry(NT):
    S = Sched(NT)
    for ds in range(4): S.done.add(("kr", 0, 0, ds))
    run_phases(S, range(0, 8), None, lambda p: p >= 2)
    return [rel(o.key, 7) for o in S.valu if o.key[0] in ("mul", "exp", "cvt")]

def params_next():
    return [sc(x) for x in (
        f"s_add_u32 s{sT2}, s{sJob}, 1",
        f"s_xor_b32 s{sT3}, s{sT2}, s{sRole}",
        f"s_and_b32 s{sT3}, s{sT3}, 1",
        f"s_cselect_b32 s{sNxt}, s{sOffB}, s{sOffA}",
        f"s_cselect_b32 s{sT3}, s{sW}, 0",
        f"s_cmp_eq_u32 s{sT3}, 0",
        f"s_cselect_b32 s{sNT7n}, 1, 0",
        f"s_mul_i32 s{sT2}, s{sT2}, {QH}",
        f"s_add_u32 s{sNxt}, s{sNxt}, s{sT2}")]

def advance():
    return [sc(x) for x in (f"s_lshl_b32 s{sBit}, 1, s{sJob}", f"s_add_u32 s{sJob}, s{sJob}, 1", f"s_mov_b32 s{sOp}, s{sCurO}",
                            f"s_mov_b32 s{sCurO}, s{sNxt}", f"s_mov_b32 s{sNT7c}, s{sNT7n}")] + params_next() + \
           [sc(x) for x in (f"s_mov_b32 s{sQn}, s{sNxt}", f"s_sub_u32 s{sQn1}, s{sNxt}, 896", f"s_mov_b32 s{sStg}, s{sStgB}", f"s_mov_b32 s{sLoop}, 5")]

def build_tail(S):
    NT = S.NT; p = 15; g0 = S.gap; S.forbid = set()
    pv = [m for m in pv_list(NT, p) if m[0][0] == "pv"]
    mf = [sum_m(p, t) for t in range(NT - 2)] + pv[:NT - 2] + [sum_m(p, NT - 2), pv[NT - 2], sum_m(p, NT - 1), pv[NT - 1]] + pv[NT:]
    for dj in range(2, 8):
        for kt in (0, 1):
            war = [("pv", p, dj - 4, NT - 1)] if dj >= 4 else []
            S.add(S.fixed, Op(("vr", p, dj, kt), v_read(p, dj, kt), war, g0 + max(0, NT * (dj + 1) - 11 + kt)))
    chain = [I("s_waitcnt vmcnt(?)", "w", tag=("needq",)), sc(f"s_add_u32 s{sT0}, s{sNxt}, 24576"), sc(f"s_cmp_lg_u32 s{sNT7n}, 0"),
             sc(f"s_cselect_b32 s{sT0}, s{sT0}, {OOB:#x}"), sc(f"s_add_u32 s{sT1}, s{sCurO}, 24576")] + advance()
    for i, x in enumerate(chain): S.add(S.scal, Op(("ts", i), x, [("ts", i - 1)] if i else [], g0))
    for ds in range(4):
        r = aQ + (6 * 4 + ds) * 4
        S.add(S.fixed, Op(("q6", ds), I(f"buffer_load_dwordx4 {rs('a', r, 4)}, v{vDir}, s[{sQ}:{sQ+3}], s{sT0} offen{off(ds*64)}{fl(CFG['q6'])}", "L",
                                        rd=[("v", vDir), ("s", sT0)], wr=R("a", r, 4), tag=("q6",)), [("ts", 3)], g0 + 2 * NT + ds))
    S.fixed.sort(key=lambda o: o.target)
    for t in range(6):
        for ds in range(4): S.add(S.flex, Op(("qr", t, ds), q_read(t, ds), [("ts", 0)]))
    vL = vP + 14; vR = vP; vmx, vmn = vP + 22, vP + 23
    for t in range(NT):
        S.add(S.valu, Op(("lr", t), V(f"v_accvgpr_read_b32 v{vL+t}, a{aL+t*4}", [("a", aL + t * 4)], [vL + t]), [("sum", p, t)]))
        S.add(S.valu, Op(("rc", t), V(f"v_rcp_f32 v{vR+2*t}, v{vL+t}", [vL + t], [vR + 2 * t], "E"), [("lr", t)]))
    alll = [("lr", t) for t in range(NT)]
    for nm, d in (("max", vmx), ("min", vmn)):
        s_ = [vL + t for t in range(NT)]
        S.add(S.valu, Op((nm, 0), V(f"v_{nm}3_f32 v{d}, v{s_[0]}, v{s_[1]}, v{s_[2]}", s_[:3], [d]), alll))
        S.add(S.valu, Op((nm, 1), V(f"v_{nm}3_f32 v{d}, v{d}, v{s_[3]}, v{s_[4]}", [d, s_[3], s_[4]], [d]), [(nm, 0)]))
        S.add(S.valu, Op((nm, 2), V(f"v_{nm}3_f32 v{d}, v{d}, v{s_[5]}, v{s_[-1]}", [d, s_[5], s_[-1]], [d]), [(nm, 1)]))
    S.add(S.valu, Op(("c1",), V(f"v_cmp_lt_f32 vcc, s{sHi}, v{vmx}", [vmx], [("s", "vcc")]), [("max", 2)]))
    S.add(S.valu, Op(("c2",), V(f"v_cmp_gt_f32_e64 s[{sPair}:{sPair+1}], s{sLo}, v{vmn}", [vmn], R("s", sPair, 2)), [("min", 2)]))
    S.add(S.valu, Op(("vl",), V(f"v_add_u32 v{vLin}, {(-24576) & 0xffffffff:#x}, v{vLin}", [vLin], [vLin]), []))
    n0 = len(chain)
    for i, x in enumerate((f"s_or_b64 vcc, vcc, s[{sPair}:{sPair+1}]", f"s_cselect_b32 s{sT2}, s{sBit}, 0", f"s_or_b32 s{sFlag}, s{sFlag}, s{sT2}")):
        S.add(S.scal, Op(("ts", n0 + i), sc(x), [("ts", n0 + i - 1), ("c1",), ("c2",)], g0))
    softdone = [("cvt", p, 1, NT - 1, 0), ("cvt", p, 1, NT - 1, 1), ("cvt", p, 1, NT - 2, 1), ("cvt", p, 1, NT - 3, 1), ("cvt", p, 1, NT - 4, 1)]
    accJ = [(t, J) for J in range(4) for t in range(NT - 1, 4, -1)]
    early = dict(zip(accJ[:3], (vTmp, vS, vS + 8)))
    for (t, J), vb in early.items():
        b = Oreg(t, 2 * J)[1]
        for i in range(8):
            S.add(S.valu, Op(("ar", t, J, i), V(f"v_accvgpr_read_b32 v{vb+i}, a{b+i}", [("a", b + i)], [vb + i]), softdone + [("pv", p, 2 * J + (i >> 2), t)]))
    opt = []
    for J in range(3):
        for t in range(5):
            b = Oreg(t, 2 * J)[1]
            for i in range(8):
                opt.append(Op(("om", t, J, i), V(f"v_mul_f32 v{b+i}, v{vR+2*t}, v{b+i}", [b + i, vR + 2 * t], [b + i]),
                              [("rc", t), ("pv", p, 2 * J + (i >> 2), t)] + ([("om", t, J, i - 1)] if i else [])))
    for o in opt: S.add(S.valu, o)
    S.run(mf)
    S.valu = [o for o in S.valu if not (o.key[0] == "om" and not (o.key[3] & 1 and ("om",) + o.key[1:3] + (o.key[3] - 1,) in S.done))]
    S.flush()
    E = []
    order = list(early) + [(t, J) for t in range(5) for J in range(4)]
    late = [x for x in accJ if x not in early]
    for i, x in enumerate(late): order.insert(3 + 4 * (i + 1) + i, x)
    outs = []; free = [vTmp, vS, vS + 8]; nb = 0
    for (t, J) in order:
        k, b = Oreg(t, 2 * J)
        if k == "a":
            if (t, J) in early: b = early[(t, J)]
            else:
                vb = free[nb % 3]; nb += 1
                for i in range(8): E.append(V(f"v_accvgpr_read_b32 v{vb+i}, a{b+i}", [("a", b + i)], [vb + i]))
                b = vb
        for i in range(4):
            if ("om", t, J, 2 * i) in S.done: continue
            E.append(V(f"v_pk_mul_f32 {rs('v', b+2*i, 2)}, {rs('v', b+2*i, 2)}, {rs('v', vR+2*t, 2)} op_sel_hi:[1,0]",
                       [b + 2 * i, b + 2 * i + 1, vR + 2 * t], [b + 2 * i, b + 2 * i + 1]))
        for i in range(4):
            E.append(V(f"v_cvt_pk_bf16_f32 v{b+i}, v{b+2*i}, v{b+2*i+1}", [b + 2 * i, b + 2 * i + 1], [b + i]))
        if t == 6:
            outs.append(I(f"buffer_store_dwordx4 {rs('v', b, 4)}, v{vDir}, s[{sO}:{sO+3}], s{sT1} offen{off(J*64)}{fl(CFG['o6'])}", "S",
                          rd=R("v", b, 4) + [("v", vDir), ("s", sT1)]))
        else:
            ad = vSt0 + (J & 1)
            outs.append(I(f"ds_write_b128 v{ad}, {rs('v', b, 4)}{off(t*4096 + (J >> 1)*1024)}", "W", rd=R("v", b, 4) + [("v", ad)]))
        if len(outs) == CFG["wgrp"]: E += outs; outs = []
    nw = sum(x.k == "W" for x in E + outs)
    E += outs
    E.append(I(f"s_waitcnt vmcnt(?) lgkmcnt({min(nw, 15)})", "w", tag=("needq6",)))
    for ins in fix_hazards(E, S.out[-10:]): S.emit(ins)

class Job: pass
def build_job(NT):
    carry = find_carry(NT)
    S = Sched(NT)
    for ds in range(4): S.done.add(("kr", 0, 0, ds))
    qo = lambda p: 2 <= p <= 13
    def extra(S, p, mf):
        if qo(p) and (p & 1):
            S.add(S.scal, Op(("lp", p), sc(f"s_sub_u32 s{sLoop}, s{sLoop}, 1"), [("uq", p, 3), ("wb", p)], S.gap + len(mf) - 6))
    st = run_phases(S, range(16), carry, qo, extra)
    tail0 = len(S.out)
    build_tail(S)
    for p in range(2, 16, 2):
        assert S.out[st[p]].k == "M"
        st[p] += 1
    seg = lambda a, b: S.out[a:b]
    bodies = [seg(st[p], st[p + 2]) for p in range(2, 14, 2)]
    for b in bodies[1:]:
        assert [x.t for x in b] == [x.t for x in bodies[0]], "loop body not periodic"
    J = Job(); J.NT = NT
    J.head = seg(0, st[2]); J.body = bodies[0]; J.final = seg(st[14], tail0); J.tail = seg(tail0, len(S.out))
    k = [x.t for x in J.body].index(f"s_sub_u32 s{sLoop}, s{sLoop}, 1")
    assert not any(x.k == "s" and not x.t.startswith("s_nop") for x in J.body[k + 1:])
    J.body.append(sc(f"s_cbranch_scc0 L_body{NT}"))
    J.carry = carry
    return J

def sigma(x, d, t):
    return [f"v_bfe_u32 v{d}, v{x}, 1, 1", f"v_lshrrev_b32 v{t}, 3, v{x}", f"v_xor_b32 v{t}, v{t}, v{x}", f"v_and_b32 v{t}, 1, v{t}",
            f"v_lshl_or_b32 v{d}, v{t}, 1, v{d}", f"v_and_b32 v{t}, 4, v{x}", f"v_or_b32 v{d}, v{d}, v{t}"]
def swz_addr(row, col, d, t):
    return sigma(row, d, t) + [f"v_xor_b32 v{d}, v{d}, v{col}", f"v_lshlrev_b32 v{d}, 4, v{d}", f"v_and_b32 v{t}, 7, v{row}",
                               f"v_lshl_add_u32 v{d}, v{t}, 7, v{d}", f"v_lshrrev_b32 v{t}, 3, v{row}"]

def stamp(i):
    if not CFG["stamp"]: return []
    L = [sc(x) for x in (f"s_memtime s[{sTm}:{sTm+1}]", f"s_memrealtime s[{sTm+2}:{sTm+3}]", "s_waitcnt lgkmcnt(0)",
         f"v_mov_b32 v{vX+2}, 0", "s_mov_b64 exec, 1")]
    for n, (a, b) in enumerate(((sTm, sTm + 2), (80, 82), (84, 86))):
        L += [sc(f"v_mov_b32 v{vX}, s{a}"), sc(f"v_mov_b32 v{vX+1}, s{b}"),
              I(f"buffer_store_dwordx2 v[{vX}:{vX+1}], v{vX+2}, s[{sDbg}:{sDbg+3}], s{sStampOff} offen offset:{8*n}", "S"), sc("s_nop 1")]
    return L + [sc("s_mov_b64 exec, -1"), sc(f"s_add_u32 s{sStampOff}, s{sStampOff}, 32"), sc("s_nop 3")]

def prologue():
    P = []
    A = lambda t: P.append(sc(t))
    ps = lambda i: A(f"s_memrealtime s[{80+2*i}:{81+2*i}]") if CFG["pstamp"] else None
    ps(0)
    if CFG["diag_tot"]: A("s_memrealtime s[96:97]")
    A("s_cmp_ge_u32 s2, 256"); A("s_cbranch_scc1 L_exit")
    if CFG["again"]:
        A(f"s_mov_b32 s90, {CFG['again']}"); P.append(I("L_again:", "#"))
    A("s_load_dwordx4 s[64:67], s[0:1], 0"); A("s_load_dwordx4 s[68:71], s[0:1], 16")
    if CFG["stamp"]: A("s_load_dwordx2 s[72:73], s[0:1], 40")
    if CFG["codepf"]:
        A("s_getpc_b64 s[74:75]"); P.append(I("L_pf:", "#")); A("v_lshlrev_b32 v20, 7, v0")
        for i in range(CFG["codepf"]):
            if i: A("v_add_u32 v20, 0x8000, v20")
            A("v_min_u32 v27, L_code_end-L_pf-4, v20")
            P.append(I("global_load_dword v26, v27, s[74:75]", "L"))
    A("v_lshrrev_b32 v20, 6, v0"); A("v_and_b32 v21, 63, v0"); A(f"v_readfirstlane_b32 s{sW}, v20")
    A(f"s_and_b32 s{sT0}, s2, 7"); A(f"s_lshr_b32 s{sT1}, s2, 3"); A(f"s_and_b32 s{sRole}, s{sT1}, 1"); A(f"s_lshr_b32 s{sT1}, s{sT1}, 1")
    A(f"s_lshl_b32 s{sT0}, s{sT0}, 4"); A(f"s_add_u32 s{sT0}, s{sT0}, s{sT1}")
    if CFG["samehead"]: A(f"s_mov_b32 s{sT0}, 0")
    if CFG["badpair"]: A(f"s_lshr_b32 s{sT0}, s2, 1"); A(f"s_and_b32 s{sRole}, s2, 1")
    A(f"s_mul_i32 s{sT1}, s{sT0}, {4*QH}"); A(f"s_lshl_b32 s{sT0}, s{sT0}, 19")
    A("v_lshrrev_b32 v22, 3, v21"); A("v_and_b32 v23, 7, v21")
    for x in sigma(22, 24, 25): A(x)
    A("v_xor_b32 v24, v24, v23"); A("v_lshlrev_b32 v24, 4, v24"); A(f"v_lshl_add_u32 v{vQO0}, v22, 8, v24")
    A(f"v_xor_b32 v{vQO1}, 32, v{vQO0}")
    A(f"s_and_b32 s{sT2}, s{sW}, 1"); A(f"s_lshl_b32 s{sT2}, s{sT2}, 5"); A(f"s_lshl_b32 s{sT3}, s{sW}, 11"); A(f"s_lshl_b32 s{sWoff}, s{sW}, 12")
    A(f"v_xor_b32 v{vDKV}, s{sT2}, v{vQO0}"); A(f"v_add_u32 v{vDKV}, s{sT3}, v{vDKV}")
    A(f"s_mul_i32 s{sStgB}, s{sW}, 24576"); A(f"s_add_u32 s{sStgB}, s{sStgB}, 65536")
    A(f"s_mul_i32 s{sOffA}, s{sW}, {112*256}"); A(f"s_mul_i32 s{sOffB}, s{sW}, {96*256}"); A(f"s_add_u32 s{sOffB}, s{sOffB}, {464*256}")
    A(f"s_cmp_eq_u32 s{sW}, 0"); A(f"s_cselect_b32 s{sOffB}, {448*256}, s{sOffB}")
    A(f"s_mov_b32 s{sJob}, -1")
    P += params_next()
    A("v_and_b32 v22, 15, v21"); A("v_lshrrev_b32 v23, 4, v21")
    A(f"v_lshlrev_b32 v{vDir}, 8, v22"); A(f"v_lshl_add_u32 v{vDir}, v23, 4, v{vDir}")
    A("s_waitcnt lgkmcnt(0)")
    for srd, src, o, n in ((sK, 66, sT0, 4 * KH), (sQ, 64, sT1, 4 * QH), (sV, 68, sT0, 4 * KH), (sO, 70, sT1, 0 if CFG["nostore"] else 4 * QH)):
        A(f"s_add_u32 s{srd}, s{src}, s{o}"); A(f"s_addc_u32 s{srd+1}, s{src+1}, 0"); A(f"s_mov_b32 s{srd+2}, {n}"); A(f"s_mov_b32 s{srd+3}, 0x20000")
    if CFG["stamp"]:
        A(f"s_mov_b32 s{sDbg}, s72"); A(f"s_mov_b32 s{sDbg+1}, s73"); A(f"s_mov_b32 s{sDbg+2}, 0x1000000"); A(f"s_mov_b32 s{sDbg+3}, 0x20000")
        A(f"s_lshl_b32 s{sStampOff}, s2, 2"); A(f"s_add_u32 s{sStampOff}, s{sStampOff}, s{sW}"); A(f"s_lshl_b32 s{sStampOff}, s{sStampOff}, 10")
    P += stamp(0)
    def kv(srd, blk, ldsbase, tag):
        for a in (0, 1):
            P.append(sc(f"s_add_u32 m0, s{sWoff}, {ldsbase + a*(1024-128)}", wr=M0)); A(f"s_mov_b32 s{sT0}, {blk*8192}")
            P.append(dma(vDKV, srd, sT0, a * 128, CFG["kv"], tag))
    kv(sK, 0, 3 * 16384, ("grp", -1))
    for t in range(6):
        for a in (0, 1):
            P.append(sc(f"s_add_u32 m0, s{sStgB}, {t*4096 + a*896}", wr=M0)); A(f"s_add_u32 s{sT1}, s{sNxt}, {t*4096}")
            for nn in (0, 1): P.append(dma(vQO0 + nn, sQ, sT1, nn * 2048 + a * 128, CFG["q"], ("q",)))
    A(f"s_add_u32 s{sT1}, s{sNxt}, 24576"); A(f"s_cmp_lg_u32 s{sNT7n}, 0"); A(f"s_cselect_b32 s{sT1}, s{sT1}, {OOB:#x}")
    for ds in range(4):
        r = aQ + (6 * 4 + ds) * 4
        P.append(I(f"buffer_load_dwordx4 {rs('a', r, 4)}, v{vDir}, s[{sQ}:{sQ+3}], s{sT1} offen{off(ds*64)}{fl(CFG['q6'])}", "L", tag=("q6",)))
    kv(sK, 1, 0, ("grp", 0)); kv(sV, 0, 2048, ("grp", 0))
    kv(sK, 2, 16384, ("grp", 1)); kv(sV, 1, 16384 + 2048, ("grp", 1))
    ps(1)
    for x in swz_addr(22, 23, 24, 25): A(x)
    A(f"v_lshl_add_u32 v{vK0}, v25, 12, v24"); A(f"v_add_u32 v{vK0}, 0x8000, v{vK0}"); A(f"v_xor_b32 v{vK1}, 64, v{vK0}")
    A(f"v_lshl_add_u32 v{vSt0}, v25, 11, v24"); A(f"v_add_u32 v{vSt0}, s{sStgB}, v{vSt0}"); A(f"v_xor_b32 v{vSt1}, 64, v{vSt0}")
    A(f"v_lshl_add_u32 v{vLin}, v21, 4, s{sStgB}")
    A("v_lshrrev_b32 v22, 2, v21"); A("v_and_b32 v23, 3, v21")
    for x in swz_addr(22, 23, 24, 25): A(x)
    A(f"v_lshl_add_u32 v{vV0}, v25, 12, v24"); A(f"v_add_u32 v{vV0}, 0x8000, v{vV0}"); A(f"v_xor_b32 v{vV1}, 64, v{vV0}")
    A(f"s_mov_b32 s{sC}, {f2u(SCALE):#x}"); A(f"s_mov_b32 s{sLo}, {f2u(2.0**CFG['lo']):#x}"); A(f"s_mov_b32 s{sHi}, {f2u(2.0**CFG['hi']):#x}")
    A(f"s_mov_b32 s{sFlag}, {CFG['forcefb']}")
    A(f"s_mov_b32 s{sK0}, {3*8192}"); A(f"s_mov_b32 s{sK1}, {3*8192 + 128 - 1024}")
    A(f"s_mov_b32 s{sV0}, {2*8192 - 2048}"); A(f"s_mov_b32 s{sV1}, {2*8192 + 128 - 3072}")
    A(f"s_add_u32 s{sM}, s{sWoff}, 32768"); A(f"s_mov_b32 s{sCurO}, {OOB:#x}")
    A("v_cmp_eq_u32 vcc, 0, v23"); A("v_mov_b32 v24, 0x3f803f80"); A("s_nop 0"); A("v_cndmask_b32 v22, 0, v24, vcc")
    for i in range(4): A(f"v_accvgpr_write_b32 a{aOne+i}, v22")
    P += advance()
    if CFG["pstamp"]:
        P.append(I(f"s_waitcnt vmcnt({CFG['pstamp']})", "w")); ps(2)
    P.append(I("s_waitcnt vmcnt(8)", "w")); ps(3); P.append(I("s_barrier", "B"))
    for ds in range(4): P.append(k_read(0, 0, ds))
    for t in range(6):
        for ds in range(4): P.append(q_read(t, ds))
    P.append(I("s_waitcnt lgkmcnt(0)", "w"))
    return P

def job_switch():
    return [I("L_next:", "#")] + stamp(1) + [sc(x) for x in (f"s_cmp_eq_u32 s{sJob}, 4", "s_cbranch_scc1 L_final", f"s_cmp_lg_u32 s{sNT7c}, 0", "s_cbranch_scc0 L_job6")]

def final_drain():
    L = [I("L_final:", "#")]
    rd = lambda i: I(f"ds_read_b128 {rs('v', vO + 4*i, 4)}, v{vLin}{off(i*1024)}", "D", rd=[("v", vLin)], wr=R("v", vO + 4 * i, 4))
    for i in range(8): L.append(rd(i))
    for i in range(24):
        L.append(I(f"s_waitcnt lgkmcnt({min(24, i + 8) - i - 1})", "w"))
        L.append(o_store(vO + 4 * i, i & 3, sOp))
        if i + 8 < 24: L.append(rd(i + 8))
        if i & 3 == 3: L.append(sc(f"s_add_u32 s{sOp}, s{sOp}, 4096"))
    if CFG["stamp"]: L += stamp(2) + [I("s_waitcnt vmcnt(0)", "w")] + stamp(3)
    return L

def fallback():
    L = []; A = L.append
    q, k, s0, pb, vf, o, lacc, m, t0, va, pa = 20, 36, 52, 60, 64, 72, 104, 108, 109, 112, 114
    sJ, sN, sRow, sKb, sI, sU = 76, 77, 78, 79, 88, 89
    MF = "v_mfma_f32_16x16x32_bf16"
    A(f"s_cmp_eq_u32 s{sFlag}, 0"); A("s_cbranch_scc1 L_done")
    A("s_waitcnt vmcnt(0) lgkmcnt(0)")
    A("v_and_b32 v21, 63, v0"); A("v_lshrrev_b32 v22, 2, v21"); A("v_and_b32 v23, 3, v21")
    L += swz_addr(22, 23, 24, 25)
    A(f"v_lshl_add_u32 v{va}, v25, 11, v24"); A(f"v_add_u32 v{va}, s{sStgB}, v{va}"); A(f"v_xor_b32 v{va+1}, 64, v{va}")
    A(f"v_xor_b32 v{pa}, 16, v21"); A(f"v_lshlrev_b32 v{pa}, 2, v{pa}"); A(f"v_xor_b32 v{pa+1}, 32, v21"); A(f"v_lshlrev_b32 v{pa+1}, 2, v{pa+1}")
    A(f"s_mov_b32 s{sJob}, -1")
    A("L_fb_job:")
    L += [x.t for x in params_next()]
    A(f"s_add_u32 s{sJob}, s{sJob}, 1"); A(f"s_cmp_eq_u32 s{sJob}, 4"); A("s_cbranch_scc1 L_done")
    A(f"s_lshr_b32 s{sJ}, s{sFlag}, s{sJob}"); A(f"s_and_b32 s{sJ}, s{sJ}, 1"); A("s_cbranch_scc0 L_fb_job")
    A(f"s_add_u32 s{sN}, s{sNT7n}, 6"); A(f"s_mov_b32 s{sRow}, s{sNxt}")
    A("L_fb_tile:")
    for ds in range(4): A(f"buffer_load_dwordx4 {rs('v', q+4*ds, 4)}, v{vDir}, s[{sQ}:{sQ+3}], s{sRow} offen{off(ds*64)}")
    def scores(dst):
        for ds in range(4): A(f"buffer_load_dwordx4 {rs('v', k+4*ds, 4)}, v{vDir}, s[{sK}:{sK+3}], s{sKb} offen{off(ds*64)}")
        A("s_waitcnt vmcnt(0)")
        for ds in range(4): A(f"{MF} {rs('v', dst, 4)}, {rs('v', k+4*ds, 4)}, {rs('v', q+4*ds, 4)}, {'0' if ds == 0 else rs('v', dst, 4)}")
        A(f"s_add_u32 s{sKb}, s{sKb}, 4096"); A("s_nop 7")
    A(f"v_mov_b32 v{m}, 0xff800000"); A(f"s_lshl_b32 s{sKb}, s{sJob}, 17"); A(f"s_mov_b32 s{sI}, 31")
    A("L_fb_max:")
    scores(s0)
    A(f"v_max3_f32 v{m}, v{m}, v{s0}, v{s0+1}"); A(f"v_max3_f32 v{m}, v{m}, v{s0+2}, v{s0+3}")
    A(f"s_sub_u32 s{sI}, s{sI}, 1"); A("s_cbranch_scc0 L_fb_max")
    for i in (0, 1):
        A(f"ds_bpermute_b32 v{t0}, v{pa+i}, v{m}"); A("s_waitcnt lgkmcnt(0)"); A(f"v_max_f32 v{m}, v{m}, v{t0}")
    for i in range(36): A(f"v_mov_b32 v{o+i}, 0")
    A(f"s_lshl_b32 s{sKb}, s{sJob}, 17"); A(f"s_mov_b32 s{sI}, 15")
    A("L_fb_pv:")
    for kt in (0, 1):
        for a in (0, 1):
            A(f"s_add_u32 m0, s{sStgB}, {kt*4096 + a*896}"); A(f"s_add_u32 s{sU}, s{sKb}, {kt*4096}")
            for nn in (0, 1): A(f"buffer_load_dwordx4 v{vQO0+nn}, s[{sV}:{sV+3}], s{sU} offen{off(nn*2048 + a*128)} lds")
    scores(s0); scores(s0 + 4)
    for r in range(8): A(f"v_sub_f32 v{s0+r}, v{s0+r}, v{m}")
    for r in range(8): A(f"v_mul_f32 v{s0+r}, s{sC}, v{s0+r}")
    for r in range(8): A(f"v_exp_f32 v{s0+r}, v{s0+r}")
    A("s_nop 0")
    for r in range(4): A(f"v_cvt_pk_bf16_f32 v{pb+r}, v{s0+2*r}, v{s0+2*r+1}")
    A("s_nop 1")
    A(f"{MF} {rs('v', lacc, 4)}, {rs('a', aOne, 4)}, {rs('v', pb, 4)}, {rs('v', lacc, 4)}")
    for dj in range(8):
        J, h = dj >> 1, dj & 1; f = vf + 4 * (dj & 1)
        for kt in (0, 1): A(f"ds_read_b64_tr_b16 {rs('v', f+2*kt, 2)}, v{va + (J & 1)}{off(kt*4096 + (J >> 1)*1024 + 8*h)}")
        A("s_waitcnt lgkmcnt(0)")
        A(f"{MF} {rs('v', o+4*dj, 4)}, {rs('v', f, 4)}, {rs('v', pb, 4)}, {rs('v', o+4*dj, 4)}")
    A(f"s_sub_u32 s{sI}, s{sI}, 1"); A("s_cbranch_scc0 L_fb_pv")
    A("s_nop 7"); A(f"v_rcp_f32 v{t0}, v{lacc}"); A("s_nop 0")
    for i in range(32): A(f"v_mul_f32 v{o+i}, v{t0}, v{o+i}")
    for J in range(4):
        for i in range(4): A(f"v_cvt_pk_bf16_f32 v{o+8*J+i}, v{o+8*J+2*i}, v{o+8*J+2*i+1}")
        A(f"buffer_store_dwordx4 {rs('v', o+8*J, 4)}, v{vDir}, s[{sO}:{sO+3}], s{sRow} offen{off(J*64)}")
    A("s_waitcnt vmcnt(0)")
    A(f"s_add_u32 s{sRow}, s{sRow}, 4096"); A(f"s_sub_u32 s{sN}, s{sN}, 1"); A(f"s_cmp_lg_u32 s{sN}, 0"); A("s_cbranch_scc1 L_fb_tile")
    A("s_branch L_fb_job")
    A("L_done:")
    return [I(x, "#" if x.endswith(":") else "s") for x in L]

def resolve_vm(pro, sw, jobs, fin):
    best = {}
    for seqn in ([7, 7, 7, 7], [7, 6, 7, 6], [6, 7, 6, 7]):
        dyn = [(x, 0) for x in pro]
        for j, nt in enumerate(seqn):
            J = jobs[nt]; b = 16 * j
            dyn += [(x, b) for x in sw] + [(x, b) for x in J.head]
            for it in range(6): dyn += [(x, b + 2 * it) for x in J.body]
            dyn += [(x, b) for x in J.final + J.tail]
        dyn += [(x, 64) for x in sw + fin]
        vm = []; epoch = -2
        for x, b in dyn:
            if x.k == "B": epoch = (x.tag[1] + b) if x.tag else -1
            if x.k == "D" and x.tag and x.tag[0] == "ring":
                assert x.tag[1] + b == epoch, ("ring read outside its epoch", x.t, x.tag, b, epoch)
            if x.k in "XLS":
                tg = x.tag
                if tg and tg[0] == "grp":
                    tg = ("grp", tg[1] + b)
                    assert epoch == -2 or tg[1] - 4 < epoch, ("dma overwrites live group", x.t)
                vm.append(tg)
            if x.k == "w" and x.tag:
                want = {"needgrp": lambda: ("grp", x.tag[1] + b), "needq": lambda: ("q",), "needq6": lambda: ("q6",)}[x.tag[0]]()
                idx = max(i for i, t in enumerate(vm) if t == want)
                n = min(63, len(vm) - 1 - idx)
                best[id(x)] = (x, min(n, best.get(id(x), (x, 99))[1]))
        seq = [x for x, _ in dyn]
        check_lgkm(seq)
        bad = hazards(seq)
        assert not bad, bad[:5]
    for x, n in best.values(): x.t = x.t.replace("?", str(n))

def main():
    jobs = {nt: build_job(nt) for nt in (7, 6)}
    pro = prologue(); sw = job_switch(); fin = final_drain()
    resolve_vm(pro, sw, jobs, fin)
    for nt in (7, 6):
        J = jobs[nt]
        nm = lambda s: sum(x.k == "M" for x in s)
        info = " ".join(f"{n}: {cycles(s)}c iss {issue_sum(s)} pipe {nm(s)*16} |" for n, s in (("head", J.head), ("body", J.body), ("final", J.final), ("tail", J.tail)))
        tot = cycles(J.head + 6 * J.body + J.final + J.tail + sw)
        print(f"NT={nt} carry={len(J.carry)} {info} total={tot}", file=sys.stderr)
    o = []
    o.append("; @launch grid=(256,1,1) block=(256,1,1) lds=163840")
    o.append('.amdgcn_target "amdgcn-amd-amdhsa--gfx950"')
    o += [".text", f".globl {NAME}_kernel", ".p2align 8", f".type {NAME}_kernel,@function", f"{NAME}_kernel:"]
    put = lambda s: o.extend(("" if x.k == "#" else "    ") + x.t for x in s)
    mt = lambda i: [sc(f"s_memtime s[{80+2*i}:{81+2*i}]")] if CFG["stamp"] else []
    put(pro); put(sw)
    for nt in (7, 6):
        J = jobs[nt]
        o.append(f"L_job{nt}:"); put(mt(0)); put(J.head); put(mt(1))
        o.append(f"L_body{nt}:"); put(J.body); put(mt(2)); put(J.final); put(mt(3)); put(J.tail)
        o.append("    s_branch L_next")
    put(fin); put(fallback())
    if CFG["again"]:
        o += ["    s_waitcnt vmcnt(0) lgkmcnt(0)", "    s_barrier", "    s_sub_u32 s90, s90, 1", "    s_cbranch_scc0 L_again"]
    if CFG["diag_rt"] or CFG["diag_cyc"]:
        ins = "s_memrealtime" if CFG["diag_rt"] else "s_memtime"
        o += ["    s_waitcnt vmcnt(0) lgkmcnt(0)", f"    {ins} s[92:93]", "    s_waitcnt lgkmcnt(0)", "L_diag:", f"    {ins} s[94:95]", "    s_waitcnt lgkmcnt(0)",
              "    s_sub_u32 s94, s94, s92", f"    s_cmp_lt_u32 s94, {CFG['diag_rt'] or CFG['diag_cyc']}", "    s_cbranch_scc1 L_diag"]
    if CFG["diag_tot"]:
        o += ["    s_waitcnt vmcnt(0) lgkmcnt(0)", "L_diag:", "    s_memrealtime s[94:95]", "    s_waitcnt lgkmcnt(0)",
              "    s_sub_u32 s94, s94, s96", f"    s_cmp_lt_u32 s94, {CFG['diag_tot']}", "    s_cbranch_scc1 L_diag"]
    o += ["L_exit:", "    s_endpgm", "L_code_end:"]
    o += ['.section .rodata,"a"', ".p2align 6", f".amdhsa_kernel {NAME}_kernel",
          "  .amdhsa_next_free_vgpr 512", "  .amdhsa_next_free_sgpr 102", "  .amdhsa_accum_offset 256",
          "  .amdhsa_group_segment_fixed_size 0", "  .amdhsa_kernarg_size 48", "  .amdhsa_user_sgpr_count 2",
          "  .amdhsa_user_sgpr_kernarg_segment_ptr 1", "  .amdhsa_system_sgpr_workgroup_id_x 1", ".end_amdhsa_kernel"]
    open(sys.argv[1], "w").write("\n".join(o) + "\n")

main()
```

```python
import re

def R(kind, a, n=1):
    return [(kind, a + i) for i in range(n)]

def rs(kind, a, n=1):
    return f"{kind}{a}" if n == 1 else f"{kind}[{a}:{a+n-1}]"

class I:
    __slots__ = ("t", "k", "rd", "wr", "c", "tag")
    def __init__(self, t, k, rd=(), wr=(), c=(), tag=None):
        self.t = t; self.k = k; self.rd = list(rd); self.wr = list(wr); self.c = list(c); self.tag = tag
    def __repr__(self): return self.t

def mfma(d, a, b, c0=False, tag=None):
    dk, dn = d; ak, an = a; bk, bn = b
    cs = "0" if c0 else rs(dk, dn, 4)
    return I(f"v_mfma_f32_16x16x32_bf16 {rs(dk,dn,4)}, {rs(ak,an,4)}, {rs(bk,bn,4)}, {cs}", "M",
             rd=R(ak, an, 4) + R(bk, bn, 4), wr=R(dk, dn, 4), c=([] if c0 else R(dk, dn, 4)), tag=tag)

def states(ins):
    if ins.k == "#": return 0
    m = re.match(r"s_nop (\d+)", ins.t)
    return int(m.group(1)) + 1 if m else 1

VALU = "VEK"
def need(p, q):
    n = 0
    pw = set(p.wr)
    if p.k == "M":
        if q.k == "M":
            if pw & set(q.rd): n = max(n, 8)
            ov = pw & set(q.c)
            if ov and p.wr != q.c: n = max(n, 6)
            if (pw & set(q.wr)) and not q.c: n = max(n, 6)
        elif q.k in VALU or q.k in "DWLXS":
            if pw & (set(q.rd) | set(q.wr)): n = max(n, 8)
        if q.k in VALU and set(p.c) & set(q.wr): n = max(n, 3)
    elif p.k in VALU:
        if q.k == "M" and pw & (set(q.rd) | set(q.c)): n = max(n, 2)
        if p.k == "E" and q.k in "VK" and pw & set(q.rd): n = max(n, 1)
        if q.k == "K" and pw & set(q.rd): n = max(n, 2)
        sw = {r for r in pw if r[0] == "s"}
        if sw & set(q.rd):
            if q.k in "LXS": n = max(n, 5)
            elif q.k in VALU: n = max(n, 2)
        if "readfirstlane" in q.t and pw & set(q.rd): n = max(n, 1)
    elif p.k == "S":
        if q.k in VALU and set(p.rd) & set(q.wr): n = max(n, 2)
        elif set(p.rd) & set(q.wr): n = max(n, 1)
    elif p.k == "s":
        if ("m", 0) in pw and q.k == "X": n = max(n, 1)
    return n

def hazards(seq, start=0):
    bad = []
    for j in range(start, len(seq)):
        q = seq[j]
        if q.k in "#wB": continue
        dist = 0
        for i in range(j - 1, -1, -1):
            n = need(seq[i], q)
            if n > dist: bad.append((j, n - dist, seq[i].t, q.t))
            dist += states(seq[i])
            if dist >= 8: break
    return bad

def fix_hazards(seq, prefix=()):
    out = list(prefix); n0 = len(out)
    for q in seq:
        if q.k not in "#wB":
            dist = 0; miss = 0
            for p in reversed(out):
                n = need(p, q)
                miss = max(miss, n - dist)
                dist += states(p)
                if dist >= 8: break
            if miss > 0: out.append(I(f"s_nop {miss-1}", "s"))
        out.append(q)
    return out[n0:]

def check_lgkm(seq, pending=None):
    pend = list(pending or [])
    for q in seq:
        if q.k == "w":
            m = re.search(r"lgkmcnt\((\d+)\)", q.t)
            if m:
                n = int(m.group(1))
                if n < len(pend): pend = pend[len(pend) - n:] if n else []
            continue
        if q.k == "#": continue
        touched = set(q.rd) | set(q.c) | set(q.wr)
        for p in pend:
            if set(p.wr) & touched:
                raise AssertionError(f"lgkm hazard: {q.t} touches result of pending {p.t}")
        if q.k in "DW": pend.append(q)
    return pend

def cycles(seq, detail=None):
    t = 0; mf = -100; vec_free = 0; last_valu_end = -100; st_free = 0
    for q in seq:
        if q.k == "#": continue
        if q.k == "M":
            t = max(t, mf + 16, vec_free, st_free); mf = t; vec_free = t + (12 if "smfmac" in q.t else 8); t += 4
        elif q.k in VALU:
            t = max(t, vec_free)
            if q.t.startswith("v_pk_"): t = max(t, mf + 28)
            d = 8 if q.k in "EK" else 4
            t += d; vec_free = t; last_valu_end = t
        elif q.k in "DWLXS":
            t = max(t, vec_free, last_valu_end + 8, st_free - 4 if q.k in "SW" else 0)
            if q.k == "S": st_free = t + 20
            d = {"D": 4, "W": 20, "L": 4, "X": 4, "S": 4}[q.k]
            t += d; vec_free = t
        elif q.k == "B" or q.t.startswith("s_cbranch") or q.t.startswith("s_branch"): t += 12
        else: t += 4 * states(q)
        if detail is not None: detail.append(t)
    return t

def issue_sum(seq):
    c = {"M": 8, "V": 4, "E": 8, "K": 8, "D": 4, "W": 20, "L": 4, "X": 4, "S": 4, "B": 8}
    return sum(c.get(q.k, 0) + (4 if "smfmac" in q.t else 0) for q in seq)
```

```python
import sys, math, struct, re
from asmlib import *

NAME = "standalone__gqa_softmax__near_ridge"
CFG = dict(kv="", q="nt", o="nt", q6="", o6="", stamp=0, samehead=0, nostore=0, again=0,
           th=26, cl=2, sp=7, sp2=7, al=1, defer=1, zeta=1, smf=1, q6pos=2, q6sp=3, early6=1, bar0="95,95,95,95", bar1="95,95,95,97", sh1=3, x1=2, x1d=3, tmark=-1, onev=1, pad=0, tth=8, xw0=16, xroom=1, sroom=4, pstamp=0, badpair=0, x="", diag_rt=0, diag_cyc=0, diag_tot=0, diag_mark=-1, wgrp=2, lo=-30, hi=30, forcefb=0, codepf=2)
for a in sys.argv[2:]:
    k, v = a.split("=", 1)
    assert k in CFG, k
    CFG[k] = int(v) if re.fullmatch(r"-?\d+", v) else v.replace("+", " ")

QH, KH = 217088, 131072
SCALE = math.log2(math.e) / math.sqrt(128.0)
def f2u(x): return struct.unpack("<I", struct.pack("<f", x))[0]

vK, vV, vDKV, vQO, vLin = 1, 5, 9, 10, 11
vTmp = 12
vS = 20
vP = 36
vO = 92
vSt0, vSt1, vDir, vIdx = 252, 253, 254, 255
aQ, aK, aV, aL, aO, aOne = 0, 112, 144, 160, 188, 252
sQ, sK, sV, sO = 4, 8, 12, 16
(sC, sW, sJob, sCnt, sU0, sU1, sU2, sM, sU3, sD, sOp, sStg, sLoop, sCurO, sNxt, sVarC, sVarN, sFlag, sRole,
 sT0, sT1, sT2, sT3, sWoff, sStgB, sOffA, sOffB, sLo, sHi, sBit, sCur6, sNxt6, sOff6, sVarB, sXb, sXl) = range(20, 56)
sPair = 56
sStampOff = 58
sDbg = 60
sTm = 92
sKx, sVx, sQx, sOx = 64, 68, 72, 76
OOB = 0x100000

EARLY6 = CFG["early6"] and CFG["zeta"] and CFG["smf"]
ONE = ("v", vTmp + 4) if EARLY6 else ("a", aOne)
def Qreg(t, ds, alt):
    if t == 6 and alt and EARLY6: return (aL + 16, aL + 20, aL + 24, aOne)[ds]
    return aQ + (t * 4 + ds) * 4

class Var:
    def __init__(self, name, NT, par=None, bar=(95, 95, 95, 95), sh=0):
        self.name = name; self.NT = NT; self.par = par; self.bar = bar; self.sh = sh
    def shared(self, p): return self.par is not None and p >= 0 and (p & 1) == self.par
    def tiles(self, p): return list(range(self.NT)) + ([6] if self.shared(p) else [])
    def chains(self, p): return [(0, t) for t in self.tiles(p)] + [(1, t) for t in range(self.NT)]
    def sbuf(self, p, kt, t):
        if t == 6 and self.par is not None: return Preg(p + 1, 6)
        return vS + ((p * 2 * self.NT + kt * self.NT + t) & 3) * 4
    def pdeps(self, p, t):
        kts = (0,) if (t == 6 and self.par is not None) else (0, 1)
        return [("cvt", p, kt, t, h) for kt in kts for h in (0, 1)]

def Oreg(t, dj):
    return ("v", vO + t * 32 + dj * 4) if t < 5 else ("a", aO + (t - 5) * 32 + dj * 4)
def Preg(p, t): return vP + (p & 1) * 28 + t * 4
def sc(t, rd=(), wr=()): return I(t, "s", rd=rd, wr=wr)
def fl(x): return (" " + x) if x else ""
def off(x): return f" offset:{x}" if x else ""
def V(t, rd, wr, k="V"): return I(t, k, rd=[("v", r) if isinstance(r, int) else r for r in rd], wr=[("v", r) if isinstance(r, int) else r for r in wr])
COST = {"V": 1, "E": 2, "D": 1}

class Op:
    def __init__(self, key, ins, deps=(), target=None, rel=None):
        self.key = key; self.ins = ins; self.deps = list(deps); self.target = target; self.rel = rel

class Sched:
    def __init__(self, var):
        self.var = var; self.NT = var.NT
        self.out = []; self.done = set(); self.pend = []
        self.valu = []; self.fixed = []; self.scal = []; self.flex = []
        self.forbid = set(); self.gap = 0
        self.bykey = {}; self.th = CFG["th"]
    def add(self, q, op):
        q.append(op); self.bykey[op.key] = op
    def emit(self, ins, key=None):
        if ins.k == "w":
            m = re.search(r"lgkmcnt\((\d+)\)", ins.t)
            if m:
                n = int(m.group(1))
                if n < len(self.pend): self.pend = self.pend[len(self.pend) - n:] if n else []
        self.out.append(ins)
        if ins.k in "DW": self.pend.append(ins)
        if key is not None: self.done.add(key)
    def haz(self, ins):
        dist = 0; miss = 0
        for p in reversed(self.out):
            miss = max(miss, need(p, ins) - dist)
            dist += states(p)
            if dist >= 8: break
        return miss
    def lgkm_need(self, inss):
        idx = -1
        for ins in inss:
            t = set(ins.rd) | set(ins.c) | set(ins.wr)
            for i, p in enumerate(self.pend):
                if set(p.wr) & t: idx = max(idx, i)
        return None if idx < 0 else min(15, len(self.pend) - 1 - idx)
    def ready(self, op):
        return op.key not in self.forbid and all(d in self.done for d in op.deps) and \
            (op.target is None or op.target <= self.gap) and self.haz(op.ins) <= 0
    def put(self, op):
        for q in (self.valu, self.fixed, self.scal, self.flex):
            if op in q: q.remove(op)
        n = self.lgkm_need([op.ins])
        if n is not None: self.emit(I(f"s_waitcnt lgkmcnt({n})", "w"))
        m = self.haz(op.ins)
        if m > 0: self.emit(I(f"s_nop {m-1}", "s"))
        self.emit(op.ins, op.key)
    def force(self, key):
        if key in self.done: return
        op = self.bykey[key]
        assert key not in self.forbid, key
        for d in op.deps: self.force(d)
        self.put(op)
    def pick(self, kinds, n):
        r = []
        for op in self.valu[:48]:
            if op.ins.k in kinds and self.ready(op):
                r.append(op)
                if len(r) == n: break
        return r
    def backlog(self):
        return sum(COST[o.ins.k] for o in self.valu if o.rel is not None and o.rel in self.done)
    def fill(self, room):
        while room > 0:
            e = self.pick("E", 1); v = self.pick("V", 2)
            if room >= 2 and e and (len(v) < 2 or self.valu.index(e[0]) < self.valu.index(v[0])):
                self.put(e[0]); room -= 2
            elif v:
                self.put(v[0]); room -= 1
            elif e and self.backlog() > self.th - 4:
                self.put(e[0]); room -= 2
            else: break
        while self.backlog() > self.th:
            c = self.pick("EV", 1)
            if not c: break
            self.put(c[0])
    def run(self, mf, look=(), cut=False):
        allm = list(mf) + list(look)
        for i, (key, ins, deps) in enumerate(mf):
            for d in deps: self.force(d)
            if i == len(mf) - 1:
                if cut: self.flush()
                self.forbid = set()
                self.left = [o.key for q in (self.valu, self.fixed, self.scal) for o in q]
            n = self.lgkm_need([ins])
            if n is not None: self.emit(I(f"s_waitcnt lgkmcnt({n})", "w"))
            m = self.haz(ins)
            if m > 0: self.emit(I(f"s_nop {m-1}", "s"))
            self.emit(ins, key)
            afterw = len(self.out) > 1 and self.out[-2].k == "W"
            fx = next((o for o in self.fixed if self.ready(o) and not (afterw and o.ins.k in "DW")), None)
            slot1 = False
            nxt = [x[1] for x in allm[i + 1:i + 2]]
            if self.lgkm_need(nxt) is not None:
                nxt = [x[1] for x in allm[i + 1:i + 5]]
            if fx is not None and fx.ins.k != "B": nxt = nxt + [fx.ins]
            n = self.lgkm_need(nxt)
            if n is not None:
                self.emit(I(f"s_waitcnt lgkmcnt({n})", "w")); slot1 = True
                if fx is not None and fx.ins.k == "B": fx = None
            if fx is not None and fx.ins.k == "B":
                self.put(fx); self.fill(1)
            else:
                if not slot1 and self.scal and self.ready(self.scal[0]):
                    if not (fx is not None and fx.ins.k == "X" and ("m", 0) in self.scal[0].ins.wr): self.put(self.scal[0])
                room = 1 if "smfmac" in ins.t else 2
                if fx is not None and room == 1 and fx.ins.k != "D": fx = None
                if fx is not None:
                    self.put(fx); room = {"D": room - 1, "X": CFG["xroom"], "L": CFG["xroom"], "S": CFG["sroom"], "W": 0}[fx.ins.k]
                if self.flex and fx is None and room == 2 and self.backlog() == 0 and not self.pick("E", 1) and not afterw:
                    f = next((o for o in self.flex if self.ready(o)), None)
                    if f is not None: self.put(f); room -= 1
                if room: self.fill(room)
            self.gap += 1
    def flush(self):
        for q in (self.fixed, self.flex, self.scal, self.valu):
            for op in list(q):
                if op.key not in self.forbid and op.key not in self.done: self.force(op.key)

def k_read(p, kt, ds):
    o = ((p - 1) & 1) * 16384 + (ds >> 1) * 1024
    r = aK + kt * 16 + ds * 4; ad = vK + kt * 2 + (ds & 1)
    return I(f"ds_read_b128 {rs('a', r, 4)}, v{ad}{off(o)}", "D", rd=[("v", ad)], wr=R("a", r, 4), tag=("ring", p - 1))
def v_read(p, dj, kt):
    J, h = dj >> 1, dj & 1
    o = (p & 1) * 16384 + 2048 + (J >> 1) * 1024 + 8 * h
    r = aV + (dj & 3) * 4 + 2 * kt; ad = vV + kt * 2 + (J & 1)
    return I(f"ds_read_b64_tr_b16 {rs('a', r, 2)}, v{ad}{off(o)}", "D", rd=[("v", ad)], wr=R("a", r, 2), tag=("ring", p))
def q_read(t, ds):
    r = aQ + (t * 4 + ds) * 4; ad = vSt0 + (ds & 1)
    return I(f"ds_read_b128 {rs('a', r, 4)}, v{ad}{off(t*4096 + (ds >> 1)*1024)}", "D", rd=[("v", ad)], wr=R("a", r, 4))
def so_(x): return "0" if x is None else f"s{x}"
def dma(vo, srd, so, o, flags, tag):
    return I(f"buffer_load_dwordx4 v{vo}, s[{srd}:{srd+3}], {so_(so)} offen{off(o)}{fl(flags)} lds", "X", rd=[("v", vo), ("m", 0)], tag=tag)
def o_store(r, o=0):
    return I(f"buffer_store_dwordx4 {rs('v', r, 4)}, v{vQO}, s[{sOx}:{sOx+3}], 0 offen{off(o)}{fl(CFG['o'])}", "S", rd=R("v", r, 4) + [("v", vQO)])
def bump(srd, by): return [f"s_add_u32 s{srd}, s{srd}, {by}", f"s_addc_u32 s{srd+1}, s{srd+1}, 0"]
def o_write(t, J, b):
    ad = vSt0 + (J & 1)
    return I(f"ds_write_b128 v{ad}, {rs('v', b, 4)}{off(t*4096 + (J >> 1)*1024)}", "W", rd=R("v", b, 4) + [("v", ad)])
DEFER = [(t, J) for J in range(4) for t in range(1, 5)] if CFG["defer"] else []
def q6_load(ds, so, alt=False):
    r = Qreg(6, ds, alt)
    return I(f"buffer_load_dwordx4 {rs('a', r, 4)}, v{vDir}, s[{sQ}:{sQ+3}], s{so} offen{off(ds*64)}{fl(CFG['q6'])}", "L",
             rd=[("v", vDir), ("s", so)], wr=R("a", r, 4), tag=("q6",))
M0 = [("m", 0)]

def sums(var, p):
    tl = var.tiles(p)
    if not CFG["smf"]:
        return [(("sum", p, t), mfma(("a", aL + t * 4), ("a", aOne), ("v", Preg(p, t)), c0=(p == 0)), var.pdeps(p, t)) for t in tl]
    L = []
    for u in range(4 if 6 in tl else 3):
        t = min(2 * u, 5); d = aL + 4 * u; b = Preg(p, t)
        L.append((("sum", p, u), I(f"v_smfmac_f32_16x16x64_bf16 {rs('a', d, 4)}, {rs(*ONE, 4)}, {rs('v', b, 8)}, v{vIdx}", "M",
                                   rd=R(*ONE, 4) + R("v", b, 8) + [("v", vIdx)], wr=R("a", d, 4), c=R("a", d, 4)),
                  var.pdeps(p, t) + var.pdeps(p, t + 1)))
    return L
def pv_only(var, p):
    return [(("pv", p, dj, t), mfma(Oreg(t, dj), ("a", aV + (dj & 3) * 4), ("v", Preg(p, t)), c0=(p == 0)),
             var.pdeps(p, t) + [("vr", p, dj, 0), ("vr", p, dj, 1)] + ([("ow", t, dj >> 1)] if p == 0 and (t, dj >> 1) in DEFER else []))
            for dj in range(8) for t in var.tiles(p)]
def pv_list(var, p):
    pv = pv_only(var, p); sm = sums(var, p); n = len(var.tiles(p)); L = []
    step = 2 if CFG["smf"] else 1
    for dj in range(8):
        L += pv[dj * n:(dj + 1) * n]
        if dj % step == 0 and dj // step < len(sm): L.append(sm[dj // step])
    return L

def phase_mf(var, p):
    NT = var.NT
    if p > 0: pv = pv_list(var, p - 1)
    elif var.par == 1:
        z = [("pz", i) for i in range(4)]
        pv = [(("zo", dj), mfma(Oreg(6, dj), ONE, ("v", Preg(1, 6)), c0=True), z) for dj in range(8)]
        if not CFG["smf"]: pv.append((("zo", 8), mfma(("a", aL + 24), ("a", aOne), ("v", Preg(1, 6)), c0=True), z))
    else: pv = []
    L = []; n = 0; ch = var.chains(p)
    for c, (kt, t) in enumerate(ch):
        sb = var.sbuf(p, kt, t)
        for ds in range(4):
            deps = [("kr", p, kt, ds)]
            if t == 6 and kt == 0 and ds == 0 and p == (var.par or 0) and not EARLY6: deps.append(("w6",))
            g = p * 2 * NT + kt * NT + t - 4
            if ds == 0 and g >= 0 and not (t == 6 and var.par is not None):
                pp, cc = divmod(g, 2 * NT)
                deps += [("cvt", pp, cc // NT, cc % NT, h) for h in (0, 1)]
            L.append((("qk", p, kt, t, ds), mfma(("v", sb), ("a", aK + kt * 16 + ds * 4), ("a", Qreg(t, ds, var.par is not None)), c0=(ds == 0)), deps))
        upto = (len(pv) * (c + 1)) // len(ch)
        L += pv[n:upto]; n = upto
    return L

def add_softmax(S, p):
    for kt, t in S.var.chains(p):
        sb = S.var.sbuf(p, kt, t)
        rel = ("qk", p, kt, t, 3)
        mul = lambda r: Op(("mul", p, kt, t, r), V(f"v_mul_f32 v{sb+r}, s{sC}, v{sb+r}", [sb + r], [sb + r]), [rel], rel=rel)
        ex = lambda r: Op(("exp", p, kt, t, r), V(f"v_exp_f32 v{sb+r}, v{sb+r}", [sb + r], [sb + r], "E"), [("mul", p, kt, t, r)], rel=rel)
        def cv(h):
            d = Preg(p, t) + 2 * kt + h
            return Op(("cvt", p, kt, t, h), V(f"v_cvt_pk_bf16_f32 v{d}, v{sb+2*h}, v{sb+2*h+1}", [sb + 2 * h, sb + 2 * h + 1], [d]),
                      [("exp", p, kt, t, 2 * h), ("exp", p, kt, t, 2 * h + 1)], rel=rel)
        for o in (mul(0), mul(1), ex(0), ex(1), mul(2), mul(3), ex(2), ex(3), cv(0), cv(1)): S.add(S.valu, o)

VPOS = {2: (10, 13), 3: (30, 33), 4: (42, 45), 5: (56, 59), 6: (70, 73), 7: (83, 86)}

def add_phase_ops(S, p, mf):
    var = S.var; g0 = S.gap; n = len(mf); with_pv = p > 0
    T = lambda x: g0 + int(x * n / 119.0)
    add_softmax(S, p)
    fx = []; scal = []
    new = lambda lst, key, ins, deps=(), x=0: lst.append(Op(key, ins, deps, T(x)))
    known = lambda k: [k] if (k in S.bykey or k in S.done) else []
    lastt = var.tiles(p - 1)[-1]
    for ds in range(4):
        new(fx, ("kr", p, 1, ds), k_read(p, 1, ds), known(("xk", p - 1, 1, ds & 1)), (36, 39, 48, 51)[ds])
    if with_pv:
        for dj in range(2, 8):
            for kt in (0, 1):
                war = [("pv", p - 1, dj - 4, lastt)] if dj >= 4 else []
                xo = known(("xv", p - 1, kt, 1)) if dj == 2 else []
                new(fx, ("vr", p - 1, dj, kt), v_read(p - 1, dj, kt), war + xo, VPOS[dj][kt])
    rd_before = [("kr", p, 1, ds) for ds in range(4)] + ([("vr", p - 1, 7, kt) for kt in (0, 1)] if with_pv else [])
    cl, sp, sp2 = CFG["cl"] + var.sh, CFG["sp"], CFG["sp2"]
    xb = var.bar[p if p < 2 else 2 + (p & 1)]
    prev = []
    def chain(name, texts, deps, x):
        for i, t in enumerate(texts):
            new(scal, (name[0], p) + tuple(name[1:]) + (i,), sc(t), deps, x)
            deps = [(name[0], p) + tuple(name[1:]) + (i,)]
        return deps
    for k, srd in enumerate((sKx, sKx, sVx, sVx)):
        new(scal, ("m0", p, k), sc(f"s_add_u32 m0, s{sM}, {k*1024 - (k & 1)*128}", wr=M0), prev, max(0, cl + k * sp - 3))
        new(fx, ("dma", p, k), dma(vDKV, srd, None, (k & 1) * 128, CFG["kv"], ("grp", p + 2)), [("m0", p, k)], cl + k * sp)
        prev = [("dma", p, k)]
    kvlast = prev
    x = cl + 4 * sp
    for j in (() if p & 1 else (0, 1, 2)):
        tmp = vTmp
        new(fx, ("or", p, j), I(f"ds_read_b128 {rs('v', tmp, 4)}, v{vLin}{off(j*1024)}", "D", rd=[("v", vLin)], wr=R("v", tmp, 4)),
            known(("ul", p - 2)) + ([("os", p, j - 1)] if j else []), x - 9)
        new(scal, ("qm", p, j), sc(f"s_mov_b32 m0, s{sStg}", wr=M0), prev, x - 1)
        new(fx, ("os", p, j), o_store(tmp), [("or", p, j)] + prev, x)
        po = chain(("uo", j), bump(sOx, f"s{sD}") + [f"s_add_u32 s{sStg}, s{sStg}, 1024"], [("os", p, j), ("qm", p, j)], x)
        new(fx, ("qd", p, j), dma(vQO, sQx, None, 0, CFG["q"], ("q", p, j)), [("os", p, j), ("qm", p, j)], x + sp2)
        prev = chain(("uq", j), bump(sQx, f"s{sD}") + [f"s_xor_b32 s{sD}, s{sD}, 0x700"], [("qd", p, j)] + po, x + sp2)
        x += 2 * sp2
    prev = chain(("uk",), [f"s_add_u32 s{sM}, s{sM}, 16384", f"s_and_b32 s{sM}, s{sM}, 0xffff"] + bump(sKx, 8192) + bump(sVx, 8192) +
                 [f"s_mov_b32 s{sVx+2}, s{sKx+2}", f"s_add_u32 s{sCnt}, s{sCnt}, 1", f"s_cmp_lt_u32 s{sCnt}, 64", f"s_cselect_b32 s{sKx+2}, 8192, 0"],
                 kvlast + prev, x - sp2 + 1)
    if not p & 1: S.add(S.valu, Op(("ul", p), V(f"v_add_u32 v{vLin}, 3072, v{vLin}", [vLin], [vLin]), [("or", p, 2)]))
    new(scal, ("wb", p), I("s_waitcnt vmcnt(?) lgkmcnt(0)", "w", tag=("needgrp", p)), rd_before + prev, xb - 1)
    new(fx, ("bar", p), I("s_barrier", "B", tag=("bar", p)), [("wb", p)], xb)
    ev = not (p & 1)
    if ev:
        xor = lambda r: V(f"v_xor_b32 v{r}, 0x8000, v{r}", [r], [r])
        for kt in (0, 1):
            for b in (0, 1):
                S.add(S.valu, Op(("xk", p, kt, b), xor(vK + 2 * kt + b), [("kr", p, 1, b), ("kr", p, 1, b + 2)]))
                dv = [("vr", p - 1, 4 + 2 * b + h, kt) for h in (0, 1)] if with_pv else []
                S.add(S.valu, Op(("xv", p, kt, b), xor(vV + 2 * kt + b), dv))
    for ds in range(4):
        new(fx, ("kr", p + 1, 0, ds), k_read(p + 1, 0, ds), [("bar", p), ("qk", p, 0, var.tiles(p)[-1], ds)] + ([("xk", p, 0, ds & 1)] if ev else []), 97 + 3 * ds)
    for dj in (0, 1):
        for kt in (0, 1):
            war = [("pv", p - 1, dj + 4, lastt)] if with_pv else []
            new(fx, ("vr", p, dj, kt), v_read(p, dj, kt), [("bar", p)] + war + ([("xv", p, kt, 0)] if ev else []), (108, 110, 113, 116)[dj * 2 + kt])
    if p == 0 and var.par is not None:
        for i in (range(4) if var.par else (2, 3)):
            r = Preg(var.par, 6) + i
            S.add(S.valu, Op(("pz", i), V(f"v_mov_b32 v{r}, 0", [], [r]), []))
    if p == (var.par or 0) and 6 in var.tiles(p) and not EARLY6:
        g6 = g0 + [m[0] for m in mf].index(("qk", p, 0, 6, 0)) - 2
        scal.append(Op(("w6",), I("s_waitcnt vmcnt(?)", "w", tag=("needq6",)), [], g6))
    if p < 2:
        for i, (t, J) in enumerate(DEFER[8 * p:8 * p + 8]):
            new(fx, ("ow", t, J), o_write(t, J, Oreg(t, 2 * J)[1]), [], (6 + 11 * i) if p == 0 else (6, 16, 22, 27, 54, 62, 66, 77)[i])
    if EARLY6 and p == 1:
        for ds in range(4): new(fx, ("q6", ds), q6_load(ds, sNxt6, var.par is None), [], cl + (4 + ds) * sp)
    if p >= 3 and p & 1:
        new(scal, ("lp", p), sc(f"s_sub_u32 s{sLoop}, s{sLoop}, 1"), [("wb", p)], 112)
    fx.sort(key=lambda o: o.target); scal.sort(key=lambda o: o.target)
    for o in fx: S.add(S.fixed, o)
    for o in scal: S.add(S.scal, o)
    misc = [o for o in S.valu if o.key[0] in ("xk", "xv", "ul", "pz")]
    S.valu = misc + [o for o in S.valu if o not in misc]

def rel(key, p): return (key[0], key[1] - p) + tuple(key[2:])

def run_phases(S, phases, carry):
    starts = {}
    for p in phases:
        starts[p] = len(S.out)
        mf = phase_mf(S.var, p)
        S.forbid = set()
        add_phase_ops(S, p, mf)
        cut = carry is not None and (p & 1)
        if cut: S.forbid = {(k[0], k[1] + p) + tuple(k[2:]) for k in carry}
        S.run(mf, phase_mf(S.var, p + 1)[:4], cut)
    return starts

def find_carry(var):
    S = Sched(var)
    for ds in range(4): S.done.add(("kr", 0, 0, ds))
    run_phases(S, range(0, 8), None)
    return [rel(k, 7) for k in S.left]

def params_next():
    return [sc(x) for x in (
        f"s_add_u32 s{sT2}, s{sJob}, 1",
        f"s_add_u32 s{sNxt6}, s{sOffA}, 24576",
        f"s_xor_b32 s{sT3}, s{sT2}, s{sRole}",
        f"s_and_b32 s{sT3}, s{sT3}, 1",
        f"s_cselect_b32 s{sNxt}, s{sOffB}, s{sOffA}",
        f"s_cselect_b32 s{sNxt6}, s{sOff6}, s{sNxt6}",
        f"s_cselect_b32 s{sVarN}, s{sVarB}, 0",
        f"s_mul_i32 s{sT2}, s{sT2}, {QH}",
        f"s_add_u32 s{sNxt}, s{sNxt}, s{sT2}",
        f"s_add_u32 s{sNxt6}, s{sNxt6}, s{sT2}")]

def advance():
    return [sc(x) for x in (f"s_lshl_b32 s{sBit}, 1, s{sJob}", f"s_add_u32 s{sJob}, s{sJob}, 1", f"s_mov_b32 s{sOp}, s{sCurO}",
                            f"s_mov_b32 s{sCurO}, s{sNxt}", f"s_mov_b32 s{sCur6}, s{sNxt6}", f"s_mov_b32 s{sVarC}, s{sVarN}")] + params_next() + \
           [sc(x) for x in (f"s_add_u32 s{sQx}, s{sQ}, s{sNxt}", f"s_addc_u32 s{sQx+1}, s{sQ+1}, 0", f"s_cmp_lt_u32 s{sJob}, 3", f"s_cselect_b32 s{sQx+2}, 4096, 0",
                            f"s_add_u32 s{sOx}, s{sO}, s{sOp}", f"s_addc_u32 s{sOx+1}, s{sO+1}, 0", f"s_cmp_gt_u32 s{sJob}, 0",
                            f"s_cselect_b32 s{sOx+2}, {0 if CFG['nostore'] else 4096}, 0", f"s_mov_b32 s{sD}, 128", f"s_mov_b32 s{sStg}, s{sStgB}", f"s_mov_b32 s{sLoop}, 6")]

def build_tail(S):
    var = S.var; NT = var.NT; p = 15; g0 = S.gap; S.forbid = set(); sh = var.par is not None; S.th = CFG['tth']
    pv = pv_only(var, p); sm = sums(var, p); tl = var.tiles(p); n = len(tl)
    ne = 2 if CFG["smf"] else NT - 2
    mf = sm[:ne] + pv[:n] + sm[ne:] + pv[n:]
    for dj in range(2, 8):
        for kt in (0, 1):
            war = [("pv", p, dj - 4, tl[-1])] if dj >= 4 else []
            S.add(S.fixed, Op(("vr", p, dj, kt), v_read(p, dj, kt), war, g0 + max(0, n * dj + len(sm) - 11 + kt)))
    chain = [I("s_waitcnt vmcnt(?)", "w", tag=("needq", 12, 1)), sc(f"s_mov_b32 s{sT0}, s{sNxt6}")]
    chain += [sc(f"s_lshl_b32 s{sT1}, s{sW}, 6"), sc(f"s_add_u32 s{sT1}, s{sT1}, s{sCur6}")] if sh else [sc(f"s_mov_b32 s{sT1}, s{sCur6}")]
    chain += advance()
    for i, x in enumerate(chain): S.add(S.scal, Op(("ts", i), x, [("ts", i - 1)] if i else [], g0))
    if not EARLY6:
      for ds in range(4): S.add(S.fixed, Op(("q6", ds), q6_load(ds, sT0), [("ts", 1)], g0 + CFG["q6pos"] + CFG["q6sp"] * ds))
    S.fixed.sort(key=lambda o: o.target)
    for t in (1, 2, 3, 0, 4):
        for ds in range(4): S.add(S.flex, Op(("qr", t, ds), q_read(t, ds), [("ts", 0)]))
    vL = vP + 14; vR = vP; vmx, vmn = vP + 22, vP + 23
    add = lambda key, ins, deps: S.add(S.valu, Op(key, ins, deps))
    for t in list(range(NT)) + ([6] if sh else []):
        pl = p if t in tl else p - 1
        if CFG["smf"]:
            u = 3 if t == 6 else t >> 1
            a = aL + 4 * u + (2 if (t & 1 or t == 6) else 0)
            add(("la", t), V(f"v_accvgpr_read_b32 v{vL+t}, a{a}", [("a", a)], [vL + t]), [("sum", pl, u)])
            add(("lb", t), V(f"v_accvgpr_read_b32 v{vR+2*t}, a{a+1}", [("a", a + 1)], [vR + 2 * t]), [("sum", pl, u)])
            add(("lr", t), V(f"v_add_f32 v{vL+t}, v{vL+t}, v{vR+2*t}", [vL + t, vR + 2 * t], [vL + t]), [("la", t), ("lb", t)])
            for i in ((a - 2, a - 1, a, a + 1) if t == 6 else (a, a + 1)):
                add(("lz", i), V(f"v_accvgpr_write_b32 a{i}, 0", [], [("a", i)]), [("la", t), ("lb", t)])
        else:
            add(("lr", t), V(f"v_accvgpr_read_b32 v{vL+t}, a{aL+t*4}", [("a", aL + t * 4)], [vL + t]), [("sum", pl, t)])
        if t < NT: add(("rc", t), V(f"v_rcp_f32 v{vR+2*t}, v{vL+t}", [vL + t], [vR + 2 * t], "E"), [("lr", t)])
    s_ = [vL + t for t in range(NT)]
    add(("tot", 1), V(f"v_add_f32 v{vmx}, v{s_[0]}, v{s_[1]}", s_[:2], [vmx]), [("lr", 0), ("lr", 1)])
    for t in range(2, NT): add(("tot", t), V(f"v_add_f32 v{vmx}, v{vmx}, v{s_[t]}", [vmx, s_[t]], [vmx]), [("tot", t - 1), ("lr", t)])
    add(("min", 0), V(f"v_min3_f32 v{vmn}, v{s_[0]}, v{s_[1]}, v{s_[2]}", s_[:3], [vmn]), [("lr", t) for t in range(NT)])
    add(("min", 1), V(f"v_min3_f32 v{vmn}, v{vmn}, v{s_[3]}, v{s_[4]}", [vmn, s_[3], s_[4]], [vmn]), [("min", 0)])
    add(("min", 2), V(f"v_min3_f32 v{vmn}, v{vmn}, v{s_[5]}, v{s_[-1]}", [vmn, s_[5], s_[-1]], [vmn]), [("min", 1)])
    add(("vl",), V(f"v_add_u32 v{vLin}, {(-24576) & 0xffffffff:#x}, v{vLin}", [vLin], [vLin]), [])
    check = [V(f"v_cmp_ngt_f32 vcc, s{sHi}, v{vmx}", [vmx], [("s", "vcc")]),
             V(f"v_cmp_gt_f32_e64 s[{sPair}:{sPair+1}], s{sLo}, v{vmn}", [vmn], R("s", sPair, 2))]
    flag = [sc(x) for x in (f"s_or_b64 vcc, vcc, s[{sPair}:{sPair+1}]", f"s_cselect_b32 s{sT2}, s{sBit}, 0", f"s_or_b32 s{sFlag}, s{sFlag}, s{sT2}")]
    if not sh:
        add(("c1",), check[0], [("tot", NT - 1)]); add(("c2",), check[1], [("min", 2)])
        for i, x in enumerate(flag): S.add(S.scal, Op(("ts", len(chain) + i), x, [("ts", len(chain) + i - 1), ("c1",), ("c2",)], g0))
    softdone = [("cvt", p, 1, t, h) for t in range(NT - 4, NT) for h in (0, 1)]
    te = NT - 1
    early = {(te, J): vb for J, vb in enumerate((vS, vS + 8) if EARLY6 else (vTmp, vS, vS + 8))}
    for (t, J), vb in early.items():
        b = Oreg(t, 2 * J)[1]
        for i in range(8):
            add(("ar", t, J, i), V(f"v_accvgpr_read_b32 v{vb+i}, a{b+i}", [("a", b + i)], [vb + i]), softdone + [("pv", p, 2 * J + (i >> 2), t)])
    for J in range(3):
        for t in (1, 2, 3, 4, 0):
            b = Oreg(t, 2 * J)[1]
            for i in range(8):
                add(("om", t, J, i), V(f"v_mul_f32 v{b+i}, v{vR+2*t}, v{b+i}", [b + i, vR + 2 * t], [b + i]),
                    [("rc", t), ("pv", p, 2 * J + (i >> 2), t)] + ([("om", t, J, i - 1)] if i else []))
    if sh:
        for dj in range(8):
            b = Oreg(6, dj)[1]
            dep = [("vl",)] + [("qr", 1 + (dj >> 2), ds) for ds in range(4)] + ([("pv", p, dj, 6)] if 6 in tl else [])
            S.add(S.fixed, Op(("xw", dj), I(f"ds_write_b128 v{vLin}, {rs('a', b, 4)}{off(4096 + dj*1024)}", "W", rd=R("a", b, 4) + [("v", vLin)]), dep,
                              g0 + CFG["xw0"] + (len(mf) - CFG["xw0"]) * dj // 8))
        S.add(S.fixed, Op(("xl",), I(f"ds_write_b32 v{vLin}, v{vL+6} offset:12288", "W", rd=[("v", vL + 6), ("v", vLin)]),
                          [("vl",), ("lr", 6)] + [("qr", 3, ds) for ds in range(4)], g0 + len(mf) - 2))
        S.fixed.sort(key=lambda o: o.target)
        o = S.bykey[("vl",)]; S.valu.remove(o); S.valu.insert(0, o)
    S.run(mf)
    S.valu = [o for o in S.valu if not (o.key[0] == "om" and not (o.key[3] & 1 and ("om",) + o.key[1:3] + (o.key[3] - 1,) in S.done))]
    S.flush()
    vC = vP + 24
    def epilogue(last):
        E = []
        mark = lambda i: E.append(sc("s_memtime s[86:87]")) if CFG["tmark"] == i else None
        mark(0)
        def scale(b, r, skip=lambda i: False):
            for i in range(4):
                if not skip(i):
                    E.append(V(f"v_pk_mul_f32 {rs('v', b+2*i, 2)}, {rs('v', b+2*i, 2)}, {rs('v', r, 2)} op_sel_hi:[1,0]",
                               [b + 2 * i, b + 2 * i + 1, r], [b + 2 * i, b + 2 * i + 1]))
            for i in range(4):
                E.append(V(f"v_cvt_pk_bf16_f32 v{b+i}, v{b+2*i}, v{b+2*i+1}", [b + 2 * i, b + 2 * i + 1], [b + i]))
        def direct(b, o):
            return I(f"buffer_store_dwordx4 {rs('v', b, 4)}, v{vDir}, s[{sO}:{sO+3}], s{sT1} offen{off(o)}{fl(CFG['o6'])}", "S",
                     rd=R("v", b, 4) + [("v", vDir), ("s", sT1)])
        def piece(t, J):
            k, b = Oreg(t, 2 * J)
            if k == "a":
                if (t, J) in early: b = early[(t, J)]
                else:
                    for i in range(8): E.append(V(f"v_accvgpr_read_b32 v{vC+8*J+i}, a{b+i}", [("a", b + i)], [vC + 8 * J + i]))
                    b = vC + 8 * J
            scale(b, vR + 2 * t, lambda i: ("om", t, J, 2 * i) in S.done)
            if last: E.append(o_write(t % 6, J, b))
            elif t == 6: E.append(direct(b, J * 64))
            elif (t, J) not in DEFER: E.append(o_write(t, J, b))
            return b
        def q5():
            mark(3)
            E.append(I("s_waitcnt vmcnt(?)", "w", tag=("needq", 14, 2))); mark(4)
            if not last:
                for ds in range(4): E.append(q_read(5, ds))
        plain = [(t, J) for t in range(1, 5) for J in range(4)]
        def mix(heavy, k):
            for x in heavy:
                piece(*x)
                for _ in range(k):
                    if plain: piece(*plain.pop(0))
        pend = []
        def drain(n):
            if not pend: return
            t, a, regs = pend.pop()
            E.append(I(f"s_waitcnt lgkmcnt({n})", "w")); E.append(sc(f"s_add_u32 s{sT3}, s{sOp}, {t*4096}"))
            for nn, r in enumerate(regs):
                E.append(I(f"buffer_store_dwordx4 {rs('v', r, 4)}, v{vQO}, s[{sO}:{sO+3}], s{sT3} offen{off(nn*2048 + a*128)}{fl(CFG['o'])}", "S", rd=R("v", r, 4) + [("v", vQO)]))
        def through(tiles):
            for t in tiles:
                for a in (0, 1):
                    regs = [piece(t, 2 * a) + 4, piece(t, 2 * a + 1) + 4]
                    for nn, r in enumerate(regs):
                        E.append(I(f"ds_read_b128 {rs('v', r, 4)}, v{vLin}{off((t % 6)*4096 + nn*2048 + a*1024)}", "D", rd=[("v", vLin)], wr=R("v", r, 4)))
                    drain(4); pend.append((t, a, regs))
        if sh:
            a0, a1, a2, a3 = vR + 9, vR + 11, vR + 13, vP + 21
            E.append(V(f"v_add_u32 v{a0}, s{sXb}, v{vLin}", [vLin], [a0]))
            E.append(V(f"v_add_u32 v{a1}, 49152, v{a0}", [a0], [a1]))
            E.append(V(f"v_add_u32 v{a2}, s{sXl}, v{vLin}", [vLin], [a2]))
            E.append(V(f"v_add_u32 v{a3}, 49152, v{a2}", [a2], [a3]))
            if last:
                through([0]); E.append(I("s_waitcnt lgkmcnt(4)", "w"))
            else:
                for _ in range(CFG["x1"] + (0 if var.par else CFG["x1d"])): piece(*plain.pop(0))
                E.append(I("s_waitcnt lgkmcnt(0)", "w"))
            E.append(I("s_barrier", "B", tag=("x",))); mark(1)
            for src in range(4):
                for h in (0, 1):
                    ad = a0 if src < 2 else a1; r = vC + 8 * src + 4 * h
                    E.append(I(f"ds_read_b128 {rs('v', r, 4)}, v{ad}{off((src & 1)*24576 + h*1024)}", "D", rd=[("v", ad)], wr=R("v", r, 4)))
            for src in range(4):
                ad = a2 if src < 2 else a3
                E.append(I(f"ds_read_b32 v{vR+1+2*src}, v{ad}{off((src & 1)*24576)}", "D", rd=[("v", ad)], wr=[("v", vR + 1 + 2 * src)]))
            if last:
                through([4]); E.append(I("s_barrier", "B", tag=("x",)))
            else:
                q5()
                for _ in range(4): piece(*plain.pop(0))
                mix([(0, J) for J in range(4)], 1)
                E.append(I("s_waitcnt lgkmcnt(4)", "w"))
            lt = vL + 6
            E.append(V(f"v_add_f32 v{vR+1}, v{vR+1}, v{vR+3}", [vR + 1, vR + 3], [vR + 1]))
            E.append(V(f"v_add_f32 v{vR+5}, v{vR+5}, v{vR+7}", [vR + 5, vR + 7], [vR + 5]))
            E.append(V(f"v_add_f32 v{lt}, v{vR+1}, v{vR+5}", [vR + 1, vR + 5], [lt]))
            E.append(V(f"v_rcp_f32 v{vR+12}, v{lt}", [lt], [vR + 12], "E"))
            E.append(V(f"v_add_f32 v{vmx}, v{vmx}, v{lt}", [vmx, lt], [vmx]))
            E.append(V(f"v_min_f32 v{vmn}, v{vmn}, v{lt}", [vmn, lt], [vmn]))
            E.extend(check)
            for d, s2 in ((0, 8), (16, 24), (0, 16)):
                for i in range(4):
                    x, y = vC + d + 2 * i, vC + s2 + 2 * i
                    E.append(V(f"v_pk_add_f32 {rs('v', x, 2)}, {rs('v', x, 2)}, {rs('v', y, 2)}", [x, x + 1, y, y + 1], [x, x + 1]))
            scale(vC, vR + 12)
            E.extend(flag[:2])
            E.append(direct(vC, 0)); E.append(flag[2])
            if last:
                through([1, 2, 3]); q5(); through([5]); drain(0)
            else:
                mix([(5, J) for J in range(4)], 1)
                while plain: piece(*plain.pop(0))
                E.append(I("s_barrier", "B", tag=("x",))); mark(2)
        elif last:
            through([0, 1] + ([6] if NT == 7 else []) + [2, 3, 4]); q5(); through([5]); drain(0)
        else:
            q5()
            heavy = []
            for J in range(4): heavy += ([(6, J)] if NT == 7 else []) + [(0, J)]
            mix(heavy, 1)
            mix([(5, J) for J in range(4)], 2)
            while plain: piece(*plain.pop(0))
            E.append(I("s_waitcnt lgkmcnt(8)", "w"))
        E2 = []
        W8 = ("v_pk_mul_f32", "v_accvgpr_read_b32", "v_pk_add_f32", "v_cvt_pk_bf16_f32", "ds_write_b128", "ds_read_b128")
        for ins in fix_hazards(E, S.out[-10:]):
            if CFG["al"] and ins.t.split()[0] in W8[:3] and (not E2 or (E2[-1].t.split()[0] not in W8 and not (E2[-1].k == "S" and not last))):
                E2.append(I(".p2align 3", "#"))
            E2.append(ins)
        return E2
    S.emit(sc(f"s_cmp_eq_u32 s{sJob}, 4")); S.emit(sc(f"s_cbranch_scc1 L_last{var.name}"))
    return epilogue(False), epilogue(True)

class Job: pass
def build_job(var):
    carry = find_carry(var)
    S = Sched(var)
    for ds in range(4): S.done.add(("kr", 0, 0, ds))
    st = run_phases(S, range(16), carry)
    st[16] = len(S.out)
    epi, lastepi = build_tail(S)
    for p in range(2, 18, 2):
        while S.out[st[p] - 1].k != "M": st[p] -= 1
    seg = lambda a, b: S.out[a:b]
    bodies = [seg(st[p], st[p + 2]) for p in range(2, 16, 2)]
    for b in bodies[1:]:
        assert [x.t for x in b] == [x.t for x in bodies[0]], "loop body not periodic"
    J = Job(); J.var = var
    J.head = seg(0, st[2]); J.body = bodies[0]; J.tail0 = seg(st[16], len(S.out)); J.tail = J.tail0 + epi; J.last = lastepi
    k = [x.t for x in J.body].index(f"s_sub_u32 s{sLoop}, s{sLoop}, 1")
    assert not any(x.k == "s" and not x.t.startswith("s_nop") for x in J.body[k + 1:])
    J.body.append(sc(f"s_cbranch_scc0 L_body{var.name}"))
    J.carry = carry
    return J

def sigma(x, d, t):
    return [f"v_bfe_u32 v{d}, v{x}, 1, 1", f"v_lshrrev_b32 v{t}, 3, v{x}", f"v_xor_b32 v{t}, v{t}, v{x}", f"v_and_b32 v{t}, 1, v{t}",
            f"v_lshl_or_b32 v{d}, v{t}, 1, v{d}", f"v_and_b32 v{t}, 4, v{x}", f"v_or_b32 v{d}, v{d}, v{t}"]
def swz_addr(row, col, d, t):
    return sigma(row, d, t) + [f"v_xor_b32 v{d}, v{d}, v{col}", f"v_lshlrev_b32 v{d}, 4, v{d}", f"v_and_b32 v{t}, 7, v{row}",
                               f"v_lshl_add_u32 v{d}, v{t}, 7, v{d}", f"v_lshrrev_b32 v{t}, 3, v{row}"]
def stg_addr(row, col, d, t):
    return [f"v_and_b32 v{t}, 7, v{row}", f"v_xor_b32 v{d}, v{t}, v{col}", f"v_lshlrev_b32 v{d}, 4, v{d}", f"v_lshl_add_u32 v{d}, v{t}, 7, v{d}"]

def stamp(i):
    if not CFG["stamp"]: return []
    x = vTmp
    L = [sc(t) for t in (f"s_memtime s[{sTm}:{sTm+1}]", f"s_memrealtime s[{sTm+2}:{sTm+3}]", "s_waitcnt lgkmcnt(0)",
         f"v_mov_b32 v{x+2}, 0", "s_mov_b64 exec, 1")]
    for n, (a, b) in enumerate(((sTm, sTm + 2), (80, 82), (84, 86))):
        L += [sc(f"v_mov_b32 v{x}, s{a}"), sc(f"v_mov_b32 v{x+1}, s{b}"),
              I(f"buffer_store_dwordx2 v[{x}:{x+1}], v{x+2}, s[{sDbg}:{sDbg+3}], s{sStampOff} offen offset:{8*n}", "S"), sc("s_nop 1")]
    return L + [sc("s_mov_b64 exec, -1"), sc(f"s_add_u32 s{sStampOff}, s{sStampOff}, 32"), sc("s_nop 3")]

def prologue():
    P = []
    A = lambda t: P.append(sc(t))
    if CFG["diag_tot"]: A("s_memrealtime s[96:97]")
    A("s_cmp_ge_u32 s2, 256"); A("s_cbranch_scc1 L_exit")
    if CFG["again"]:
        A(f"s_mov_b32 s90, {CFG['again']}"); P.append(I("L_again:", "#"))
    A("s_load_dwordx4 s[80:83], s[0:1], 0"); A("s_load_dwordx4 s[84:87], s[0:1], 16")
    if CFG["stamp"]: A("s_load_dwordx2 s[88:89], s[0:1], 40")
    if CFG["codepf"]:
        A("s_getpc_b64 s[98:99]"); P.append(I("L_pf:", "#")); A("v_lshlrev_b32 v20, 7, v0")
        for i in range(CFG["codepf"]):
            if i: A("v_add_u32 v20, 0x8000, v20")
            A("v_min_u32 v27, L_code_end-L_pf-4, v20")
            P.append(I("global_load_dword v26, v27, s[98:99]", "L"))
    A("v_lshrrev_b32 v20, 6, v0"); A("v_and_b32 v21, 63, v0"); A(f"v_readfirstlane_b32 s{sW}, v20")
    A(f"s_and_b32 s{sT0}, s2, 7"); A(f"s_lshr_b32 s{sT1}, s2, 3"); A(f"s_and_b32 s{sRole}, s{sT1}, 1"); A(f"s_lshr_b32 s{sT1}, s{sT1}, 1")
    A(f"s_lshl_b32 s{sT0}, s{sT0}, 4"); A(f"s_add_u32 s{sT0}, s{sT0}, s{sT1}")
    if CFG["samehead"]: A(f"s_mov_b32 s{sT0}, 0")
    A(f"s_mul_i32 s{sT1}, s{sT0}, {4*QH}"); A(f"s_lshl_b32 s{sT0}, s{sT0}, 19")
    A("v_lshrrev_b32 v22, 3, v21"); A("v_and_b32 v23, 7, v21")
    for x in sigma(22, 24, 25): A(x)
    A("v_xor_b32 v24, v24, v23"); A("v_lshlrev_b32 v24, 4, v24"); A(f"v_lshl_add_u32 v{vDKV}, v22, 8, v24")
    A("v_xor_b32 v24, v22, v23"); A("v_lshlrev_b32 v24, 4, v24"); A(f"v_lshl_add_u32 v{vQO}, v22, 8, v24")
    A(f"s_and_b32 s{sT2}, s{sW}, 1"); A(f"s_lshl_b32 s{sT2}, s{sT2}, 5"); A(f"s_lshl_b32 s{sT3}, s{sW}, 11"); A(f"s_lshl_b32 s{sWoff}, s{sW}, 12")
    A(f"v_xor_b32 v{vDKV}, s{sT2}, v{vDKV}"); A(f"v_add_u32 v{vDKV}, s{sT3}, v{vDKV}")
    A(f"s_mul_i32 s{sStgB}, s{sW}, 24576"); A(f"s_sub_u32 s{sXb}, s{sT3}, s{sStgB}"); A(f"s_add_u32 s{sXb}, s{sXb}, 4096"); A(f"s_sub_u32 s{sXl}, 12288, s{sStgB}")
    A(f"s_add_u32 s{sStgB}, s{sStgB}, 65536")
    A(f"s_mul_i32 s{sOffA}, s{sW}, {112*256}"); A(f"s_mul_i32 s{sOffB}, s{sW}, {96*256}")
    if CFG["zeta"]:
        A(f"s_add_u32 s{sOffB}, s{sOffB}, {448*256}"); A(f"s_mov_b32 s{sOff6}, {832*256}")
        A(f"s_lshr_b32 s{sVarB}, s{sW}, 1"); A(f"s_add_u32 s{sVarB}, s{sVarB}, 1")
    else:
        A(f"s_add_u32 s{sOffB}, s{sOffB}, {464*256}")
        A(f"s_cmp_eq_u32 s{sW}, 0"); A(f"s_cselect_b32 s{sOffB}, {448*256}, s{sOffB}")
        A(f"s_mov_b32 s{sOff6}, {OOB:#x}"); A(f"s_cselect_b32 s{sOff6}, {544*256}, s{sOff6}"); A(f"s_cselect_b32 s{sVarB}, 0, 1")
    A(f"s_mov_b32 s{sJob}, -1")
    P += params_next()
    A("v_and_b32 v22, 15, v21"); A("v_lshrrev_b32 v23, 4, v21")
    A("v_lshlrev_b32 v24, 1, v22"); A("v_and_b32 v24, 8, v24"); A("v_xor_b32 v24, v24, v22")
    A(f"v_lshlrev_b32 v{vDir}, 8, v24"); A(f"v_lshl_add_u32 v{vDir}, v23, 4, v{vDir}")
    A("s_waitcnt lgkmcnt(0)")
    for srd, src, o, n in ((sK, 82, sT0, 4 * KH), (sQ, 80, sT1, 4 * QH), (sV, 84, sT0, 4 * KH), (sO, 86, sT1, 0 if CFG["nostore"] else 4 * QH)):
        A(f"s_add_u32 s{srd}, s{src}, s{o}"); A(f"s_addc_u32 s{srd+1}, s{src+1}, 0"); A(f"s_mov_b32 s{srd+2}, {n}"); A(f"s_mov_b32 s{srd+3}, 0x20000")
    if CFG["stamp"]:
        A(f"s_mov_b32 s{sDbg}, s88"); A(f"s_mov_b32 s{sDbg+1}, s89"); A(f"s_mov_b32 s{sDbg+2}, 0x1000000"); A(f"s_mov_b32 s{sDbg+3}, 0x20000")
        A(f"s_lshl_b32 s{sStampOff}, s2, 2"); A(f"s_add_u32 s{sStampOff}, s{sStampOff}, s{sW}"); A(f"s_lshl_b32 s{sStampOff}, s{sStampOff}, 10")
    P += stamp(0)
    def kv(srd, blk, ldsbase, tag):
        for a in (0, 1):
            P.append(sc(f"s_add_u32 m0, s{sWoff}, {ldsbase + a*(1024-128)}", wr=M0)); A(f"s_mov_b32 s{sT0}, {blk*8192}")
            P.append(dma(vDKV, srd, sT0, a * 128, CFG["kv"], tag))
    kv(sK, 0, 3 * 16384, ("grp", -1))
    for t in range(6):
        for a in (0, 1):
            P.append(sc(f"s_add_u32 m0, s{sStgB}, {t*4096 + a*896}", wr=M0)); A(f"s_add_u32 s{sT1}, s{sNxt}, {t*4096}")
            for nn in (0, 1): P.append(dma(vQO, sQ, sT1, nn * 2048 + a * 128, CFG["q"], None))
    if EARLY6:
        A(f"s_cmp_eq_u32 s{sVarN}, 0"); A("s_cbranch_scc1 L_q6a")
        for ds in range(4): A(q6_load(ds, sNxt6, True).t)
        A("s_branch L_q6b"); P.append(I("L_q6a:", "#"))
    for ds in range(4): P.append(q6_load(ds, sNxt6))
    if EARLY6: P.append(I("L_q6b:", "#"))
    kv(sK, 1, 0, ("grp", 0)); kv(sV, 0, 2048, ("grp", 0))
    kv(sK, 2, 16384, ("grp", 1)); kv(sV, 1, 16384 + 2048, ("grp", 1))
    A(f"s_and_b32 s{sT2}, s{sW}, {1 if CFG['zeta'] else 0}"); A(f"s_lshl_b32 s{sT2}, s{sT2}, 13"); A(f"s_add_u32 s{sT2}, s{sT2}, 0x8000")
    def ring(d):
        A(f"v_lshl_add_u32 v{d}, v25, 12, v24"); A(f"v_add_u32 v{d}, s{sT2}, v{d}"); A(f"v_xor_b32 v{d+1}, 64, v{d}")
        A(f"v_xor_b32 v{d+2}, 0x2000, v{d}"); A(f"v_xor_b32 v{d+3}, 0x2000, v{d+1}")
    for x in swz_addr(22, 23, 24, 25): A(x)
    ring(vK)
    for x in stg_addr(22, 23, 24, 25): A(x)
    A("v_lshrrev_b32 v25, 1, v22"); A("v_xor_b32 v25, v25, v22"); A("v_bfe_u32 v25, v25, 2, 1")
    A(f"v_lshl_add_u32 v{vSt0}, v25, 11, v24"); A(f"v_add_u32 v{vSt0}, s{sStgB}, v{vSt0}"); A(f"v_xor_b32 v{vSt1}, 64, v{vSt0}")
    A(f"v_lshl_add_u32 v{vLin}, v21, 4, s{sStgB}")
    A("v_lshrrev_b32 v22, 2, v21"); A("v_and_b32 v23, 3, v21")
    for x in swz_addr(22, 23, 24, 25): A(x)
    ring(vV)
    A(f"s_mov_b32 s{sC}, {f2u(1.0 if 'c1' in CFG['x'] else SCALE):#x}")
    A(f"s_mov_b32 s{sLo}, {f2u(2.0**CFG['lo']):#x}"); A(f"s_mov_b32 s{sHi}, {f2u(2.0**CFG['hi']):#x}")
    A(f"s_mov_b32 s{sFlag}, {CFG['forcefb']}")
    for d, b, blk in ((sKx, sK, 3), (sVx, sV, 2)):
        A(f"s_add_u32 s{d}, s{b}, {blk*8192}"); A(f"s_addc_u32 s{d+1}, s{b+1}, 0"); A(f"s_mov_b32 s{d+2}, 8192")
    for d in (sKx, sVx, sQx, sOx): A(f"s_mov_b32 s{d+3}, 0x20000")
    A(f"s_mov_b32 s{sCnt}, 3")
    A(f"s_add_u32 s{sM}, s{sWoff}, 32768"); A(f"s_mov_b32 s{sCurO}, 0")
    if CFG["smf"]:
        A("v_lshrrev_b32 v22, 4, v21"); A("v_xor_b32 v22, v22, v21"); A("v_and_b32 v23, 2, v22")
        A("v_and_b32 v22, 1, v21"); A("v_mul_u32_u24 v22, 0xaaaa, v22"); A(f"v_add_u32 v{vIdx}, 0x4444, v22"); A(f"v_lshl_or_b32 v{vIdx}, v{vIdx}, 16, v{vIdx}")
        for i in range(16): A(f"v_accvgpr_write_b32 a{aL+i}, 0")
    A("v_cmp_eq_u32 vcc, 0, v23"); A("v_mov_b32 v24, 0x3f803f80"); A("s_nop 0"); A("v_cndmask_b32 v22, 0, v24, vcc")
    for i in range(4): A(f"v_mov_b32 v{ONE[1]+i}, v22" if EARLY6 else f"v_accvgpr_write_b32 a{aOne+i}, v22")
    P += advance()
    P.append(I("s_waitcnt vmcnt(8)", "w")); P.append(I("s_barrier", "B"))
    for ds in range(4): P.append(k_read(0, 0, ds))
    for t in range(6):
        for ds in range(4): P.append(q_read(t, ds))
    P.append(I("s_waitcnt lgkmcnt(0)", "w"))
    return P

def job_switch(vars_):
    D = []
    if CFG["diag_mark"] >= 0:
        D = [sc(f"s_cmp_lg_u32 s{sJob}, {CFG['diag_mark']}"), sc("s_cbranch_scc1 L_nomark"), sc("s_memrealtime s[96:97]"), I("L_nomark:", "#")]
    L = [I("L_next:", "#")] + D + stamp(1)
    for i, v in list(enumerate(vars_))[1:]: L += [sc(f"s_cmp_eq_u32 s{sVarC}, {i}"), sc(f"s_cbranch_scc1 L_job{v.name}")]
    return L

def final_drain():
    L = [I("L_final:", "#")]
    if CFG["diag_mark"] == 4: L.append(sc("s_memrealtime s[96:97]"))
    if CFG["stamp"]: L += stamp(1) + stamp(2) + [I("s_waitcnt vmcnt(0)", "w")] + stamp(3)
    return L

def fallback():
    L = []; A = L.append
    q, k, s0, pb, vf, o, lacc, m, t0, va, pa, one = 20, 36, 52, 60, 64, 72, 104, 108, 109, 112, 114, 116
    sJ, sN, sRow, sKb, sI, sU, sMask = sU0, sU1, sU2, sU3, sLoop, sD, sBit
    MF = "v_mfma_f32_16x16x32_bf16"
    A(f"s_cmp_eq_u32 s{sFlag}, 0"); A("s_cbranch_scc1 L_done")
    A("s_waitcnt vmcnt(0) lgkmcnt(0)")
    A("v_and_b32 v21, 63, v0"); A("v_and_b32 v22, 15, v21"); A("v_lshrrev_b32 v23, 4, v21")
    A(f"v_lshlrev_b32 v{vDir}, 8, v22"); A(f"v_lshl_add_u32 v{vDir}, v23, 4, v{vDir}")
    A("v_lshrrev_b32 v22, 2, v21"); A("v_and_b32 v23, 3, v21")
    L += stg_addr(22, 23, 24, 25) + ["v_lshrrev_b32 v25, 3, v22"]
    A(f"v_lshl_add_u32 v{va}, v25, 11, v24"); A(f"v_add_u32 v{va}, s{sStgB}, v{va}"); A(f"v_xor_b32 v{va+1}, 64, v{va}")
    A(f"v_xor_b32 v{pa}, 16, v21"); A(f"v_lshlrev_b32 v{pa}, 2, v{pa}"); A(f"v_xor_b32 v{pa+1}, 32, v21"); A(f"v_lshlrev_b32 v{pa+1}, 2, v{pa+1}")
    for i in range(4): A(f"v_mov_b32 v{one+i}, 0x3f803f80")
    A(f"s_mov_b32 s{sJob}, -1")
    A("L_fb_job:")
    L += [x.t for x in params_next()]
    A(f"s_add_u32 s{sJob}, s{sJob}, 1"); A(f"s_cmp_eq_u32 s{sJob}, 4"); A("s_cbranch_scc1 L_done")
    A(f"s_lshr_b32 s{sJ}, s{sFlag}, s{sJob}"); A(f"s_and_b32 s{sJ}, s{sJ}, 1"); A("s_cbranch_scc0 L_fb_job")
    A(f"s_mov_b32 s{sN}, 0"); A(f"s_mov_b32 s{sRow}, s{sNxt}"); A(f"s_mov_b32 s{sMask}, 15")
    A("L_fb_tile:")
    for ds in range(4): A(f"buffer_load_dwordx4 {rs('v', q+4*ds, 4)}, v{vDir}, s[{sQ}:{sQ+3}], s{sRow} offen{off(ds*64)}")
    def scores(dst):
        for ds in range(4): A(f"buffer_load_dwordx4 {rs('v', k+4*ds, 4)}, v{vDir}, s[{sK}:{sK+3}], s{sKb} offen{off(ds*64)}")
        A("s_waitcnt vmcnt(0)")
        for ds in range(4): A(f"{MF} {rs('v', dst, 4)}, {rs('v', k+4*ds, 4)}, {rs('v', q+4*ds, 4)}, {'0' if ds == 0 else rs('v', dst, 4)}")
        A(f"s_add_u32 s{sKb}, s{sKb}, 4096"); A("s_nop 7")
    A(f"v_mov_b32 v{m}, 0xff800000"); A(f"s_lshl_b32 s{sKb}, s{sJob}, 17"); A(f"s_mov_b32 s{sI}, 31")
    A("L_fb_max:")
    scores(s0)
    A(f"v_max3_f32 v{m}, v{m}, v{s0}, v{s0+1}"); A(f"v_max3_f32 v{m}, v{m}, v{s0+2}, v{s0+3}")
    A(f"s_sub_u32 s{sI}, s{sI}, 1"); A("s_cbranch_scc0 L_fb_max")
    for i in (0, 1):
        A(f"ds_bpermute_b32 v{t0}, v{pa+i}, v{m}"); A("s_waitcnt lgkmcnt(0)"); A(f"v_max_f32 v{m}, v{m}, v{t0}")
    for i in range(36): A(f"v_mov_b32 v{o+i}, 0")
    A(f"s_lshl_b32 s{sKb}, s{sJob}, 17"); A(f"s_mov_b32 s{sI}, 15")
    A("L_fb_pv:")
    for kt in (0, 1):
        for a in (0, 1):
            A(f"s_add_u32 m0, s{sStgB}, {kt*4096 + a*896}"); A(f"s_add_u32 s{sU}, s{sKb}, {kt*4096}")
            for nn in (0, 1): A(f"buffer_load_dwordx4 v{vQO}, s[{sV}:{sV+3}], s{sU} offen{off(nn*2048 + a*128)} lds")
    scores(s0); scores(s0 + 4)
    for r in range(8): A(f"v_sub_f32 v{s0+r}, v{s0+r}, v{m}")
    for r in range(8): A(f"v_mul_f32 v{s0+r}, s{sC}, v{s0+r}")
    for r in range(8): A(f"v_exp_f32 v{s0+r}, v{s0+r}")
    A("s_nop 0")
    for r in range(4): A(f"v_cvt_pk_bf16_f32 v{pb+r}, v{s0+2*r}, v{s0+2*r+1}")
    A("s_nop 1")
    A(f"{MF} {rs('v', lacc, 4)}, {rs('v', one, 4)}, {rs('v', pb, 4)}, {rs('v', lacc, 4)}")
    for dj in range(8):
        J, h = dj >> 1, dj & 1; f = vf + 4 * (dj & 1)
        for kt in (0, 1): A(f"ds_read_b64_tr_b16 {rs('v', f+2*kt, 2)}, v{va + (J & 1)}{off(kt*4096 + (J >> 1)*1024 + 8*h)}")
        A("s_waitcnt lgkmcnt(0)")
        A(f"{MF} {rs('v', o+4*dj, 4)}, {rs('v', f, 4)}, {rs('v', pb, 4)}, {rs('v', o+4*dj, 4)}")
    A(f"s_sub_u32 s{sI}, s{sI}, 1"); A("s_cbranch_scc0 L_fb_pv")
    A("s_nop 7"); A(f"v_rcp_f32 v{t0}, v{lacc}"); A("s_nop 0")
    for i in range(32): A(f"v_mul_f32 v{o+i}, v{t0}, v{o+i}")
    for J in range(4):
        for i in range(4): A(f"v_cvt_pk_bf16_f32 v{o+8*J+i}, v{o+8*J+2*i}, v{o+8*J+2*i+1}")
        A(f"s_bitcmp1_b32 s{sMask}, {J}"); A(f"s_cselect_b32 s{sU}, s{sRow}, {OOB:#x}")
        A(f"buffer_store_dwordx4 {rs('v', o+8*J, 4)}, v{vDir}, s[{sO}:{sO+3}], s{sU} offen{off(J*64)}")
    A("s_waitcnt vmcnt(0)")
    A(f"s_add_u32 s{sRow}, s{sRow}, 4096"); A(f"s_add_u32 s{sN}, s{sN}, 1"); A(f"s_cmp_lt_u32 s{sN}, 6"); A("s_cbranch_scc1 L_fb_tile")
    A(f"s_cmp_eq_u32 s{sN}, 7"); A("s_cbranch_scc1 L_fb_job")
    A(f"s_mov_b32 s{sRow}, s{sNxt6}"); A(f"s_lshl_b32 s{sU}, 1, s{sW}"); A(f"s_cmp_eq_u32 s{sVarN}, 0"); A(f"s_cselect_b32 s{sMask}, 15, s{sU}")
    A("s_branch L_fb_tile")
    A("L_done:")
    return [I(x, "#" if x.endswith(":") else "s") for x in L]

def resolve_vm(pro, sw, jobs, fin):
    best = {}
    seqs = ([] if CFG["zeta"] else [[0, 0, 0, 0]]) + [s for i in range(1, len(jobs)) for s in ([0, i, 0, i], [i, 0, i, 0])]
    for seqn in seqs:
        dyn = [(x, 0) for x in pro]
        for j, v in enumerate(seqn):
            J = jobs[v]; b = 16 * j
            dyn += [(x, b) for x in sw] + [(x, b) for x in J.head]
            for it in range(7): dyn += [(x, b + 2 * it) for x in J.body]
            dyn += [(x, b) for x in (J.tail if j < 3 else J.tail0 + J.last)]
        dyn += [(x, 64) for x in fin]
        vm = []; epoch = -2
        for x, b in dyn:
            if x.k == "B" and not (x.tag and x.tag[0] == "x"): epoch = (x.tag[1] + b) if x.tag else -1
            if x.k == "D" and x.tag and x.tag[0] == "ring":
                assert x.tag[1] + b == epoch, ("ring read outside its epoch", x.t, x.tag, b, epoch)
            if x.k in "XLS":
                tg = x.tag
                if tg and tg[0] in ("grp", "q"): tg = (tg[0], tg[1] + b) + tuple(tg[2:])
                if tg and tg[0] == "grp": assert epoch == -2 or tg[1] - 4 < epoch, ("dma overwrites live group", x.t)
                vm.append(tg)
            if x.k == "w" and x.tag:
                want = {"needgrp": lambda: ("grp", x.tag[1] + b), "needq": lambda: ("q", x.tag[1] + b, x.tag[2]), "needq6": lambda: ("q6",)}[x.tag[0]]()
                idx = max(i for i, t in enumerate(vm) if t == want)
                n = min(63, len(vm) - 1 - idx)
                best[id(x)] = (x, min(n, best.get(id(x), (x, 99))[1]))
        seq = [x for x, _ in dyn]
        last = None
        for x in seq:
            op = x.t.split()[0]
            if op == "s_addc_u32":
                a = int(re.match(r"s_addc_u32 s(\d+)", x.t).group(1))
                assert last.startswith(f"s_add_u32 s{a-1},"), (last, x.t)
            if op == "s_cselect_b32": assert last.split()[0] in ("s_cmp_lt_u32", "s_cmp_gt_u32", "s_cmp_eq_u32", "s_and_b32", "s_or_b64"), (last, x.t)
            if re.match(r"s_(add|addc|sub|and|or|xor|lshl|lshr|cmp)", op): last = x.t
        check_lgkm(seq)
        bad = hazards(seq)
        assert not bad, bad[:5]
    for x, n in best.values(): x.t = x.t.replace("?", str(n))

def main():
    bb = lambda k: tuple(int(x) for x in str(CFG[k]).split(","))
    vars_ = [Var("A", 7)] + ([Var("B0", 6, 0, bb("bar0")), Var("B1", 6, 1, bb("bar1"), CFG["sh1"])] if CFG["zeta"] else [Var("B", 6)])
    jobs = [build_job(v) for v in vars_]
    pro = prologue(); sw = job_switch(vars_); fin = final_drain()
    resolve_vm(pro, sw, jobs, fin)
    info = []
    for J in jobs:
        nm = lambda s: sum(x.k == "M" for x in s)
        t = " ".join(f"{n}: {cycles(s)}c iss {issue_sum(s)} pipe {nm(s)*16} |" for n, s in (("head", J.head), ("body", J.body), ("tail", J.tail)))
        info.append(f"{J.var.name} carry={len(J.carry)} {t} total={cycles(J.head + 7 * J.body + J.tail + sw)}")
    for J in jobs:
        seq = [x for x in J.head + 7 * J.body + J.tail if x.k != "#"]; det = []
        cycles(seq, det)
        bt = [0] + [t for x, t in zip(seq, det) if x.k == "B"] + [det[-1]]
        info.append(f"  {J.var.name} epochs: " + " ".join(str(b - a) for a, b in zip(bt, bt[1:])))
    o = []
    o.append("; Attention forward, B*H = 512 heads, Sq 848, Sk 512, D 128, bf16 in/out.")
    o.append("; @launch grid=(256,1,1) block=(256,1,1) lds=163840")
    o.append('.amdgcn_target "amdgcn-amd-amdhsa--gfx950"')
    o += [".text", f".globl {NAME}_kernel", ".p2align 8", f".type {NAME}_kernel,@function", f"{NAME}_kernel:"]
    X = CFG["x"].split()
    def keep(x):
        if "mul" in X and x.t.startswith("v_mul_f32") and f"s{sC}," in x.t and x.k == "V": return None
        if "sum" in X and x.k == "M" and f", {rs(*ONE, 4)}," in x.t: return None
        if "ds" in X and inbody[0] and x.k == "D": return "v_mov_b32 v12, v12"
        if "kvdma" in X and inbody[0] and x.k == "X" and x.tag[0] == "grp": return "v_mov_b32 v12, v12"
        if "st" in X and inbody[0] and x.k == "S": return "v_mov_b32 v12, v12"
        if "qdma" in X and inbody[0] and x.k == "X" and x.tag[0] == "q": return "v_mov_b32 v12, v12"
        if "bar" in X and inbody[0] and x.k == "B": return "s_nop 2"
        if "wait" in X and inbody[0] and x.k == "w": return "s_nop 0"
        return x.t
    inbody = [False]
    put = lambda s: o.extend(("" if x.k == "#" else "    ") + keep(x) for x in s if keep(x) is not None)
    mt = lambda i: [sc(f"s_memtime s[{80+2*i}:{81+2*i}]")] if CFG["stamp"] else []
    put(pro); put(sw)
    for J in jobs:
        o.append(f"L_job{J.var.name}:"); put(mt(0)); put(J.head); put(mt(1))
        if CFG["pad"]: o.append(f"    .p2align {CFG['pad']}")
        o.append(f"L_body{J.var.name}:"); inbody[0] = True; put(J.body); inbody[0] = False; put(mt(2)); put(mt(3)); put(J.tail)
        o.append("    s_branch L_next")
    for J in jobs:
        o.append(f"L_last{J.var.name}:"); put(J.last)
        if J is not jobs[-1]: o.append("    s_branch L_final")
    put(fin); put(fallback())
    if CFG["again"]:
        o += ["    s_waitcnt vmcnt(0) lgkmcnt(0)", "    s_barrier", "    s_sub_u32 s90, s90, 1", "    s_cbranch_scc0 L_again"]
    if CFG["diag_tot"]:
        o += ["    s_waitcnt vmcnt(0) lgkmcnt(0)", "L_diag:", "    s_memrealtime s[94:95]", "    s_waitcnt lgkmcnt(0)",
              "    s_sub_u32 s94, s94, s96", f"    s_cmp_lt_u32 s94, {CFG['diag_tot']}", "    s_cbranch_scc1 L_diag"]
    o += ["L_exit:", "    s_endpgm", "L_code_end:"]
    o += ['.section .rodata,"a"', ".p2align 6", f".amdhsa_kernel {NAME}_kernel",
          "  .amdhsa_next_free_vgpr 512", "  .amdhsa_next_free_sgpr 102", "  .amdhsa_accum_offset 256",
          "  .amdhsa_group_segment_fixed_size 0", "  .amdhsa_kernarg_size 48", "  .amdhsa_user_sgpr_count 2",
          "  .amdhsa_user_sgpr_kernarg_segment_ptr 1", "  .amdhsa_system_sgpr_workgroup_id_x 1", ".end_amdhsa_kernel"]
    open(sys.argv[1], "w").write("\n".join(o) + "\n")
    print("\n".join(info), file=sys.stderr)

main()
```

```python
import re

def R(kind, a, n=1):
    return [(kind, a + i) for i in range(n)]

def rs(kind, a, n=1):
    return f"{kind}{a}" if n == 1 else f"{kind}[{a}:{a+n-1}]"

class I:
    __slots__ = ("t", "k", "rd", "wr", "c", "tag")
    def __init__(self, t, k, rd=(), wr=(), c=(), tag=None):
        self.t = t; self.k = k; self.rd = list(rd); self.wr = list(wr); self.c = list(c); self.tag = tag
    def __repr__(self): return self.t

def mfma(d, a, b, c0=False, tag=None):
    dk, dn = d; ak, an = a; bk, bn = b
    cs = "0" if c0 else rs(dk, dn, 4)
    return I(f"v_mfma_f32_16x16x32_bf16 {rs(dk,dn,4)}, {rs(ak,an,4)}, {rs(bk,bn,4)}, {cs}", "M",
             rd=R(ak, an, 4) + R(bk, bn, 4), wr=R(dk, dn, 4), c=([] if c0 else R(dk, dn, 4)), tag=tag)

def states(ins):
    if ins.k == "#": return 0
    m = re.match(r"s_nop (\d+)", ins.t)
    return int(m.group(1)) + 1 if m else 1

VALU = "VEK"
def need(p, q):
    n = 0
    pw = set(p.wr)
    if p.k == "M":
        if q.k == "M":
            if pw & set(q.rd): n = max(n, 8)
            ov = pw & set(q.c)
            if ov and p.wr != q.c: n = max(n, 6)
            if (pw & set(q.wr)) and not q.c: n = max(n, 6)
        elif q.k in VALU or q.k in "DWLXS":
            if pw & (set(q.rd) | set(q.wr)): n = max(n, 8)
        if q.k in VALU and set(p.c) & set(q.wr): n = max(n, 3)
    elif p.k in VALU:
        if q.k == "M" and pw & (set(q.rd) | set(q.c)): n = max(n, 2)
        if p.k == "E" and q.k in "VK" and pw & set(q.rd): n = max(n, 1)
        if q.k == "K" and pw & set(q.rd): n = max(n, 2)
        sw = {r for r in pw if r[0] == "s"}
        if sw & set(q.rd):
            if q.k in "LXS": n = max(n, 5)
            elif q.k in VALU: n = max(n, 2)
        if "readfirstlane" in q.t and pw & set(q.rd): n = max(n, 1)
    elif p.k == "S":
        if q.k in VALU and set(p.rd) & set(q.wr): n = max(n, 2)
        elif set(p.rd) & set(q.wr): n = max(n, 1)
    elif p.k == "s":
        if ("m", 0) in pw and q.k == "X": n = max(n, 1)
    return n

def hazards(seq, start=0):
    bad = []
    for j in range(start, len(seq)):
        q = seq[j]
        if q.k in "#wB": continue
        dist = 0
        for i in range(j - 1, -1, -1):
            n = need(seq[i], q)
            if n > dist: bad.append((j, n - dist, seq[i].t, q.t))
            dist += states(seq[i])
            if dist >= 8: break
    return bad

def fix_hazards(seq, prefix=()):
    out = list(prefix); n0 = len(out)
    for q in seq:
        if q.k not in "#wB":
            dist = 0; miss = 0
            for p in reversed(out):
                n = need(p, q)
                miss = max(miss, n - dist)
                dist += states(p)
                if dist >= 8: break
            if miss > 0: out.append(I(f"s_nop {miss-1}", "s"))
        out.append(q)
    return out[n0:]

def check_lgkm(seq, pending=None):
    pend = list(pending or [])
    for q in seq:
        if q.k == "w":
            m = re.search(r"lgkmcnt\((\d+)\)", q.t)
            if m:
                n = int(m.group(1))
                if n < len(pend): pend = pend[len(pend) - n:] if n else []
            continue
        if q.k == "#": continue
        touched = set(q.rd) | set(q.c) | set(q.wr)
        for p in pend:
            if set(p.wr) & touched:
                raise AssertionError(f"lgkm hazard: {q.t} touches result of pending {p.t}")
        if q.k in "DW": pend.append(q)
    return pend

def cycles(seq, detail=None):
    t = 0; mf = -100; vec_free = 0; last_valu_end = -100; st_free = 0
    for q in seq:
        if q.k == "#": continue
        if q.k == "M":
            t = max(t, mf + 16, vec_free, st_free); mf = t; vec_free = t + (12 if "smfmac" in q.t else 8); t += 4
        elif q.k in VALU:
            t = max(t, vec_free)
            if q.t.startswith("v_pk_"): t = max(t, mf + 28)
            d = 8 if q.k in "EK" else 4
            t += d; vec_free = t; last_valu_end = t
        elif q.k in "DWLXS":
            t = max(t, vec_free, last_valu_end + 8, st_free - 4 if q.k in "SW" else 0)
            if q.k == "S": st_free = t + 20
            d = {"D": 4, "W": 20, "L": 4, "X": 4, "S": 4}[q.k]
            t += d; vec_free = t
        elif q.k == "B" or q.t.startswith("s_cbranch") or q.t.startswith("s_branch"): t += 12
        else: t += 4 * states(q)
        if detail is not None: detail.append(t)
    return t

def issue_sum(seq):
    c = {"M": 8, "V": 4, "E": 8, "K": 8, "D": 4, "W": 20, "L": 4, "X": 4, "S": 4, "B": 8}
    return sum(c.get(q.k, 0) + (4 if "smfmac" in q.t else 0) for q in seq)

def _inline(tok):
    try: v = int(tok, 0)
    except ValueError: return None
    return -16 <= v <= 64

E32 = ("v_mul_f32", "v_exp_f32", "v_rcp_f32", "v_add_f32", "v_min_f32", "v_max_f32", "v_mov_b32", "v_xor_b32", "v_add_u32", "v_and_b32",
       "v_lshlrev_b32", "v_lshrrev_b32", "v_or_b32", "v_sub_f32", "v_cmp_ngt_f32", "v_cmp_lt_f32", "v_cmp_eq_u32", "v_cndmask_b32",
       "v_readfirstlane_b32", "v_min_u32", "v_mul_u32_u24")
def size(t):
    op = t.split()[0]
    toks = [x.strip() for x in t[len(op):].split(",")]
    lit = any(_inline(x) is False or x.startswith("L_") for x in toks)
    if op.startswith(("s_waitcnt", "s_nop", "s_barrier", "s_cbranch", "s_branch", "s_endpgm")): return 4
    if op.startswith(("s_load", "s_mem")): return 8
    if op.startswith("s_") or op in E32: return 8 if lit else 4
    return 8

def align8(seq, close=True):
    out = []; pos = 0; run = []
    for x in seq:
        if x.k == "#":
            if not x.t.startswith(".p2align"): out.append(x)
            continue
        n = size(x.t)
        if n == 8 and pos % 8:
            c = [i for i in run if out[i].k in "VE" and out[i].t.split()[0] in E32[:14]]
            if c:
                y = out[c[-1]]; op = y.t.split()[0]
                out[c[-1]] = I(op + "_e64" + y.t[len(op):], y.k, y.rd, y.wr, y.c, y.tag)
            else:
                c = [i for i in run if re.match(r"s_(addc_u32 s\d+, s\d+, 0|mov_b32 (m0|s\d+), s\d+)$", out[i].t)]
                out.append(I("s_nop 0", "s"))
            pos += 4
        if n == 8: run = []
        else: run.append(len(out))
        out.append(x); pos += n
    if close and pos % 8: out.append(I("s_nop 0", "s"))
    return out
```

```python
import sys, math, struct, re
from asmlib import *

NAME = "standalone__gqa_softmax__near_ridge"
CFG = dict(kv="", q="nt", o="nt", ol="nt", q6="", o6="", stamp=0, samehead=0, nostore=0, again=0,
           th=26, cl=2, sp=7, sp2=7, al=1, defer=1, zeta=1, smf=1, q6pos=2, q6sp=3, early6=1, first=1, fth=16, look=4, shift=0, otouch=0, bar0="95,95,95,95", bar1="95,95,95,97", sh1=3, x1=2, x1d=3, tmark=-1, onev=1, pad=0, tth=8, xw0=16, xroom=1, sroom=4, pstamp=0, badpair=0, x="", diag_rt=0, diag_cyc=0, diag_tot=0, diag_mark=-1, wgrp=2, lo=-30, hi=30, forcefb=0, codepf=2)
for a in sys.argv[2:]:
    k, v = a.split("=", 1)
    assert k in CFG, k
    CFG[k] = int(v) if re.fullmatch(r"-?\d+", v) else v.replace("+", " ")

QH, KH = 217088, 131072
SCALE = math.log2(math.e) / math.sqrt(128.0)
def f2u(x): return struct.unpack("<I", struct.pack("<f", x))[0]

vK, vV, vDKV, vQO, vLin = 1, 5, 9, 10, 11
vTmp = 12
vS = 20
vP = 36
vO = 92
vSt0, vSt1, vDir, vIdx = 252, 253, 254, 255
aQ, aK, aV, aL, aO, aOne = 0, 112, 144, 160, 188, 252
sQ, sK, sV, sO = 4, 8, 12, 16
(sC, sW, sJob, sCnt, sU0, sU1, sU2, sM, sU3, sD, sOp, sStg, sLoop, sCurO, sNxt, sVarC, sVarN, sFlag, sRole,
 sT0, sT1, sT2, sT3, sWoff, sStgB, sOffA, sOffB, sLo, sHi, sBit, sCur6, sNxt6, sOff6, sVarB, sXb, sXl) = range(20, 56)
sPair = 56
sStampOff = 58
sDbg = 60
sTm = 92
sKx, sVx, sQx, sOx = 64, 68, 72, 76
OOB = 0x100000

EARLY6 = CFG["early6"] and CFG["zeta"] and CFG["smf"]
ONE = ("v", vTmp + 4) if EARLY6 else ("a", aOne)
def Qreg(t, ds, alt):
    if t == 6 and alt and EARLY6: return (aL + 16, aL + 20, aL + 24, aOne)[ds]
    return aQ + (t * 4 + ds) * 4

class Var:
    def __init__(self, name, NT, par=None, bar=(95, 95, 95, 95), sh=0):
        self.name = name; self.NT = NT; self.par = par; self.bar = bar; self.sh = sh
    def shared(self, p): return self.par is not None and p >= 0 and (p & 1) == self.par
    def tiles(self, p): return list(range(self.NT)) + ([6] if self.shared(p) else [])
    def chains(self, p): return [(0, t) for t in self.tiles(p)] + [(1, t) for t in range(self.NT)]
    def sbuf(self, p, kt, t):
        if t == 6 and self.par is not None: return Preg(p + 1, 6)
        return vS + ((p * 2 * self.NT + kt * self.NT + t) & 3) * 4
    def pdeps(self, p, t):
        kts = (0,) if (t == 6 and self.par is not None) else (0, 1)
        return [("cvt", p, kt, t, h) for kt in kts for h in (0, 1)]

def Oreg(t, dj):
    return ("v", vO + t * 32 + dj * 4) if t < 5 else ("a", aO + (t - 5) * 32 + dj * 4)
def Preg(p, t): return vP + (p & 1) * 28 + t * 4
def sc(t, rd=(), wr=()): return I(t, "s", rd=rd, wr=wr)
def fl(x): return (" " + x) if x else ""
def off(x): return f" offset:{x}" if x else ""
def V(t, rd, wr, k="V"): return I(t, k, rd=[("v", r) if isinstance(r, int) else r for r in rd], wr=[("v", r) if isinstance(r, int) else r for r in wr])
COST = {"V": 1, "E": 2, "D": 1}

class Op:
    def __init__(self, key, ins, deps=(), target=None, rel=None):
        self.key = key; self.ins = ins; self.deps = list(deps); self.target = target; self.rel = rel

class Sched:
    def __init__(self, var):
        self.var = var; self.NT = var.NT
        self.out = []; self.done = set(); self.pend = []
        self.valu = []; self.fixed = []; self.scal = []; self.flex = []
        self.forbid = set(); self.gap = 0
        self.bykey = {}; self.th = CFG["th"]
    def add(self, q, op):
        q.append(op); self.bykey[op.key] = op
    def emit(self, ins, key=None):
        if ins.k == "w":
            m = re.search(r"lgkmcnt\((\d+)\)", ins.t)
            if m:
                n = int(m.group(1))
                if n < len(self.pend): self.pend = self.pend[len(self.pend) - n:] if n else []
        self.out.append(ins)
        if ins.k in "DW": self.pend.append(ins)
        if key is not None: self.done.add(key)
    def haz(self, ins):
        dist = 0; miss = 0
        for p in reversed(self.out):
            miss = max(miss, need(p, ins) - dist)
            dist += states(p)
            if dist >= 8: break
        return miss
    def lgkm_need(self, inss):
        idx = -1
        for ins in inss:
            t = set(ins.rd) | set(ins.c) | set(ins.wr)
            for i, p in enumerate(self.pend):
                if set(p.wr) & t: idx = max(idx, i)
        return None if idx < 0 else min(15, len(self.pend) - 1 - idx)
    def ready(self, op):
        return op.key not in self.forbid and all(d in self.done for d in op.deps) and \
            (op.target is None or op.target <= self.gap) and self.haz(op.ins) <= 0
    def put(self, op):
        for q in (self.valu, self.fixed, self.scal, self.flex):
            if op in q: q.remove(op)
        n = self.lgkm_need([op.ins])
        if n is not None: self.emit(I(f"s_waitcnt lgkmcnt({n})", "w"))
        m = self.haz(op.ins)
        if m > 0: self.emit(I(f"s_nop {m-1}", "s"))
        self.emit(op.ins, op.key)
    def force(self, key):
        if key in self.done: return
        op = self.bykey[key]
        assert key not in self.forbid, key
        for d in op.deps: self.force(d)
        self.put(op)
    def pick(self, kinds, n):
        r = []
        for op in self.valu[:48]:
            if op.ins.k in kinds and self.ready(op):
                r.append(op)
                if len(r) == n: break
        return r
    def backlog(self):
        return sum(COST[o.ins.k] for o in self.valu if o.rel is not None and o.rel in self.done)
    def fill(self, room):
        while room > 0:
            e = self.pick("E", 1); v = self.pick("V", 2)
            if room >= 2 and e and (len(v) < 2 or self.valu.index(e[0]) < self.valu.index(v[0])):
                self.put(e[0]); room -= 2
            elif v:
                self.put(v[0]); room -= 1
            elif e and self.backlog() > self.th - 4:
                self.put(e[0]); room -= 2
            else: break
        while self.backlog() > self.th:
            c = self.pick("EV", 1)
            if not c: break
            self.put(c[0])
    def run(self, mf, look=(), cut=False, keep=False):
        allm = list(mf) + list(look)
        for i, (key, ins, deps) in enumerate(mf):
            for d in deps: self.force(d)
            if i == len(mf) - 1 and not keep:
                if cut: self.flush()
                self.forbid = set()
                self.left = [o.key for q in (self.valu, self.fixed, self.scal) for o in q]
            n = self.lgkm_need([ins])
            if n is not None: self.emit(I(f"s_waitcnt lgkmcnt({n})", "w"))
            m = self.haz(ins)
            if m > 0: self.emit(I(f"s_nop {m-1}", "s"))
            self.emit(ins, key)
            afterw = len(self.out) > 1 and self.out[-2].k == "W"
            fx = next((o for o in self.fixed if self.ready(o) and not (afterw and o.ins.k in "DW")), None)
            slot1 = False
            nxt = [x[1] for x in allm[i + 1:i + 2]]
            if self.lgkm_need(nxt) is not None:
                nxt = [x[1] for x in allm[i + 1:i + 5]]
            if fx is not None and fx.ins.k != "B": nxt = nxt + [fx.ins]
            n = self.lgkm_need(nxt)
            if n is not None:
                self.emit(I(f"s_waitcnt lgkmcnt({n})", "w")); slot1 = True
                if fx is not None and fx.ins.k == "B": fx = None
            if fx is not None and fx.ins.k == "B":
                self.put(fx); self.fill(1)
            else:
                if not slot1 and self.scal and self.ready(self.scal[0]):
                    if not (fx is not None and fx.ins.k == "X" and ("m", 0) in self.scal[0].ins.wr): self.put(self.scal[0])
                room = 1 if "smfmac" in ins.t else 2
                if fx is not None and room == 1 and fx.ins.k != "D": fx = None
                if fx is not None:
                    self.put(fx); room = {"D": room - 1, "X": CFG["xroom"], "L": CFG["xroom"], "S": CFG["sroom"], "W": 0}[fx.ins.k]
                if self.flex and fx is None and room == 2 and self.backlog() == 0 and not self.pick("E", 1) and not afterw:
                    f = next((o for o in self.flex if self.ready(o)), None)
                    if f is not None: self.put(f); room -= 1
                if room: self.fill(room)
            self.gap += 1
    def flush(self):
        for q in (self.fixed, self.flex, self.scal, self.valu):
            for op in list(q):
                if op.key not in self.forbid and op.key not in self.done: self.force(op.key)

def k_read(p, kt, ds):
    o = ((p - 1) & 1) * 16384 + (ds >> 1) * 1024
    r = aK + kt * 16 + ds * 4; ad = vK + kt * 2 + (ds & 1)
    return I(f"ds_read_b128 {rs('a', r, 4)}, v{ad}{off(o)}", "D", rd=[("v", ad)], wr=R("a", r, 4), tag=("ring", p - 1))
def v_read(p, dj, kt):
    J, h = dj >> 1, dj & 1
    o = (p & 1) * 16384 + 2048 + (J >> 1) * 1024 + 8 * h
    r = aV + (dj & 3) * 4 + 2 * kt; ad = vV + kt * 2 + (J & 1)
    return I(f"ds_read_b64_tr_b16 {rs('a', r, 2)}, v{ad}{off(o)}", "D", rd=[("v", ad)], wr=R("a", r, 2), tag=("ring", p))
def q_read(t, ds):
    r = aQ + (t * 4 + ds) * 4; ad = vSt0 + (ds & 1)
    return I(f"ds_read_b128 {rs('a', r, 4)}, v{ad}{off(t*4096 + (ds >> 1)*1024)}", "D", rd=[("v", ad)], wr=R("a", r, 4))
def so_(x): return "0" if x is None else f"s{x}"
def dma(vo, srd, so, o, flags, tag):
    return I(f"buffer_load_dwordx4 v{vo}, s[{srd}:{srd+3}], {so_(so)} offen{off(o)}{fl(flags)} lds", "X", rd=[("v", vo), ("m", 0)], tag=tag)
def o_store(r, o=0):
    return I(f"buffer_store_dwordx4 {rs('v', r, 4)}, v{vQO}, s[{sOx}:{sOx+3}], 0 offen{off(o)}{fl(CFG['o'])}", "S", rd=R("v", r, 4) + [("v", vQO)])
def bump(srd, by): return [f"s_add_u32 s{srd}, s{srd}, {by}", f"s_addc_u32 s{srd+1}, s{srd+1}, 0"]
def o_write(t, J, b):
    ad = vSt0 + (J & 1)
    return I(f"ds_write_b128 v{ad}, {rs('v', b, 4)}{off(t*4096 + (J >> 1)*1024)}", "W", rd=R("v", b, 4) + [("v", ad)])
DEFER = [(t, J) for J in range(4) for t in range(1, 5)] if CFG["defer"] else []
def q6_load(ds, so, alt=False):
    r = Qreg(6, ds, alt)
    return I(f"buffer_load_dwordx4 {rs('a', r, 4)}, v{vDir}, s[{sQ}:{sQ+3}], s{so} offen{off(ds*64)}{fl(CFG['q6'])}", "L",
             rd=[("v", vDir), ("s", so)], wr=R("a", r, 4), tag=("q6",))
M0 = [("m", 0)]

def sums(var, p):
    tl = var.tiles(p)
    if not CFG["smf"]:
        return [(("sum", p, t), mfma(("a", aL + t * 4), ("a", aOne), ("v", Preg(p, t)), c0=(p == 0)), var.pdeps(p, t)) for t in tl]
    L = []
    for u in range(4 if 6 in tl else 3):
        t = min(2 * u, 5); d = aL + 4 * u; b = Preg(p, t)
        L.append((("sum", p, u), I(f"v_smfmac_f32_16x16x64_bf16 {rs('a', d, 4)}, {rs(*ONE, 4)}, {rs('v', b, 8)}, v{vIdx}", "M",
                                   rd=R(*ONE, 4) + R("v", b, 8) + [("v", vIdx)], wr=R("a", d, 4), c=R("a", d, 4)),
                  var.pdeps(p, t) + var.pdeps(p, t + 1)))
    return L
def pv_only(var, p):
    return [(("pv", p, dj, t), mfma(Oreg(t, dj), ("a", aV + (dj & 3) * 4), ("v", Preg(p, t)), c0=(p == 0)),
             var.pdeps(p, t) + [("vr", p, dj, 0), ("vr", p, dj, 1)] + ([("ow", t, dj >> 1)] if p == 0 and (t, dj >> 1) in DEFER else []))
            for dj in range(8) for t in var.tiles(p)]
def pv_list(var, p):
    pv = pv_only(var, p); sm = sums(var, p); n = len(var.tiles(p)); L = []
    step = 2 if CFG["smf"] else 1
    for dj in range(8):
        L += pv[dj * n:(dj + 1) * n]
        if dj % step == 0 and dj // step < len(sm): L.append(sm[dj // step])
    return L

def phase_mf(var, p):
    NT = var.NT
    if p > 0: pv = pv_list(var, p - 1)
    elif var.par == 1:
        z = [("pz", i) for i in range(4)]
        pv = [(("zo", dj), mfma(Oreg(6, dj), ONE, ("v", Preg(1, 6)), c0=True), z) for dj in range(8)]
        if not CFG["smf"]: pv.append((("zo", 8), mfma(("a", aL + 24), ("a", aOne), ("v", Preg(1, 6)), c0=True), z))
    else: pv = []
    L = []; n = 0; ch = var.chains(p)
    for c, (kt, t) in enumerate(ch):
        sb = var.sbuf(p, kt, t)
        for ds in range(4):
            deps = [("kr", p, kt, ds)]
            if t == 6 and kt == 0 and ds == 0 and p == (var.par or 0) and not EARLY6: deps.append(("w6",))
            g = p * 2 * NT + kt * NT + t - 4
            if ds == 0 and g >= 0 and not (t == 6 and var.par is not None):
                pp, cc = divmod(g, 2 * NT)
                deps += [("cvt", pp, cc // NT, cc % NT, h) for h in (0, 1)]
            L.append((("qk", p, kt, t, ds), mfma(("v", sb), ("a", aK + kt * 16 + ds * 4), ("a", Qreg(t, ds, var.par is not None)), c0=(ds == 0)), deps))
        upto = (len(pv) * (c + 1)) // len(ch)
        L += pv[n:upto]; n = upto
    return L

def add_softmax(S, p, chains=None):
    for kt, t, sb in chains or [(kt, t, S.var.sbuf(p, kt, t)) for kt, t in S.var.chains(p)]:
        rel = ("qk", p, kt, t, 3)
        mul = lambda r: Op(("mul", p, kt, t, r), V(f"v_mul_f32 v{sb+r}, s{sC}, v{sb+r}", [sb + r], [sb + r]), [rel], rel=rel)
        ex = lambda r: Op(("exp", p, kt, t, r), V(f"v_exp_f32 v{sb+r}, v{sb+r}", [sb + r], [sb + r], "E"), [("mul", p, kt, t, r)], rel=rel)
        def cv(h):
            d = Preg(p, t) + 2 * kt + h
            return Op(("cvt", p, kt, t, h), V(f"v_cvt_pk_bf16_f32 v{d}, v{sb+2*h}, v{sb+2*h+1}", [sb + 2 * h, sb + 2 * h + 1], [d]),
                      [("exp", p, kt, t, 2 * h), ("exp", p, kt, t, 2 * h + 1)], rel=rel)
        for o in (mul(0), mul(1), ex(0), ex(1), mul(2), mul(3), ex(2), ex(3), cv(0), cv(1)): S.add(S.valu, o)

VPOS = {2: (10, 13), 3: (30, 33), 4: (42, 45), 5: (56, 59), 6: (70, 73), 7: (83, 86)}

def add_phase_ops(S, p, mf):
    var = S.var; g0 = S.gap; n = len(mf); with_pv = p > 0
    T = lambda x: g0 + int(x * n / 119.0)
    add_softmax(S, p)
    fx = []; scal = []
    new = lambda lst, key, ins, deps=(), x=0: lst.append(Op(key, ins, deps, T(x)))
    known = lambda k: [k] if (k in S.bykey or k in S.done) else []
    lastt = var.tiles(p - 1)[-1]
    for ds in range(4):
        new(fx, ("kr", p, 1, ds), k_read(p, 1, ds), known(("xk", p - 1, 1, ds & 1)), (36, 39, 48, 51)[ds])
    if with_pv:
        for dj in range(2, 8):
            for kt in (0, 1):
                war = [("pv", p - 1, dj - 4, lastt)] if dj >= 4 else []
                xo = known(("xv", p - 1, kt, 1)) if dj == 2 else []
                new(fx, ("vr", p - 1, dj, kt), v_read(p - 1, dj, kt), war + xo, VPOS[dj][kt])
    rd_before = [("kr", p, 1, ds) for ds in range(4)] + ([("vr", p - 1, 7, kt) for kt in (0, 1)] if with_pv else [])
    cl, sp, sp2 = CFG["cl"] + var.sh, CFG["sp"], CFG["sp2"]
    xb = var.bar[p if p < 2 else 2 + (p & 1)]
    prev = []
    def chain(name, texts, deps, x):
        for i, t in enumerate(texts):
            new(scal, (name[0], p) + tuple(name[1:]) + (i,), sc(t), deps, x)
            deps = [(name[0], p) + tuple(name[1:]) + (i,)]
        return deps
    for k, srd in enumerate((sKx, sKx, sVx, sVx)):
        new(scal, ("m0", p, k), sc(f"s_add_u32 m0, s{sM}, {k*1024 - (k & 1)*128}", wr=M0), prev, max(0, cl + k * sp - 3))
        new(fx, ("dma", p, k), dma(vDKV, srd, None, (k & 1) * 128, CFG["kv"], ("grp", p + 2)), [("m0", p, k)], cl + k * sp)
        prev = [("dma", p, k)]
    kvlast = prev
    x = cl + 4 * sp
    for j in (() if p & 1 else (0, 1, 2)):
        tmp = vTmp
        new(fx, ("or", p, j), I(f"ds_read_b128 {rs('v', tmp, 4)}, v{vLin}{off(j*1024)}", "D", rd=[("v", vLin)], wr=R("v", tmp, 4)),
            known(("ul", p - 2)) + ([("os", p, j - 1)] if j else []), x - 9)
        new(scal, ("qm", p, j), sc(f"s_mov_b32 m0, s{sStg}", wr=M0), prev, x - 1)
        new(fx, ("os", p, j), o_store(tmp), [("or", p, j)] + prev, x)
        po = chain(("uo", j), bump(sOx, f"s{sD}") + [f"s_add_u32 s{sStg}, s{sStg}, 1024"], [("os", p, j), ("qm", p, j)], x)
        new(fx, ("qd", p, j), dma(vQO, sQx, None, 0, CFG["q"], ("q", p, j)), [("os", p, j), ("qm", p, j)], x + sp2)
        prev = chain(("uq", j), bump(sQx, f"s{sD}") + [f"s_xor_b32 s{sD}, s{sD}, 0x700"], [("qd", p, j)] + po, x + sp2)
        x += 2 * sp2
    prev = chain(("uk",), [f"s_add_u32 s{sM}, s{sM}, 16384", f"s_and_b32 s{sM}, s{sM}, 0xffff"] + bump(sKx, 8192) + bump(sVx, 8192) +
                 [f"s_mov_b32 s{sVx+2}, s{sKx+2}", f"s_add_u32 s{sCnt}, s{sCnt}, 1", f"s_cmp_lt_u32 s{sCnt}, 64", f"s_cselect_b32 s{sKx+2}, 8192, 0"],
                 kvlast + prev, x - sp2 + 1)
    if not p & 1: S.add(S.valu, Op(("ul", p), V(f"v_add_u32 v{vLin}, 3072, v{vLin}", [vLin], [vLin]), [("or", p, 2)]))
    new(scal, ("wb", p), I("s_waitcnt vmcnt(?) lgkmcnt(0)", "w", tag=("needgrp", p)), rd_before + prev, xb - 1)
    new(fx, ("bar", p), I("s_barrier", "B", tag=("bar", p)), [("wb", p)], xb)
    ev = not (p & 1)
    if ev:
        xor = lambda r: V(f"v_xor_b32 v{r}, 0x8000, v{r}", [r], [r])
        for kt in (0, 1):
            for b in (0, 1):
                S.add(S.valu, Op(("xk", p, kt, b), xor(vK + 2 * kt + b), [("kr", p, 1, b), ("kr", p, 1, b + 2)]))
                dv = [("vr", p - 1, 4 + 2 * b + h, kt) for h in (0, 1)] if with_pv else []
                S.add(S.valu, Op(("xv", p, kt, b), xor(vV + 2 * kt + b), dv))
    for ds in range(4):
        new(fx, ("kr", p + 1, 0, ds), k_read(p + 1, 0, ds), [("bar", p), ("qk", p, 0, var.tiles(p)[-1], ds)] + ([("xk", p, 0, ds & 1)] if ev else []), 97 + 3 * ds)
    for dj in (0, 1):
        for kt in (0, 1):
            war = [("pv", p - 1, dj + 4, lastt)] if with_pv else []
            new(fx, ("vr", p, dj, kt), v_read(p, dj, kt), [("bar", p)] + war + ([("xv", p, kt, 0)] if ev else []), (108, 110, 113, 116)[dj * 2 + kt])
    if p == 0 and var.par is not None:
        for i in (range(4) if var.par else (2, 3)):
            r = Preg(var.par, 6) + i
            S.add(S.valu, Op(("pz", i), V(f"v_mov_b32 v{r}, 0", [], [r]), []))
    if p == (var.par or 0) and 6 in var.tiles(p) and not EARLY6:
        g6 = g0 + [m[0] for m in mf].index(("qk", p, 0, 6, 0)) - 2
        scal.append(Op(("w6",), I("s_waitcnt vmcnt(?)", "w", tag=("needq6",)), [], g6))
    if p < 2:
        for i, (t, J) in enumerate(DEFER[8 * p:8 * p + 8]):
            new(fx, ("ow", t, J), o_write(t, J, Oreg(t, 2 * J)[1]), [], (6 + 11 * i) if p == 0 else (6, 16, 22, 27, 54, 62, 66, 77)[i])
    if EARLY6 and p == 1:
        for ds in range(4): new(fx, ("q6", ds), q6_load(ds, sNxt6, var.par is None), [], 32 + 19 * ds)
    if p >= 3 and p & 1:
        new(scal, ("lp", p), sc(f"s_sub_u32 s{sLoop}, s{sLoop}, 1"), [("wb", p)], 112)
    fx.sort(key=lambda o: o.target); scal.sort(key=lambda o: o.target)
    for o in fx: S.add(S.fixed, o)
    for o in scal: S.add(S.scal, o)
    misc = [o for o in S.valu if o.key[0] in ("xk", "xv", "ul", "pz")]
    S.valu = misc + [o for o in S.valu if o not in misc]

def rel(key, p): return (key[0], key[1] - p) + tuple(key[2:])

def run_phases(S, phases, carry):
    starts = {}
    for p in phases:
        starts[p] = len(S.out)
        mf = phase_mf(S.var, p)
        S.forbid = set()
        add_phase_ops(S, p, mf)
        cut = carry is not None and (p & 1)
        if cut: S.forbid = {(k[0], k[1] + p) + tuple(k[2:]) for k in carry}
        S.run(mf, phase_mf(S.var, p + 1)[:4], cut)
    return starts

def find_carry(var):
    S = Sched(var)
    for ds in range(4): S.done.add(("kr", 0, 0, ds))
    run_phases(S, range(0, 8), None)
    return [rel(k, 7) for k in S.left]

def params_next():
    return [sc(x) for x in (
        f"s_add_u32 s{sT2}, s{sJob}, 1",
        f"s_add_u32 s{sNxt6}, s{sOffA}, 24576",
        f"s_xor_b32 s{sT3}, s{sT2}, s{sRole}",
        f"s_and_b32 s{sT3}, s{sT3}, 1",
        f"s_cselect_b32 s{sNxt}, s{sOffB}, s{sOffA}",
        f"s_cselect_b32 s{sNxt6}, s{sOff6}, s{sNxt6}",
        f"s_cselect_b32 s{sVarN}, s{sVarB}, 0",
        f"s_mul_i32 s{sT2}, s{sT2}, {QH}",
        f"s_add_u32 s{sNxt}, s{sNxt}, s{sT2}",
        f"s_add_u32 s{sNxt6}, s{sNxt6}, s{sT2}")]

def advance():
    return [sc(x) for x in (f"s_lshl_b32 s{sBit}, 1, s{sJob}", f"s_add_u32 s{sJob}, s{sJob}, 1", f"s_mov_b32 s{sOp}, s{sCurO}",
                            f"s_mov_b32 s{sCurO}, s{sNxt}", f"s_mov_b32 s{sCur6}, s{sNxt6}", f"s_mov_b32 s{sVarC}, s{sVarN}")] + params_next() + \
           [sc(x) for x in (f"s_add_u32 s{sQx}, s{sQ}, s{sNxt}", f"s_addc_u32 s{sQx+1}, s{sQ+1}, 0", f"s_cmp_lt_u32 s{sJob}, 3", f"s_cselect_b32 s{sQx+2}, 4096, 0",
                            f"s_add_u32 s{sOx}, s{sO}, s{sOp}", f"s_addc_u32 s{sOx+1}, s{sO+1}, 0", f"s_cmp_gt_u32 s{sJob}, 0",
                            f"s_cselect_b32 s{sOx+2}, {0 if CFG['nostore'] else 4096}, 0", f"s_mov_b32 s{sD}, 128", f"s_mov_b32 s{sStg}, s{sStgB}", f"s_mov_b32 s{sLoop}, 6")]

def build_tail(S):
    var = S.var; NT = var.NT; p = 15; g0 = S.gap; S.forbid = set(); sh = var.par is not None; S.th = CFG['tth']
    pv = pv_only(var, p); sm = sums(var, p); tl = var.tiles(p); n = len(tl)
    ne = 2 if CFG["smf"] else NT - 2
    mf = sm[:ne] + pv[:n] + sm[ne:] + pv[n:]
    for dj in range(2, 8):
        for kt in (0, 1):
            war = [("pv", p, dj - 4, tl[-1])] if dj >= 4 else []
            S.add(S.fixed, Op(("vr", p, dj, kt), v_read(p, dj, kt), war, g0 + max(0, n * dj + len(sm) - 11 + kt)))
    chain = [I("s_waitcnt vmcnt(?)", "w", tag=("needq", 12, 1)), sc(f"s_mov_b32 s{sT0}, s{sNxt6}")]
    chain += [sc(f"s_lshl_b32 s{sT1}, s{sW}, 6"), sc(f"s_add_u32 s{sT1}, s{sT1}, s{sCur6}")] if sh else [sc(f"s_mov_b32 s{sT1}, s{sCur6}")]
    chain += advance()
    for i, x in enumerate(chain): S.add(S.scal, Op(("ts", i), x, [("ts", i - 1)] if i else [], g0))
    if not EARLY6:
      for ds in range(4): S.add(S.fixed, Op(("q6", ds), q6_load(ds, sT0), [("ts", 1)], g0 + CFG["q6pos"] + CFG["q6sp"] * ds))
    S.fixed.sort(key=lambda o: o.target)
    for t in (1, 2, 3, 0, 4):
        for ds in range(4): S.add(S.flex, Op(("qr", t, ds), q_read(t, ds), [("ts", 0)]))
    vL = vP + 14; vR = vP; vmx, vmn = vP + 22, vP + 23
    add = lambda key, ins, deps: S.add(S.valu, Op(key, ins, deps))
    for t in list(range(NT)) + ([6] if sh else []):
        pl = p if t in tl else p - 1
        if CFG["smf"]:
            u = 3 if t == 6 else t >> 1
            a = aL + 4 * u + (2 if (t & 1 or t == 6) else 0)
            add(("la", t), V(f"v_accvgpr_read_b32 v{vL+t}, a{a}", [("a", a)], [vL + t]), [("sum", pl, u)])
            add(("lb", t), V(f"v_accvgpr_read_b32 v{vR+2*t}, a{a+1}", [("a", a + 1)], [vR + 2 * t]), [("sum", pl, u)])
            add(("lr", t), V(f"v_add_f32 v{vL+t}, v{vL+t}, v{vR+2*t}", [vL + t, vR + 2 * t], [vL + t]), [("la", t), ("lb", t)])
            for i in ((a - 2, a - 1, a, a + 1) if t == 6 else (a, a + 1)):
                add(("lz", i), V(f"v_accvgpr_write_b32 a{i}, 0", [], [("a", i)]), [("la", t), ("lb", t)])
        else:
            add(("lr", t), V(f"v_accvgpr_read_b32 v{vL+t}, a{aL+t*4}", [("a", aL + t * 4)], [vL + t]), [("sum", pl, t)])
        if t < NT: add(("rc", t), V(f"v_rcp_f32 v{vR+2*t}, v{vL+t}", [vL + t], [vR + 2 * t], "E"), [("lr", t)])
    s_ = [vL + t for t in range(NT)]
    add(("tot", 1), V(f"v_add_f32 v{vmx}, v{s_[0]}, v{s_[1]}", s_[:2], [vmx]), [("lr", 0), ("lr", 1)])
    for t in range(2, NT): add(("tot", t), V(f"v_add_f32 v{vmx}, v{vmx}, v{s_[t]}", [vmx, s_[t]], [vmx]), [("tot", t - 1), ("lr", t)])
    add(("min", 0), V(f"v_min3_f32 v{vmn}, v{s_[0]}, v{s_[1]}, v{s_[2]}", s_[:3], [vmn]), [("lr", t) for t in range(NT)])
    add(("min", 1), V(f"v_min3_f32 v{vmn}, v{vmn}, v{s_[3]}, v{s_[4]}", [vmn, s_[3], s_[4]], [vmn]), [("min", 0)])
    add(("min", 2), V(f"v_min3_f32 v{vmn}, v{vmn}, v{s_[5]}, v{s_[-1]}", [vmn, s_[5], s_[-1]], [vmn]), [("min", 1)])
    add(("vl",), V(f"v_add_u32 v{vLin}, {(-24576) & 0xffffffff:#x}, v{vLin}", [vLin], [vLin]), [])
    check = [V(f"v_cmp_ngt_f32 vcc, s{sHi}, v{vmx}", [vmx], [("s", "vcc")]),
             V(f"v_cmp_gt_f32_e64 s[{sPair}:{sPair+1}], s{sLo}, v{vmn}", [vmn], R("s", sPair, 2))]
    flag = [sc(x) for x in (f"s_or_b64 vcc, vcc, s[{sPair}:{sPair+1}]", f"s_cselect_b32 s{sT2}, s{sBit}, 0", f"s_or_b32 s{sFlag}, s{sFlag}, s{sT2}")]
    if not sh:
        add(("c1",), check[0], [("tot", NT - 1)]); add(("c2",), check[1], [("min", 2)])
        for i, x in enumerate(flag): S.add(S.scal, Op(("ts", len(chain) + i), x, [("ts", len(chain) + i - 1), ("c1",), ("c2",)], g0))
    softdone = [("cvt", p, 1, t, h) for t in range(NT - 4, NT) for h in (0, 1)]
    te = NT - 1
    early = {(te, J): vb for J, vb in enumerate((vS, vS + 8) if EARLY6 else (vTmp, vS, vS + 8))}
    for (t, J), vb in early.items():
        b = Oreg(t, 2 * J)[1]
        for i in range(8):
            add(("ar", t, J, i), V(f"v_accvgpr_read_b32 v{vb+i}, a{b+i}", [("a", b + i)], [vb + i]), softdone + [("pv", p, 2 * J + (i >> 2), t)])
    for J in range(3):
        for t in (1, 2, 3, 4, 0):
            b = Oreg(t, 2 * J)[1]
            for i in range(8):
                add(("om", t, J, i), V(f"v_mul_f32 v{b+i}, v{vR+2*t}, v{b+i}", [b + i, vR + 2 * t], [b + i]),
                    [("rc", t), ("pv", p, 2 * J + (i >> 2), t)] + ([("om", t, J, i - 1)] if i else []))
    if sh:
        for dj in range(8):
            b = Oreg(6, dj)[1]
            dep = [("vl",)] + [("qr", 1 + (dj >> 2), ds) for ds in range(4)] + ([("pv", p, dj, 6)] if 6 in tl else [])
            S.add(S.fixed, Op(("xw", dj), I(f"ds_write_b128 v{vLin}, {rs('a', b, 4)}{off(4096 + dj*1024)}", "W", rd=R("a", b, 4) + [("v", vLin)]), dep,
                              g0 + CFG["xw0"] + (len(mf) - CFG["xw0"]) * dj // 8))
        S.add(S.fixed, Op(("xl",), I(f"ds_write_b32 v{vLin}, v{vL+6} offset:12288", "W", rd=[("v", vL + 6), ("v", vLin)]),
                          [("vl",), ("lr", 6)] + [("qr", 3, ds) for ds in range(4)], g0 + len(mf) - 2))
        S.fixed.sort(key=lambda o: o.target)
        o = S.bykey[("vl",)]; S.valu.remove(o); S.valu.insert(0, o)
    S.run(mf)
    S.valu = [o for o in S.valu if not (o.key[0] == "om" and not (o.key[3] & 1 and ("om",) + o.key[1:3] + (o.key[3] - 1,) in S.done))]
    S.flush()
    vC = vP + 24
    def epilogue(last):
        E = []
        mark = lambda i: E.append(sc("s_memtime s[86:87]")) if CFG["tmark"] == i else None
        mark(0)
        def scale(b, r, skip=lambda i: False):
            for i in range(4):
                if not skip(i):
                    E.append(V(f"v_pk_mul_f32 {rs('v', b+2*i, 2)}, {rs('v', b+2*i, 2)}, {rs('v', r, 2)} op_sel_hi:[1,0]",
                               [b + 2 * i, b + 2 * i + 1, r], [b + 2 * i, b + 2 * i + 1]))
            for i in range(4):
                E.append(V(f"v_cvt_pk_bf16_f32 v{b+i}, v{b+2*i}, v{b+2*i+1}", [b + 2 * i, b + 2 * i + 1], [b + i]))
        def direct(b, o):
            return I(f"buffer_store_dwordx4 {rs('v', b, 4)}, v{vDir}, s[{sO}:{sO+3}], s{sT1} offen{off(o)}{fl(CFG['o6'])}", "S",
                     rd=R("v", b, 4) + [("v", vDir), ("s", sT1)])
        def piece(t, J):
            k, b = Oreg(t, 2 * J)
            if k == "a":
                if (t, J) in early: b = early[(t, J)]
                else:
                    for i in range(8): E.append(V(f"v_accvgpr_read_b32 v{vC+8*J+i}, a{b+i}", [("a", b + i)], [vC + 8 * J + i]))
                    b = vC + 8 * J
            scale(b, vR + 2 * t, lambda i: ("om", t, J, 2 * i) in S.done)
            if last: E.append(o_write(t % 6, J, b))
            elif t == 6: E.append(direct(b, J * 64))
            elif (t, J) not in DEFER: E.append(o_write(t, J, b))
            return b
        def q5():
            mark(3)
            E.append(I("s_waitcnt vmcnt(?)", "w", tag=("needq", 14, 2))); mark(4)
            if not last:
                for ds in range(4): E.append(q_read(5, ds))
        plain = [(t, J) for t in range(1, 5) for J in range(4)]
        def mix(heavy, k):
            for x in heavy:
                piece(*x)
                for _ in range(k):
                    if plain: piece(*plain.pop(0))
        pend = []
        def drain(n):
            if not pend: return
            t, a, regs = pend.pop()
            E.append(I(f"s_waitcnt lgkmcnt({n})", "w")); E.append(sc(f"s_add_u32 s{sT3}, s{sOp}, {t*4096}"))
            for nn, r in enumerate(regs):
                E.append(I(f"buffer_store_dwordx4 {rs('v', r, 4)}, v{vQO}, s[{sO}:{sO+3}], s{sT3} offen{off(nn*2048 + a*128)}{fl(CFG['ol'])}", "S", rd=R("v", r, 4) + [("v", vQO)]))
        def through(tiles):
            for t in tiles:
                for a in (0, 1):
                    regs = [piece(t, 2 * a) + 4, piece(t, 2 * a + 1) + 4]
                    for nn, r in enumerate(regs):
                        E.append(I(f"ds_read_b128 {rs('v', r, 4)}, v{vLin}{off((t % 6)*4096 + nn*2048 + a*1024)}", "D", rd=[("v", vLin)], wr=R("v", r, 4)))
                    drain(4); pend.append((t, a, regs))
        if sh:
            a0, a1, a2, a3 = vR + 9, vR + 11, vR + 13, vP + 21
            E.append(V(f"v_add_u32 v{a0}, s{sXb}, v{vLin}", [vLin], [a0]))
            E.append(V(f"v_add_u32 v{a1}, 49152, v{a0}", [a0], [a1]))
            E.append(V(f"v_add_u32 v{a2}, s{sXl}, v{vLin}", [vLin], [a2]))
            E.append(V(f"v_add_u32 v{a3}, 49152, v{a2}", [a2], [a3]))
            if last:
                through([0]); E.append(I("s_waitcnt lgkmcnt(4)", "w"))
            else:
                for _ in range(CFG["x1"] + (0 if var.par else CFG["x1d"])): piece(*plain.pop(0))
                E.append(I("s_waitcnt lgkmcnt(0)", "w"))
            E.append(I("s_barrier", "B", tag=("x",))); mark(1)
            for src in range(4):
                for h in (0, 1):
                    ad = a0 if src < 2 else a1; r = vC + 8 * src + 4 * h
                    E.append(I(f"ds_read_b128 {rs('v', r, 4)}, v{ad}{off((src & 1)*24576 + h*1024)}", "D", rd=[("v", ad)], wr=R("v", r, 4)))
            for src in range(4):
                ad = a2 if src < 2 else a3
                E.append(I(f"ds_read_b32 v{vR+1+2*src}, v{ad}{off((src & 1)*24576)}", "D", rd=[("v", ad)], wr=[("v", vR + 1 + 2 * src)]))
            if last:
                through([4]); E.append(I("s_barrier", "B", tag=("x",)))
            else:
                q5()
                for _ in range(4): piece(*plain.pop(0))
                mix([(0, J) for J in range(4)], 1)
                E.append(I("s_waitcnt lgkmcnt(4)", "w"))
            lt = vL + 6
            E.append(V(f"v_add_f32 v{vR+1}, v{vR+1}, v{vR+3}", [vR + 1, vR + 3], [vR + 1]))
            E.append(V(f"v_add_f32 v{vR+5}, v{vR+5}, v{vR+7}", [vR + 5, vR + 7], [vR + 5]))
            E.append(V(f"v_add_f32 v{lt}, v{vR+1}, v{vR+5}", [vR + 1, vR + 5], [lt]))
            E.append(V(f"v_rcp_f32 v{vR+12}, v{lt}", [lt], [vR + 12], "E"))
            E.append(V(f"v_add_f32 v{vmx}, v{vmx}, v{lt}", [vmx, lt], [vmx]))
            E.append(V(f"v_min_f32 v{vmn}, v{vmn}, v{lt}", [vmn, lt], [vmn]))
            E.extend(check)
            for d, s2 in ((0, 8), (16, 24), (0, 16)):
                for i in range(4):
                    x, y = vC + d + 2 * i, vC + s2 + 2 * i
                    E.append(V(f"v_pk_add_f32 {rs('v', x, 2)}, {rs('v', x, 2)}, {rs('v', y, 2)}", [x, x + 1, y, y + 1], [x, x + 1]))
            scale(vC, vR + 12)
            E.extend(flag[:2])
            E.append(direct(vC, 0)); E.append(flag[2])
            if last:
                through([1, 2, 3]); q5(); through([5]); drain(0)
            else:
                mix([(5, J) for J in range(4)], 1)
                while plain: piece(*plain.pop(0))
                E.append(I("s_barrier", "B", tag=("x",))); mark(2)
        elif last:
            through([0, 1] + ([6] if NT == 7 else []) + [2, 3, 4]); q5(); through([5]); drain(0)
        else:
            q5()
            heavy = []
            for J in range(4): heavy += ([(6, J)] if NT == 7 else []) + [(0, J)]
            mix(heavy, 1)
            mix([(5, J) for J in range(4)], 2)
            while plain: piece(*plain.pop(0))
            E.append(I("s_waitcnt lgkmcnt(8)", "w"))
        E = fix_hazards(E, S.out[-10:])
        return [I(".p2align 3", "#")] + align8(E, False) if CFG["al"] else E
    S.emit(sc(f"s_cmp_eq_u32 s{sJob}, 4")); S.emit(sc(f"s_cbranch_scc1 L_last{var.name}"))
    return epilogue(False), epilogue(True)

class Job: pass
def build_job(var):
    carry = find_carry(var)
    S = Sched(var)
    for ds in range(4): S.done.add(("kr", 0, 0, ds))
    st = run_phases(S, range(16), carry)
    st[16] = len(S.out)
    epi, lastepi = build_tail(S)
    for p in range(2, 18, 2):
        while S.out[st[p] - 1].k != "M": st[p] -= 1
    seg = lambda a, b: S.out[a:b]
    bodies = [seg(st[p], st[p + 2]) for p in range(2, 16, 2)]
    for b in bodies[1:]:
        assert [x.t for x in b] == [x.t for x in bodies[0]], "loop body not periodic"
    J = Job(); J.var = var
    J.head = seg(0, st[2]); J.body = bodies[0]; J.tail0 = seg(st[16], len(S.out)); J.tail = J.tail0 + epi; J.last = lastepi
    k = [x.t for x in J.body].index(f"s_sub_u32 s{sLoop}, s{sLoop}, 1")
    assert not any(x.k == "s" and not x.t.startswith("s_nop") for x in J.body[k + 1:])
    J.body.append(sc(f"s_cbranch_scc0 L_body{var.name}"))
    J.carry = carry
    return J

def sigma(x, d, t):
    return [f"v_bfe_u32 v{d}, v{x}, 1, 1", f"v_lshrrev_b32 v{t}, 3, v{x}", f"v_xor_b32 v{t}, v{t}, v{x}", f"v_and_b32 v{t}, 1, v{t}",
            f"v_lshl_or_b32 v{d}, v{t}, 1, v{d}", f"v_and_b32 v{t}, 4, v{x}", f"v_or_b32 v{d}, v{d}, v{t}"]
def swz_addr(row, col, d, t):
    return sigma(row, d, t) + [f"v_xor_b32 v{d}, v{d}, v{col}", f"v_lshlrev_b32 v{d}, 4, v{d}", f"v_and_b32 v{t}, 7, v{row}",
                               f"v_lshl_add_u32 v{d}, v{t}, 7, v{d}", f"v_lshrrev_b32 v{t}, 3, v{row}"]
def stg_addr(row, col, d, t):
    return [f"v_and_b32 v{t}, 7, v{row}", f"v_xor_b32 v{d}, v{t}, v{col}", f"v_lshlrev_b32 v{d}, 4, v{d}", f"v_lshl_add_u32 v{d}, v{t}, 7, v{d}"]

def stamp(i):
    if not CFG["stamp"]: return []
    x = vTmp
    L = [sc(t) for t in (f"s_memtime s[{sTm}:{sTm+1}]", f"s_memrealtime s[{sTm+2}:{sTm+3}]", "s_waitcnt lgkmcnt(0)",
         f"v_mov_b32 v{x+2}, 0", "s_mov_b64 exec, 1")]
    for n, (a, b) in enumerate(((sTm, sTm + 2), (80, 82), (84, 86))):
        L += [sc(f"v_mov_b32 v{x}, s{a}"), sc(f"v_mov_b32 v{x+1}, s{b}"),
              I(f"buffer_store_dwordx2 v[{x}:{x+1}], v{x+2}, s[{sDbg}:{sDbg+3}], s{sStampOff} offen offset:{8*n}", "S"), sc("s_nop 1")]
    return L + [sc("s_mov_b64 exec, -1"), sc(f"s_add_u32 s{sStampOff}, s{sStampOff}, 32"), sc("s_nop 3")]

def kv_batch(srd, blk, ldsbase, tag):
    L = []
    for a in (0, 1):
        L += [sc(f"s_add_u32 m0, s{sWoff}, {ldsbase + a*(1024-128)}", wr=M0), sc(f"s_mov_b32 s{sT0}, {blk*8192}"), dma(vDKV, srd, sT0, a * 128, CFG["kv"], tag)]
    return L
def grp_batch(e): return kv_batch(sK, e + 1, (e & 3) * 16384, ("grp", e)) + kv_batch(sV, e, (e & 3) * 16384 + 2048, ("grp", e))
def q_batch(slot, base, o, tag):
    L = []
    for a in (0, 1):
        L += [sc(f"s_add_u32 m0, s{sStgB}, {slot*4096 + a*896}", wr=M0), sc(f"s_add_u32 s{sT1}, s{base}, {o}")]
        L += [dma(vQO, sQ, sT1, nn * 2048 + a * 128, CFG["q"], tag) for nn in (0, 1)]
    return L

def build_first(var, carry):
    S = Sched(var); S.th = CFG["fth"]; NT = var.NT; alt = var.par is not None
    forbid = {(k[0], k[1] + 1) + tuple(k[2:]) for k in carry}
    assert all(k[2:4] in ((1, NT - 1), (1, NT - 2)) for k in forbid if k[0] in ("mul", "exp", "cvt"))
    Kh = lambda p, kt, ds: aO + p * 32 + kt * 16 + ds * 4
    Vh = lambda dj: aV + dj * 4 if dj < 4 else aK + dj * 4
    em = lambda L: [S.emit(x) for x in L]
    em([I("s_waitcnt vmcnt(?)", "w", tag=("needgrp", 0)), I("s_barrier", "B")])
    for p in (0, 1):
        for kt in (0, 1):
            for ds in range(4):
                ad = vK + kt * 2 + (ds & 1)
                S.emit(I(f"ds_read_b128 {rs('a', Kh(p, kt, ds), 4)}, v{ad}{off((0 if p else 49152) + (ds >> 1)*1024)}", "D", rd=[("v", ad)], wr=R("a", Kh(p, kt, ds), 4)))
    for dj in range(8):
        for kt in (0, 1):
            ad = vV + kt * 2 + ((dj >> 1) & 1); r = Vh(dj) + 2 * kt
            S.emit(I(f"ds_read_b64_tr_b16 {rs('a', r, 2)}, v{ad}{off(2048 + (dj >> 2)*1024 + 8*(dj & 1))}", "D", rd=[("v", ad)], wr=R("a", r, 2)))
    em([I("s_waitcnt lgkmcnt(0)", "w"), I("s_barrier", "B", tag=("bar", 0))])
    batches = [q_batch(t, sCurO, t * 4096, ("q0", t)) for t in range(CFG["look"], 6)]
    batches += [q_batch(1, sCur6, 0, ("q0", 6)), grp_batch(1)]
    if EARLY6: batches.append([q6_load(ds, sNxt6, not alt) for ds in range(4)])
    batches.append(grp_batch(2))
    assert CFG["look"] <= 4
    lastbuf = {}
    def chain(p, kt, t, sb):
        add_softmax(S, p, [(kt, t, sb)])
        dep = lastbuf.get(sb, []); lastbuf[sb] = [("cvt", p, kt, t, h) for h in (0, 1)]
        return [(("qk", p, kt, t, ds), mfma(("v", sb), ("a", Kh(p, kt, ds)), ("a", Qreg(t, ds, alt)), c0=(ds == 0)), dep if ds == 0 else []) for ds in range(4)]
    pv = lambda dj, t: (("pv", 0, dj, t), mfma(Oreg(t, dj), ("a", Vh(dj)), ("v", Preg(0, t)), c0=True), var.pdeps(0, t))
    sm = sums(var, 0)
    smt = (lambda i: min(2 * i + 1, 6)) if CFG["smf"] else (lambda i: var.tiles(0)[i])
    tiles = list(range(NT)) + ([6] if alt else [])
    split = None
    for t in tiles:
        if t == 4:
            split = len(S.out)
            if alt:
                for i in (range(4) if var.par else (2, 3)): S.emit(V(f"v_mov_b32 v{Preg(var.par, 6)+i}, 0", [], [Preg(var.par, 6) + i]))
        end = t == tiles[-1]
        S.emit(I("s_waitcnt vmcnt(?)", "w", tag=("needq0", t)))
        for ds in range(4):
            r = Qreg(t, ds, alt); ad = vSt0 + (ds & 1)
            S.emit(I(f"ds_read_b128 {rs('a', r, 4)}, v{ad}{off((1 if t == 6 else t)*4096 + (ds >> 1)*1024)}", "D", rd=[("v", ad)], wr=R("a", r, 4)))
        while batches:
            em(batches.pop(0))
            if not end: break
        mf = []
        if t == 6 and alt: mf += chain(var.par, 0, 6, var.sbuf(var.par, 0, 6))
        else:
            for i, (p, kt) in enumerate(((0, 0), (0, 1), (1, 0), (1, 1))):
                sb = vS + 4 * i if t < NT - 2 else (var.sbuf(1, 1, t) if i == 3 else vS + 4 * (i & 1))
                mf += chain(p, kt, t, sb)
        S.forbid = forbid
        if not end:
            if t < 5: mf += [pv(dj, t) for dj in range(8)]
            mf += [m for i, m in enumerate(sm) if smt(i) == t]
            S.run(mf, keep=True); S.flush()
            continue
        g0 = S.gap
        late = [x for x in var.tiles(0) if x >= 5]
        if var.par == 1:
            zo = [(("zo", dj), mfma(Oreg(6, dj), ONE, ("v", Preg(1, 6)), c0=True), []) for dj in range(8)]
            if not CFG["smf"]: zo.append((("zo", 8), mfma(("a", aL + 24), ONE, ("v", Preg(1, 6)), c0=True), []))
            for h in (0, 1): S.bykey[("cvt", 1, 0, 6, h)].deps.append(zo[-1][0])
            mf += zo
        n1 = len(mf)
        mf += [pv(dj, x) for dj in range(8) for x in late]
        mf[-1:-1] = [m for i, m in enumerate(sm) if smt(i) == t]
        S.add(S.scal, Op(("wb", 1), I("s_waitcnt vmcnt(?)", "w", tag=("needgrp", 1)), [], g0 + n1 - 4))
        S.add(S.fixed, Op(("bar", 1), I("s_barrier", "B", tag=("bar", 1)), [("wb", 1)], g0 + n1 - 3))
        prev = [("bar", 1)]
        for ds in range(4):
            S.add(S.fixed, Op(("kr", 2, 0, ds), k_read(2, 0, ds), prev, g0 + n1 - 2 + ds)); prev = [("kr", 2, 0, ds)]
        for dj in (0, 1):
            for kt in (0, 1):
                S.add(S.fixed, Op(("vr", 1, dj, kt), v_read(1, dj, kt), prev + [("pv", 0, dj, late[-1])], g0)); prev = [("vr", 1, dj, kt)]
        T = grp_batch(3)
        for j in range(3):
            T += [sc(f"s_mov_b32 m0, s{sStg}", wr=M0), sc(f"s_add_u32 s{sStg}, s{sStg}, 1024"), dma(vQO, sQx, None, 0, CFG["q"], ("q", 0, j))]
            T += [sc(x) for x in bump(sQx, f"s{sD}") + [f"s_xor_b32 s{sD}, s{sD}, 0x700"]]
        S.run(mf, cut=True)
        while S.out[-1].k != "M": S.out.pop()
        groups = []; cur = []
        for x in T:
            cur.append(x)
            if len(cur) == 3: groups.append(cur); cur = []
        ms = [i for i, x in enumerate(S.out) if x.k == "M"][-len(groups) - 1:-1]
        for i, g in reversed(list(zip(ms, groups))): S.out[i + 1:i + 1] = g
    return S.out[:split], S.out[split:]

def prologue():
    P = []
    A = lambda t: P.append(sc(t))
    if CFG["diag_tot"]: A("s_memrealtime s[96:97]")
    A("s_cmp_ge_u32 s2, 256"); A("s_cbranch_scc1 L_exit")
    if CFG["again"]:
        A(f"s_mov_b32 s90, {CFG['again']}"); P.append(I("L_again:", "#"))
    A("s_load_dwordx4 s[80:83], s[0:1], 0"); A("s_load_dwordx4 s[84:87], s[0:1], 16")
    if CFG["stamp"]: A("s_load_dwordx2 s[88:89], s[0:1], 40")
    if CFG["codepf"]:
        A("s_getpc_b64 s[98:99]"); P.append(I("L_pf:", "#")); A("v_lshlrev_b32 v20, 7, v0")
        for i in range(CFG["codepf"]):
            if i: A("v_add_u32 v20, 0x8000, v20")
            A("v_min_u32 v27, L_code_end-L_pf-4, v20")
            P.append(I("global_load_dword v26, v27, s[98:99]", "L"))
    A("v_lshrrev_b32 v20, 6, v0"); A("v_and_b32 v21, 63, v0"); A(f"v_readfirstlane_b32 s{sW}, v20")
    A(f"s_and_b32 s{sT0}, s2, 7"); A(f"s_lshr_b32 s{sT1}, s2, 3"); A(f"s_and_b32 s{sRole}, s{sT1}, 1"); A(f"s_lshr_b32 s{sT1}, s{sT1}, 1")
    A(f"s_lshl_b32 s{sT0}, s{sT0}, 4"); A(f"s_add_u32 s{sT0}, s{sT0}, s{sT1}")
    if CFG["samehead"]: A(f"s_mov_b32 s{sT0}, 0")
    A(f"s_mul_i32 s{sT1}, s{sT0}, {4*QH}"); A(f"s_lshl_b32 s{sT0}, s{sT0}, 19")
    A("v_lshrrev_b32 v22, 3, v21"); A("v_and_b32 v23, 7, v21")
    for x in sigma(22, 24, 25): A(x)
    A("v_xor_b32 v24, v24, v23"); A("v_lshlrev_b32 v24, 4, v24"); A(f"v_lshl_add_u32 v{vDKV}, v22, 8, v24")
    A("v_xor_b32 v24, v22, v23"); A("v_lshlrev_b32 v24, 4, v24"); A(f"v_lshl_add_u32 v{vQO}, v22, 8, v24")
    A(f"s_and_b32 s{sT2}, s{sW}, 1"); A(f"s_lshl_b32 s{sT2}, s{sT2}, 5"); A(f"s_lshl_b32 s{sT3}, s{sW}, 11"); A(f"s_lshl_b32 s{sWoff}, s{sW}, 12")
    A(f"v_xor_b32 v{vDKV}, s{sT2}, v{vDKV}"); A(f"v_add_u32 v{vDKV}, s{sT3}, v{vDKV}")
    A(f"s_mul_i32 s{sStgB}, s{sW}, 24576"); A(f"s_sub_u32 s{sXb}, s{sT3}, s{sStgB}"); A(f"s_add_u32 s{sXb}, s{sXb}, 4096"); A(f"s_sub_u32 s{sXl}, 12288, s{sStgB}")
    A(f"s_add_u32 s{sStgB}, s{sStgB}, 65536")
    A(f"s_mul_i32 s{sOffA}, s{sW}, {112*256}"); A(f"s_mul_i32 s{sOffB}, s{sW}, {96*256}")
    if CFG["zeta"]:
        A(f"s_add_u32 s{sOffB}, s{sOffB}, {448*256}"); A(f"s_mov_b32 s{sOff6}, {832*256}")
        A(f"s_lshr_b32 s{sVarB}, s{sW}, 1"); A(f"s_add_u32 s{sVarB}, s{sVarB}, 1")
    else:
        A(f"s_add_u32 s{sOffB}, s{sOffB}, {464*256}")
        A(f"s_cmp_eq_u32 s{sW}, 0"); A(f"s_cselect_b32 s{sOffB}, {448*256}, s{sOffB}")
        A(f"s_mov_b32 s{sOff6}, {OOB:#x}"); A(f"s_cselect_b32 s{sOff6}, {544*256}, s{sOff6}"); A(f"s_cselect_b32 s{sVarB}, 0, 1")
    A(f"s_mov_b32 s{sJob}, -1")
    P += params_next()
    A("v_and_b32 v22, 15, v21"); A("v_lshrrev_b32 v23, 4, v21")
    A("v_lshlrev_b32 v24, 1, v22"); A("v_and_b32 v24, 8, v24"); A("v_xor_b32 v24, v24, v22")
    A(f"v_lshlrev_b32 v{vDir}, 8, v24"); A(f"v_lshl_add_u32 v{vDir}, v23, 4, v{vDir}")
    A("s_waitcnt lgkmcnt(0)")
    for srd, src, o, n in ((sK, 82, sT0, 4 * KH), (sQ, 80, sT1, 4 * QH), (sV, 84, sT0, 4 * KH), (sO, 86, sT1, 0 if CFG["nostore"] else 4 * QH)):
        A(f"s_add_u32 s{srd}, s{src}, s{o}"); A(f"s_addc_u32 s{srd+1}, s{src+1}, 0"); A(f"s_mov_b32 s{srd+2}, {n}"); A(f"s_mov_b32 s{srd+3}, 0x20000")
    if CFG["stamp"]:
        A(f"s_mov_b32 s{sDbg}, s88"); A(f"s_mov_b32 s{sDbg+1}, s89"); A(f"s_mov_b32 s{sDbg+2}, 0x1000000"); A(f"s_mov_b32 s{sDbg+3}, 0x20000")
        A(f"s_lshl_b32 s{sStampOff}, s2, 2"); A(f"s_add_u32 s{sStampOff}, s{sStampOff}, s{sW}"); A(f"s_lshl_b32 s{sStampOff}, s{sStampOff}, 10")
    P += stamp(0)
    F = CFG["first"]
    P += kv_batch(sK, 0, 3 * 16384, ("grp", -1))
    if F:
        P += grp_batch(0)
        for t in range(CFG["look"]): P += q_batch(t, sNxt, t * 4096, ("q0", t))
    else:
        for t in range(6): P += q_batch(t, sNxt, t * 4096, None)
        if EARLY6:
            A(f"s_cmp_eq_u32 s{sVarN}, 0"); A("s_cbranch_scc1 L_q6a")
            for ds in range(4): A(q6_load(ds, sNxt6, True).t)
            A("s_branch L_q6b"); P.append(I("L_q6a:", "#"))
        for ds in range(4): P.append(q6_load(ds, sNxt6))
        if EARLY6: P.append(I("L_q6b:", "#"))
        P += grp_batch(0) + grp_batch(1)
    A(f"s_and_b32 s{sT2}, s{sW}, {1 if CFG['zeta'] else 0}"); A(f"s_lshl_b32 s{sT2}, s{sT2}, 13"); A(f"s_add_u32 s{sT2}, s{sT2}, {0 if F else 0x8000}")
    def ring(d):
        A(f"v_lshl_add_u32 v{d}, v25, 12, v24"); A(f"v_add_u32 v{d}, s{sT2}, v{d}"); A(f"v_xor_b32 v{d+1}, 64, v{d}")
        A(f"v_xor_b32 v{d+2}, 0x2000, v{d}"); A(f"v_xor_b32 v{d+3}, 0x2000, v{d+1}")
    for x in swz_addr(22, 23, 24, 25): A(x)
    ring(vK)
    for x in stg_addr(22, 23, 24, 25): A(x)
    A("v_lshrrev_b32 v25, 1, v22"); A("v_xor_b32 v25, v25, v22"); A("v_bfe_u32 v25, v25, 2, 1")
    A(f"v_lshl_add_u32 v{vSt0}, v25, 11, v24"); A(f"v_add_u32 v{vSt0}, s{sStgB}, v{vSt0}"); A(f"v_xor_b32 v{vSt1}, 64, v{vSt0}")
    A(f"v_lshl_add_u32 v{vLin}, v21, 4, s{sStgB}")
    if F: A(f"v_add_u32 v{vLin}, 3072, v{vLin}")
    A("v_lshrrev_b32 v22, 2, v21"); A("v_and_b32 v23, 3, v21")
    for x in swz_addr(22, 23, 24, 25): A(x)
    ring(vV)
    A(f"s_mov_b32 s{sC}, {f2u(1.0 if 'c1' in CFG['x'] else SCALE):#x}")
    A(f"s_mov_b32 s{sLo}, {f2u(2.0**CFG['lo']):#x}"); A(f"s_mov_b32 s{sHi}, {f2u(2.0**CFG['hi']):#x}")
    A(f"s_mov_b32 s{sFlag}, {CFG['forcefb']}")
    for d, b, blk in ((sKx, sK, 3 + 2 * F), (sVx, sV, 2 + 2 * F)):
        A(f"s_add_u32 s{d}, s{b}, {blk*8192}"); A(f"s_addc_u32 s{d+1}, s{b+1}, 0"); A(f"s_mov_b32 s{d+2}, 8192")
    for d in (sKx, sVx, sQx, sOx): A(f"s_mov_b32 s{d+3}, 0x20000")
    A(f"s_mov_b32 s{sCnt}, {3 + 2 * F}")
    A(f"s_add_u32 s{sM}, s{sWoff}, {0 if F else 32768}"); A(f"s_mov_b32 s{sCurO}, 0")
    if CFG["smf"]:
        A("v_lshrrev_b32 v22, 4, v21"); A("v_xor_b32 v22, v22, v21"); A("v_and_b32 v23, 2, v22")
        A("v_and_b32 v22, 1, v21"); A("v_mul_u32_u24 v22, 0xaaaa, v22"); A(f"v_add_u32 v{vIdx}, 0x4444, v22"); A(f"v_lshl_or_b32 v{vIdx}, v{vIdx}, 16, v{vIdx}")
        for i in range(16): A(f"v_accvgpr_write_b32 a{aL+i}, 0")
    A("v_cmp_eq_u32 vcc, 0, v23"); A("v_mov_b32 v24, 0x3f803f80"); A("s_nop 0"); A("v_cndmask_b32 v22, 0, v24, vcc")
    for i in range(4): A(f"v_mov_b32 v{ONE[1]+i}, v22" if EARLY6 else f"v_accvgpr_write_b32 a{aOne+i}, v22")
    P += advance()
    if F: return P
    P.append(I("s_waitcnt vmcnt(8)", "w")); P.append(I("s_barrier", "B"))
    for ds in range(4): P.append(k_read(0, 0, ds))
    for t in range(6):
        for ds in range(4): P.append(q_read(t, ds))
    P.append(I("s_waitcnt lgkmcnt(0)", "w"))
    return P

def job_switch(vars_):
    D = []
    if CFG["diag_mark"] >= 0:
        D = [sc(f"s_cmp_lg_u32 s{sJob}, {CFG['diag_mark']}"), sc("s_cbranch_scc1 L_nomark"), sc("s_memrealtime s[96:97]"), I("L_nomark:", "#")]
    L = [I("L_next:", "#")] + D + stamp(1)
    for i, v in list(enumerate(vars_))[1:]: L += [sc(f"s_cmp_eq_u32 s{sVarC}, {i}"), sc(f"s_cbranch_scc1 L_job{v.name}")]
    return L

def final_drain():
    L = [I("L_final:", "#")]
    if CFG["diag_mark"] == 4: L.append(sc("s_memrealtime s[96:97]"))
    if CFG["stamp"]: L += stamp(1) + stamp(2) + [I("s_waitcnt vmcnt(0)", "w")] + stamp(3)
    return L

def fallback():
    L = []; A = L.append
    q, k, s0, pb, vf, o, lacc, m, t0, va, pa, one = 20, 36, 52, 60, 64, 72, 104, 108, 109, 112, 114, 116
    sJ, sN, sRow, sKb, sI, sU, sMask = sU0, sU1, sU2, sU3, sLoop, sD, sBit
    MF = "v_mfma_f32_16x16x32_bf16"
    A(f"s_cmp_eq_u32 s{sFlag}, 0"); A("s_cbranch_scc1 L_done")
    A("s_waitcnt vmcnt(0) lgkmcnt(0)")
    A("v_and_b32 v21, 63, v0"); A("v_and_b32 v22, 15, v21"); A("v_lshrrev_b32 v23, 4, v21")
    A(f"v_lshlrev_b32 v{vDir}, 8, v22"); A(f"v_lshl_add_u32 v{vDir}, v23, 4, v{vDir}")
    A("v_lshrrev_b32 v22, 2, v21"); A("v_and_b32 v23, 3, v21")
    L += stg_addr(22, 23, 24, 25) + ["v_lshrrev_b32 v25, 3, v22"]
    A(f"v_lshl_add_u32 v{va}, v25, 11, v24"); A(f"v_add_u32 v{va}, s{sStgB}, v{va}"); A(f"v_xor_b32 v{va+1}, 64, v{va}")
    A(f"v_xor_b32 v{pa}, 16, v21"); A(f"v_lshlrev_b32 v{pa}, 2, v{pa}"); A(f"v_xor_b32 v{pa+1}, 32, v21"); A(f"v_lshlrev_b32 v{pa+1}, 2, v{pa+1}")
    for i in range(4): A(f"v_mov_b32 v{one+i}, 0x3f803f80")
    A(f"s_mov_b32 s{sJob}, -1")
    A("L_fb_job:")
    L += [x.t for x in params_next()]
    A(f"s_add_u32 s{sJob}, s{sJob}, 1"); A(f"s_cmp_eq_u32 s{sJob}, 4"); A("s_cbranch_scc1 L_done")
    A(f"s_lshr_b32 s{sJ}, s{sFlag}, s{sJob}"); A(f"s_and_b32 s{sJ}, s{sJ}, 1"); A("s_cbranch_scc0 L_fb_job")
    A(f"s_mov_b32 s{sN}, 0"); A(f"s_mov_b32 s{sRow}, s{sNxt}"); A(f"s_mov_b32 s{sMask}, 15")
    A("L_fb_tile:")
    for ds in range(4): A(f"buffer_load_dwordx4 {rs('v', q+4*ds, 4)}, v{vDir}, s[{sQ}:{sQ+3}], s{sRow} offen{off(ds*64)}")
    def scores(dst):
        for ds in range(4): A(f"buffer_load_dwordx4 {rs('v', k+4*ds, 4)}, v{vDir}, s[{sK}:{sK+3}], s{sKb} offen{off(ds*64)}")
        A("s_waitcnt vmcnt(0)")
        for ds in range(4): A(f"{MF} {rs('v', dst, 4)}, {rs('v', k+4*ds, 4)}, {rs('v', q+4*ds, 4)}, {'0' if ds == 0 else rs('v', dst, 4)}")
        A(f"s_add_u32 s{sKb}, s{sKb}, 4096"); A("s_nop 7")
    A(f"v_mov_b32 v{m}, 0xff800000"); A(f"s_lshl_b32 s{sKb}, s{sJob}, 17"); A(f"s_mov_b32 s{sI}, 31")
    A("L_fb_max:")
    scores(s0)
    A(f"v_max3_f32 v{m}, v{m}, v{s0}, v{s0+1}"); A(f"v_max3_f32 v{m}, v{m}, v{s0+2}, v{s0+3}")
    A(f"s_sub_u32 s{sI}, s{sI}, 1"); A("s_cbranch_scc0 L_fb_max")
    for i in (0, 1):
        A(f"ds_bpermute_b32 v{t0}, v{pa+i}, v{m}"); A("s_waitcnt lgkmcnt(0)"); A(f"v_max_f32 v{m}, v{m}, v{t0}")
    for i in range(36): A(f"v_mov_b32 v{o+i}, 0")
    A(f"s_lshl_b32 s{sKb}, s{sJob}, 17"); A(f"s_mov_b32 s{sI}, 15")
    A("L_fb_pv:")
    for kt in (0, 1):
        for a in (0, 1):
            A(f"s_add_u32 m0, s{sStgB}, {kt*4096 + a*896}"); A(f"s_add_u32 s{sU}, s{sKb}, {kt*4096}")
            for nn in (0, 1): A(f"buffer_load_dwordx4 v{vQO}, s[{sV}:{sV+3}], s{sU} offen{off(nn*2048 + a*128)} lds")
    scores(s0); scores(s0 + 4)
    for r in range(8): A(f"v_sub_f32 v{s0+r}, v{s0+r}, v{m}")
    for r in range(8): A(f"v_mul_f32 v{s0+r}, s{sC}, v{s0+r}")
    for r in range(8): A(f"v_exp_f32 v{s0+r}, v{s0+r}")
    A("s_nop 0")
    for r in range(4): A(f"v_cvt_pk_bf16_f32 v{pb+r}, v{s0+2*r}, v{s0+2*r+1}")
    A("s_nop 1")
    A(f"{MF} {rs('v', lacc, 4)}, {rs('v', one, 4)}, {rs('v', pb, 4)}, {rs('v', lacc, 4)}")
    for dj in range(8):
        J, h = dj >> 1, dj & 1; f = vf + 4 * (dj & 1)
        for kt in (0, 1): A(f"ds_read_b64_tr_b16 {rs('v', f+2*kt, 2)}, v{va + (J & 1)}{off(kt*4096 + (J >> 1)*1024 + 8*h)}")
        A("s_waitcnt lgkmcnt(0)")
        A(f"{MF} {rs('v', o+4*dj, 4)}, {rs('v', f, 4)}, {rs('v', pb, 4)}, {rs('v', o+4*dj, 4)}")
    A(f"s_sub_u32 s{sI}, s{sI}, 1"); A("s_cbranch_scc0 L_fb_pv")
    A("s_nop 7"); A(f"v_rcp_f32 v{t0}, v{lacc}"); A("s_nop 0")
    for i in range(32): A(f"v_mul_f32 v{o+i}, v{t0}, v{o+i}")
    for J in range(4):
        for i in range(4): A(f"v_cvt_pk_bf16_f32 v{o+8*J+i}, v{o+8*J+2*i}, v{o+8*J+2*i+1}")
        A(f"s_bitcmp1_b32 s{sMask}, {J}"); A(f"s_cselect_b32 s{sU}, s{sRow}, {OOB:#x}")
        A(f"buffer_store_dwordx4 {rs('v', o+8*J, 4)}, v{vDir}, s[{sO}:{sO+3}], s{sU} offen{off(J*64)}")
    A("s_waitcnt vmcnt(0)")
    A(f"s_add_u32 s{sRow}, s{sRow}, 4096"); A(f"s_add_u32 s{sN}, s{sN}, 1"); A(f"s_cmp_lt_u32 s{sN}, 6"); A("s_cbranch_scc1 L_fb_tile")
    A(f"s_cmp_eq_u32 s{sN}, 7"); A("s_cbranch_scc1 L_fb_job")
    A(f"s_mov_b32 s{sRow}, s{sNxt6}"); A(f"s_lshl_b32 s{sU}, 1, s{sW}"); A(f"s_cmp_eq_u32 s{sVarN}, 0"); A(f"s_cselect_b32 s{sMask}, 15, s{sU}")
    A("s_branch L_fb_tile")
    A("L_done:")
    return [I(x, "#" if x.endswith(":") else "s") for x in L]

def resolve_vm(pro, sw, jobs, fin):
    best = {}
    seqs = ([] if CFG["zeta"] else [[0, 0, 0, 0]]) + [s for i in range(1, len(jobs)) for s in ([0, i, 0, i], [i, 0, i, 0])]
    for seqn in seqs:
        dyn = [(x, 0) for x in pro]
        for j, v in enumerate(seqn):
            J = jobs[v]; b = 16 * j
            dyn += [(x, b) for x in (jobs[0].fcom + J.first if (j == 0 and CFG["first"]) else sw + J.head)]
            for it in range(7): dyn += [(x, b + 2 * it) for x in J.body]
            dyn += [(x, b) for x in (J.tail if j < 3 else J.tail0 + J.last)]
        dyn += [(x, 64) for x in fin]
        vm = []; epoch = -2
        for x, b in dyn:
            if x.k == "B" and not (x.tag and x.tag[0] == "x"): epoch = (x.tag[1] + b) if x.tag else -1
            if x.k == "D" and x.tag and x.tag[0] == "ring":
                assert x.tag[1] + b == epoch, ("ring read outside its epoch", x.t, x.tag, b, epoch)
            if x.k in "XLS":
                tg = x.tag
                if tg and tg[0] in ("grp", "q"): tg = (tg[0], tg[1] + b) + tuple(tg[2:])
                if tg and tg[0] == "grp": assert epoch == -2 or tg[1] - 4 < epoch, ("dma overwrites live group", x.t)
                vm.append(tg)
            if x.k == "w" and x.tag:
                want = {"needgrp": lambda: ("grp", x.tag[1] + b), "needq": lambda: ("q", x.tag[1] + b, x.tag[2]), "needq6": lambda: ("q6",), "needq0": lambda: ("q0", x.tag[1])}[x.tag[0]]()
                idx = max(i for i, t in enumerate(vm) if t == want)
                n = min(63, len(vm) - 1 - idx)
                best[id(x)] = (x, min(n, best.get(id(x), (x, 99))[1]))
        seq = [x for x, _ in dyn]
        last = None
        for x in seq:
            op = x.t.split()[0]
            if op == "s_addc_u32":
                a = int(re.match(r"s_addc_u32 s(\d+)", x.t).group(1))
                assert last.startswith(f"s_add_u32 s{a-1},"), (last, x.t)
            if op == "s_cselect_b32": assert last.split()[0] in ("s_cmp_lt_u32", "s_cmp_gt_u32", "s_cmp_eq_u32", "s_and_b32", "s_or_b64"), (last, x.t)
            if re.match(r"s_(add|addc|sub|and|or|xor|lshl|lshr|cmp)", op): last = x.t
        check_lgkm(seq)
        bad = hazards(seq)
        assert not bad, bad[:5]
    for x, n in best.values(): x.t = x.t.replace("?", str(n))

def main():
    bb = lambda k: tuple(int(x) for x in str(CFG[k]).split(","))
    vars_ = [Var("A", 7)] + ([Var("B0", 6, 0, bb("bar0")), Var("B1", 6, 1, bb("bar1"), CFG["sh1"])] if CFG["zeta"] else [Var("B", 6)])
    jobs = [build_job(v) for v in vars_]
    mt = lambda i: [sc(f"s_memtime s[{80+2*i}:{81+2*i}]")] if CFG["stamp"] else []
    if CFG["first"]:
        for J in jobs:
            J.fcom, J.first = build_first(J.var, J.carry)
            assert [x.t for x in J.fcom] == [x.t for x in jobs[0].fcom]
            if CFG["diag_mark"] == 0: J.first.append(sc("s_memrealtime s[96:97]"))
            J.first += stamp(1) + mt(0) + mt(1) + [sc("s_nop 3"), sc(f"s_branch L_body{J.var.name}")]
        for i, v in list(enumerate(vars_))[1:]: jobs[0].fcom += [sc(f"s_cmp_eq_u32 s{sVarC}, {i}"), sc(f"s_cbranch_scc1 L_first{v.name}")]
    pro = prologue(); sw = job_switch(vars_); fin = final_drain()
    resolve_vm(pro, sw, jobs, fin)
    info = []
    for J in jobs:
        nm = lambda s: sum(x.k == "M" for x in s)
        t = " ".join(f"{n}: {cycles(s)}c iss {issue_sum(s)} pipe {nm(s)*16} |" for n, s in (("head", J.head), ("body", J.body), ("tail", J.tail)))
        info.append(f"{J.var.name} carry={len(J.carry)} {t} total={cycles(J.head + 7 * J.body + J.tail + sw)}")
    for J in jobs:
        seq = [x for x in J.head + 7 * J.body + J.tail if x.k != "#"]; det = []
        cycles(seq, det)
        bt = [0] + [t for x, t in zip(seq, det) if x.k == "B"] + [det[-1]]
        info.append(f"  {J.var.name} epochs: " + " ".join(str(b - a) for a, b in zip(bt, bt[1:])))
    o = []
    o.append("; Attention forward, B*H = 512 heads, Sq 848, Sk 512, D 128, bf16 in/out.")
    o.append("; @launch grid=(256,1,1) block=(256,1,1) lds=163840")
    o.append('.amdgcn_target "amdgcn-amd-amdhsa--gfx950"')
    o += [".text", f".globl {NAME}_kernel", ".p2align 8", f".type {NAME}_kernel,@function", f"{NAME}_kernel:"]
    X = CFG["x"].split()
    def keep(x):
        if "mul" in X and x.t.startswith("v_mul_f32") and f"s{sC}," in x.t and x.k == "V": return None
        if "sum" in X and x.k == "M" and f", {rs(*ONE, 4)}," in x.t: return None
        if "ds" in X and inbody[0] and x.k == "D": return "v_mov_b32 v12, v12"
        if "kvdma" in X and inbody[0] and x.k == "X" and x.tag[0] == "grp": return "v_mov_b32 v12, v12"
        if "st" in X and inbody[0] and x.k == "S": return "v_mov_b32 v12, v12"
        if "qdma" in X and inbody[0] and x.k == "X" and x.tag[0] == "q": return "v_mov_b32 v12, v12"
        if "bar" in X and inbody[0] and x.k == "B": return "s_nop 2"
        if "wait" in X and inbody[0] and x.k == "w": return "s_nop 0"
        return x.t
    inbody = [False]
    put = lambda s: o.extend(("" if x.k == "#" else "    ") + keep(x) for x in s if keep(x) is not None)
    put(pro)
    if CFG["first"]:
        put(jobs[0].fcom)
        for J in jobs:
            o.append(f"L_first{J.var.name}:"); put(J.first)
    put(sw)
    for J in jobs:
        o.append(f"L_job{J.var.name}:"); put(mt(0)); put(J.head); put(mt(1))
        if CFG["pad"]: o.append(f"    .p2align {CFG['pad']}")
        o += ["    s_nop 0"] * CFG["shift"]
        o.append(f"L_body{J.var.name}:"); inbody[0] = True; put(J.body); inbody[0] = False; put(mt(2)); put(mt(3)); put(J.tail)
        o.append("    s_branch L_next")
    for J in jobs:
        o.append(f"L_last{J.var.name}:"); put(J.last)
        if J is not jobs[-1]: o.append("    s_branch L_final")
    put(fin); put(fallback())
    if CFG["again"]:
        o += ["    s_waitcnt vmcnt(0) lgkmcnt(0)", "    s_barrier", "    s_sub_u32 s90, s90, 1", "    s_cbranch_scc0 L_again"]
    if CFG["diag_tot"]:
        o += ["    s_waitcnt vmcnt(0) lgkmcnt(0)", "L_diag:", "    s_memrealtime s[94:95]", "    s_waitcnt lgkmcnt(0)",
              "    s_sub_u32 s94, s94, s96", f"    s_cmp_lt_u32 s94, {CFG['diag_tot']}", "    s_cbranch_scc1 L_diag"]
    o += ["L_exit:", "    s_endpgm", "L_code_end:"]
    for J in jobs:
        while True:
            pos = 0; at = {}
            for l in o[o.index(f"{NAME}_kernel:"):]:
                t = l.strip(); at[t] = pos
                if t.startswith(".p2align"): a = 1 << int(t.split()[1]); pos = (pos + a - 1) // a * a
                elif not t.endswith(":"): pos += size(t)
            if at[f"L_body{J.var.name}:"] % 32 != 28 and at[f"s_cbranch_scc0 L_body{J.var.name}"] % 32 != 0: break
            k = max(i for i in range(o.index(f"L_body{J.var.name}:")) if o[i].startswith("    v_exp_f32 "))
            o[k] = o[k].replace("v_exp_f32 ", "v_exp_f32_e64 ")
    o += ['.section .rodata,"a"', ".p2align 6", f".amdhsa_kernel {NAME}_kernel",
          "  .amdhsa_next_free_vgpr 512", "  .amdhsa_next_free_sgpr 102", "  .amdhsa_accum_offset 256",
          "  .amdhsa_group_segment_fixed_size 0", "  .amdhsa_kernarg_size 48", "  .amdhsa_user_sgpr_count 2",
          "  .amdhsa_user_sgpr_kernarg_segment_ptr 1", "  .amdhsa_system_sgpr_workgroup_id_x 1", ".end_amdhsa_kernel"]
    open(sys.argv[1], "w").write("\n".join(o) + "\n")
    print("\n".join(info), file=sys.stderr)

main()
```

```python
import sys, math, struct, re
from asmlib import *

NAME = "standalone__gqa_softmax__near_ridge"
CFG = dict(kv="", q="nt", o="nt", ol="nt", th=26, tth=8, fth=16, cl=2, sp=7, sp2=7, sh6=3, sroom=4, look=4, split=28, x6=1,
           lo=-30, hi=30, codepf=2,
           stamp=0, samehead=0, nostore=0, again=0, tmark=-1, x="", diag_tot=0, diag_mark=-1, forcefb=0)
for a in sys.argv[2:]:
    k, v = a.split("=", 1)
    assert k in CFG, k
    CFG[k] = int(v) if re.fullmatch(r"-?\d+", v) else v.replace("+", " ")

QH, KH = 217088, 131072
SCALE = math.log2(math.e) / math.sqrt(128.0)
def f2u(x): return struct.unpack("<I", struct.pack("<f", x))[0]

vK, vV, vDKV, vQO, vLin, vSt, vQ6 = 1, 3, 5, 6, 7, 8, 10
vTmp = 12
vS = 20
vP = 36
vO = 92
vIdx, vDir = 252, 253
aQ, aK, aV, aL, aO, aOne = 0, 112, 144, 160, 188, 252
sQ, sK, sV, sO = 4, 8, 12, 16
(sC, sW, sJob, sCnt, sU0, sU1, sU2, sM, sU3, sD, sOp, sStg, sLoop, sCurO, sNxt, sN7c, sN7n, sFlag, sRole,
 sT0, sT1, sT2, sT3, sWoff, sStgB, sOffA, sOffB, sLo, sHi, sBit, sN7A, sN7B) = range(20, 52)
sPair = 56
sStampOff = 58
sDbg = 60
sKx, sVx, sQx, sOx = 64, 68, 72, 76
sTm = 92
OOB = 0x100000

def Oreg(t, dj):
    return ("v", vO + t * 32 + dj * 4) if t < 5 else ("a", aO + (t - 5) * 32 + dj * 4)
def Preg(p, t):
    return vP + t * 4 if not p & 1 else vP + 28 + ((t + 1) % 7) * 4
def Qreg(t, ds): return aQ + (t * 4 + ds) * 4
def sbuf(NT, p, kt, t): return vS + ((p * 2 * NT + kt * NT + t) & 3) * 4
def pdeps(p, t): return [("cvt", p, kt, t, h) for kt in (0, 1) for h in (0, 1)]
def sc(t, rd=(), wr=()): return I(t, "s", rd=rd, wr=wr)
def fl(x): return (" " + x) if x else ""
def off(x): return f" offset:{x}" if x else ""
def V(t, rd, wr, k="V"): return I(t, k, rd=[("v", r) if isinstance(r, int) else r for r in rd], wr=[("v", r) if isinstance(r, int) else r for r in wr])
COST = {"V": 1, "E": 2, "D": 1}
M0 = [("m", 0)]

class Op:
    def __init__(self, key, ins, deps=(), target=None, rel=None):
        self.key = key; self.ins = ins; self.deps = list(deps); self.target = target; self.rel = rel

class Sched:
    def __init__(self, NT):
        self.NT = NT
        self.out = []; self.done = set(); self.pend = []
        self.valu = []; self.fixed = []; self.scal = []; self.flex = []
        self.forbid = set(); self.gap = 0
        self.bykey = {}; self.th = CFG["th"]
    def add(self, q, op):
        q.append(op); self.bykey[op.key] = op
    def emit(self, ins, key=None):
        if ins.k == "w":
            m = re.search(r"lgkmcnt\((\d+)\)", ins.t)
            if m:
                n = int(m.group(1))
                if n < len(self.pend): self.pend = self.pend[len(self.pend) - n:] if n else []
        self.out.append(ins)
        if ins.k in "DW": self.pend.append(ins)
        if key is not None: self.done.add(key)
    def haz(self, ins):
        dist = 0; miss = 0
        for p in reversed(self.out):
            miss = max(miss, need(p, ins) - dist)
            dist += states(p)
            if dist >= 8: break
        return miss
    def lgkm_need(self, inss):
        idx = -1
        for ins in inss:
            t = set(ins.rd) | set(ins.c) | set(ins.wr)
            for i, p in enumerate(self.pend):
                if set(p.wr) & t: idx = max(idx, i)
        return None if idx < 0 else min(15, len(self.pend) - 1 - idx)
    def ready(self, op):
        return op.key not in self.forbid and all(d in self.done for d in op.deps) and \
            (op.target is None or op.target <= self.gap) and self.haz(op.ins) <= 0
    def put(self, op):
        for q in (self.valu, self.fixed, self.scal, self.flex):
            if op in q: q.remove(op)
        n = self.lgkm_need([op.ins])
        if n is not None: self.emit(I(f"s_waitcnt lgkmcnt({n})", "w"))
        m = self.haz(op.ins)
        if m > 0: self.emit(I(f"s_nop {m-1}", "s"))
        self.emit(op.ins, op.key)
    def force(self, key):
        if key in self.done: return
        op = self.bykey[key]
        assert key not in self.forbid, key
        for d in op.deps: self.force(d)
        self.put(op)
    def pick(self, kinds, n):
        r = []
        for op in self.valu[:48]:
            if op.ins.k in kinds and self.ready(op):
                r.append(op)
                if len(r) == n: break
        return r
    def backlog(self):
        return sum(COST[o.ins.k] for o in self.valu if o.rel is not None and o.rel in self.done)
    def fill(self, room):
        while room > 0:
            e = self.pick("E", 1); v = self.pick("V", 2)
            if room >= 2 and e and (len(v) < 2 or self.valu.index(e[0]) < self.valu.index(v[0])):
                self.put(e[0]); room -= 2
            elif v:
                self.put(v[0]); room -= 1
            elif e and self.backlog() > self.th - 4:
                self.put(e[0]); room -= 2
            else: break
        while self.backlog() > self.th:
            c = self.pick("EV", 1)
            if not c: break
            self.put(c[0])
    def run(self, mf, look=(), cut=False, keep=False):
        allm = list(mf) + list(look)
        for i, (key, ins, deps) in enumerate(mf):
            for d in deps: self.force(d)
            if i == len(mf) - 1 and not keep:
                if cut: self.flush()
                self.forbid = set()
                self.left = [o.key for q in (self.valu, self.fixed, self.scal) for o in q]
            n = self.lgkm_need([ins])
            if n is not None: self.emit(I(f"s_waitcnt lgkmcnt({n})", "w"))
            m = self.haz(ins)
            if m > 0: self.emit(I(f"s_nop {m-1}", "s"))
            self.emit(ins, key)
            afterw = len(self.out) > 1 and self.out[-2].k == "W"
            fx = next((o for o in self.fixed if self.ready(o) and not (afterw and o.ins.k in "DW")), None)
            slot1 = False
            nxt = [x[1] for x in allm[i + 1:i + 2]]
            if self.lgkm_need(nxt) is not None:
                nxt = [x[1] for x in allm[i + 1:i + 5]]
            if fx is not None and fx.ins.k != "B": nxt = nxt + [fx.ins]
            n = self.lgkm_need(nxt)
            if n is not None:
                self.emit(I(f"s_waitcnt lgkmcnt({n})", "w")); slot1 = True
                if fx is not None and fx.ins.k == "B": fx = None
            if fx is not None and fx.ins.k == "B":
                self.put(fx); self.fill(1)
            else:
                if not slot1 and self.scal and self.ready(self.scal[0]):
                    if not (fx is not None and fx.ins.k == "X" and ("m", 0) in self.scal[0].ins.wr): self.put(self.scal[0])
                room = 1 if "smfmac" in ins.t else 2
                if fx is not None and room == 1 and fx.ins.k != "D": fx = None
                if fx is not None:
                    self.put(fx); room = {"D": room - 1, "X": 1, "S": CFG["sroom"], "W": 0}[fx.ins.k]
                if self.flex and fx is None and room == 2 and self.backlog() == 0 and not self.pick("E", 1) and not afterw:
                    f = next((o for o in self.flex if self.ready(o)), None)
                    if f is not None: self.put(f); room -= 1
                if room: self.fill(room)
            self.gap += 1
    def flush(self):
        for q in (self.fixed, self.flex, self.scal, self.valu):
            for op in list(q):
                if op.key not in self.forbid and op.key not in self.done: self.force(op.key)

def ds128(k, r, ad, o, tag=None):
    return I(f"ds_read_b128 {rs(k, r, 4)}, v{ad}{off(o)}", "D", rd=[("v", ad)], wr=R(k, r, 4), tag=tag)
def dstr(r, ad, o, tag=None):
    return I(f"ds_read_b64_tr_b16 {rs('a', r, 2)}, v{ad}{off(o)}", "D", rd=[("v", ad)], wr=R("a", r, 2), tag=tag)
def koff(kt, ds): return kt * 8192 + (ds >> 1) * 1024
def voff(dj, kt): return kt * 8192 + 2048 + (dj >> 2) * 1024 + 8 * (dj & 1)
def k_read(p, kt, ds): return ds128("a", aK + kt * 16 + ds * 4, vK + (ds & 1), ((p - 1) & 1) * 16384 + koff(kt, ds), ("ring", p - 1))
def v_read(p, dj, kt): return dstr(aV + (dj & 3) * 4 + 2 * kt, vV + ((dj >> 1) & 1), (p & 1) * 16384 + voff(dj, kt), ("ring", p))
def q_read(t, ds, slot=None): return ds128("a", Qreg(t, ds), vSt + (ds & 1), (t if slot is None else slot) * 4096 + (ds >> 1) * 1024)
def so_(x): return "0" if x is None else f"s{x}"
def dma(vo, srd, so, o, flags, tag):
    return I(f"buffer_load_dwordx4 v{vo}, s[{srd}:{srd+3}], {so_(so)} offen{off(o)}{fl(flags)} lds", "X", rd=[("v", vo), ("m", 0)], tag=tag)
def o_store(r, srd, so, o, flags):
    return I(f"buffer_store_dwordx4 {rs('v', r, 4)}, v{vQO}, s[{srd}:{srd+3}], {so_(so)} offen{off(o)}{fl(flags)}", "S", rd=R("v", r, 4) + [("v", vQO)])
def o_write(slot, J, b):
    ad = vSt + (J & 1)
    return I(f"ds_write_b128 v{ad}, {rs('v', b, 4)}{off(slot*4096 + (J >> 1)*1024)}", "W", rd=R("v", b, 4) + [("v", ad)])
def bump(srd, by): return [f"s_add_u32 s{srd}, s{srd}, {by}", f"s_addc_u32 s{srd+1}, s{srd+1}, 0"]
DEFER = [(0, J) for J in range(4)] + [(t, J) for J in range(4) for t in range(1, 5)]

def sums(NT, p):
    def one(u, b, deps):
        d = aL + 4 * u
        return (("sum", p, u), I(f"v_smfmac_f32_16x16x64_bf16 {rs('a', d, 4)}, {rs('a', aOne, 4)}, {rs('v', b, 8)}, v{vIdx}", "M",
                                 rd=R("a", aOne, 4) + R("v", b, 8) + [("v", vIdx)], wr=R("a", d, 4), c=R("a", d, 4)), deps)
    L = [one(u, Preg(p, 2 * u), pdeps(p, 2 * u) + pdeps(p, 2 * u + 1)) for u in range(3)]
    if NT == 7 and p & 1: L.insert(1, one(3, Preg(0, 6), pdeps(p, 6)))
    return L
def pv_only(NT, p):
    return [(("pv", p, dj, t), mfma(Oreg(t, dj), ("a", aV + (dj & 3) * 4), ("v", Preg(p, t)), c0=(p == 0)),
             pdeps(p, t) + [("vr", p, dj, 0), ("vr", p, dj, 1)] + ([("ow", t, dj >> 1)] if p == 0 and (t, dj >> 1) in DEFER else []))
            for dj in range(8) for t in range(NT)]
def pv_list(NT, p):
    pv = pv_only(NT, p); sm = sums(NT, p); L = []
    at = {4: (0, 1, 4, 6), 3: (0, 3, 6)}[len(sm)]
    for dj in range(8):
        L += pv[dj * NT:(dj + 1) * NT]
        if dj in at: L.append(sm[at.index(dj)])
    return L

def phase_mf(NT, p):
    pv = pv_list(NT, p - 1) if p > 0 else []
    L = []; n = 0
    for c in range(2 * NT):
        kt, t = divmod(c, NT)
        for ds in range(4):
            deps = [("kr", p, kt, ds)]
            if p == 0 and c == 6 and NT == 7: deps.append(("q6r", ds))
            g = p * 2 * NT + c - 4
            if ds == 0 and g >= 0:
                pp, cc = divmod(g, 2 * NT)
                deps += [("cvt", pp, cc // NT, cc % NT, h) for h in (0, 1)]
            L.append((("qk", p, kt, t, ds), mfma(("v", sbuf(NT, p, kt, t)), ("a", aK + kt * 16 + ds * 4), ("a", Qreg(t, ds)), c0=(ds == 0)), deps))
        upto = (len(pv) * (c + 1)) // (2 * NT)
        L += pv[n:upto]; n = upto
    return L

def add_softmax(S, p, chains=None):
    for kt, t, sb in chains or [(kt, t, sbuf(S.NT, p, kt, t)) for kt in (0, 1) for t in range(S.NT)]:
        rel = ("qk", p, kt, t, 3)
        mul = lambda r: Op(("mul", p, kt, t, r), V(f"v_mul_f32 v{sb+r}, s{sC}, v{sb+r}", [sb + r], [sb + r]), [rel], rel=rel)
        ex = lambda r: Op(("exp", p, kt, t, r), V(f"v_exp_f32 v{sb+r}, v{sb+r}", [sb + r], [sb + r], "E"), [("mul", p, kt, t, r)], rel=rel)
        def cv(h):
            d = Preg(p, t) + 2 * kt + h
            war = [("sum", p - 1, 3)] if (t == 6 and p >= 2 and not p & 1) else []
            return Op(("cvt", p, kt, t, h), V(f"v_cvt_pk_bf16_f32 v{d}, v{sb+2*h}, v{sb+2*h+1}", [sb + 2 * h, sb + 2 * h + 1], [d]),
                      [("exp", p, kt, t, 2 * h), ("exp", p, kt, t, 2 * h + 1)] + war, rel=rel)
        for o in (mul(0), mul(1), ex(0), ex(1), mul(2), mul(3), ex(2), ex(3), cv(0), cv(1)): S.add(S.valu, o)

VPOS = {2: (10, 13), 3: (30, 33), 4: (42, 45), 5: (56, 59), 6: (70, 73), 7: (83, 86)}

def add_phase_ops(S, p, mf):
    NT = S.NT; g0 = S.gap; n = len(mf); with_pv = p > 0; ev = not p & 1; hasqo = ev != (p < 2)
    T = lambda x: g0 + int(x * n / 119.0)
    add_softmax(S, p)
    fx = []; scal = []
    new = lambda lst, key, ins, deps=(), x=0: lst.append(Op(key, ins, deps, T(x)))
    known = lambda k: [k] if (k in S.bykey or k in S.done) else []
    for ds in range(4): new(fx, ("kr", p, 1, ds), k_read(p, 1, ds), [], (36, 39, 48, 51)[ds] - (0 if p else 24))
    if with_pv:
        for dj in range(2, 8):
            for kt in (0, 1):
                war = [("pv", p - 1, dj - 4, NT - 1)] if dj >= 4 else []
                xo = known(("xv", p - 1, 1)) if dj == 2 else []
                new(fx, ("vr", p - 1, dj, kt), v_read(p - 1, dj, kt), war + xo, VPOS[dj][kt])
    rd_before = [("kr", p, 1, ds) for ds in range(4)] + ([("vr", p - 1, 7, kt) for kt in (0, 1)] if with_pv else [])
    cl, sp, sp2 = CFG["cl"] + (CFG["sh6"] if NT == 6 else 0), CFG["sp"], CFG["sp2"]
    def chain(name, texts, deps, x):
        for i, t in enumerate(texts):
            new(scal, (name[0], p) + tuple(name[1:]) + (i,), sc(t), deps, x)
            deps = [(name[0], p) + tuple(name[1:]) + (i,)]
        return deps
    def kv(x, prev):
        for k, srd in enumerate((sKx, sKx, sVx, sVx)):
            new(scal, ("m0", p, k), sc(f"s_add_u32 m0, s{sM}, {k*1024 - (k & 1)*128}", wr=M0), prev, max(0, x - 3))
            new(fx, ("dma", p, k), dma(vDKV, srd, None, (k & 1) * 128, CFG["kv"], ("grp", p + 2)), [("m0", p, k)], x)
            prev = [("dma", p, k)]; x += sp
        return x, prev
    def qo(x, prev):
        for j in ((0, 1, 2) if hasqo else ()):
            new(fx, ("or", p, j), ds128("v", vTmp, vLin, j * 1024), known(("ul", p - 2)) + known(("ul", p - 1)) + known(("ow", 0, 3)) + ([("os", p, j - 1)] if j else []), max(0, x - 9))
            new(scal, ("qm", p, j), sc(f"s_mov_b32 m0, s{sStg}", wr=M0), prev, x - 1)
            new(fx, ("os", p, j), o_store(vTmp, sOx, None, 0, CFG["o"]), [("or", p, j)] + prev, x)
            po = chain(("uo", j), bump(sOx, f"s{sD}") + [f"s_add_u32 s{sStg}, s{sStg}, 1024"], [("os", p, j), ("qm", p, j)], x)
            new(fx, ("qd", p, j), dma(vQO, sQx, None, 0, CFG["q"], ("q", p, j)), [("os", p, j), ("qm", p, j)], x + sp2)
            prev = chain(("uq", j), bump(sQx, f"s{sD}") + [f"s_xor_b32 s{sD}, s{sD}, 0x700"], [("qd", p, j)] + po, x + sp2)
            x += 2 * sp2
        return x, prev
    if p:
        x, prev = kv(cl, []); x, prev = qo(x, prev)
    else:
        x, prev = 60, []
        new(scal, ("w6",), I("s_waitcnt vmcnt(?)", "w", tag=("needq6",)), [], 33)
        if NT == 7:
            for ds in range(4): new(fx, ("q6r", ds), ds128("a", Qreg(6, ds), vQ6 + (ds & 1), (ds >> 1) * 1024), [("w6",)], 35 + 2 * ds)
        x, prev = kv(x, prev + ([("qk", 0, 0, 6, 3)] if NT == 7 else [("w6",)]))
    prev = chain(("uk",), [f"s_add_u32 s{sM}, s{sM}, 16384", f"s_and_b32 s{sM}, s{sM}, 0xffff"] + bump(sKx, 8192) + bump(sVx, 8192) +
                 [f"s_add_u32 s{sCnt}, s{sCnt}, 1", f"s_mov_b32 s{sVx+2}, s{sKx+2}", f"s_cmp_lt_u32 s{sCnt}, 64", f"s_cselect_b32 s{sKx+2}, 8192, 0"],
                 prev, 96 if p == 0 else x - sp2 + 1)
    new(scal, ("wb", p), I("s_waitcnt vmcnt(?) lgkmcnt(0)", "w", tag=("needgrp", p)), rd_before + [("dma", p, 3)], 94)
    new(fx, ("bar", p), I("s_barrier", "B", tag=("bar", p)), [("wb", p)], 95)
    if hasqo: S.add(S.valu, Op(("ul", p), V(f"v_add_u32 v{vLin}, 3072, v{vLin}", [vLin], [vLin]), [("or", p, 2)]))
    if ev:
        xor = lambda r: V(f"v_xor_b32 v{r}, 0x8000, v{r}", [r], [r])
        for b in (0, 1):
            S.add(S.valu, Op(("xk", p, b), xor(vK + b), [("kr", p, 1, b), ("kr", p, 1, b + 2)]))
            S.add(S.valu, Op(("xv", p, b), xor(vV + b), [("vr", p - 1, 4 + 2 * b + h, kt) for h in (0, 1) for kt in (0, 1)] if with_pv else []))
    for ds in range(4):
        new(fx, ("kr", p + 1, 0, ds), k_read(p + 1, 0, ds), [("bar", p), ("qk", p, 0, NT - 1, ds)] + ([("xk", p, ds & 1)] if ev else []), 97 + 3 * ds)
    for dj in (0, 1):
        for kt in (0, 1):
            war = [("pv", p - 1, dj + 4, NT - 1)] if with_pv else []
            new(fx, ("vr", p, dj, kt), v_read(p, dj, kt), [("bar", p)] + war + ([("xv", p, 0)] if ev else []), (108, 110, 113, 116)[dj * 2 + kt])
    if p < 2:
        pos = (2, 7, 19, 30, 45, 50, 55, 63, 70, 77, 84, 89) if p == 0 else (5, 19, 26, 53, 62, 66, 76, 79)
        for i, (x_, (t, J)) in enumerate(zip(pos, DEFER[12 * p:])):
            new(fx, ("ow", t, J), o_write(t, J, Oreg(t, 2 * J)[1]), [("ow",) + DEFER[12 * p + i - 1]] if i else [], x_)
    if CFG["stamp"] == 2:
        new(scal, ("b0", p), sc("s_memrealtime s[98:99]"), [], 80)
        S.add(S.valu, Op(("ul2", p), V(f"v_accvgpr_write_b32 a{aL+16}, s98", [], [("a", aL + 16)]), [("b0", p), ("bar", p)]))
        new(fx, ("b2", p), I(f"buffer_store_dword a{aL+16}, off, s[{sDbg}:{sDbg+3}], s91 offset:512", "S", rd=[("a", aL + 16)]), [("ul2", p)], 104)
        new(scal, ("b3", p), sc("s_add_u32 s91, s91, 4"), [("b2", p)], 105)
    if p >= 3 and not ev: new(scal, ("lp", p), sc(f"s_sub_u32 s{sLoop}, s{sLoop}, 1"), [("wb", p)] + prev, 112)
    fx.sort(key=lambda o: o.target); scal.sort(key=lambda o: o.target)
    for o in fx: S.add(S.fixed, o)
    for o in scal: S.add(S.scal, o)
    misc = [o for o in S.valu if o.key[0] in ("xk", "xv", "ul", "ul2")]
    S.valu = misc + [o for o in S.valu if o not in misc]

def shift(key, p): return (key[0], key[1] + p) + tuple(key[2:])

def run_phases(S, phases, carry):
    starts = {}
    for p in phases:
        starts[p] = len(S.out)
        mf = phase_mf(S.NT, p)
        S.forbid = set()
        add_phase_ops(S, p, mf)
        cut = carry is not None and (p & 1)
        if cut: S.forbid = {shift(k, p) for k in carry}
        S.run(mf, phase_mf(S.NT, p + 1)[:4], cut)
    return starts

def find_carry(NT):
    S = Sched(NT)
    for ds in range(4): S.done.add(("kr", 0, 0, ds))
    run_phases(S, range(0, 8), None)
    return [shift(k, -7) for k in S.left]

def params_next():
    return [sc(x) for x in (
        f"s_add_u32 s{sT2}, s{sJob}, 1",
        f"s_xor_b32 s{sT3}, s{sT2}, s{sRole}",
        f"s_and_b32 s{sT3}, s{sT3}, 1",
        f"s_cselect_b32 s{sNxt}, s{sOffB}, s{sOffA}",
        f"s_cselect_b32 s{sN7n}, s{sN7B}, s{sN7A}",
        f"s_mul_i32 s{sT2}, s{sT2}, {QH}",
        f"s_add_u32 s{sNxt}, s{sNxt}, s{sT2}")]

def advance():
    return [sc(x) for x in (f"s_lshl_b32 s{sBit}, 1, s{sJob}", f"s_add_u32 s{sJob}, s{sJob}, 1", f"s_mov_b32 s{sOp}, s{sCurO}",
                            f"s_mov_b32 s{sCurO}, s{sNxt}", f"s_mov_b32 s{sN7c}, s{sN7n}")] + params_next() + \
           [sc(x) for x in (f"s_add_u32 s{sQx}, s{sQ}, s{sNxt}", f"s_addc_u32 s{sQx+1}, s{sQ+1}, 0", f"s_cmp_lt_u32 s{sJob}, 3", f"s_cselect_b32 s{sQx+2}, 4096, 0",
                            f"s_add_u32 s{sOx}, s{sO}, s{sOp}", f"s_addc_u32 s{sOx+1}, s{sO+1}, 0", f"s_cmp_gt_u32 s{sJob}, 0",
                            f"s_cselect_b32 s{sOx+2}, {0 if CFG['nostore'] else 4096}, 0", f"s_mov_b32 s{sD}, 128", f"s_mov_b32 s{sStg}, s{sStgB}", f"s_mov_b32 s{sLoop}, 6")]

def build_tail(S):
    NT = S.NT; p = 15; g0 = S.gap; S.forbid = set(); S.th = CFG["tth"]
    pv = pv_only(NT, p); sm = sorted(sums(NT, p), key=lambda m: m[0][2])
    mf = sm[:2] + pv[:NT] + sm[2:] + pv[NT:]
    for dj in range(2, 8):
        for kt in (0, 1):
            war = [("pv", p, dj - 4, NT - 1)] if dj >= 4 else []
            S.add(S.fixed, Op(("vr", p, dj, kt), v_read(p, dj, kt), war, g0 + max(0, NT * dj + len(sm) - 11 + kt)))
    nsc = [0]
    def scal(x, deps=()):
        i = nsc[0]; nsc[0] += 1
        S.add(S.scal, Op(("ts", i), x, ([("ts", i - 1)] if i else []) + list(deps), g0)); return ("ts", i)
    scal(sc(f"s_mul_i32 s{sQx+2}, s{sQx+2}, s{sN7n}"))
    prev = []
    for a in (0, 1):
        m = scal(sc(f"s_add_u32 m0, s{sWoff}, {32768 + a*896}", wr=M0), prev)
        if a == 0: wq = scal(I("s_waitcnt vmcnt(?)", "w", tag=("needq", 12, 1)))
        for nn in (0, 1):
            S.add(S.fixed, Op(("q6", a, nn), dma(vQO, sQx, None, nn * 2048 + a * 128, CFG["q"], ("q6",)), [m, wq], g0 + CFG["x6"] + 4 * (2 * a + nn)))
        prev = [("q6", a, 0), ("q6", a, 1)]
    for x in advance(): scal(x, prev); prev = []
    S.fixed.sort(key=lambda o: o.target)
    for t in range(5):
        for ds in range(4): S.add(S.flex, Op(("qr", t, ds), q_read(t, ds), [wq]))
    vL = vP + 14; vR = vP; vmx, vmn = vP + 22, vP + 23
    add = lambda key, ins, deps: S.add(S.valu, Op(key, ins, deps))
    for t in range(NT):
        src = [aL + 2 * t, aL + 2 * t + 1] + ([aL + 14, aL + 15] if t == 6 else [])
        dst = [vL + t, vR + 2 * t, vR + 2 * t + 1, vL + 7]
        for a, d in zip(src, dst):
            add(("la", a), V(f"v_accvgpr_read_b32 v{d}, a{a}", [("a", a)], [d]), [("sum", p, t >> 1)])
        if t == 6:
            add(("l6", 0), V(f"v_add_f32 v{dst[0]}, v{dst[0]}, v{dst[3]}", [dst[0], dst[3]], [dst[0]]), [("la", a) for a in src])
            add(("l6", 1), V(f"v_add_f32 v{dst[1]}, v{dst[1]}, v{dst[2]}", [dst[1], dst[2]], [dst[1]]), [("l6", 0)])
        add(("lr", t), V(f"v_add_f32 v{dst[0]}, v{dst[0]}, v{dst[1]}", dst[:2], [dst[0]]), [("la", a) for a in src] + ([("l6", 1)] if t == 6 else []))
        add(("rc", t), V(f"v_rcp_f32 v{vR+2*t}, v{vL+t}", [vL + t], [vR + 2 * t], "E"), [("lr", t)])
        for a in src: add(("lz", a), V(f"v_accvgpr_write_b32 a{a}, 0", [], [("a", a)]), [("la", a)])
    s_ = [vL + t for t in range(NT)]
    add(("tot", 1), V(f"v_add_f32 v{vmx}, v{s_[0]}, v{s_[1]}", s_[:2], [vmx]), [("lr", 0), ("lr", 1)])
    for t in range(2, NT): add(("tot", t), V(f"v_add_f32 v{vmx}, v{vmx}, v{s_[t]}", [vmx, s_[t]], [vmx]), [("tot", t - 1), ("lr", t)])
    add(("min", 0), V(f"v_min3_f32 v{vmn}, v{s_[0]}, v{s_[1]}, v{s_[2]}", s_[:3], [vmn]), [("lr", t) for t in range(NT)])
    add(("min", 1), V(f"v_min3_f32 v{vmn}, v{vmn}, v{s_[3]}, v{s_[4]}", [vmn, s_[3], s_[4]], [vmn]), [("min", 0)])
    add(("min", 2), V(f"v_min3_f32 v{vmn}, v{vmn}, v{s_[5]}, v{s_[-1]}", [vmn, s_[5], s_[-1]], [vmn]), [("min", 1)])
    add(("vl",), V(f"v_add_u32 v{vLin}, {(-24576) & 0xffffffff:#x}, v{vLin}", [vLin], [vLin]), [])
    add(("c1",), V(f"v_cmp_ngt_f32 vcc, s{sHi}, v{vmx}", [vmx], [("s", "vcc")]), [("tot", NT - 1)])
    add(("c2",), V(f"v_cmp_gt_f32_e64 s[{sPair}:{sPair+1}], s{sLo}, v{vmn}", [vmn], R("s", sPair, 2)), [("min", 2)])
    for x in (f"s_or_b64 vcc, vcc, s[{sPair}:{sPair+1}]", f"s_cselect_b32 s{sT2}, s{sBit}, 0", f"s_or_b32 s{sFlag}, s{sFlag}, s{sT2}", f"s_cmp_eq_u32 s{sJob}, 4"):
        scal(sc(x), [("c1",), ("c2",)])
    softdone = [("cvt", p, 1, t, h) for t in range(NT - 4, NT) for h in (0, 1)]
    early = {(NT - 1, J): vb for J, vb in enumerate((vTmp, vS, vS + 8))}
    for (t, J), vb in early.items():
        b = Oreg(t, 2 * J)[1]
        for i in range(8):
            add(("ar", t, J, i), V(f"v_accvgpr_read_b32 v{vb+i}, a{b+i}", [("a", b + i)], [vb + i]), softdone + [("pv", p, 2 * J + (i >> 2), t)])
    for J in range(3):
        for t in (1, 2, 3, 4, 0):
            b = Oreg(t, 2 * J)[1]
            for i in range(8):
                add(("om", t, J, i), V(f"v_mul_f32 v{b+i}, v{vR+2*t}, v{b+i}", [b + i, vR + 2 * t], [b + i]),
                    [("rc", t), ("pv", p, 2 * J + (i >> 2), t)] + ([("om", t, J, i - 1)] if i else []))
    S.run(mf)
    S.valu = [o for o in S.valu if not (o.key[0] == "om" and not (o.key[3] & 1 and ("om",) + o.key[1:3] + (o.key[3] - 1,) in S.done))]
    S.flush()
    S.emit(sc(f"s_cbranch_scc1 L_last{NT}"))
    vC = vP + 24
    def epilogue(last):
        E = []
        mark = lambda i: E.append(sc("s_memtime s[86:87]")) if CFG["tmark"] == i else None
        mark(0)
        def piece(t, J):
            k, b = Oreg(t, 2 * J)
            if k == "a":
                if (t, J) in early: b = early[(t, J)]
                else:
                    for i in range(8): E.append(V(f"v_accvgpr_read_b32 v{vC+8*J+i}, a{b+i}", [("a", b + i)], [vC + 8 * J + i]))
                    b = vC + 8 * J
            r = vR + 2 * t
            for i in range(4):
                if ("om", t, J, 2 * i) not in S.done:
                    E.append(V(f"v_pk_mul_f32 {rs('v', b+2*i, 2)}, {rs('v', b+2*i, 2)}, {rs('v', r, 2)} op_sel_hi:[1,0]",
                               [b + 2 * i, b + 2 * i + 1, r], [b + 2 * i, b + 2 * i + 1]))
            for i in range(4):
                E.append(V(f"v_cvt_pk_bf16_f32 v{b+i}, v{b+2*i}, v{b+2*i+1}", [b + 2 * i, b + 2 * i + 1], [b + i]))
            if last or (t, J) not in DEFER: E.append(o_write(t % 6, J, b))
            return b
        plain = [] if last else [(t, J) for t in range(5) for J in range(4)]
        def some(k):
            for _ in range(k):
                if plain: piece(*plain.pop(0))
        pend = []
        def drain(n):
            if not pend: return
            t, a, regs = pend.pop()
            E.append(I(f"s_waitcnt lgkmcnt({n})", "w")); E.append(sc(f"s_add_u32 s{sT3}, s{sOp}, {t*4096}"))
            for nn, r in enumerate(regs): E.append(o_store(r, sO, sT3, nn * 2048 + a * 128, CFG["ol" if last else "o"]))
        def through(tiles):
            for t in tiles:
                for a in (0, 1):
                    r0 = piece(t, 2 * a) + 4; some(1)
                    r1 = piece(t, 2 * a + 1) + 4; some(1)
                    for nn, r in enumerate((r0, r1)): E.append(ds128("v", r, vLin, (t % 6) * 4096 + nn * 2048 + a * 1024))
                    drain(4); pend.append((t, a, (r0, r1)))
        w5 = I("s_waitcnt vmcnt(?)", "w", tag=("needq", 14, 2))
        if last:
            through([0, 1] + ([6] if NT == 7 else []) + [2, 3, 4]); E.append(w5); through([5]); drain(0)
        else:
            E.append(w5)
            for ds in range(4): E.append(q_read(5, ds))
            if NT == 7: through([6])
            else:
                E.append(sc(f"s_mov_b32 s{sT3}, {OOB:#x}"))
                for i in range(4): E.append(o_store(vC, sO, sT3, 0, ""))
            some(3); drain(0)
            for J in range(4): piece(5, J); some(3)
            some(20)
            E.append(I("s_waitcnt lgkmcnt(4)", "w"))
        return [I(".p2align 3", "#")] + align8(fix_hazards(E, S.out[-10:]), False)
    return epilogue(False), epilogue(True)

class Job: pass
def build_job(NT):
    carry = find_carry(NT)
    S = Sched(NT)
    for ds in range(4): S.done.add(("kr", 0, 0, ds))
    st = run_phases(S, range(16), carry)
    st[16] = len(S.out)
    epi, lastepi = build_tail(S)
    for p in range(2, 18, 2):
        while S.out[st[p] - 1].k != "M": st[p] -= 1
    seg = lambda a, b: S.out[a:b]
    bodies = [seg(st[p], st[p + 2]) for p in range(2, 16, 2)]
    for b in bodies[1:]:
        assert [x.t for x in b] == [x.t for x in bodies[0]], "loop body not periodic"
    J = Job(); J.NT = NT; J.carry = carry
    J.head = seg(0, st[2]); J.body = bodies[0]; J.tail0 = seg(st[16], len(S.out)); J.tail = J.tail0 + epi; J.last = lastepi
    J.body.append(sc(f"s_cbranch_scc0 L_body{NT}"))
    return J

def kv_batch(srd, blk, ldsbase, tag):
    L = []
    for a in (0, 1):
        L += [sc(f"s_add_u32 m0, s{sWoff}, {ldsbase + a*896}", wr=M0), sc(f"s_mov_b32 s{sT0}, {blk*8192}"), dma(vDKV, srd, sT0, a * 128, CFG["kv"], tag)]
    return L
def grp_batch(e): return kv_batch(sK, e + 1, (e & 3) * 16384, ("grp", e)) + kv_batch(sV, e, (e & 3) * 16384 + 2048, ("grp", e))
def q_batch(slot, base, o, tag):
    L = []
    for a in (0, 1):
        L += [sc(f"s_add_u32 m0, s{sStgB}, {slot*4096 + a*896}", wr=M0), sc(f"s_add_u32 s{sT1}, s{base}, {o}")]
        L += [dma(vQO, sQ, sT1, nn * 2048 + a * 128, CFG["q"], tag) for nn in (0, 1)]
    return L

def build_first(NT, carry):
    S = Sched(NT); S.th = CFG["fth"]
    forbid = {shift(k, 1) for k in carry}
    assert all(k[2:4] in ((1, NT - 1), (1, NT - 2)) for k in forbid if k[0] in ("mul", "exp", "cvt"))
    Kh = lambda p, kt, ds: aO + p * 32 + kt * 16 + ds * 4
    Vh = lambda dj: aV + dj * 4 if dj < 4 else aK + dj * 4
    em = lambda L: [S.emit(x) for x in L]
    em([I("s_waitcnt vmcnt(?)", "w", tag=("needgrp", 0)), I("s_barrier", "B")])
    em([ds128("a", Kh(p, kt, ds), vK + (ds & 1), (0 if p else 49152) + koff(kt, ds)) for p in (0, 1) for kt in (0, 1) for ds in range(4)])
    em([dstr(Vh(dj) + 2 * kt, vV + ((dj >> 1) & 1), voff(dj, kt)) for dj in range(8) for kt in (0, 1)])
    em([I("s_waitcnt lgkmcnt(0)", "w"), I("s_barrier", "B", tag=("bar", 0))])
    assert CFG["look"] <= 4
    batches = [q_batch(t, sCurO, t * 4096, ("q0", t)) for t in range(CFG["look"], 6)]
    batches += [[sc(f"s_cmp_eq_u32 s{sN7c}, 1"), sc(f"s_cselect_b32 s{sU0}, s{sCurO}, {OOB:#x}")] + q_batch(1, sU0, 24576, ("q0", 6)), grp_batch(1), grp_batch(2)]
    lastbuf = {}
    def chain(p, kt, t, sb):
        add_softmax(S, p, [(kt, t, sb)])
        dep = lastbuf.get(sb, []); lastbuf[sb] = [("cvt", p, kt, t, h) for h in (0, 1)]
        return [(("qk", p, kt, t, ds), mfma(("v", sb), ("a", Kh(p, kt, ds)), ("a", Qreg(t, ds)), c0=(ds == 0)), dep if ds == 0 else []) for ds in range(4)]
    pv = lambda dj, t: (("pv", 0, dj, t), mfma(Oreg(t, dj), ("a", Vh(dj)), ("v", Preg(0, t)), c0=True), pdeps(0, t))
    sm = sums(NT, 0)
    for t in range(NT):
        if t == 4: split = len(S.out)
        end = t == NT - 1
        S.emit(I("s_waitcnt vmcnt(?)", "w", tag=("needq0", t)))
        em([q_read(t, ds, 1 if t == 6 else t) for ds in range(4)])
        while batches:
            em(batches.pop(0))
            if not end: break
        mf = []
        for i, (p, kt) in enumerate(((0, 0), (0, 1), (1, 0), (1, 1))):
            mf += chain(p, kt, t, vS + 4 * i if t < NT - 2 else (sbuf(NT, 1, 1, t) if i == 3 else vS + 4 * (i & 1)))
        S.forbid = forbid
        mine = [sm[t >> 1]] if t & 1 else []
        if not end:
            if t < 5: mf += [pv(dj, t) for dj in range(8)]
            S.run(mf + mine, keep=True); S.flush()
            continue
        g0 = S.gap; n1 = len(mf)
        mf += mine + [pv(dj, x) for dj in range(8) for x in range(5, NT)]
        S.add(S.scal, Op(("wb", 1), I("s_waitcnt vmcnt(?)", "w", tag=("needgrp", 1)), [], g0 + n1 - 4))
        S.add(S.fixed, Op(("bar", 1), I("s_barrier", "B", tag=("bar", 1)), [("wb", 1)], g0 + n1 - 3))
        prev = [("bar", 1)]
        for ds in range(4):
            S.add(S.fixed, Op(("kr", 2, 0, ds), k_read(2, 0, ds), prev, g0 + n1 - 2 + ds)); prev = [("kr", 2, 0, ds)]
        for dj in (0, 1):
            for kt in (0, 1):
                S.add(S.fixed, Op(("vr", 1, dj, kt), v_read(1, dj, kt), prev + [("pv", 0, dj, NT - 1)], g0)); prev = [("vr", 1, dj, kt)]
        S.run(mf, cut=True)
        while S.out[-1].k != "M": S.out.pop()
        T = grp_batch(3)
        for j in range(3):
            T += [sc(f"s_mov_b32 m0, s{sStg}", wr=M0), sc(f"s_add_u32 s{sStg}, s{sStg}, 1024"), dma(vQO, sQx, None, 0, CFG["q"], ("q", 0, j))]
            T += [sc(x) for x in bump(sQx, f"s{sD}") + [f"s_xor_b32 s{sD}, s{sD}, 0x700"]]
        groups = [T[i:i + 3] for i in range(0, len(T), 3)]
        ms = [i for i, x in enumerate(S.out) if x.k == "M"][-len(groups) - 1:-1]
        for i, g in reversed(list(zip(ms, groups))): S.out[i + 1:i + 1] = g
    return S.out[:split], S.out[split:]

def sigma(x, d, t):
    return [f"v_bfe_u32 v{d}, v{x}, 1, 1", f"v_lshrrev_b32 v{t}, 3, v{x}", f"v_xor_b32 v{t}, v{t}, v{x}", f"v_and_b32 v{t}, 1, v{t}",
            f"v_lshl_or_b32 v{d}, v{t}, 1, v{d}", f"v_and_b32 v{t}, 4, v{x}", f"v_or_b32 v{d}, v{d}, v{t}"]
def swz_addr(row, col, d, t):
    return sigma(row, d, t) + [f"v_xor_b32 v{d}, v{d}, v{col}", f"v_lshlrev_b32 v{d}, 4, v{d}", f"v_and_b32 v{t}, 7, v{row}",
                               f"v_lshl_add_u32 v{d}, v{t}, 7, v{d}", f"v_lshrrev_b32 v{t}, 3, v{row}"]
def stg_addr(row, col, d, t):
    return [f"v_and_b32 v{t}, 7, v{row}", f"v_xor_b32 v{d}, v{t}, v{col}", f"v_lshlrev_b32 v{d}, 4, v{d}", f"v_lshl_add_u32 v{d}, v{t}, 7, v{d}"]

def stamp():
    if not CFG["stamp"]: return []
    x = 254
    L = [sc(t) for t in (f"s_memtime s[{sTm}:{sTm+1}]", f"s_memrealtime s[{sTm+2}:{sTm+3}]", "s_waitcnt lgkmcnt(0)", "s_mov_b64 exec, 1")]
    for n, (a, b) in enumerate(((sTm, sTm + 2), (80, 82), (84, 86))):
        L += [sc(f"v_mov_b32 v{x}, s{a}"), sc(f"v_mov_b32 v{x+1}, s{b}"),
              I(f"buffer_store_dwordx2 v[{x}:{x+1}], off, s[{sDbg}:{sDbg+3}], s{sStampOff} offset:{8*n}", "S"), sc("s_nop 1")]
    return L + [sc("s_mov_b64 exec, -1"), sc(f"s_add_u32 s{sStampOff}, s{sStampOff}, 32"), sc("s_nop 3")]

def prologue():
    P = []
    A = lambda t: P.append(sc(t))
    if CFG["diag_tot"]: A("s_memrealtime s[96:97]")
    A("s_cmp_ge_u32 s2, 256"); A("s_cbranch_scc1 L_exit")
    if CFG["again"]:
        A(f"s_mov_b32 s90, {CFG['again']}"); P.append(I("L_again:", "#"))
    A("s_load_dwordx4 s[80:83], s[0:1], 0"); A("s_load_dwordx4 s[84:87], s[0:1], 16")
    if CFG["stamp"]: A("s_load_dwordx2 s[88:89], s[0:1], 40")
    if CFG["codepf"]:
        A("s_getpc_b64 s[98:99]"); P.append(I("L_pf:", "#")); A("v_lshlrev_b32 v20, 7, v0")
        for i in range(CFG["codepf"]):
            if i: A("v_add_u32 v20, 0x8000, v20")
            A("v_min_u32 v27, L_code_end-L_pf-4, v20")
            P.append(I("global_load_dword v26, v27, s[98:99]", "L"))
    A("v_lshrrev_b32 v20, 6, v0"); A("v_and_b32 v21, 63, v0"); A(f"v_readfirstlane_b32 s{sW}, v20")
    A(f"s_and_b32 s{sT0}, s2, 7"); A(f"s_lshr_b32 s{sT1}, s2, 3"); A(f"s_and_b32 s{sRole}, s{sT1}, 1"); A(f"s_lshr_b32 s{sT1}, s{sT1}, 1")
    A(f"s_lshl_b32 s{sT0}, s{sT0}, 4"); A(f"s_add_u32 s{sT0}, s{sT0}, s{sT1}")
    if CFG["samehead"]: A(f"s_mov_b32 s{sT0}, 0")
    A(f"s_mul_i32 s{sT1}, s{sT0}, {4*QH}"); A(f"s_lshl_b32 s{sT0}, s{sT0}, 19")
    A("v_lshrrev_b32 v22, 3, v21"); A("v_and_b32 v23, 7, v21")
    for x in sigma(22, 24, 25): A(x)
    A("v_xor_b32 v24, v24, v23"); A("v_lshlrev_b32 v24, 4, v24"); A(f"v_lshl_add_u32 v{vDKV}, v22, 8, v24")
    A("v_xor_b32 v24, v22, v23"); A("v_lshlrev_b32 v24, 4, v24"); A(f"v_lshl_add_u32 v{vQO}, v22, 8, v24")
    A(f"s_and_b32 s{sT2}, s{sW}, 1"); A(f"s_lshl_b32 s{sT2}, s{sT2}, 5"); A(f"s_lshl_b32 s{sT3}, s{sW}, 11"); A(f"s_lshl_b32 s{sWoff}, s{sW}, 12")
    A(f"v_xor_b32 v{vDKV}, s{sT2}, v{vDKV}"); A(f"v_add_u32 v{vDKV}, s{sT3}, v{vDKV}")
    A(f"s_mul_i32 s{sStgB}, s{sW}, 24576")
    for d, f, n7, base in ((sOffA, sN7A, CFG["split"] - 24, 0), (sOffB, sN7B, 53 - CFG["split"] - 24, CFG["split"] * 4096)):
        A(f"s_min_u32 s{d}, s{sW}, {n7}"); A(f"s_cselect_b32 s{f}, 1, 0"); A(f"s_lshl_b32 s{d}, s{d}, 12")
        A(f"s_add_u32 s{d}, s{d}, s{sStgB}"); A(f"s_add_u32 s{d}, s{d}, {base}")
    A(f"s_add_u32 s{sStgB}, s{sStgB}, 65536")
    A(f"s_mov_b32 s{sJob}, -1")
    P += params_next()
    A("s_waitcnt lgkmcnt(0)")
    for srd, src, o, n in ((sK, 82, sT0, 4 * KH), (sV, 84, sT0, 4 * KH), (sQ, 80, sT1, 4 * QH), (sO, 86, sT1, 0 if CFG["nostore"] else 4 * QH)):
        A(f"s_add_u32 s{srd}, s{src}, s{o}"); A(f"s_addc_u32 s{srd+1}, s{src+1}, 0"); A(f"s_mov_b32 s{srd+2}, {n}"); A(f"s_mov_b32 s{srd+3}, 0x20000")
    if CFG["stamp"]:
        A(f"s_mov_b32 s{sDbg}, s88"); A(f"s_mov_b32 s{sDbg+1}, s89"); A(f"s_mov_b32 s{sDbg+2}, 0x1000000"); A(f"s_mov_b32 s{sDbg+3}, 0x20000")
        A(f"s_lshl_b32 s{sStampOff}, s2, 2"); A(f"s_add_u32 s{sStampOff}, s{sStampOff}, s{sW}"); A(f"s_lshl_b32 s{sStampOff}, s{sStampOff}, 10")
        A(f"s_mov_b32 s91, s{sStampOff}")
    P += stamp()
    P += kv_batch(sK, 0, 3 * 16384, ("grp", -1)) + grp_batch(0)
    for t in range(CFG["look"]): P += q_batch(t, sNxt, t * 4096, ("q0", t))
    A("v_and_b32 v22, 15, v21"); A("v_lshrrev_b32 v23, 4, v21")
    for x in swz_addr(22, 23, 24, 25): A(x)
    A(f"v_lshl_add_u32 v{vK}, v25, 12, v24"); A(f"v_xor_b32 v{vK+1}, 64, v{vK}")
    for x in stg_addr(22, 23, 24, 25): A(x)
    A("v_lshrrev_b32 v25, 1, v22"); A("v_xor_b32 v25, v25, v22"); A("v_bfe_u32 v25, v25, 2, 1"); A("v_lshl_add_u32 v24, v25, 11, v24")
    A(f"v_add_u32 v{vSt}, s{sStgB}, v24"); A(f"v_xor_b32 v{vSt+1}, 64, v{vSt}")
    A(f"s_add_u32 s{sT2}, s{sWoff}, 32768"); A(f"v_add_u32 v{vQ6}, s{sT2}, v24"); A(f"v_xor_b32 v{vQ6+1}, 64, v{vQ6}")
    A(f"v_lshl_add_u32 v{vLin}, v21, 4, s{sStgB}"); A(f"v_add_u32 v{vLin}, 3072, v{vLin}")
    A("v_lshrrev_b32 v22, 2, v21"); A("v_and_b32 v23, 3, v21")
    for x in swz_addr(22, 23, 24, 25): A(x)
    A(f"v_lshl_add_u32 v{vV}, v25, 12, v24"); A(f"v_xor_b32 v{vV+1}, 64, v{vV}")
    A(f"s_mov_b32 s{sC}, {f2u(1.0 if 'c1' in CFG['x'] else SCALE):#x}")
    A(f"s_mov_b32 s{sLo}, {f2u(2.0**CFG['lo']):#x}"); A(f"s_mov_b32 s{sHi}, {f2u(2.0**CFG['hi']):#x}")
    A(f"s_mov_b32 s{sFlag}, {CFG['forcefb']}")
    for d, b, blk in ((sVx, sV, 4), (sKx, sK, 5)):
        A(f"s_add_u32 s{d}, s{b}, {blk*8192}"); A(f"s_addc_u32 s{d+1}, s{b+1}, 0"); A(f"s_mov_b32 s{d+2}, 8192")
    for d in (sKx, sVx, sQx, sOx): A(f"s_mov_b32 s{d+3}, 0x20000")
    A(f"s_mov_b32 s{sCnt}, 5"); A(f"s_mov_b32 s{sM}, s{sWoff}"); A(f"s_mov_b32 s{sCurO}, 0")
    A("v_and_b32 v22, 1, v21"); A("v_mul_u32_u24 v22, 0xaaaa, v22"); A(f"v_add_u32 v{vIdx}, 0x4444, v22"); A(f"v_lshl_or_b32 v{vIdx}, v{vIdx}, 16, v{vIdx}")
    A("v_lshrrev_b32 v22, 4, v21"); A("v_xor_b32 v22, v22, v21"); A("v_and_b32 v23, 2, v22")
    if "row4" in CFG["x"]: A("v_and_b32 v22, 12, v21"); A("v_or_b32 v23, v23, v22")
    A("v_cmp_eq_u32 vcc, 0, v23"); A("v_mov_b32 v24, 0x3f803f80"); A("s_nop 0"); A("v_cndmask_b32 v22, 0, v24, vcc")
    for i in range(4): A(f"v_accvgpr_write_b32 a{aOne+i}, v22")
    for i in range(16): A(f"v_accvgpr_write_b32 a{aL+i}, 0")
    return P + advance()

def job_switch(NT):
    L = []
    if CFG["diag_mark"] > 0: L = [sc(f"s_cmp_lg_u32 s{sJob}, {CFG['diag_mark']}"), sc(f"s_cbranch_scc1 L_nomark{NT}"), sc("s_memrealtime s[96:97]"), I(f"L_nomark{NT}:", "#")]
    L += stamp() + [sc(f"s_cmp_eq_u32 s{sN7c}, 1"), sc("s_cbranch_scc1 L_job7")]
    return L + ([sc("s_branch L_job6")] if NT == 6 else [])

def final():
    L = [I("L_final:", "#")]
    if CFG["diag_mark"] == 4: L.append(sc("s_memrealtime s[96:97]"))
    if CFG["stamp"]: L += stamp() + stamp() + [I("s_waitcnt vmcnt(0)", "w")] + stamp()
    return L

def fallback():
    L = []; A = L.append
    q, k, s0, pb, vf, o, lacc, m, t0, va, pa, one = 20, 36, 52, 60, 64, 72, 104, 108, 109, 112, 114, 116
    sJ, sN, sRow, sKb, sI, sU = sU0, sU1, sU2, sU3, sLoop, sD
    MF = "v_mfma_f32_16x16x32_bf16"
    A(f"s_cmp_eq_u32 s{sFlag}, 0"); A("s_cbranch_scc1 L_done")
    A("s_waitcnt vmcnt(0) lgkmcnt(0)")
    A("v_and_b32 v21, 63, v0"); A("v_and_b32 v22, 15, v21"); A("v_lshrrev_b32 v23, 4, v21")
    A(f"v_lshlrev_b32 v{vDir}, 8, v22"); A(f"v_lshl_add_u32 v{vDir}, v23, 4, v{vDir}")
    A("v_lshrrev_b32 v22, 2, v21"); A("v_and_b32 v23, 3, v21")
    L += stg_addr(22, 23, 24, 25) + ["v_lshrrev_b32 v25, 3, v22"]
    A(f"v_lshl_add_u32 v{va}, v25, 11, v24"); A(f"v_add_u32 v{va}, s{sStgB}, v{va}"); A(f"v_xor_b32 v{va+1}, 64, v{va}")
    A(f"v_xor_b32 v{pa}, 16, v21"); A(f"v_lshlrev_b32 v{pa}, 2, v{pa}"); A(f"v_xor_b32 v{pa+1}, 32, v21"); A(f"v_lshlrev_b32 v{pa+1}, 2, v{pa+1}")
    for i in range(4): A(f"v_mov_b32 v{one+i}, 0x3f803f80")
    A(f"s_mov_b32 s{sJob}, -1")
    A("L_fb_job:")
    L += [x.t for x in params_next()]
    A(f"s_add_u32 s{sJob}, s{sJob}, 1"); A(f"s_cmp_eq_u32 s{sJob}, 4"); A("s_cbranch_scc1 L_done")
    A(f"s_lshr_b32 s{sJ}, s{sFlag}, s{sJob}"); A(f"s_and_b32 s{sJ}, s{sJ}, 1"); A("s_cbranch_scc0 L_fb_job")
    A(f"s_add_u32 s{sN}, s{sN7n}, 5"); A(f"s_mov_b32 s{sRow}, s{sNxt}")
    A("L_fb_tile:")
    for ds in range(4): A(f"buffer_load_dwordx4 {rs('v', q+4*ds, 4)}, v{vDir}, s[{sQ}:{sQ+3}], s{sRow} offen{off(ds*64)}")
    def scores(dst):
        for ds in range(4): A(f"buffer_load_dwordx4 {rs('v', k+4*ds, 4)}, v{vDir}, s[{sK}:{sK+3}], s{sKb} offen{off(ds*64)}")
        A("s_waitcnt vmcnt(0)")
        for ds in range(4): A(f"{MF} {rs('v', dst, 4)}, {rs('v', k+4*ds, 4)}, {rs('v', q+4*ds, 4)}, {'0' if ds == 0 else rs('v', dst, 4)}")
        A(f"s_add_u32 s{sKb}, s{sKb}, 4096"); A("s_nop 7")
    A(f"v_mov_b32 v{m}, 0xff800000"); A(f"s_lshl_b32 s{sKb}, s{sJob}, 17"); A(f"s_mov_b32 s{sI}, 31")
    A("L_fb_max:")
    scores(s0)
    A(f"v_max3_f32 v{m}, v{m}, v{s0}, v{s0+1}"); A(f"v_max3_f32 v{m}, v{m}, v{s0+2}, v{s0+3}")
    A(f"s_sub_u32 s{sI}, s{sI}, 1"); A("s_cbranch_scc0 L_fb_max")
    for i in (0, 1):
        A(f"ds_bpermute_b32 v{t0}, v{pa+i}, v{m}"); A("s_waitcnt lgkmcnt(0)"); A(f"v_max_f32 v{m}, v{m}, v{t0}")
    for i in range(36): A(f"v_mov_b32 v{o+i}, 0")
    A(f"s_lshl_b32 s{sKb}, s{sJob}, 17"); A(f"s_mov_b32 s{sI}, 15")
    A("L_fb_pv:")
    for kt in (0, 1):
        for a in (0, 1):
            A(f"s_add_u32 m0, s{sStgB}, {kt*4096 + a*896}"); A(f"s_add_u32 s{sU}, s{sKb}, {kt*4096}")
            for nn in (0, 1): A(f"buffer_load_dwordx4 v{vQO}, s[{sV}:{sV+3}], s{sU} offen{off(nn*2048 + a*128)} lds")
    scores(s0); scores(s0 + 4)
    for r in range(8): A(f"v_sub_f32 v{s0+r}, v{s0+r}, v{m}")
    for r in range(8): A(f"v_mul_f32 v{s0+r}, s{sC}, v{s0+r}")
    for r in range(8): A(f"v_exp_f32 v{s0+r}, v{s0+r}")
    A("s_nop 0")
    for r in range(4): A(f"v_cvt_pk_bf16_f32 v{pb+r}, v{s0+2*r}, v{s0+2*r+1}")
    A("s_nop 1")
    A(f"{MF} {rs('v', lacc, 4)}, {rs('v', one, 4)}, {rs('v', pb, 4)}, {rs('v', lacc, 4)}")
    for dj in range(8):
        J, h = dj >> 1, dj & 1; f = vf + 4 * (dj & 1)
        for kt in (0, 1): A(f"ds_read_b64_tr_b16 {rs('v', f+2*kt, 2)}, v{va + (J & 1)}{off(kt*4096 + (J >> 1)*1024 + 8*h)}")
        A("s_waitcnt lgkmcnt(0)")
        A(f"{MF} {rs('v', o+4*dj, 4)}, {rs('v', f, 4)}, {rs('v', pb, 4)}, {rs('v', o+4*dj, 4)}")
    A(f"s_sub_u32 s{sI}, s{sI}, 1"); A("s_cbranch_scc0 L_fb_pv")
    A("s_nop 7"); A(f"v_rcp_f32 v{t0}, v{lacc}"); A("s_nop 0")
    for i in range(32): A(f"v_mul_f32 v{o+i}, v{t0}, v{o+i}")
    for J in range(4):
        for i in range(4): A(f"v_cvt_pk_bf16_f32 v{o+8*J+i}, v{o+8*J+2*i}, v{o+8*J+2*i+1}")
        A(f"buffer_store_dwordx4 {rs('v', o+8*J, 4)}, v{vDir}, s[{sO}:{sO+3}], s{sRow} offen{off(J*64)}")
    A("s_waitcnt vmcnt(0)")
    A(f"s_add_u32 s{sRow}, s{sRow}, 4096"); A(f"s_sub_u32 s{sN}, s{sN}, 1"); A("s_cbranch_scc0 L_fb_tile")
    A("s_branch L_fb_job")
    A("L_done:")
    return [I(x, "#" if x.endswith(":") else "s") for x in L]

def resolve(pro, jobs, fin):
    best = {}
    for seqn in ([7, 7, 7, 7], [7, 6, 7, 6], [6, 7, 6, 7], [6, 6, 6, 6]):
        dyn = [(x, 0) for x in pro]
        for j, v in enumerate(seqn):
            J = jobs[v]; b = 16 * j
            dyn += [(x, b) for x in (jobs[7].fcom + J.first if j == 0 else J.head)]
            for it in range(7): dyn += [(x, b + 2 * it) for x in J.body]
            dyn += [(x, b) for x in (J.tail + J.sw if j < 3 else J.tail0 + J.last)]
        dyn += [(x, 64) for x in fin]
        vm = []; epoch = -2
        for x, b in dyn:
            if x.k == "B": epoch = (x.tag[1] + b) if x.tag else -1
            if x.k == "D" and x.tag and x.tag[0] == "ring":
                assert x.tag[1] + b == epoch, ("ring read outside its epoch", x.t, x.tag, b, epoch)
            if x.k in "XLS":
                tg = x.tag
                if tg and tg[0] in ("grp", "q"): tg = shift(tg, b)
                if tg and tg[0] == "grp": assert epoch == -2 or tg[1] - 4 < epoch, ("dma overwrites live group", x.t)
                vm.append(tg)
            if x.k == "w" and x.tag:
                want = (x.tag[0][4:],) + tuple(x.tag[1:])
                if want[0] in ("grp", "q"): want = shift(want, b)
                idx = max(i for i, t in enumerate(vm) if t == want)
                n = min(63, len(vm) - 1 - idx)
                best[id(x)] = (x, min(n, best.get(id(x), (x, 99))[1]))
        seq = [x for x, _ in dyn]
        last = None
        for x in seq:
            op = x.t.split()[0]
            if op == "s_addc_u32":
                a = int(re.match(r"s_addc_u32 s(\d+)", x.t).group(1))
                assert last.startswith(f"s_add_u32 s{a-1},"), (last, x.t)
            if op == "s_cselect_b32": assert re.match(r"s_(cmp|and_b32|or_b64|min)", last), (last, x.t)
            if x.t.startswith("s_cbranch_scc0 L_body"): assert last.startswith(f"s_sub_u32 s{sLoop},"), last
            elif op.startswith("s_cbranch_scc"): assert last.startswith("s_cmp"), (last, x.t)
            if re.match(r"s_(add|sub|and|or|xor|lshl|lshr|cmp|min)", op): last = x.t
        check_lgkm(seq)
        bad = hazards(seq)
        assert not bad, bad[:5]
    for x, n in best.values(): x.t = x.t.replace("?", str(n))

def main():
    jobs = {nt: build_job(nt) for nt in (7, 6)}
    mt = lambda i: [sc(f"s_memtime s[{80+2*i}:{81+2*i}]")] if CFG["stamp"] else []
    for nt, J in jobs.items():
        J.fcom, J.first = build_first(nt, J.carry)
        assert [x.t for x in J.fcom] == [x.t for x in jobs[7].fcom]
        if CFG["diag_mark"] == 0: J.first.append(sc("s_memrealtime s[96:97]"))
        J.first += stamp() + mt(0) + mt(1) + [sc("s_nop 3"), sc(f"s_branch L_body{nt}")]
        J.sw = job_switch(nt)
    jobs[7].fcom += [sc(f"s_cmp_eq_u32 s{sN7c}, 0"), sc("s_cbranch_scc1 L_first6")]
    pro = prologue(); fin = final()
    resolve(pro, jobs, fin)
    info = []
    for nt, J in jobs.items():
        nm = lambda s: sum(x.k == "M" for x in s)
        t = " ".join(f"{n}: {cycles(s)}c iss {issue_sum(s)} pipe {nm(s)*16} |" for n, s in (("head", J.head), ("body", J.body), ("tail", J.tail)))
        info.append(f"NT={nt} carry={len(J.carry)} {t} total={cycles(J.head + 7 * J.body + J.tail + J.sw)}")
    o = open("header.txt").read().rstrip("\n").split("\n")
    o += ['.amdgcn_target "amdgcn-amd-amdhsa--gfx950"', ".text", f".globl {NAME}_kernel", ".p2align 8", f".type {NAME}_kernel,@function", f"{NAME}_kernel:"]
    X = CFG["x"].split()
    def keep(x):
        if "mul" in X and x.t.startswith("v_mul_f32") and f"s{sC}," in x.t and x.k == "V": return None
        if "sum" in X and "smfmac" in x.t: return None
        if inbody[0]:
            if "ds" in X and x.k == "D": return "v_mov_b32 v12, v12"
            if "kvdma" in X and x.k == "X" and x.tag[0] == "grp": return "v_mov_b32 v12, v12"
            if "st" in X and x.k == "S": return "v_mov_b32 v12, v12"
            if "bar" in X and x.k == "B": return "s_nop 2"
        return x.t
    inbody = [False]
    put = lambda s: o.extend(("" if x.k == "#" else "    ") + keep(x) for x in s if keep(x) is not None)
    put(pro); put(jobs[7].fcom)
    for nt, J in jobs.items():
        o.append(f"L_first{nt}:"); put(J.first)
    for nt, J in jobs.items():
        o.append(f"L_job{nt}:"); put(mt(0)); put(J.head); put(mt(1))
        o.append(f"L_body{nt}:"); inbody[0] = True; put(J.body); inbody[0] = False; put(mt(2)); put(mt(3)); put(J.tail); put(J.sw)
    for nt, J in jobs.items():
        o.append(f"L_last{nt}:"); put(J.last)
        if nt == 7: o.append("    s_branch L_final")
    put(fin); put(fallback())
    if CFG["again"]:
        o += ["    s_waitcnt vmcnt(0) lgkmcnt(0)", "    s_barrier", "    s_sub_u32 s90, s90, 1", "    s_cbranch_scc0 L_again"]
    if CFG["diag_tot"]:
        o += ["    s_waitcnt vmcnt(0) lgkmcnt(0)", "L_diag:", "    s_memrealtime s[94:95]", "    s_waitcnt lgkmcnt(0)",
              "    s_sub_u32 s94, s94, s96", f"    s_cmp_lt_u32 s94, {CFG['diag_tot']}", "    s_cbranch_scc1 L_diag"]
    o += ["L_exit:", "    s_endpgm", "L_code_end:"]
    for nt in jobs:
        while True:
            pos = 0; at = {}
            for l in o[o.index(f"{NAME}_kernel:"):]:
                t = l.strip(); at[t] = pos
                if t.startswith(".p2align"): a = 1 << int(t.split()[1]); pos = (pos + a - 1) // a * a
                elif not t.endswith(":"): pos += size(t)
            if at[f"L_body{nt}:"] % 32 != 28 and at[f"s_cbranch_scc0 L_body{nt}"] % 32 != 0: break
            k = max(i for i in range(o.index(f"L_body{nt}:")) if o[i].startswith("    v_exp_f32 "))
            o[k] = o[k].replace("v_exp_f32 ", "v_exp_f32_e64 ")
    info.append(f"code bytes {pos}")
    o += ['.section .rodata,"a"', ".p2align 6", f".amdhsa_kernel {NAME}_kernel",
          "  .amdhsa_next_free_vgpr 512", "  .amdhsa_next_free_sgpr 102", "  .amdhsa_accum_offset 256",
          "  .amdhsa_group_segment_fixed_size 0", "  .amdhsa_kernarg_size 48", "  .amdhsa_user_sgpr_count 2",
          "  .amdhsa_user_sgpr_kernarg_segment_ptr 1", "  .amdhsa_system_sgpr_workgroup_id_x 1", ".end_amdhsa_kernel"]
    open(sys.argv[1], "w").write("\n".join(o) + "\n")
    print("\n".join(info), file=sys.stderr)

main()
```

```python
import sys, math, struct, re
from asmlib import *

NAME = "standalone__gqa_softmax__near_ridge"
CFG = dict(kv="", q="nt", o="nt", ol="nt", th=26, tth=8, fth=16, cl=2, sp=7, sp2=7, sh6=3, sroom=4, look=4, split=27, pri="", prim=16, x6=1,
           lo=-30, hi=30, codepf=2,
           stamp=0, samehead=0, nostore=0, again=0, tmark=-1, x="", diag_tot=0, diag_mark=-1, forcefb=0)
for a in sys.argv[2:]:
    k, v = a.split("=", 1)
    assert k in CFG, k
    CFG[k] = int(v) if re.fullmatch(r"-?\d+", v) else v.replace("+", " ")

QH, KH = 217088, 131072
SCALE = math.log2(math.e) / math.sqrt(128.0)
def f2u(x): return struct.unpack("<I", struct.pack("<f", x))[0]

vK, vV, vDKV, vQO, vLin, vSt, vQ6 = 1, 3, 5, 6, 7, 8, 10
vTmp = 12
vS = 20
vP = 36
vO = 92
vIdx, vDir = 252, 253
aQ, aK, aV, aL, aO, aOne = 0, 112, 144, 160, 188, 252
sQ, sK, sV, sO = 4, 8, 12, 16
(sC, sW, sJob, sCnt, sU0, sU1, sU2, sM, sU3, sD, sOp, sStg, sLoop, sCurO, sNxt, sN7c, sN7n, sFlag, sRole,
 sT0, sT1, sT2, sT3, sWoff, sStgB, sOffA, sOffB, sLo, sHi, sBit, sN7A, sN7B) = range(20, 52)
sPair = 56
sStampOff = 58
sDbg = 60
sKx, sVx, sQx, sOx = 64, 68, 72, 76
sTm = 92
OOB = 0x100000

def Oreg(t, dj):
    return ("v", vO + t * 32 + dj * 4) if t < 5 else ("a", aO + (t - 5) * 32 + dj * 4)
def Preg(p, t):
    return vP + t * 4 if not p & 1 else vP + 28 + ((t + 1) % 7) * 4
def Qreg(t, ds): return aQ + (t * 4 + ds) * 4
def sbuf(NT, p, kt, t): return vS + ((p * 2 * NT + kt * NT + t) & 3) * 4
def pdeps(p, t): return [("cvt", p, kt, t, h) for kt in (0, 1) for h in (0, 1)]
def sc(t, rd=(), wr=()): return I(t, "s", rd=rd, wr=wr)
def fl(x): return (" " + x) if x else ""
def off(x): return f" offset:{x}" if x else ""
def V(t, rd, wr, k="V"): return I(t, k, rd=[("v", r) if isinstance(r, int) else r for r in rd], wr=[("v", r) if isinstance(r, int) else r for r in wr])
COST = {"V": 1, "E": 2, "D": 1}
M0 = [("m", 0)]

class Op:
    def __init__(self, key, ins, deps=(), target=None, rel=None):
        self.key = key; self.ins = ins; self.deps = list(deps); self.target = target; self.rel = rel

class Sched:
    def __init__(self, NT):
        self.NT = NT
        self.out = []; self.done = set(); self.pend = []
        self.valu = []; self.fixed = []; self.scal = []; self.flex = []
        self.forbid = set(); self.gap = 0
        self.bykey = {}; self.th = CFG["th"]
    def add(self, q, op):
        q.append(op); self.bykey[op.key] = op
    def emit(self, ins, key=None):
        if ins.k == "w":
            m = re.search(r"lgkmcnt\((\d+)\)", ins.t)
            if m:
                n = int(m.group(1))
                if n < len(self.pend): self.pend = self.pend[len(self.pend) - n:] if n else []
        self.out.append(ins)
        if ins.k in "DW": self.pend.append(ins)
        if key is not None: self.done.add(key)
    def haz(self, ins):
        dist = 0; miss = 0
        for p in reversed(self.out):
            miss = max(miss, need(p, ins) - dist)
            dist += states(p)
            if dist >= 8: break
        return miss
    def lgkm_need(self, inss):
        idx = -1
        for ins in inss:
            t = set(ins.rd) | set(ins.c) | set(ins.wr)
            for i, p in enumerate(self.pend):
                if set(p.wr) & t: idx = max(idx, i)
        return None if idx < 0 else min(15, len(self.pend) - 1 - idx)
    def ready(self, op):
        return op.key not in self.forbid and all(d in self.done for d in op.deps) and \
            (op.target is None or op.target <= self.gap) and self.haz(op.ins) <= 0
    def put(self, op):
        for q in (self.valu, self.fixed, self.scal, self.flex):
            if op in q: q.remove(op)
        n = self.lgkm_need([op.ins])
        if n is not None: self.emit(I(f"s_waitcnt lgkmcnt({n})", "w"))
        m = self.haz(op.ins)
        if m > 0: self.emit(I(f"s_nop {m-1}", "s"))
        self.emit(op.ins, op.key)
    def force(self, key):
        if key in self.done: return
        op = self.bykey[key]
        assert key not in self.forbid, key
        for d in op.deps: self.force(d)
        self.put(op)
    def pick(self, kinds, n):
        r = []
        for op in self.valu[:48]:
            if op.ins.k in kinds and self.ready(op):
                r.append(op)
                if len(r) == n: break
        return r
    def backlog(self):
        return sum(COST[o.ins.k] for o in self.valu if o.rel is not None and o.rel in self.done)
    def fill(self, room):
        while room > 0:
            e = self.pick("E", 1); v = self.pick("V", 2)
            if room >= 2 and e and (len(v) < 2 or self.valu.index(e[0]) < self.valu.index(v[0])):
                self.put(e[0]); room -= 2
            elif v:
                self.put(v[0]); room -= 1
            elif e and self.backlog() > self.th - 4:
                self.put(e[0]); room -= 2
            else: break
        while self.backlog() > self.th:
            c = self.pick("EV", 1)
            if not c: break
            self.put(c[0])
    def run(self, mf, look=(), cut=False, keep=False):
        allm = list(mf) + list(look)
        for i, (key, ins, deps) in enumerate(mf):
            for d in deps: self.force(d)
            if i == len(mf) - 1 and not keep:
                if cut: self.flush()
                self.forbid = set()
                self.left = [o.key for q in (self.valu, self.fixed, self.scal) for o in q]
            n = self.lgkm_need([ins])
            if n is not None: self.emit(I(f"s_waitcnt lgkmcnt({n})", "w"))
            m = self.haz(ins)
            if m > 0: self.emit(I(f"s_nop {m-1}", "s"))
            self.emit(ins, key)
            afterw = len(self.out) > 1 and self.out[-2].k == "W"
            fx = next((o for o in self.fixed if self.ready(o) and not (afterw and o.ins.k in "DW")), None)
            slot1 = False
            nxt = [x[1] for x in allm[i + 1:i + 2]]
            if self.lgkm_need(nxt) is not None:
                nxt = [x[1] for x in allm[i + 1:i + 5]]
            if fx is not None and fx.ins.k != "B": nxt = nxt + [fx.ins]
            n = self.lgkm_need(nxt)
            if n is not None:
                self.emit(I(f"s_waitcnt lgkmcnt({n})", "w")); slot1 = True
                if fx is not None and fx.ins.k == "B": fx = None
            if fx is not None and fx.ins.k == "B":
                self.put(fx); self.fill(1)
            else:
                if not slot1 and self.scal and self.ready(self.scal[0]):
                    if not (fx is not None and fx.ins.k == "X" and ("m", 0) in self.scal[0].ins.wr): self.put(self.scal[0])
                room = 1 if "smfmac" in ins.t else 2
                if fx is not None and room == 1 and fx.ins.k != "D": fx = None
                if fx is not None:
                    self.put(fx); room = {"D": room - 1, "X": 1, "S": CFG["sroom"], "W": 0}[fx.ins.k]
                if self.flex and fx is None and room == 2 and self.backlog() == 0 and not self.pick("E", 1) and not afterw:
                    f = next((o for o in self.flex if self.ready(o)), None)
                    if f is not None: self.put(f); room -= 1
                if room: self.fill(room)
            self.gap += 1
    def flush(self):
        for q in (self.fixed, self.flex, self.scal, self.valu):
            for op in list(q):
                if op.key not in self.forbid and op.key not in self.done: self.force(op.key)

def ds128(k, r, ad, o, tag=None):
    return I(f"ds_read_b128 {rs(k, r, 4)}, v{ad}{off(o)}", "D", rd=[("v", ad)], wr=R(k, r, 4), tag=tag)
def dstr(r, ad, o, tag=None):
    return I(f"ds_read_b64_tr_b16 {rs('a', r, 2)}, v{ad}{off(o)}", "D", rd=[("v", ad)], wr=R("a", r, 2), tag=tag)
def koff(kt, ds): return kt * 8192 + (ds >> 1) * 1024
def voff(dj, kt): return kt * 8192 + 2048 + (dj >> 2) * 1024 + 8 * (dj & 1)
def k_read(p, kt, ds): return ds128("a", aK + kt * 16 + ds * 4, vK + (ds & 1), ((p - 1) & 1) * 16384 + koff(kt, ds), ("ring", p - 1))
def v_read(p, dj, kt): return dstr(aV + (dj & 3) * 4 + 2 * kt, vV + ((dj >> 1) & 1), (p & 1) * 16384 + voff(dj, kt), ("ring", p))
def q_read(t, ds, slot=None): return ds128("a", Qreg(t, ds), vSt + (ds & 1), (t if slot is None else slot) * 4096 + (ds >> 1) * 1024)
def so_(x): return "0" if x is None else f"s{x}"
def dma(vo, srd, so, o, flags, tag):
    return I(f"buffer_load_dwordx4 v{vo}, s[{srd}:{srd+3}], {so_(so)} offen{off(o)}{fl(flags)} lds", "X", rd=[("v", vo), ("m", 0)], tag=tag)
def o_store(r, srd, so, o, flags):
    return I(f"buffer_store_dwordx4 {rs('v', r, 4)}, v{vQO}, s[{srd}:{srd+3}], {so_(so)} offen{off(o)}{fl(flags)}", "S", rd=R("v", r, 4) + [("v", vQO)])
def o_write(slot, J, b):
    ad = vSt + (J & 1)
    return I(f"ds_write_b128 v{ad}, {rs('v', b, 4)}{off(slot*4096 + (J >> 1)*1024)}", "W", rd=R("v", b, 4) + [("v", ad)])
def bump(srd, by): return [f"s_add_u32 s{srd}, s{srd}, {by}", f"s_addc_u32 s{srd+1}, s{srd+1}, 0"]
DEFER = [(0, J) for J in range(4)] + [(t, J) for J in range(4) for t in range(1, 5)]

def sums(NT, p):
    def one(u, b, deps):
        d = aL + 4 * u
        return (("sum", p, u), I(f"v_smfmac_f32_16x16x64_bf16 {rs('a', d, 4)}, {rs('a', aOne, 4)}, {rs('v', b, 8)}, v{vIdx}", "M",
                                 rd=R("a", aOne, 4) + R("v", b, 8) + [("v", vIdx)], wr=R("a", d, 4), c=R("a", d, 4)), deps)
    L = [one(u, Preg(p, 2 * u), pdeps(p, 2 * u) + pdeps(p, 2 * u + 1)) for u in range(3)]
    if NT == 7 and p & 1: L.insert(1, one(3, Preg(0, 6), pdeps(p, 6)))
    return L
def pv_only(NT, p):
    return [(("pv", p, dj, t), mfma(Oreg(t, dj), ("a", aV + (dj & 3) * 4), ("v", Preg(p, t)), c0=(p == 0)),
             pdeps(p, t) + [("vr", p, dj, 0), ("vr", p, dj, 1)] + ([("ow", t, dj >> 1)] if p == 0 and (t, dj >> 1) in DEFER else []))
            for dj in range(8) for t in range(NT)]
def pv_list(NT, p):
    pv = pv_only(NT, p); sm = sums(NT, p); L = []
    at = {4: (0, 1, 4, 6), 3: (0, 3, 6)}[len(sm)]
    for dj in range(8):
        L += pv[dj * NT:(dj + 1) * NT]
        if dj in at: L.append(sm[at.index(dj)])
    return L

def phase_mf(NT, p):
    pv = pv_list(NT, p - 1) if p > 0 else []
    L = []; n = 0
    for c in range(2 * NT):
        kt, t = divmod(c, NT)
        for ds in range(4):
            deps = [("kr", p, kt, ds)]
            if p == 0 and c == 6 and NT == 7: deps.append(("q6r", ds))
            g = p * 2 * NT + c - 4
            if ds == 0 and g >= 0:
                pp, cc = divmod(g, 2 * NT)
                deps += [("cvt", pp, cc // NT, cc % NT, h) for h in (0, 1)]
            L.append((("qk", p, kt, t, ds), mfma(("v", sbuf(NT, p, kt, t)), ("a", aK + kt * 16 + ds * 4), ("a", Qreg(t, ds)), c0=(ds == 0)), deps))
        upto = (len(pv) * (c + 1)) // (2 * NT)
        L += pv[n:upto]; n = upto
    return L

def add_softmax(S, p, chains=None):
    for kt, t, sb in chains or [(kt, t, sbuf(S.NT, p, kt, t)) for kt in (0, 1) for t in range(S.NT)]:
        rel = ("qk", p, kt, t, 3)
        mul = lambda r: Op(("mul", p, kt, t, r), V(f"v_mul_f32 v{sb+r}, s{sC}, v{sb+r}", [sb + r], [sb + r]), [rel], rel=rel)
        ex = lambda r: Op(("exp", p, kt, t, r), V(f"v_exp_f32 v{sb+r}, v{sb+r}", [sb + r], [sb + r], "E"), [("mul", p, kt, t, r)], rel=rel)
        def cv(h):
            d = Preg(p, t) + 2 * kt + h
            war = [("sum", p - 1, 3)] if (t == 6 and p >= 2 and not p & 1) else []
            return Op(("cvt", p, kt, t, h), V(f"v_cvt_pk_bf16_f32 v{d}, v{sb+2*h}, v{sb+2*h+1}", [sb + 2 * h, sb + 2 * h + 1], [d]),
                      [("exp", p, kt, t, 2 * h), ("exp", p, kt, t, 2 * h + 1)] + war, rel=rel)
        for o in (mul(0), mul(1), ex(0), ex(1), mul(2), mul(3), ex(2), ex(3), cv(0), cv(1)): S.add(S.valu, o)

VPOS = {2: (10, 13), 3: (30, 33), 4: (42, 45), 5: (56, 59), 6: (70, 73), 7: (83, 86)}

def add_phase_ops(S, p, mf):
    NT = S.NT; g0 = S.gap; n = len(mf); with_pv = p > 0; ev = not p & 1; hasqo = ev != (p < 2)
    T = lambda x: g0 + int(x * n / 119.0)
    add_softmax(S, p)
    fx = []; scal = []
    new = lambda lst, key, ins, deps=(), x=0: lst.append(Op(key, ins, deps, T(x)))
    known = lambda k: [k] if (k in S.bykey or k in S.done) else []
    for ds in range(4): new(fx, ("kr", p, 1, ds), k_read(p, 1, ds), [], (36, 39, 48, 51)[ds] - (0 if p else 24))
    if with_pv:
        for dj in range(2, 8):
            for kt in (0, 1):
                war = [("pv", p - 1, dj - 4, NT - 1)] if dj >= 4 else []
                xo = known(("xv", p - 1, 1)) if dj == 2 else []
                new(fx, ("vr", p - 1, dj, kt), v_read(p - 1, dj, kt), war + xo, VPOS[dj][kt])
    rd_before = [("kr", p, 1, ds) for ds in range(4)] + ([("vr", p - 1, 7, kt) for kt in (0, 1)] if with_pv else [])
    cl, sp, sp2 = CFG["cl"] + (CFG["sh6"] if NT == 6 else 0), CFG["sp"], CFG["sp2"]
    def chain(name, texts, deps, x):
        for i, t in enumerate(texts):
            new(scal, (name[0], p) + tuple(name[1:]) + (i,), sc(t), deps, x)
            deps = [(name[0], p) + tuple(name[1:]) + (i,)]
        return deps
    def kv(x, prev):
        for k, srd in enumerate((sKx, sKx, sVx, sVx)):
            new(scal, ("m0", p, k), sc(f"s_add_u32 m0, s{sM}, {k*1024 - (k & 1)*128}", wr=M0), prev, max(0, x - 3))
            new(fx, ("dma", p, k), dma(vDKV, srd, None, (k & 1) * 128, CFG["kv"], ("grp", p + 2)), [("m0", p, k)], x)
            prev = [("dma", p, k)]; x += sp
        return x, prev
    def qo(x, prev):
        for j in ((0, 1, 2) if hasqo else ()):
            new(fx, ("or", p, j), ds128("v", vTmp, vLin, j * 1024), known(("ul", p - 2)) + known(("ul", p - 1)) + known(("ow", 0, 3)) + ([("os", p, j - 1)] if j else []), max(0, x - 9))
            new(scal, ("qm", p, j), sc(f"s_mov_b32 m0, s{sStg}", wr=M0), prev, x - 1)
            new(fx, ("os", p, j), o_store(vTmp, sOx, None, 0, CFG["o"]), [("or", p, j)] + prev, x)
            po = chain(("uo", j), bump(sOx, f"s{sD}") + [f"s_add_u32 s{sStg}, s{sStg}, 1024"], [("os", p, j), ("qm", p, j)], x)
            new(fx, ("qd", p, j), dma(vQO, sQx, None, 0, CFG["q"], ("q", p, j)), [("os", p, j), ("qm", p, j)], x + sp2)
            prev = chain(("uq", j), bump(sQx, f"s{sD}") + [f"s_xor_b32 s{sD}, s{sD}, 0x700"], [("qd", p, j)] + po, x + sp2)
            x += 2 * sp2
        return x, prev
    if p:
        x, prev = kv(cl, []); x, prev = qo(x, prev)
    else:
        x, prev = 60, []
        new(scal, ("w6",), I("s_waitcnt vmcnt(?)", "w", tag=("needq6",)), [], 33)
        if NT == 7:
            for ds in range(4): new(fx, ("q6r", ds), ds128("a", Qreg(6, ds), vQ6 + (ds & 1), (ds >> 1) * 1024), [("w6",)], 35 + 2 * ds)
        x, prev = kv(x, prev + ([("qk", 0, 0, 6, 3)] if NT == 7 else [("w6",)]))
    prev = chain(("uk",), [f"s_add_u32 s{sM}, s{sM}, 16384", f"s_and_b32 s{sM}, s{sM}, 0xffff"] + bump(sKx, 8192) + bump(sVx, 8192) +
                 [f"s_add_u32 s{sCnt}, s{sCnt}, 1", f"s_mov_b32 s{sVx+2}, s{sKx+2}", f"s_cmp_lt_u32 s{sCnt}, 64", f"s_cselect_b32 s{sKx+2}, 8192, 0"],
                 prev, 96 if p == 0 else x - sp2 + 1)
    new(scal, ("wb", p), I("s_waitcnt vmcnt(?) lgkmcnt(0)", "w", tag=("needgrp", p)), rd_before + [("dma", p, 3)], 94)
    new(fx, ("bar", p), I("s_barrier", "B", tag=("bar", p)), [("wb", p)], 95)
    if hasqo: S.add(S.valu, Op(("ul", p), V(f"v_add_u32 v{vLin}, 3072, v{vLin}", [vLin], [vLin]), [("or", p, 2)]))
    if ev:
        xor = lambda r: V(f"v_xor_b32 v{r}, 0x8000, v{r}", [r], [r])
        for b in (0, 1):
            S.add(S.valu, Op(("xk", p, b), xor(vK + b), [("kr", p, 1, b), ("kr", p, 1, b + 2)]))
            S.add(S.valu, Op(("xv", p, b), xor(vV + b), [("vr", p - 1, 4 + 2 * b + h, kt) for h in (0, 1) for kt in (0, 1)] if with_pv else []))
    for ds in range(4):
        new(fx, ("kr", p + 1, 0, ds), k_read(p + 1, 0, ds), [("bar", p), ("qk", p, 0, NT - 1, ds)] + ([("xk", p, ds & 1)] if ev else []), 97 + 3 * ds)
    for dj in (0, 1):
        for kt in (0, 1):
            war = [("pv", p - 1, dj + 4, NT - 1)] if with_pv else []
            new(fx, ("vr", p, dj, kt), v_read(p, dj, kt), [("bar", p)] + war + ([("xv", p, 0)] if ev else []), (108, 110, 113, 116)[dj * 2 + kt])
    if p < 2:
        pos = (2, 7, 19, 30, 45, 50, 55, 63, 70, 77, 84, 89) if p == 0 else (5, 19, 26, 53, 62, 66, 76, 79)
        for i, (x_, (t, J)) in enumerate(zip(pos, DEFER[12 * p:])):
            new(fx, ("ow", t, J), o_write(t, J, Oreg(t, 2 * J)[1]), [("ow",) + DEFER[12 * p + i - 1]] if i else [], x_)
    if CFG["stamp"] == 2:
        new(scal, ("b0", p), sc("s_memrealtime s[98:99]"), [], 80)
        S.add(S.valu, Op(("ul2", p), V(f"v_accvgpr_write_b32 a{aL+16}, s98", [], [("a", aL + 16)]), [("b0", p), ("bar", p)]))
        new(fx, ("b2", p), I(f"buffer_store_dword a{aL+16}, off, s[{sDbg}:{sDbg+3}], s91 offset:512", "S", rd=[("a", aL + 16)]), [("ul2", p)], 104)
        new(scal, ("b3", p), sc("s_add_u32 s91, s91, 4"), [("b2", p)], 105)
    if p >= 3 and not ev: new(scal, ("lp", p), sc(f"s_sub_u32 s{sLoop}, s{sLoop}, 1"), [("wb", p)] + prev, 112)
    fx.sort(key=lambda o: o.target); scal.sort(key=lambda o: o.target)
    for o in fx: S.add(S.fixed, o)
    for o in scal: S.add(S.scal, o)
    misc = [o for o in S.valu if o.key[0] in ("xk", "xv", "ul", "ul2")]
    S.valu = misc + [o for o in S.valu if o not in misc]

def shift(key, p): return (key[0], key[1] + p) + tuple(key[2:])

def run_phases(S, phases, carry):
    starts = {}
    for p in phases:
        starts[p] = len(S.out)
        mf = phase_mf(S.NT, p)
        S.forbid = set()
        add_phase_ops(S, p, mf)
        cut = carry is not None and (p & 1)
        if cut: S.forbid = {shift(k, p) for k in carry}
        S.run(mf, phase_mf(S.NT, p + 1)[:4], cut)
    return starts

def find_carry(NT):
    S = Sched(NT)
    for ds in range(4): S.done.add(("kr", 0, 0, ds))
    run_phases(S, range(0, 8), None)
    return [shift(k, -7) for k in S.left]

def params_next():
    return [sc(x) for x in (
        f"s_add_u32 s{sT2}, s{sJob}, 1",
        f"s_xor_b32 s{sT3}, s{sT2}, s{sRole}",
        f"s_and_b32 s{sT3}, s{sT3}, 1",
        f"s_cselect_b32 s{sNxt}, s{sOffB}, s{sOffA}",
        f"s_cselect_b32 s{sN7n}, s{sN7B}, s{sN7A}",
        f"s_mul_i32 s{sT2}, s{sT2}, {QH}",
        f"s_add_u32 s{sNxt}, s{sNxt}, s{sT2}")]

def advance():
    return [sc(x) for x in (f"s_lshl_b32 s{sBit}, 1, s{sJob}", f"s_add_u32 s{sJob}, s{sJob}, 1", f"s_mov_b32 s{sOp}, s{sCurO}",
                            f"s_mov_b32 s{sCurO}, s{sNxt}", f"s_mov_b32 s{sN7c}, s{sN7n}")] + params_next() + \
           [sc(x) for x in (f"s_add_u32 s{sQx}, s{sQ}, s{sNxt}", f"s_addc_u32 s{sQx+1}, s{sQ+1}, 0", f"s_cmp_lt_u32 s{sJob}, 3", f"s_cselect_b32 s{sQx+2}, 4096, 0",
                            f"s_add_u32 s{sOx}, s{sO}, s{sOp}", f"s_addc_u32 s{sOx+1}, s{sO+1}, 0", f"s_cmp_gt_u32 s{sJob}, 0",
                            f"s_cselect_b32 s{sOx+2}, {0 if CFG['nostore'] else 4096}, 0", f"s_mov_b32 s{sD}, 128", f"s_mov_b32 s{sStg}, s{sStgB}", f"s_mov_b32 s{sLoop}, 6")]

def build_tail(S):
    NT = S.NT; p = 15; g0 = S.gap; S.forbid = set(); S.th = CFG["tth"]
    pv = pv_only(NT, p); sm = sorted(sums(NT, p), key=lambda m: m[0][2])
    mf = sm[:2] + pv[:NT] + sm[2:] + pv[NT:]
    for dj in range(2, 8):
        for kt in (0, 1):
            war = [("pv", p, dj - 4, NT - 1)] if dj >= 4 else []
            S.add(S.fixed, Op(("vr", p, dj, kt), v_read(p, dj, kt), war, g0 + max(0, NT * dj + len(sm) - 11 + kt)))
    nsc = [0]
    def scal(x, deps=()):
        i = nsc[0]; nsc[0] += 1
        S.add(S.scal, Op(("ts", i), x, ([("ts", i - 1)] if i else []) + list(deps), g0)); return ("ts", i)
    scal(sc(f"s_mul_i32 s{sQx+2}, s{sQx+2}, s{sN7n}"))
    prev = []
    for a in (0, 1):
        m = scal(sc(f"s_add_u32 m0, s{sWoff}, {32768 + a*896}", wr=M0), prev)
        if a == 0: wq = scal(I("s_waitcnt vmcnt(?)", "w", tag=("needq", 12, 1)))
        for nn in (0, 1):
            S.add(S.fixed, Op(("q6", a, nn), dma(vQO, sQx, None, nn * 2048 + a * 128, CFG["q"], ("q6",)), [m, wq], g0 + CFG["x6"] + 4 * (2 * a + nn)))
        prev = [("q6", a, 0), ("q6", a, 1)]
    for x in advance(): scal(x, prev); prev = []
    S.fixed.sort(key=lambda o: o.target)
    for t in range(5):
        for ds in range(4): S.add(S.flex, Op(("qr", t, ds), q_read(t, ds), [wq]))
    vL = vP + 14; vR = vP; vmx, vmn = vP + 22, vP + 23
    add = lambda key, ins, deps: S.add(S.valu, Op(key, ins, deps))
    for t in range(NT):
        src = [aL + 2 * t, aL + 2 * t + 1] + ([aL + 14, aL + 15] if t == 6 else [])
        dst = [vL + t, vR + 2 * t, vR + 2 * t + 1, vL + 7]
        for a, d in zip(src, dst):
            add(("la", a), V(f"v_accvgpr_read_b32 v{d}, a{a}", [("a", a)], [d]), [("sum", p, t >> 1)])
        if t == 6:
            add(("l6", 0), V(f"v_add_f32 v{dst[0]}, v{dst[0]}, v{dst[3]}", [dst[0], dst[3]], [dst[0]]), [("la", a) for a in src])
            add(("l6", 1), V(f"v_add_f32 v{dst[1]}, v{dst[1]}, v{dst[2]}", [dst[1], dst[2]], [dst[1]]), [("l6", 0)])
        add(("lr", t), V(f"v_add_f32 v{dst[0]}, v{dst[0]}, v{dst[1]}", dst[:2], [dst[0]]), [("la", a) for a in src] + ([("l6", 1)] if t == 6 else []))
        add(("rc", t), V(f"v_rcp_f32 v{vR+2*t}, v{vL+t}", [vL + t], [vR + 2 * t], "E"), [("lr", t)])
        for a in src: add(("lz", a), V(f"v_accvgpr_write_b32 a{a}, 0", [], [("a", a)]), [("la", a)])
    s_ = [vL + t for t in range(NT)]
    add(("tot", 1), V(f"v_add_f32 v{vmx}, v{s_[0]}, v{s_[1]}", s_[:2], [vmx]), [("lr", 0), ("lr", 1)])
    for t in range(2, NT): add(("tot", t), V(f"v_add_f32 v{vmx}, v{vmx}, v{s_[t]}", [vmx, s_[t]], [vmx]), [("tot", t - 1), ("lr", t)])
    add(("min", 0), V(f"v_min3_f32 v{vmn}, v{s_[0]}, v{s_[1]}, v{s_[2]}", s_[:3], [vmn]), [("lr", t) for t in range(NT)])
    add(("min", 1), V(f"v_min3_f32 v{vmn}, v{vmn}, v{s_[3]}, v{s_[4]}", [vmn, s_[3], s_[4]], [vmn]), [("min", 0)])
    add(("min", 2), V(f"v_min3_f32 v{vmn}, v{vmn}, v{s_[5]}, v{s_[-1]}", [vmn, s_[5], s_[-1]], [vmn]), [("min", 1)])
    add(("vl",), V(f"v_add_u32 v{vLin}, {(-24576) & 0xffffffff:#x}, v{vLin}", [vLin], [vLin]), [])
    add(("c1",), V(f"v_cmp_ngt_f32 vcc, s{sHi}, v{vmx}", [vmx], [("s", "vcc")]), [("tot", NT - 1)])
    add(("c2",), V(f"v_cmp_gt_f32_e64 s[{sPair}:{sPair+1}], s{sLo}, v{vmn}", [vmn], R("s", sPair, 2)), [("min", 2)])
    for x in (f"s_or_b64 vcc, vcc, s[{sPair}:{sPair+1}]", f"s_cselect_b32 s{sT2}, s{sBit}, 0", f"s_or_b32 s{sFlag}, s{sFlag}, s{sT2}", f"s_cmp_eq_u32 s{sJob}, 4"):
        scal(sc(x), [("c1",), ("c2",)])
    softdone = [("cvt", p, 1, t, h) for t in range(NT - 4, NT) for h in (0, 1)]
    early = {(NT - 1, J): vb for J, vb in enumerate((vTmp, vS, vS + 8))}
    for (t, J), vb in early.items():
        b = Oreg(t, 2 * J)[1]
        for i in range(8):
            add(("ar", t, J, i), V(f"v_accvgpr_read_b32 v{vb+i}, a{b+i}", [("a", b + i)], [vb + i]), softdone + [("pv", p, 2 * J + (i >> 2), t)])
    for J in range(3):
        for t in (1, 2, 3, 4, 0):
            b = Oreg(t, 2 * J)[1]
            for i in range(8):
                add(("om", t, J, i), V(f"v_mul_f32 v{b+i}, v{vR+2*t}, v{b+i}", [b + i, vR + 2 * t], [b + i]),
                    [("rc", t), ("pv", p, 2 * J + (i >> 2), t)] + ([("om", t, J, i - 1)] if i else []))
    S.run(mf)
    S.valu = [o for o in S.valu if not (o.key[0] == "om" and not (o.key[3] & 1 and ("om",) + o.key[1:3] + (o.key[3] - 1,) in S.done))]
    S.flush()
    S.emit(sc(f"s_cbranch_scc1 L_last{NT}"))
    vC = vP + 24
    def epilogue(last):
        E = []
        mark = lambda i: E.append(sc("s_memtime s[86:87]")) if CFG["tmark"] == i else None
        mark(0)
        def piece(t, J):
            k, b = Oreg(t, 2 * J)
            if k == "a":
                if (t, J) in early: b = early[(t, J)]
                else:
                    for i in range(8): E.append(V(f"v_accvgpr_read_b32 v{vC+8*J+i}, a{b+i}", [("a", b + i)], [vC + 8 * J + i]))
                    b = vC + 8 * J
            r = vR + 2 * t
            for i in range(4):
                if ("om", t, J, 2 * i) not in S.done:
                    E.append(V(f"v_pk_mul_f32 {rs('v', b+2*i, 2)}, {rs('v', b+2*i, 2)}, {rs('v', r, 2)} op_sel_hi:[1,0]",
                               [b + 2 * i, b + 2 * i + 1, r], [b + 2 * i, b + 2 * i + 1]))
            for i in range(4):
                E.append(V(f"v_cvt_pk_bf16_f32 v{b+i}, v{b+2*i}, v{b+2*i+1}", [b + 2 * i, b + 2 * i + 1], [b + i]))
            if last or (t, J) not in DEFER: E.append(o_write(t % 6, J, b))
            return b
        plain = [] if last else [(t, J) for t in range(5) for J in range(4)]
        def some(k):
            for _ in range(k):
                if plain: piece(*plain.pop(0))
        pend = []
        def drain(n):
            if not pend: return
            t, a, regs = pend.pop()
            E.append(I(f"s_waitcnt lgkmcnt({n})", "w")); E.append(sc(f"s_add_u32 s{sT3}, s{sOp}, {t*4096}"))
            for nn, r in enumerate(regs): E.append(o_store(r, sO, sT3, nn * 2048 + a * 128, CFG["ol" if last else "o"]))
        def through(tiles):
            for t in tiles:
                for a in (0, 1):
                    r0 = piece(t, 2 * a) + 4; some(1)
                    r1 = piece(t, 2 * a + 1) + 4; some(1)
                    for nn, r in enumerate((r0, r1)): E.append(ds128("v", r, vLin, (t % 6) * 4096 + nn * 2048 + a * 1024))
                    drain(4); pend.append((t, a, (r0, r1)))
        w5 = I("s_waitcnt vmcnt(?)", "w", tag=("needq", 14, 2))
        if last:
            through([0, 1] + ([6] if NT == 7 else []) + [2, 3, 4]); E.append(w5); through([5]); drain(0)
        else:
            E.append(w5)
            for ds in range(4): E.append(q_read(5, ds))
            if NT == 7: through([6])
            else:
                E.append(sc(f"s_mov_b32 s{sT3}, {OOB:#x}"))
                for i in range(4): E.append(o_store(vC, sO, sT3, 0, ""))
            some(3); drain(0)
            for J in range(4): piece(5, J); some(3)
            some(20)
            E.append(I("s_waitcnt lgkmcnt(4)", "w"))
        return [I(".p2align 3", "#")] + align8(fix_hazards(E, S.out[-10:]), False)
    return epilogue(False), epilogue(True)

class Job: pass
def build_job(NT):
    carry = find_carry(NT)
    S = Sched(NT)
    for ds in range(4): S.done.add(("kr", 0, 0, ds))
    st = run_phases(S, range(16), carry)
    st[16] = len(S.out)
    epi, lastepi = build_tail(S)
    for p in range(2, 18, 2):
        while S.out[st[p] - 1].k != "M": st[p] -= 1
    seg = lambda a, b: S.out[a:b]
    bodies = [seg(st[p], st[p + 2]) for p in range(2, 16, 2)]
    for b in bodies[1:]:
        assert [x.t for x in b] == [x.t for x in bodies[0]], "loop body not periodic"
    J = Job(); J.NT = NT; J.carry = carry
    J.head = seg(0, st[2]); J.body = bodies[0]; J.tail0 = seg(st[16], len(S.out)); J.tail = J.tail0 + epi; J.last = lastepi
    J.body.append(sc(f"s_cbranch_scc0 L_body{NT}"))
    return J

def kv_batch(srd, blk, ldsbase, tag):
    L = []
    for a in (0, 1):
        L += [sc(f"s_add_u32 m0, s{sWoff}, {ldsbase + a*896}", wr=M0), sc(f"s_mov_b32 s{sT0}, {blk*8192}"), dma(vDKV, srd, sT0, a * 128, CFG["kv"], tag)]
    return L
def grp_batch(e): return kv_batch(sK, e + 1, (e & 3) * 16384, ("grp", e)) + kv_batch(sV, e, (e & 3) * 16384 + 2048, ("grp", e))
def q_batch(slot, base, o, tag):
    L = []
    for a in (0, 1):
        L += [sc(f"s_add_u32 m0, s{sStgB}, {slot*4096 + a*896}", wr=M0), sc(f"s_add_u32 s{sT1}, s{base}, {o}")]
        L += [dma(vQO, sQ, sT1, nn * 2048 + a * 128, CFG["q"], tag) for nn in (0, 1)]
    return L

def build_first(NT, carry):
    S = Sched(NT); S.th = CFG["fth"]
    forbid = {shift(k, 1) for k in carry}
    assert all(k[2:4] in ((1, NT - 1), (1, NT - 2)) for k in forbid if k[0] in ("mul", "exp", "cvt"))
    Kh = lambda p, kt, ds: aO + p * 32 + kt * 16 + ds * 4
    Vh = lambda dj: aV + dj * 4 if dj < 4 else aK + dj * 4
    em = lambda L: [S.emit(x) for x in L]
    em([I("s_waitcnt vmcnt(?)", "w", tag=("needgrp", 0)), I("s_barrier", "B")])
    em([ds128("a", Kh(p, kt, ds), vK + (ds & 1), (0 if p else 49152) + koff(kt, ds)) for p in (0, 1) for kt in (0, 1) for ds in range(4)])
    em([dstr(Vh(dj) + 2 * kt, vV + ((dj >> 1) & 1), voff(dj, kt)) for dj in range(8) for kt in (0, 1)])
    em([I("s_waitcnt lgkmcnt(0)", "w"), I("s_barrier", "B", tag=("bar", 0))])
    assert CFG["look"] <= 4
    batches = [q_batch(t, sCurO, t * 4096, ("q0", t)) for t in range(CFG["look"], 6)]
    batches += [[sc(f"s_cmp_eq_u32 s{sN7c}, 1"), sc(f"s_cselect_b32 s{sU0}, s{sCurO}, {OOB:#x}")] + q_batch(1, sU0, 24576, ("q0", 6)), grp_batch(1), grp_batch(2)]
    lastbuf = {}
    def chain(p, kt, t, sb):
        add_softmax(S, p, [(kt, t, sb)])
        dep = lastbuf.get(sb, []); lastbuf[sb] = [("cvt", p, kt, t, h) for h in (0, 1)]
        return [(("qk", p, kt, t, ds), mfma(("v", sb), ("a", Kh(p, kt, ds)), ("a", Qreg(t, ds)), c0=(ds == 0)), dep if ds == 0 else []) for ds in range(4)]
    pv = lambda dj, t: (("pv", 0, dj, t), mfma(Oreg(t, dj), ("a", Vh(dj)), ("v", Preg(0, t)), c0=True), pdeps(0, t))
    sm = sums(NT, 0)
    for t in range(NT):
        if t == 4: split = len(S.out)
        end = t == NT - 1
        S.emit(I("s_waitcnt vmcnt(?)", "w", tag=("needq0", t)))
        em([q_read(t, ds, 1 if t == 6 else t) for ds in range(4)])
        while batches:
            em(batches.pop(0))
            if not end: break
        mf = []
        for i, (p, kt) in enumerate(((0, 0), (0, 1), (1, 0), (1, 1))):
            mf += chain(p, kt, t, vS + 4 * i if t < NT - 2 else (sbuf(NT, 1, 1, t) if i == 3 else vS + 4 * (i & 1)))
        S.forbid = forbid
        mine = [sm[t >> 1]] if t & 1 else []
        if not end:
            if t < 5: mf += [pv(dj, t) for dj in range(8)]
            S.run(mf + mine, keep=True); S.flush()
            continue
        g0 = S.gap; n1 = len(mf)
        mf += mine + [pv(dj, x) for dj in range(8) for x in range(5, NT)]
        S.add(S.scal, Op(("wb", 1), I("s_waitcnt vmcnt(?)", "w", tag=("needgrp", 1)), [], g0 + n1 - 4))
        S.add(S.fixed, Op(("bar", 1), I("s_barrier", "B", tag=("bar", 1)), [("wb", 1)], g0 + n1 - 3))
        prev = [("bar", 1)]
        for ds in range(4):
            S.add(S.fixed, Op(("kr", 2, 0, ds), k_read(2, 0, ds), prev, g0 + n1 - 2 + ds)); prev = [("kr", 2, 0, ds)]
        for dj in (0, 1):
            for kt in (0, 1):
                S.add(S.fixed, Op(("vr", 1, dj, kt), v_read(1, dj, kt), prev + [("pv", 0, dj, NT - 1)], g0)); prev = [("vr", 1, dj, kt)]
        S.run(mf, cut=True)
        while S.out[-1].k != "M": S.out.pop()
        T = grp_batch(3)
        for j in range(3):
            T += [sc(f"s_mov_b32 m0, s{sStg}", wr=M0), sc(f"s_add_u32 s{sStg}, s{sStg}, 1024"), dma(vQO, sQx, None, 0, CFG["q"], ("q", 0, j))]
            T += [sc(x) for x in bump(sQx, f"s{sD}") + [f"s_xor_b32 s{sD}, s{sD}, 0x700"]]
        groups = [T[i:i + 3] for i in range(0, len(T), 3)]
        ms = [i for i, x in enumerate(S.out) if x.k == "M"][-len(groups) - 1:-1]
        for i, g in reversed(list(zip(ms, groups))): S.out[i + 1:i + 1] = g
    return S.out[:split], S.out[split:]

def sigma(x, d, t):
    return [f"v_bfe_u32 v{d}, v{x}, 1, 1", f"v_lshrrev_b32 v{t}, 3, v{x}", f"v_xor_b32 v{t}, v{t}, v{x}", f"v_and_b32 v{t}, 1, v{t}",
            f"v_lshl_or_b32 v{d}, v{t}, 1, v{d}", f"v_and_b32 v{t}, 4, v{x}", f"v_or_b32 v{d}, v{d}, v{t}"]
def swz_addr(row, col, d, t):
    return sigma(row, d, t) + [f"v_xor_b32 v{d}, v{d}, v{col}", f"v_lshlrev_b32 v{d}, 4, v{d}", f"v_and_b32 v{t}, 7, v{row}",
                               f"v_lshl_add_u32 v{d}, v{t}, 7, v{d}", f"v_lshrrev_b32 v{t}, 3, v{row}"]
def stg_addr(row, col, d, t):
    return [f"v_and_b32 v{t}, 7, v{row}", f"v_xor_b32 v{d}, v{t}, v{col}", f"v_lshlrev_b32 v{d}, 4, v{d}", f"v_lshl_add_u32 v{d}, v{t}, 7, v{d}"]

def stamp():
    if not CFG["stamp"]: return []
    x = 254
    L = [sc(t) for t in (f"s_memtime s[{sTm}:{sTm+1}]", f"s_memrealtime s[{sTm+2}:{sTm+3}]", "s_waitcnt lgkmcnt(0)", "s_mov_b64 exec, 1")]
    for n, (a, b) in enumerate(((sTm, sTm + 2), (80, 82), (84, 86))):
        L += [sc(f"v_mov_b32 v{x}, s{a}"), sc(f"v_mov_b32 v{x+1}, s{b}"),
              I(f"buffer_store_dwordx2 v[{x}:{x+1}], off, s[{sDbg}:{sDbg+3}], s{sStampOff} offset:{8*n}", "S"), sc("s_nop 1")]
    return L + [sc("s_mov_b64 exec, -1"), sc(f"s_add_u32 s{sStampOff}, s{sStampOff}, 32"), sc("s_nop 3")]

def prologue():
    P = []
    A = lambda t: P.append(sc(t))
    if CFG["diag_tot"]: A("s_memrealtime s[96:97]")
    A("s_cmp_ge_u32 s2, 256"); A("s_cbranch_scc1 L_exit")
    if CFG["again"]:
        A(f"s_mov_b32 s90, {CFG['again']}"); P.append(I("L_again:", "#"))
    A("s_load_dwordx4 s[80:83], s[0:1], 0"); A("s_load_dwordx4 s[84:87], s[0:1], 16")
    if CFG["stamp"]: A("s_load_dwordx2 s[88:89], s[0:1], 40")
    if CFG["codepf"]:
        A("s_getpc_b64 s[98:99]"); P.append(I("L_pf:", "#")); A("v_lshlrev_b32 v20, 7, v0")
        for i in range(CFG["codepf"]):
            if i: A("v_add_u32 v20, 0x8000, v20")
            A("v_min_u32 v27, L_code_end-L_pf-4, v20")
            P.append(I("global_load_dword v26, v27, s[98:99]", "L"))
    A("v_lshrrev_b32 v20, 6, v0"); A("v_and_b32 v21, 63, v0"); A(f"v_readfirstlane_b32 s{sW}, v20")
    A(f"s_and_b32 s{sT0}, s2, 7"); A(f"s_lshr_b32 s{sT1}, s2, 3"); A(f"s_and_b32 s{sRole}, s{sT1}, 1"); A(f"s_lshr_b32 s{sT1}, s{sT1}, 1")
    A(f"s_lshl_b32 s{sT0}, s{sT0}, 4"); A(f"s_add_u32 s{sT0}, s{sT0}, s{sT1}")
    if CFG["samehead"]: A(f"s_mov_b32 s{sT0}, 0")
    A(f"s_mul_i32 s{sT1}, s{sT0}, {4*QH}"); A(f"s_lshl_b32 s{sT0}, s{sT0}, 19")
    A("v_lshrrev_b32 v22, 3, v21"); A("v_and_b32 v23, 7, v21")
    for x in sigma(22, 24, 25): A(x)
    A("v_xor_b32 v24, v24, v23"); A("v_lshlrev_b32 v24, 4, v24"); A(f"v_lshl_add_u32 v{vDKV}, v22, 8, v24")
    A("v_xor_b32 v24, v22, v23"); A("v_lshlrev_b32 v24, 4, v24"); A(f"v_lshl_add_u32 v{vQO}, v22, 8, v24")
    A(f"s_and_b32 s{sT2}, s{sW}, 1"); A(f"s_lshl_b32 s{sT2}, s{sT2}, 5"); A(f"s_lshl_b32 s{sT3}, s{sW}, 11"); A(f"s_lshl_b32 s{sWoff}, s{sW}, 12")
    A(f"v_xor_b32 v{vDKV}, s{sT2}, v{vDKV}"); A(f"v_add_u32 v{vDKV}, s{sT3}, v{vDKV}")
    A(f"s_mul_i32 s{sStgB}, s{sW}, 24576")
    for d, f, n7, base in ((sOffA, sN7A, CFG["split"] - 24, 0), (sOffB, sN7B, 53 - CFG["split"] - 24, CFG["split"] * 4096)):
        A(f"s_min_u32 s{d}, s{sW}, {n7}"); A(f"s_cselect_b32 s{f}, 1, 0"); A(f"s_lshl_b32 s{d}, s{d}, 12")
        A(f"s_add_u32 s{d}, s{d}, s{sStgB}"); A(f"s_add_u32 s{d}, s{d}, {base}")
    A(f"s_add_u32 s{sStgB}, s{sStgB}, 65536")
    A(f"s_mov_b32 s{sJob}, -1")
    P += params_next()
    A("s_waitcnt lgkmcnt(0)")
    for srd, src, o, n in ((sK, 82, sT0, 4 * KH), (sV, 84, sT0, 4 * KH), (sQ, 80, sT1, 4 * QH), (sO, 86, sT1, 0 if CFG["nostore"] else 4 * QH)):
        A(f"s_add_u32 s{srd}, s{src}, s{o}"); A(f"s_addc_u32 s{srd+1}, s{src+1}, 0"); A(f"s_mov_b32 s{srd+2}, {n}"); A(f"s_mov_b32 s{srd+3}, 0x20000")
    if CFG["stamp"]:
        A(f"s_mov_b32 s{sDbg}, s88"); A(f"s_mov_b32 s{sDbg+1}, s89"); A(f"s_mov_b32 s{sDbg+2}, 0x1000000"); A(f"s_mov_b32 s{sDbg+3}, 0x20000")
        A(f"s_lshl_b32 s{sStampOff}, s2, 2"); A(f"s_add_u32 s{sStampOff}, s{sStampOff}, s{sW}"); A(f"s_lshl_b32 s{sStampOff}, s{sStampOff}, 10")
        A(f"s_mov_b32 s91, s{sStampOff}")
    P += stamp()
    P += kv_batch(sK, 0, 3 * 16384, ("grp", -1)) + grp_batch(0)
    hold = {int(x[0]): int(x[1:]) for x in str(CFG["pri"]).split(",") if x}
    for t in range(CFG["look"]):
        if t in hold:
            A(f"s_and_b32 s{sT2}, s2, {CFG['prim']}"); A(f"s_cmp_eq_u32 s{sT2}, 0"); A(f"s_cbranch_scc1 L_deep{t}"); A(f"s_waitcnt vmcnt({hold[t]})"); P.append(I(f"L_deep{t}:", "#"))
        P += q_batch(t, sNxt, t * 4096, ("q0", t))
    A("v_and_b32 v22, 15, v21"); A("v_lshrrev_b32 v23, 4, v21")
    for x in swz_addr(22, 23, 24, 25): A(x)
    A(f"v_lshl_add_u32 v{vK}, v25, 12, v24"); A(f"v_xor_b32 v{vK+1}, 64, v{vK}")
    for x in stg_addr(22, 23, 24, 25): A(x)
    A("v_lshrrev_b32 v25, 1, v22"); A("v_xor_b32 v25, v25, v22"); A("v_bfe_u32 v25, v25, 2, 1"); A("v_lshl_add_u32 v24, v25, 11, v24")
    A(f"v_add_u32 v{vSt}, s{sStgB}, v24"); A(f"v_xor_b32 v{vSt+1}, 64, v{vSt}")
    A(f"s_add_u32 s{sT2}, s{sWoff}, 32768"); A(f"v_add_u32 v{vQ6}, s{sT2}, v24"); A(f"v_xor_b32 v{vQ6+1}, 64, v{vQ6}")
    A(f"v_lshl_add_u32 v{vLin}, v21, 4, s{sStgB}"); A(f"v_add_u32 v{vLin}, 3072, v{vLin}")
    A("v_lshrrev_b32 v22, 2, v21"); A("v_and_b32 v23, 3, v21")
    for x in swz_addr(22, 23, 24, 25): A(x)
    A(f"v_lshl_add_u32 v{vV}, v25, 12, v24"); A(f"v_xor_b32 v{vV+1}, 64, v{vV}")
    A(f"s_mov_b32 s{sC}, {f2u(1.0 if 'c1' in CFG['x'] else SCALE):#x}")
    A(f"s_mov_b32 s{sLo}, {f2u(2.0**CFG['lo']):#x}"); A(f"s_mov_b32 s{sHi}, {f2u(2.0**CFG['hi']):#x}")
    A(f"s_mov_b32 s{sFlag}, {CFG['forcefb']}")
    for d, b, blk in ((sVx, sV, 4), (sKx, sK, 5)):
        A(f"s_add_u32 s{d}, s{b}, {blk*8192}"); A(f"s_addc_u32 s{d+1}, s{b+1}, 0"); A(f"s_mov_b32 s{d+2}, 8192")
    for d in (sKx, sVx, sQx, sOx): A(f"s_mov_b32 s{d+3}, 0x20000")
    A(f"s_mov_b32 s{sCnt}, 5"); A(f"s_mov_b32 s{sM}, s{sWoff}"); A(f"s_mov_b32 s{sCurO}, 0")
    A("v_and_b32 v22, 1, v21"); A("v_mul_u32_u24 v22, 0xaaaa, v22"); A(f"v_add_u32 v{vIdx}, 0x4444, v22"); A(f"v_lshl_or_b32 v{vIdx}, v{vIdx}, 16, v{vIdx}")
    A("v_lshrrev_b32 v22, 4, v21"); A("v_xor_b32 v22, v22, v21"); A("v_and_b32 v23, 2, v22")
    if "row4" in CFG["x"]: A("v_and_b32 v22, 12, v21"); A("v_or_b32 v23, v23, v22")
    A("v_cmp_eq_u32 vcc, 0, v23"); A("v_mov_b32 v24, 0x3f803f80"); A("s_nop 0"); A("v_cndmask_b32 v22, 0, v24, vcc")
    for i in range(4): A(f"v_accvgpr_write_b32 a{aOne+i}, v22")
    for i in range(16): A(f"v_accvgpr_write_b32 a{aL+i}, 0")
    return P + advance()

def job_switch(NT):
    L = []
    if CFG["diag_mark"] > 0: L = [sc(f"s_cmp_lg_u32 s{sJob}, {CFG['diag_mark']}"), sc(f"s_cbranch_scc1 L_nomark{NT}"), sc("s_memrealtime s[96:97]"), I(f"L_nomark{NT}:", "#")]
    L += stamp() + [sc(f"s_cmp_eq_u32 s{sN7c}, 1"), sc("s_cbranch_scc1 L_job7")]
    return L + ([sc("s_branch L_job6")] if NT == 6 else [])

def final():
    L = [I("L_final:", "#")]
    if CFG["diag_mark"] == 4: L.append(sc("s_memrealtime s[96:97]"))
    if CFG["stamp"]: L += stamp() + stamp() + [I("s_waitcnt vmcnt(0)", "w")] + stamp()
    return L

def fallback():
    L = []; A = L.append
    q, k, s0, pb, vf, o, lacc, m, t0, va, pa, one = 20, 36, 52, 60, 64, 72, 104, 108, 109, 112, 114, 116
    sJ, sN, sRow, sKb, sI, sU = sU0, sU1, sU2, sU3, sLoop, sD
    MF = "v_mfma_f32_16x16x32_bf16"
    A(f"s_cmp_eq_u32 s{sFlag}, 0"); A("s_cbranch_scc1 L_done")
    A("s_waitcnt vmcnt(0) lgkmcnt(0)")
    A("v_and_b32 v21, 63, v0"); A("v_and_b32 v22, 15, v21"); A("v_lshrrev_b32 v23, 4, v21")
    A(f"v_lshlrev_b32 v{vDir}, 8, v22"); A(f"v_lshl_add_u32 v{vDir}, v23, 4, v{vDir}")
    A("v_lshrrev_b32 v22, 2, v21"); A("v_and_b32 v23, 3, v21")
    L += stg_addr(22, 23, 24, 25) + ["v_lshrrev_b32 v25, 3, v22"]
    A(f"v_lshl_add_u32 v{va}, v25, 11, v24"); A(f"v_add_u32 v{va}, s{sStgB}, v{va}"); A(f"v_xor_b32 v{va+1}, 64, v{va}")
    A(f"v_xor_b32 v{pa}, 16, v21"); A(f"v_lshlrev_b32 v{pa}, 2, v{pa}"); A(f"v_xor_b32 v{pa+1}, 32, v21"); A(f"v_lshlrev_b32 v{pa+1}, 2, v{pa+1}")
    for i in range(4): A(f"v_mov_b32 v{one+i}, 0x3f803f80")
    A(f"s_mov_b32 s{sJob}, -1")
    A("L_fb_job:")
    L += [x.t for x in params_next()]
    A(f"s_add_u32 s{sJob}, s{sJob}, 1"); A(f"s_cmp_eq_u32 s{sJob}, 4"); A("s_cbranch_scc1 L_done")
    A(f"s_lshr_b32 s{sJ}, s{sFlag}, s{sJob}"); A(f"s_and_b32 s{sJ}, s{sJ}, 1"); A("s_cbranch_scc0 L_fb_job")
    A(f"s_add_u32 s{sN}, s{sN7n}, 5"); A(f"s_mov_b32 s{sRow}, s{sNxt}")
    A("L_fb_tile:")
    for ds in range(4): A(f"buffer_load_dwordx4 {rs('v', q+4*ds, 4)}, v{vDir}, s[{sQ}:{sQ+3}], s{sRow} offen{off(ds*64)}")
    def scores(dst):
        for ds in range(4): A(f"buffer_load_dwordx4 {rs('v', k+4*ds, 4)}, v{vDir}, s[{sK}:{sK+3}], s{sKb} offen{off(ds*64)}")
        A("s_waitcnt vmcnt(0)")
        for ds in range(4): A(f"{MF} {rs('v', dst, 4)}, {rs('v', k+4*ds, 4)}, {rs('v', q+4*ds, 4)}, {'0' if ds == 0 else rs('v', dst, 4)}")
        A(f"s_add_u32 s{sKb}, s{sKb}, 4096"); A("s_nop 7")
    A(f"v_mov_b32 v{m}, 0xff800000"); A(f"s_lshl_b32 s{sKb}, s{sJob}, 17"); A(f"s_mov_b32 s{sI}, 31")
    A("L_fb_max:")
    scores(s0)
    A(f"v_max3_f32 v{m}, v{m}, v{s0}, v{s0+1}"); A(f"v_max3_f32 v{m}, v{m}, v{s0+2}, v{s0+3}")
    A(f"s_sub_u32 s{sI}, s{sI}, 1"); A("s_cbranch_scc0 L_fb_max")
    for i in (0, 1):
        A(f"ds_bpermute_b32 v{t0}, v{pa+i}, v{m}"); A("s_waitcnt lgkmcnt(0)"); A(f"v_max_f32 v{m}, v{m}, v{t0}")
    for i in range(36): A(f"v_mov_b32 v{o+i}, 0")
    A(f"s_lshl_b32 s{sKb}, s{sJob}, 17"); A(f"s_mov_b32 s{sI}, 15")
    A("L_fb_pv:")
    for kt in (0, 1):
        for a in (0, 1):
            A(f"s_add_u32 m0, s{sStgB}, {kt*4096 + a*896}"); A(f"s_add_u32 s{sU}, s{sKb}, {kt*4096}")
            for nn in (0, 1): A(f"buffer_load_dwordx4 v{vQO}, s[{sV}:{sV+3}], s{sU} offen{off(nn*2048 + a*128)} lds")
    scores(s0); scores(s0 + 4)
    for r in range(8): A(f"v_sub_f32 v{s0+r}, v{s0+r}, v{m}")
    for r in range(8): A(f"v_mul_f32 v{s0+r}, s{sC}, v{s0+r}")
    for r in range(8): A(f"v_exp_f32 v{s0+r}, v{s0+r}")
    A("s_nop 0")
    for r in range(4): A(f"v_cvt_pk_bf16_f32 v{pb+r}, v{s0+2*r}, v{s0+2*r+1}")
    A("s_nop 1")
    A(f"{MF} {rs('v', lacc, 4)}, {rs('v', one, 4)}, {rs('v', pb, 4)}, {rs('v', lacc, 4)}")
    for dj in range(8):
        J, h = dj >> 1, dj & 1; f = vf + 4 * (dj & 1)
        for kt in (0, 1): A(f"ds_read_b64_tr_b16 {rs('v', f+2*kt, 2)}, v{va + (J & 1)}{off(kt*4096 + (J >> 1)*1024 + 8*h)}")
        A("s_waitcnt lgkmcnt(0)")
        A(f"{MF} {rs('v', o+4*dj, 4)}, {rs('v', f, 4)}, {rs('v', pb, 4)}, {rs('v', o+4*dj, 4)}")
    A(f"s_sub_u32 s{sI}, s{sI}, 1"); A("s_cbranch_scc0 L_fb_pv")
    A("s_nop 7"); A(f"v_rcp_f32 v{t0}, v{lacc}"); A("s_nop 0")
    for i in range(32): A(f"v_mul_f32 v{o+i}, v{t0}, v{o+i}")
    for J in range(4):
        for i in range(4): A(f"v_cvt_pk_bf16_f32 v{o+8*J+i}, v{o+8*J+2*i}, v{o+8*J+2*i+1}")
        A(f"buffer_store_dwordx4 {rs('v', o+8*J, 4)}, v{vDir}, s[{sO}:{sO+3}], s{sRow} offen{off(J*64)}")
    A("s_waitcnt vmcnt(0)")
    A(f"s_add_u32 s{sRow}, s{sRow}, 4096"); A(f"s_sub_u32 s{sN}, s{sN}, 1"); A("s_cbranch_scc0 L_fb_tile")
    A("s_branch L_fb_job")
    A("L_done:")
    return [I(x, "#" if x.endswith(":") else "s") for x in L]

def resolve(pro, jobs, fin):
    best = {}
    for seqn in ([7, 7, 7, 7], [7, 6, 7, 6], [6, 7, 6, 7], [6, 6, 6, 6]):
        dyn = [(x, 0) for x in pro]
        for j, v in enumerate(seqn):
            J = jobs[v]; b = 16 * j
            dyn += [(x, b) for x in (jobs[7].fcom + J.first if j == 0 else J.head)]
            for it in range(7): dyn += [(x, b + 2 * it) for x in J.body]
            dyn += [(x, b) for x in (J.tail + J.sw if j < 3 else J.tail0 + J.last)]
        dyn += [(x, 64) for x in fin]
        vm = []; epoch = -2
        for x, b in dyn:
            if x.k == "B": epoch = (x.tag[1] + b) if x.tag else -1
            if x.k == "D" and x.tag and x.tag[0] == "ring":
                assert x.tag[1] + b == epoch, ("ring read outside its epoch", x.t, x.tag, b, epoch)
            if x.k in "XLS":
                tg = x.tag
                if tg and tg[0] in ("grp", "q"): tg = shift(tg, b)
                if tg and tg[0] == "grp": assert epoch == -2 or tg[1] - 4 < epoch, ("dma overwrites live group", x.t)
                vm.append(tg)
            if x.k == "w" and x.tag:
                want = (x.tag[0][4:],) + tuple(x.tag[1:])
                if want[0] in ("grp", "q"): want = shift(want, b)
                idx = max(i for i, t in enumerate(vm) if t == want)
                n = min(63, len(vm) - 1 - idx)
                best[id(x)] = (x, min(n, best.get(id(x), (x, 99))[1]))
        seq = [x for x, _ in dyn]
        last = None
        for x in seq:
            op = x.t.split()[0]
            if op == "s_addc_u32":
                a = int(re.match(r"s_addc_u32 s(\d+)", x.t).group(1))
                assert last.startswith(f"s_add_u32 s{a-1},"), (last, x.t)
            if op == "s_cselect_b32": assert re.match(r"s_(cmp|and_b32|or_b64|min)", last), (last, x.t)
            if x.t.startswith("s_cbranch_scc0 L_body"): assert last.startswith(f"s_sub_u32 s{sLoop},"), last
            elif op.startswith("s_cbranch_scc"): assert last.startswith("s_cmp"), (last, x.t)
            if re.match(r"s_(add|sub|and|or|xor|lshl|lshr|cmp|min)", op): last = x.t
        check_lgkm(seq)
        bad = hazards(seq)
        assert not bad, bad[:5]
    for x, n in best.values(): x.t = x.t.replace("?", str(n))

def main():
    jobs = {nt: build_job(nt) for nt in (7, 6)}
    mt = lambda i: [sc(f"s_memtime s[{80+2*i}:{81+2*i}]")] if CFG["stamp"] else []
    for nt, J in jobs.items():
        J.fcom, J.first = build_first(nt, J.carry)
        assert [x.t for x in J.fcom] == [x.t for x in jobs[7].fcom]
        if CFG["diag_mark"] == 0: J.first.append(sc("s_memrealtime s[96:97]"))
        J.first += stamp() + mt(0) + mt(1) + [sc("s_nop 3"), sc(f"s_branch L_body{nt}")]
        J.sw = job_switch(nt)
    jobs[7].fcom += [sc(f"s_cmp_eq_u32 s{sN7c}, 0"), sc("s_cbranch_scc1 L_first6")]
    pro = prologue(); fin = final()
    resolve(pro, jobs, fin)
    info = []
    for nt, J in jobs.items():
        nm = lambda s: sum(x.k == "M" for x in s)
        t = " ".join(f"{n}: {cycles(s)}c iss {issue_sum(s)} pipe {nm(s)*16} |" for n, s in (("head", J.head), ("body", J.body), ("tail", J.tail)))
        info.append(f"NT={nt} carry={len(J.carry)} {t} total={cycles(J.head + 7 * J.body + J.tail + J.sw)}")
    o = open("header.txt").read().rstrip("\n").split("\n")
    o += ['.amdgcn_target "amdgcn-amd-amdhsa--gfx950"', ".text", f".globl {NAME}_kernel", ".p2align 8", f".type {NAME}_kernel,@function", f"{NAME}_kernel:"]
    X = CFG["x"].split()
    def keep(x):
        if "mul" in X and x.t.startswith("v_mul_f32") and f"s{sC}," in x.t and x.k == "V": return None
        if "sum" in X and "smfmac" in x.t: return None
        if inbody[0]:
            if "ds" in X and x.k == "D": return "v_mov_b32 v12, v12"
            if "kvdma" in X and x.k == "X" and x.tag[0] == "grp": return "v_mov_b32 v12, v12"
            if "st" in X and x.k == "S": return "v_mov_b32 v12, v12"
            if "bar" in X and x.k == "B": return "s_nop 2"
        return x.t
    inbody = [False]
    put = lambda s: o.extend(("" if x.k == "#" else "    ") + keep(x) for x in s if keep(x) is not None)
    put(pro); put(jobs[7].fcom)
    for nt, J in jobs.items():
        o.append(f"L_first{nt}:"); put(J.first)
    for nt, J in jobs.items():
        o.append(f"L_job{nt}:"); put(mt(0)); put(J.head); put(mt(1))
        o.append(f"L_body{nt}:"); inbody[0] = True; put(J.body); inbody[0] = False; put(mt(2)); put(mt(3)); put(J.tail); put(J.sw)
    for nt, J in jobs.items():
        o.append(f"L_last{nt}:"); put(J.last)
        if nt == 7: o.append("    s_branch L_final")
    put(fin); put(fallback())
    if CFG["again"]:
        o += ["    s_waitcnt vmcnt(0) lgkmcnt(0)", "    s_barrier", "    s_sub_u32 s90, s90, 1", "    s_cbranch_scc0 L_again"]
    if CFG["diag_tot"]:
        o += ["    s_waitcnt vmcnt(0) lgkmcnt(0)", "L_diag:", "    s_memrealtime s[94:95]", "    s_waitcnt lgkmcnt(0)",
              "    s_sub_u32 s94, s94, s96", f"    s_cmp_lt_u32 s94, {CFG['diag_tot']}", "    s_cbranch_scc1 L_diag"]
    o += ["L_exit:", "    s_endpgm", "L_code_end:"]
    for nt in jobs:
        while True:
            pos = 0; at = {}
            for l in o[o.index(f"{NAME}_kernel:"):]:
                t = l.strip(); at[t] = pos
                if t.startswith(".p2align"): a = 1 << int(t.split()[1]); pos = (pos + a - 1) // a * a
                elif not t.endswith(":"): pos += size(t)
            if at[f"L_body{nt}:"] % 32 != 28 and at[f"s_cbranch_scc0 L_body{nt}"] % 32 != 0: break
            k = max(i for i in range(o.index(f"L_body{nt}:")) if o[i].startswith("    v_exp_f32 "))
            o[k] = o[k].replace("v_exp_f32 ", "v_exp_f32_e64 ")
    info.append(f"code bytes {pos}")
    o += ['.section .rodata,"a"', ".p2align 6", f".amdhsa_kernel {NAME}_kernel",
          "  .amdhsa_next_free_vgpr 512", "  .amdhsa_next_free_sgpr 102", "  .amdhsa_accum_offset 256",
          "  .amdhsa_group_segment_fixed_size 0", "  .amdhsa_kernarg_size 48", "  .amdhsa_user_sgpr_count 2",
          "  .amdhsa_user_sgpr_kernarg_segment_ptr 1", "  .amdhsa_system_sgpr_workgroup_id_x 1", ".end_amdhsa_kernel"]
    open(sys.argv[1], "w").write("\n".join(o) + "\n")
    print("\n".join(info), file=sys.stderr)

main()
```

```python
import sys, math, struct, re
from asmlib import *

NAME = "standalone__gqa_softmax__near_ridge"
CFG = dict(kv="", q="nt", o="nt", ol="nt", th=26, tth=8, fth=16, cl=2, sp=7, sp2=7, sh6=3, sroom=4, look=4, split=27, endsplit=4, lpf=1, lth=20, g3=1, pri="", prim=16, x6=1,
           lo=-30, hi=30, codepf=1,
           stamp=0, samehead=0, nostore=0, again=0, tmark=-1, x="", diag_tot=0, diag_mark=-1, forcefb=0)
for a in sys.argv[2:]:
    k, v = a.split("=", 1)
    assert k in CFG, k
    CFG[k] = int(v) if re.fullmatch(r"-?\d+", v) else v.replace("+", " ")

QH, KH = 217088, 131072
SCALE = math.log2(math.e) / math.sqrt(128.0)
def f2u(x): return struct.unpack("<I", struct.pack("<f", x))[0]

vK, vV, vDKV, vQO, vLin, vSt, vQ6 = 1, 3, 5, 6, 7, 8, 10
vTmp = 12
vS = 20
vP = 36
vO = 92
vIdx, vDir = 252, 253
aQ, aK, aV, aL, aO, aOne = 0, 112, 144, 160, 188, 252
sQ, sK, sV, sO = 4, 8, 12, 16
(sC, sW, sJob, sCnt, sU0, sU1, sU2, sM, sU3, sD, sOp, sStg, sLoop, sCurO, sNxt, sN7c, sN7n, sFlag, sRole,
 sT0, sT1, sT2, sT3, sWoff, sStgB, sOffA, sOffB, sLo, sHi, sBit, sN7A, sN7B) = range(20, 52)
sPair = 56
sStampOff = 58
sDbg = 60
sKx, sVx, sQx, sOx = 64, 68, 72, 76
sTm = 92
OOB = 0x100000

def Oreg(t, dj):
    return ("v", vO + t * 32 + dj * 4) if t < 5 else ("a", aO + (t - 5) * 32 + dj * 4)
def Preg(p, t):
    return vP + t * 4 if not p & 1 else vP + 28 + ((t + 1) % 7) * 4
def Qreg(t, ds): return aQ + (t * 4 + ds) * 4
def sbuf(NT, p, kt, t): return vS + ((p * 2 * NT + kt * NT + t) & 3) * 4
def pdeps(p, t): return [("cvt", p, kt, t, h) for kt in (0, 1) for h in (0, 1)]
def sc(t, rd=(), wr=()): return I(t, "s", rd=rd, wr=wr)
def fl(x): return (" " + x) if x else ""
def off(x): return f" offset:{x}" if x else ""
def V(t, rd, wr, k="V"): return I(t, k, rd=[("v", r) if isinstance(r, int) else r for r in rd], wr=[("v", r) if isinstance(r, int) else r for r in wr])
COST = {"V": 1, "E": 2, "D": 1}
M0 = [("m", 0)]

class Op:
    def __init__(self, key, ins, deps=(), target=None, rel=None):
        self.key = key; self.ins = ins; self.deps = list(deps); self.target = target; self.rel = rel

class Sched:
    def __init__(self, NT):
        self.NT = NT
        self.out = []; self.done = set(); self.pend = []
        self.valu = []; self.fixed = []; self.scal = []; self.flex = []
        self.forbid = set(); self.gap = 0
        self.bykey = {}; self.th = CFG["th"]
    def add(self, q, op):
        q.append(op); self.bykey[op.key] = op
    def emit(self, ins, key=None):
        if ins.k == "w":
            m = re.search(r"lgkmcnt\((\d+)\)", ins.t)
            if m:
                n = int(m.group(1))
                if n < len(self.pend): self.pend = self.pend[len(self.pend) - n:] if n else []
        self.out.append(ins)
        if ins.k in "DW": self.pend.append(ins)
        if key is not None: self.done.add(key)
    def haz(self, ins):
        dist = 0; miss = 0
        for p in reversed(self.out):
            miss = max(miss, need(p, ins) - dist)
            dist += states(p)
            if dist >= 8: break
        return miss
    def lgkm_need(self, inss):
        idx = -1
        for ins in inss:
            t = set(ins.rd) | set(ins.c) | set(ins.wr)
            for i, p in enumerate(self.pend):
                if set(p.wr) & t: idx = max(idx, i)
        return None if idx < 0 else min(15, len(self.pend) - 1 - idx)
    def ready(self, op):
        return op.key not in self.forbid and all(d in self.done for d in op.deps) and \
            (op.target is None or op.target <= self.gap) and self.haz(op.ins) <= 0
    def put(self, op):
        for q in (self.valu, self.fixed, self.scal, self.flex):
            if op in q: q.remove(op)
        n = self.lgkm_need([op.ins])
        if n is not None: self.emit(I(f"s_waitcnt lgkmcnt({n})", "w"))
        m = self.haz(op.ins)
        if m > 0: self.emit(I(f"s_nop {m-1}", "s"))
        self.emit(op.ins, op.key)
    def force(self, key):
        if key in self.done: return
        op = self.bykey[key]
        assert key not in self.forbid, key
        for d in op.deps: self.force(d)
        self.put(op)
    def pick(self, kinds, n):
        r = []
        for op in self.valu[:48]:
            if op.ins.k in kinds and self.ready(op):
                r.append(op)
                if len(r) == n: break
        return r
    def backlog(self):
        return sum(COST[o.ins.k] for o in self.valu if o.rel is not None and o.rel in self.done)
    def fill(self, room):
        while room > 0:
            e = self.pick("E", 1); v = self.pick("V", 2)
            if room >= 2 and e and (len(v) < 2 or self.valu.index(e[0]) < self.valu.index(v[0])):
                self.put(e[0]); room -= 2
            elif v:
                self.put(v[0]); room -= 1
            elif e and self.backlog() > self.th - 4:
                self.put(e[0]); room -= 2
            else: break
        while self.backlog() > self.th:
            c = self.pick("EV", 1)
            if not c: break
            self.put(c[0])
    def run(self, mf, look=(), cut=False, keep=False):
        allm = list(mf) + list(look)
        for i, (key, ins, deps) in enumerate(mf):
            for d in deps: self.force(d)
            if i == len(mf) - 1 and not keep:
                if cut: self.flush()
                self.forbid = set()
                self.left = [o.key for q in (self.valu, self.fixed, self.scal) for o in q]
            n = self.lgkm_need([ins])
            if n is not None: self.emit(I(f"s_waitcnt lgkmcnt({n})", "w"))
            m = self.haz(ins)
            if m > 0: self.emit(I(f"s_nop {m-1}", "s"))
            self.emit(ins, key)
            afterw = len(self.out) > 1 and self.out[-2].k == "W"
            fx = next((o for o in self.fixed if self.ready(o) and not (afterw and o.ins.k in "DW")), None)
            slot1 = False
            nxt = [x[1] for x in allm[i + 1:i + 2]]
            if self.lgkm_need(nxt) is not None:
                nxt = [x[1] for x in allm[i + 1:i + 5]]
            if fx is not None and fx.ins.k != "B": nxt = nxt + [fx.ins]
            n = self.lgkm_need(nxt)
            if n is not None:
                self.emit(I(f"s_waitcnt lgkmcnt({n})", "w")); slot1 = True
                if fx is not None and fx.ins.k == "B": fx = None
            if fx is not None and fx.ins.k == "B":
                self.put(fx); self.fill(1)
            else:
                if not slot1 and self.scal and self.ready(self.scal[0]):
                    if not (fx is not None and fx.ins.k == "X" and ("m", 0) in self.scal[0].ins.wr): self.put(self.scal[0])
                room = 1 if "smfmac" in ins.t else 2
                if fx is not None and room == 1 and fx.ins.k != "D": fx = None
                if fx is not None:
                    self.put(fx); room = {"D": room - 1, "X": 1, "S": CFG["sroom"], "W": 0}[fx.ins.k]
                if self.flex and fx is None and room == 2 and self.backlog() == 0 and not self.pick("E", 1) and not afterw:
                    f = next((o for o in self.flex if self.ready(o)), None)
                    if f is not None: self.put(f); room -= 1
                if room: self.fill(room)
            self.gap += 1
    def flush(self):
        for q in (self.fixed, self.flex, self.scal, self.valu):
            for op in list(q):
                if op.key not in self.forbid and op.key not in self.done: self.force(op.key)

def ds128(k, r, ad, o, tag=None):
    return I(f"ds_read_b128 {rs(k, r, 4)}, v{ad}{off(o)}", "D", rd=[("v", ad)], wr=R(k, r, 4), tag=tag)
def dstr(r, ad, o, tag=None):
    return I(f"ds_read_b64_tr_b16 {rs('a', r, 2)}, v{ad}{off(o)}", "D", rd=[("v", ad)], wr=R("a", r, 2), tag=tag)
def koff(kt, ds): return kt * 8192 + (ds >> 1) * 1024
def voff(dj, kt): return kt * 8192 + 2048 + (dj >> 2) * 1024 + 8 * (dj & 1)
def k_read(p, kt, ds): return ds128("a", aK + kt * 16 + ds * 4, vK + (ds & 1), ((p - 1) & 1) * 16384 + koff(kt, ds), ("ring", p - 1))
def v_read(p, dj, kt): return dstr(aV + (dj & 3) * 4 + 2 * kt, vV + ((dj >> 1) & 1), (p & 1) * 16384 + voff(dj, kt), ("ring", p))
def q_read(t, ds, slot=None): return ds128("a", Qreg(t, ds), vSt + (ds & 1), (t if slot is None else slot) * 4096 + (ds >> 1) * 1024)
def so_(x): return "0" if x is None else f"s{x}"
def dma(vo, srd, so, o, flags, tag):
    return I(f"buffer_load_dwordx4 v{vo}, s[{srd}:{srd+3}], {so_(so)} offen{off(o)}{fl(flags)} lds", "X", rd=[("v", vo), ("m", 0)], tag=tag)
def o_store(r, srd, so, o, flags):
    return I(f"buffer_store_dwordx4 {rs('v', r, 4)}, v{vQO}, s[{srd}:{srd+3}], {so_(so)} offen{off(o)}{fl(flags)}", "S", rd=R("v", r, 4) + [("v", vQO)])
def o_write(slot, J, b):
    ad = vSt + (J & 1)
    return I(f"ds_write_b128 v{ad}, {rs('v', b, 4)}{off(slot*4096 + (J >> 1)*1024)}", "W", rd=R("v", b, 4) + [("v", ad)])
def bump(srd, by): return [f"s_add_u32 s{srd}, s{srd}, {by}", f"s_addc_u32 s{srd+1}, s{srd+1}, 0"]
DEFER = [(0, J) for J in range(4)] + [(t, J) for J in range(4) for t in range(1, 5)]

def sums(NT, p):
    def one(u, b, deps):
        d = aL + 4 * u
        return (("sum", p, u), I(f"v_smfmac_f32_16x16x64_bf16 {rs('a', d, 4)}, {rs('a', aOne, 4)}, {rs('v', b, 8)}, v{vIdx}", "M",
                                 rd=R("a", aOne, 4) + R("v", b, 8) + [("v", vIdx)], wr=R("a", d, 4), c=R("a", d, 4)), deps)
    L = [one(u, Preg(p, 2 * u), pdeps(p, 2 * u) + pdeps(p, 2 * u + 1)) for u in range(3)]
    if NT == 7 and p & 1: L.insert(1, one(3, Preg(0, 6), pdeps(p, 6)))
    return L
def pv_only(NT, p):
    return [(("pv", p, dj, t), mfma(Oreg(t, dj), ("a", aV + (dj & 3) * 4), ("v", Preg(p, t)), c0=(p == 0)),
             pdeps(p, t) + [("vr", p, dj, 0), ("vr", p, dj, 1)] + ([("ow", t, dj >> 1)] if p == 0 and (t, dj >> 1) in DEFER else []))
            for dj in range(8) for t in range(NT)]
def pv_list(NT, p):
    pv = pv_only(NT, p); sm = sums(NT, p); L = []
    at = {4: (0, 1, 4, 6), 3: (0, 3, 6)}[len(sm)]
    for dj in range(8):
        L += pv[dj * NT:(dj + 1) * NT]
        if dj in at: L.append(sm[at.index(dj)])
    return L

def phase_mf(NT, p):
    pv = pv_list(NT, p - 1) if p > 0 else []
    L = []; n = 0
    for c in range(2 * NT):
        kt, t = divmod(c, NT)
        for ds in range(4):
            deps = [("kr", p, kt, ds)]
            if p == 0 and c == 6 and NT == 7: deps.append(("q6r", ds))
            g = p * 2 * NT + c - 4
            if ds == 0 and g >= 0:
                pp, cc = divmod(g, 2 * NT)
                deps += [("cvt", pp, cc // NT, cc % NT, h) for h in (0, 1)]
            L.append((("qk", p, kt, t, ds), mfma(("v", sbuf(NT, p, kt, t)), ("a", aK + kt * 16 + ds * 4), ("a", Qreg(t, ds)), c0=(ds == 0)), deps))
        upto = (len(pv) * (c + 1)) // (2 * NT)
        L += pv[n:upto]; n = upto
    return L

def add_softmax(S, p, chains=None):
    for kt, t, sb in chains or [(kt, t, sbuf(S.NT, p, kt, t)) for kt in (0, 1) for t in range(S.NT)]:
        rel = ("qk", p, kt, t, 3)
        mul = lambda r: Op(("mul", p, kt, t, r), V(f"v_mul_f32 v{sb+r}, s{sC}, v{sb+r}", [sb + r], [sb + r]), [rel], rel=rel)
        ex = lambda r: Op(("exp", p, kt, t, r), V(f"v_exp_f32 v{sb+r}, v{sb+r}", [sb + r], [sb + r], "E"), [("mul", p, kt, t, r)], rel=rel)
        def cv(h):
            d = Preg(p, t) + 2 * kt + h
            war = [("sum", p - 1, 3)] if (t == 6 and p >= 2 and not p & 1) else []
            return Op(("cvt", p, kt, t, h), V(f"v_cvt_pk_bf16_f32 v{d}, v{sb+2*h}, v{sb+2*h+1}", [sb + 2 * h, sb + 2 * h + 1], [d]),
                      [("exp", p, kt, t, 2 * h), ("exp", p, kt, t, 2 * h + 1)] + war, rel=rel)
        for o in (mul(0), mul(1), ex(0), ex(1), mul(2), mul(3), ex(2), ex(3), cv(0), cv(1)): S.add(S.valu, o)

VPOS = {2: (10, 13), 3: (30, 33), 4: (42, 45), 5: (56, 59), 6: (70, 73), 7: (83, 86)}

def add_phase_ops(S, p, mf):
    NT = S.NT; g0 = S.gap; n = len(mf); with_pv = p > 0; ev = not p & 1; hasqo = ev != (p < 2)
    T = lambda x: g0 + int(x * n / 119.0)
    add_softmax(S, p)
    fx = []; scal = []
    new = lambda lst, key, ins, deps=(), x=0: lst.append(Op(key, ins, deps, T(x)))
    known = lambda k: [k] if (k in S.bykey or k in S.done) else []
    for ds in range(4): new(fx, ("kr", p, 1, ds), k_read(p, 1, ds), [], (36, 39, 48, 51)[ds] - (0 if p else 24))
    if with_pv:
        for dj in range(2, 8):
            for kt in (0, 1):
                war = [("pv", p - 1, dj - 4, NT - 1)] if dj >= 4 else []
                xo = known(("xv", p - 1, 1)) if dj == 2 else []
                new(fx, ("vr", p - 1, dj, kt), v_read(p - 1, dj, kt), war + xo, VPOS[dj][kt])
    rd_before = [("kr", p, 1, ds) for ds in range(4)] + ([("vr", p - 1, 7, kt) for kt in (0, 1)] if with_pv else [])
    cl, sp, sp2 = CFG["cl"] + (CFG["sh6"] if NT == 6 else 0), CFG["sp"], CFG["sp2"]
    def chain(name, texts, deps, x):
        for i, t in enumerate(texts):
            new(scal, (name[0], p) + tuple(name[1:]) + (i,), sc(t), deps, x)
            deps = [(name[0], p) + tuple(name[1:]) + (i,)]
        return deps
    def kv(x, prev):
        for k, srd in enumerate((sKx, sKx, sVx, sVx)):
            new(scal, ("m0", p, k), sc(f"s_add_u32 m0, s{sM}, {k*1024 - (k & 1)*128}", wr=M0), prev, max(0, x - 3))
            new(fx, ("dma", p, k), dma(vDKV, srd, None, (k & 1) * 128, CFG["kv"], ("grp", p + 2)), [("m0", p, k)], x)
            prev = [("dma", p, k)]; x += sp
        return x, prev
    def qo(x, prev):
        for j in ((0, 1, 2) if hasqo else ()):
            new(fx, ("or", p, j), ds128("v", vTmp, vLin, j * 1024), known(("ul", p - 2)) + known(("ul", p - 1)) + known(("ow", 0, 3)) + ([("os", p, j - 1)] if j else []), max(0, x - 9))
            new(scal, ("qm", p, j), sc(f"s_mov_b32 m0, s{sStg}", wr=M0), prev, x - 1)
            new(fx, ("os", p, j), o_store(vTmp, sOx, None, 0, CFG["o"]), [("or", p, j)] + prev, x)
            po = chain(("uo", j), bump(sOx, f"s{sD}") + [f"s_add_u32 s{sStg}, s{sStg}, 1024"], [("os", p, j), ("qm", p, j)], x)
            new(fx, ("qd", p, j), dma(vQO, sQx, None, 0, CFG["q"], ("q", p, j)), [("os", p, j), ("qm", p, j)], x + sp2)
            prev = chain(("uq", j), bump(sQx, f"s{sD}") + [f"s_xor_b32 s{sD}, s{sD}, 0x700"], [("qd", p, j)] + po, x + sp2)
            x += 2 * sp2
        return x, prev
    if p:
        x, prev = kv(cl, []); x, prev = qo(x, prev)
    else:
        x, prev = 60, []
        new(scal, ("w6",), I("s_waitcnt vmcnt(?)", "w", tag=("needq6",)), [], 33)
        if NT == 7:
            for ds in range(4): new(fx, ("q6r", ds), ds128("a", Qreg(6, ds), vQ6 + (ds & 1), (ds >> 1) * 1024), [("w6",)], 35 + 2 * ds)
        x, prev = kv(x, prev + ([("qk", 0, 0, 6, 3)] if NT == 7 else [("w6",)]))
    prev = chain(("uk",), [f"s_add_u32 s{sM}, s{sM}, 16384", f"s_and_b32 s{sM}, s{sM}, 0xffff"] + bump(sKx, 8192) + bump(sVx, 8192) +
                 [f"s_add_u32 s{sCnt}, s{sCnt}, 1", f"s_mov_b32 s{sVx+2}, s{sKx+2}", f"s_cmp_lt_u32 s{sCnt}, 64", f"s_cselect_b32 s{sKx+2}, 8192, 0"],
                 prev, 96 if p == 0 else x - sp2 + 1)
    new(scal, ("wb", p), I("s_waitcnt vmcnt(?) lgkmcnt(0)", "w", tag=("needgrp", p)), rd_before + [("dma", p, 3)], 94)
    new(fx, ("bar", p), I("s_barrier", "B", tag=("bar", p)), [("wb", p)], 95)
    if hasqo: S.add(S.valu, Op(("ul", p), V(f"v_add_u32 v{vLin}, 3072, v{vLin}", [vLin], [vLin]), [("or", p, 2)]))
    if ev:
        xor = lambda r: V(f"v_xor_b32 v{r}, 0x8000, v{r}", [r], [r])
        for b in (0, 1):
            S.add(S.valu, Op(("xk", p, b), xor(vK + b), [("kr", p, 1, b), ("kr", p, 1, b + 2)]))
            S.add(S.valu, Op(("xv", p, b), xor(vV + b), [("vr", p - 1, 4 + 2 * b + h, kt) for h in (0, 1) for kt in (0, 1)] if with_pv else []))
    for ds in range(4):
        new(fx, ("kr", p + 1, 0, ds), k_read(p + 1, 0, ds), [("bar", p), ("qk", p, 0, NT - 1, ds)] + ([("xk", p, ds & 1)] if ev else []), 97 + 3 * ds)
    for dj in (0, 1):
        for kt in (0, 1):
            war = [("pv", p - 1, dj + 4, NT - 1)] if with_pv else []
            new(fx, ("vr", p, dj, kt), v_read(p, dj, kt), [("bar", p)] + war + ([("xv", p, 0)] if ev else []), (108, 110, 113, 116)[dj * 2 + kt])
    if p < 2:
        pos = (2, 7, 19, 30, 45, 50, 55, 63, 70, 77, 84, 89) if p == 0 else (5, 19, 26, 53, 62, 66, 76, 79)
        for i, (x_, (t, J)) in enumerate(zip(pos, DEFER[12 * p:])):
            new(fx, ("ow", t, J), o_write(t, J, Oreg(t, 2 * J)[1]), [("ow",) + DEFER[12 * p + i - 1]] if i else [], x_)
    if CFG["stamp"] == 2:
        new(scal, ("b0", p), sc("s_memrealtime s[98:99]"), [], 80)
        S.add(S.valu, Op(("ul2", p), V(f"v_accvgpr_write_b32 a{aL+16}, s98", [], [("a", aL + 16)]), [("b0", p), ("bar", p)]))
        new(fx, ("b2", p), I(f"buffer_store_dword a{aL+16}, off, s[{sDbg}:{sDbg+3}], s91 offset:512", "S", rd=[("a", aL + 16)]), [("ul2", p)], 104)
        new(scal, ("b3", p), sc("s_add_u32 s91, s91, 4"), [("b2", p)], 105)
    if p >= 3 and not ev: new(scal, ("lp", p), sc(f"s_sub_u32 s{sLoop}, s{sLoop}, 1"), [("wb", p)] + prev, 112)
    fx.sort(key=lambda o: o.target); scal.sort(key=lambda o: o.target)
    for o in fx: S.add(S.fixed, o)
    for o in scal: S.add(S.scal, o)
    misc = [o for o in S.valu if o.key[0] in ("xk", "xv", "ul", "ul2")]
    S.valu = misc + [o for o in S.valu if o not in misc]

def shift(key, p): return (key[0], key[1] + p) + tuple(key[2:])

def run_phases(S, phases, carry):
    starts = {}
    for p in phases:
        starts[p] = len(S.out)
        mf = phase_mf(S.NT, p)
        S.forbid = set()
        add_phase_ops(S, p, mf)
        cut = carry is not None and (p & 1)
        if cut: S.forbid = {shift(k, p) for k in carry}
        S.run(mf, phase_mf(S.NT, p + 1)[:4], cut)
    return starts

def find_carry(NT):
    S = Sched(NT)
    for ds in range(4): S.done.add(("kr", 0, 0, ds))
    run_phases(S, range(0, 8), None)
    return [shift(k, -7) for k in S.left]

def params_next():
    return [sc(x) for x in (
        f"s_add_u32 s{sT2}, s{sJob}, 1",
        f"s_xor_b32 s{sT3}, s{sT2}, s{sRole}",
        f"s_and_b32 s{sT3}, s{sT3}, 1",
        f"s_cselect_b32 s{sNxt}, s{sOffB}, s{sOffA}",
        f"s_cselect_b32 s{sN7n}, s{sN7B}, s{sN7A}",
        f"s_mul_i32 s{sT2}, s{sT2}, {QH}",
        f"s_add_u32 s{sNxt}, s{sNxt}, s{sT2}")]

def advance():
    return [sc(x) for x in (f"s_lshl_b32 s{sBit}, 1, s{sJob}", f"s_add_u32 s{sJob}, s{sJob}, 1", f"s_mov_b32 s{sOp}, s{sCurO}",
                            f"s_mov_b32 s{sCurO}, s{sNxt}", f"s_mov_b32 s{sN7c}, s{sN7n}")] + params_next() + \
           [sc(x) for x in (f"s_add_u32 s{sQx}, s{sQ}, s{sNxt}", f"s_addc_u32 s{sQx+1}, s{sQ+1}, 0", f"s_cmp_lt_u32 s{sJob}, 3", f"s_cselect_b32 s{sQx+2}, 4096, 0", f"s_cselect_b32 s{sLoop}, 6, {5 if CFG['endsplit'] else 6}",
                            f"s_add_u32 s{sOx}, s{sO}, s{sOp}", f"s_addc_u32 s{sOx+1}, s{sO+1}, 0", f"s_cmp_gt_u32 s{sJob}, 0",
                            f"s_cselect_b32 s{sOx+2}, {0 if CFG['nostore'] else 4096}, 0", f"s_mov_b32 s{sD}, 128", f"s_mov_b32 s{sStg}, s{sStgB}")]

def build_tail(S):
    NT = S.NT; p = 15; g0 = S.gap; S.forbid = set(); S.th = CFG["tth"]
    pv = pv_only(NT, p); sm = sorted(sums(NT, p), key=lambda m: m[0][2])
    mf = sm[:2] + pv[:NT] + sm[2:] + pv[NT:]
    for dj in range(2, 8):
        for kt in (0, 1):
            war = [("pv", p, dj - 4, NT - 1)] if dj >= 4 else []
            S.add(S.fixed, Op(("vr", p, dj, kt), v_read(p, dj, kt), war, g0 + max(0, NT * dj + len(sm) - 11 + kt)))
    nsc = [0]
    def scal(x, deps=()):
        i = nsc[0]; nsc[0] += 1
        S.add(S.scal, Op(("ts", i), x, ([("ts", i - 1)] if i else []) + list(deps), g0)); return ("ts", i)
    scal(sc(f"s_mul_i32 s{sQx+2}, s{sQx+2}, s{sN7n}"))
    prev = []
    for a in (0, 1):
        m = scal(sc(f"s_add_u32 m0, s{sWoff}, {32768 + a*896}", wr=M0), prev)
        if a == 0: wq = scal(I("s_waitcnt vmcnt(?)", "w", tag=("needq", 12, 1)))
        for nn in (0, 1):
            S.add(S.fixed, Op(("q6", a, nn), dma(vQO, sQx, None, nn * 2048 + a * 128, CFG["q"], ("q6",)), [m, wq], g0 + CFG["x6"] + 4 * (2 * a + nn)))
        prev = [("q6", a, 0), ("q6", a, 1)]
    for x in advance(): scal(x, prev); prev = []
    S.fixed.sort(key=lambda o: o.target)
    for t in range(5):
        for ds in range(4): S.add(S.flex, Op(("qr", t, ds), q_read(t, ds), [wq]))
    vL = vP + 14; vR = vP; vmx, vmn = vP + 22, vP + 23
    add = lambda key, ins, deps: S.add(S.valu, Op(key, ins, deps))
    for t in range(NT):
        src = [aL + 2 * t, aL + 2 * t + 1] + ([aL + 14, aL + 15] if t == 6 else [])
        dst = [vL + t, vR + 2 * t, vR + 2 * t + 1, vL + 7]
        for a, d in zip(src, dst):
            add(("la", a), V(f"v_accvgpr_read_b32 v{d}, a{a}", [("a", a)], [d]), [("sum", p, t >> 1)])
        if t == 6:
            add(("l6", 0), V(f"v_add_f32 v{dst[0]}, v{dst[0]}, v{dst[3]}", [dst[0], dst[3]], [dst[0]]), [("la", a) for a in src])
            add(("l6", 1), V(f"v_add_f32 v{dst[1]}, v{dst[1]}, v{dst[2]}", [dst[1], dst[2]], [dst[1]]), [("l6", 0)])
        add(("lr", t), V(f"v_add_f32 v{dst[0]}, v{dst[0]}, v{dst[1]}", dst[:2], [dst[0]]), [("la", a) for a in src] + ([("l6", 1)] if t == 6 else []))
        add(("rc", t), V(f"v_rcp_f32 v{vR+2*t}, v{vL+t}", [vL + t], [vR + 2 * t], "E"), [("lr", t)])
        for a in src: add(("lz", a), V(f"v_accvgpr_write_b32 a{a}, 0", [], [("a", a)]), [("la", a)])
    s_ = [vL + t for t in range(NT)]
    add(("tot", 1), V(f"v_add_f32 v{vmx}, v{s_[0]}, v{s_[1]}", s_[:2], [vmx]), [("lr", 0), ("lr", 1)])
    for t in range(2, NT): add(("tot", t), V(f"v_add_f32 v{vmx}, v{vmx}, v{s_[t]}", [vmx, s_[t]], [vmx]), [("tot", t - 1), ("lr", t)])
    add(("min", 0), V(f"v_min3_f32 v{vmn}, v{s_[0]}, v{s_[1]}, v{s_[2]}", s_[:3], [vmn]), [("lr", t) for t in range(NT)])
    add(("min", 1), V(f"v_min3_f32 v{vmn}, v{vmn}, v{s_[3]}, v{s_[4]}", [vmn, s_[3], s_[4]], [vmn]), [("min", 0)])
    add(("min", 2), V(f"v_min3_f32 v{vmn}, v{vmn}, v{s_[5]}, v{s_[-1]}", [vmn, s_[5], s_[-1]], [vmn]), [("min", 1)])
    add(("vl",), V(f"v_add_u32 v{vLin}, {(-24576) & 0xffffffff:#x}, v{vLin}", [vLin], [vLin]), [])
    add(("c1",), V(f"v_cmp_ngt_f32 vcc, s{sHi}, v{vmx}", [vmx], [("s", "vcc")]), [("tot", NT - 1)])
    add(("c2",), V(f"v_cmp_gt_f32_e64 s[{sPair}:{sPair+1}], s{sLo}, v{vmn}", [vmn], R("s", sPair, 2)), [("min", 2)])
    for x in (f"s_or_b64 vcc, vcc, s[{sPair}:{sPair+1}]", f"s_cselect_b32 s{sT2}, s{sBit}, 0", f"s_or_b32 s{sFlag}, s{sFlag}, s{sT2}", f"s_cmp_eq_u32 s{sJob}, 4"):
        scal(sc(x), [("c1",), ("c2",)])
    softdone = [("cvt", p, 1, t, h) for t in range(NT - 4, NT) for h in (0, 1)]
    early = {(NT - 1, J): vb for J, vb in enumerate((vTmp, vS, vS + 8))}
    for (t, J), vb in early.items():
        b = Oreg(t, 2 * J)[1]
        for i in range(8):
            add(("ar", t, J, i), V(f"v_accvgpr_read_b32 v{vb+i}, a{b+i}", [("a", b + i)], [vb + i]), softdone + [("pv", p, 2 * J + (i >> 2), t)])
    for J in range(3):
        for t in (1, 2, 3, 4, 0):
            b = Oreg(t, 2 * J)[1]
            for i in range(8):
                add(("om", t, J, i), V(f"v_mul_f32 v{b+i}, v{vR+2*t}, v{b+i}", [b + i, vR + 2 * t], [b + i]),
                    [("rc", t), ("pv", p, 2 * J + (i >> 2), t)] + ([("om", t, J, i - 1)] if i else []))
    S.run(mf)
    S.valu = [o for o in S.valu if not (o.key[0] == "om" and not (o.key[3] & 1 and ("om",) + o.key[1:3] + (o.key[3] - 1,) in S.done))]
    S.flush()
    if not CFG["endsplit"]: S.emit(sc(f"s_cbranch_scc1 L_last{NT}"))
    vC = vP + 24
    def epilogue(last):
        E = []
        mark = lambda i: E.append(sc("s_memtime s[86:87]")) if CFG["tmark"] == i else None
        mark(0)
        def piece(t, J):
            k, b = Oreg(t, 2 * J)
            if k == "a":
                if (t, J) in early: b = early[(t, J)]
                else:
                    for i in range(8): E.append(V(f"v_accvgpr_read_b32 v{vC+8*J+i}, a{b+i}", [("a", b + i)], [vC + 8 * J + i]))
                    b = vC + 8 * J
            r = vR + 2 * t
            for i in range(4):
                if ("om", t, J, 2 * i) not in S.done:
                    E.append(V(f"v_pk_mul_f32 {rs('v', b+2*i, 2)}, {rs('v', b+2*i, 2)}, {rs('v', r, 2)} op_sel_hi:[1,0]",
                               [b + 2 * i, b + 2 * i + 1, r], [b + 2 * i, b + 2 * i + 1]))
            for i in range(4):
                E.append(V(f"v_cvt_pk_bf16_f32 v{b+i}, v{b+2*i}, v{b+2*i+1}", [b + 2 * i, b + 2 * i + 1], [b + i]))
            if last or (t, J) not in DEFER: E.append(o_write(t % 6, J, b))
            return b
        plain = [] if last else [(t, J) for t in range(5) for J in range(4)]
        def some(k):
            for _ in range(k):
                if plain: piece(*plain.pop(0))
        pend = []
        def drain(n):
            if not pend: return
            t, a, regs = pend.pop()
            E.append(I(f"s_waitcnt lgkmcnt({n})", "w")); E.append(sc(f"s_add_u32 s{sT3}, s{sOp}, {t*4096}"))
            for nn, r in enumerate(regs): E.append(o_store(r, sO, sT3, nn * 2048 + a * 128, CFG["ol" if last else "o"]))
        def through(tiles):
            for t in tiles:
                for a in (0, 1):
                    r0 = piece(t, 2 * a) + 4; some(1)
                    r1 = piece(t, 2 * a + 1) + 4; some(1)
                    for nn, r in enumerate((r0, r1)): E.append(ds128("v", r, vLin, (t % 6) * 4096 + nn * 2048 + a * 1024))
                    drain(4); pend.append((t, a, (r0, r1)))
        w5 = I("s_waitcnt vmcnt(?)", "w", tag=("needq", 14, 2))
        if last:
            through([0, 1] + ([6] if NT == 7 else []) + [2, 3, 4]); E.append(w5); through([5]); drain(0)
        else:
            E.append(w5)
            for ds in range(4): E.append(q_read(5, ds))
            if NT == 7: through([6])
            else:
                E.append(sc(f"s_mov_b32 s{sT3}, {OOB:#x}"))
                for i in range(4): E.append(o_store(vC, sO, sT3, 0, ""))
            some(3); drain(0)
            for J in range(4): piece(5, J); some(3)
            some(20)
            E.append(I("s_waitcnt lgkmcnt(4)", "w"))
        return [I(".p2align 3", "#")] + align8(fix_hazards(E, S.out[-10:]), False)
    return epilogue(False), epilogue(True)

def build_last(NT, carry):
    S = Sched(NT)
    for ds in range(4): S.done.add(("kr", 0, 0, ds))
    run_phases(S, range(14), carry)
    start = len(S.out)
    while S.out[start - 1].k != "M": start -= 1
    S.th = CFG["lth"]
    G = [list(range(CFG["endsplit"])), list(range(CFG["endsplit"], NT))]
    fix = lambda key, ins, deps, g=0: S.add(S.fixed, Op(key, ins, deps, g))
    add = lambda key, ins, deps: S.add(S.valu, Op(key, ins, deps))
    nsc = [0]
    def scal(x, deps=(), g=0):
        i = nsc[0]; nsc[0] += 1
        S.add(S.scal, Op(("ts", i), x, ([("ts", i - 1)] if i else []) + list(deps), g)); return ("ts", i)
    lastbuf = {sbuf(NT, 13, 1, t): [("cvt", 13, 1, t, h) for h in (0, 1)] for t in range(NT - 4, NT)}
    nch = [0]; klast = {}; vseq = []
    def qk(p, g):
        L = []
        for kt in (0, 1):
            for ds in range(4):
                key = ("kr", p, kt, ds) if g == 0 else ("kr2", p, kt, ds)
                if key not in S.done and key not in S.bykey:
                    fix(key, ds128("a", aK + kt * 16 + ds * 4, vK + (ds & 1), ((p - 1) & 3) * 16384 + koff(kt, ds)),
                        klast.get((kt, ds), []) + ([("bar", 14)] if p == 15 else []))
                klast[(kt, ds)] = [("qk", p, kt, G[g][-1], ds)]
            for t in G[g]:
                sb = vS + 4 * (nch[0] & 3); nch[0] += 1
                add_softmax(S, p, [(kt, t, sb)])
                if p == 15:
                    for h in (0, 1): S.bykey[("cvt", p, kt, t, h)].deps += [("pv", 13, 7, t), ("sum", 13, t >> 1)]
                dep = lastbuf[sb]; lastbuf[sb] = [("cvt", p, kt, t, h) for h in (0, 1)]
                L.append([(("qk", p, kt, t, ds), mfma(("v", sb), ("a", aK + kt * 16 + ds * 4), ("a", Qreg(t, ds)), c0=(ds == 0)),
                           [("kr" if g == 0 else "kr2", p, kt, ds)] + (dep if ds == 0 else [])) for ds in range(4)])
        return L
    def pv(p, g):
        L = []
        for dj in range(8):
            keys = [("vr" if g == 0 else "vr2", p, dj, kt) for kt in (0, 1)]
            for kt, key in enumerate(keys):
                if key not in S.done and key not in S.bykey:
                    fix(key, dstr(aV + (dj & 3) * 4 + 2 * kt, vV + ((dj >> 1) & 1), (p & 3) * 16384 + voff(dj, kt)),
                        (vseq[-4] if len(vseq) >= 4 else []) + ([("bar", p)] if p > 13 else []))
            vseq.append([("pv", p, dj, G[g][-1])])
            L += [(("pv", p, dj, t), mfma(Oreg(t, dj), ("a", aV + (dj & 3) * 4), ("v", Preg(p, t))), pdeps(p, t) + keys) for t in G[g]]
        sm = [m for m in sums(NT, p) if min(2 * m[0][2], 6) in G[g] and m[0] != ("sum", 13, 3)]
        k = len(G[g])
        return L[:k] + sm + L[k:]
    def merge(ch, pvs):
        L = []; n = 0
        for c, x in enumerate(ch):
            upto = (len(pvs) * (c + 1)) // len(ch)
            L += x + pvs[n:upto]; n = upto
        return L
    g0 = S.gap
    segs = [merge(qk(14, 0), pv(13, 0)), merge(qk(15, 0), pv(14, 0))]
    if NT == 7: segs[1] += [m for m in sums(NT, 13) if m[0][2] == 3]
    segs.append(merge(qk(14, 1), pv(15, 0)))
    prev = []
    for j in range(3):
        fix(("or", j), ds128("v", vTmp, vLin, j * 1024), prev, g0 + 4 + 12 * j)
        fix(("os", j), o_store(vTmp, sOx, None, 0, CFG["o"]), [("or", j)] + prev, g0 + 12 + 12 * j)
        for x in bump(sOx, f"s{sD}") + [f"s_xor_b32 s{sD}, s{sD}, 0x700"]: k = scal(sc(x), [("os", j)])
        prev = [k]
    add(("vl",), V(f"v_add_u32 v{vLin}, {(-21504) & 0xffffffff:#x}, v{vLin}", [vLin], [vLin]), [("or", 2)])
    n0 = len(segs[0])
    for e, g in ((14, g0 + n0 - 24), (15, g0 + 2 * n0 - 24)):
        w = scal(I("s_waitcnt vmcnt(?)", "w", tag=("needgrp", e)), [], g)
        fix(("bar", e), I("s_barrier", "B", tag=("bar", e)), [w], g + 1)
    vR = {t: (Preg(0, 0) + 2 * t if t in G[0] else Preg(1, 0) + 2 * (t - G[1][0])) for t in range(NT)}
    vL = {t: (Preg(0, 2) + t if t in G[0] else Preg(1, 2) + t - G[1][0]) for t in range(NT)}
    vmx, vmn, vx = Preg(0, 3), Preg(0, 3) + 1, Preg(0, 3) + 2
    def rows(g, extra):
        for t in G[g]:
            src = [aL + 2 * t, aL + 2 * t + 1] + ([aL + 14, aL + 15] if t == 6 else [])
            dst = [vL[t], vR[t], vR[t] + 1, vx]
            for a, d in zip(src, dst): add(("la", a), V(f"v_accvgpr_read_b32 v{d}, a{a}", [("a", a)], [d]), [("sum", 15, t >> 1)] + extra)
            if t == 6:
                add(("l6", 0), V(f"v_add_f32 v{dst[0]}, v{dst[0]}, v{dst[3]}", [dst[0], dst[3]], [dst[0]]), [("la", a) for a in src])
                add(("l6", 1), V(f"v_add_f32 v{dst[1]}, v{dst[1]}, v{dst[2]}", [dst[1], dst[2]], [dst[1]]), [("l6", 0)])
            add(("lr", t), V(f"v_add_f32 v{dst[0]}, v{dst[0]}, v{dst[1]}", dst[:2], [dst[0]]), [("la", a) for a in src] + ([("l6", 1)] if t == 6 else []))
            add(("rc", t), V(f"v_rcp_f32 v{vR[t]}, v{vL[t]}", [vL[t]], [vR[t]], "E"), [("lr", t)])
            if t:
                a, b = (vL[0], vL[0]) if t == 1 else (vmx, vmn)
                add(("tot", t), V(f"v_add_f32 v{vmx}, v{a}, v{vL[t]}", [a, vL[t]], [vmx]), [("tot", t - 1) if t > 1 else ("lr", 0), ("lr", t)])
                add(("min", t), V(f"v_min_f32 v{vmn}, v{b}, v{vL[t]}", [b, vL[t]], [vmn]), [("min", t - 1) if t > 1 else ("lr", 0), ("lr", t)])
    rows(0, [("pv", 14, 7, G[0][-1])])
    later = [pv(13, 1), merge(qk(15, 1), pv(14, 1)), pv(15, 1)]
    S.run(sum(segs, []), later[0][:4], keep=True)
    def mark(i):
        if CFG["tmark"] == i: S.emit(sc("s_memtime s[86:87]")); print(f"NT={NT} model at mark {i}: {cycles(S.out[start:])}", file=sys.stderr)
    for o in list(S.valu):
        if o.key[0] in ("rc", "vl"): S.force(o.key)
    mark(11)
    def convert(E, b, r):
        for i in range(4):
            E.append(V(f"v_pk_mul_f32 {rs('v', b+2*i, 2)}, {rs('v', b+2*i, 2)}, {rs('v', r, 2)} op_sel_hi:[1,0]",
                       [b + 2 * i, b + 2 * i + 1, r], [b + 2 * i, b + 2 * i + 1]))
        for i in range(4): E.append(V(f"v_cvt_pk_bf16_f32 v{b+i}, v{b+2*i}, v{b+2*i+1}", [b + 2 * i, b + 2 * i + 1], [b + i]))
    so = lambda t: (sT0, sT1, sT2, sT3, sU0, sU1, sU2)[t]
    back = lambda t, a, nn, r: ds128("v", r, vLin, (t % 6) * 4096 + nn * 2048 + a * 1024)
    out = lambda t, a, nn, r: o_store(r, sO, so(t), nn * 2048 + a * 128, CFG["ol"])
    E = [sc(f"s_add_u32 s{so(t)}, s{sCurO}, {t*4096}") for t in range(NT)]
    O = lambda t, J: Oreg(t, 2 * J)[1]
    rest = [(t, J) for t in G[0][1:] for J in range(4)]
    for J in range(4):
        convert(E, O(0, J), vR[0]); E.append(o_write(0, J, O(0, J)))
        for _ in range(1 + (J & 1)): t, j = rest.pop(0); convert(E, O(t, j), vR[t])
        if J & 1: E += [back(0, J >> 1, nn, O(0, J - 1 + nn) + 4) for nn in (0, 1)]
    for a in (0, 1):
        E.append(I(f"s_waitcnt lgkmcnt({4 - 4*a})", "w")); E += [out(0, a, nn, O(0, 2 * a + nn) + 4) for nn in (0, 1)]
        for _ in range(3):
            if rest: t, j = rest.pop(0); convert(E, O(t, j), vR[t])
    while rest: t, j = rest.pop(0); convert(E, O(t, j), vR[t])
    S.emit(I(".p2align 3", "#"))
    for x in align8(fix_hazards(E, S.out[-10:]), False): S.emit(x)
    mark(12)
    mf = sum(later, []); g0 = S.gap
    halves = [(t, a) for t in G[0][1:] for a in (0, 1)]
    step = (len(mf) - 16) / len(halves); prev = []
    for i, (t, a) in enumerate(halves):
        g = g0 + int(i * step)
        for k in (0, 1): fix(("ow", t, a, k), o_write(t, 2 * a + k, O(t, 2 * a + k)), [], g + 3 * k)
        for k in (0, 1): fix(("ob", t, a, k), back(t, a, k, O(t, 2 * a + k) + 4), [("ow", t, a, 0), ("ow", t, a, 1)], g + 5 + k)
        for k in (0, 1): fix(("oo", t, a, k), out(t, a, k, O(t, 2 * a + k) + 4), [("ob", t, a, k)], g + 12 + 3 * k)
    rows(1, [])
    add(("c1",), V(f"v_cmp_ngt_f32 vcc, s{sHi}, v{vmx}", [vmx], [("s", "vcc")]), [("tot", NT - 1)])
    add(("c2",), V(f"v_cmp_gt_f32_e64 s[{sPair}:{sPair+1}], s{sLo}, v{vmn}", [vmn], R("s", sPair, 2)), [("min", NT - 1)])
    for x in (f"s_or_b64 vcc, vcc, s[{sPair}:{sPair+1}]", f"s_cselect_b32 s{sBit}, 8, 0", f"s_or_b32 s{sFlag}, s{sFlag}, s{sBit}"): scal(sc(x), [("c1",), ("c2",)])
    home = {}
    for t in G[1]:
        for J in range(4):
            k, b = Oreg(t, 2 * J)
            if k == "v": home[(t, J)] = b; continue
            home[(t, J)] = O(t - 5, J)
            free = [("oo", 1, J >> 1, J & 1)] if t == 6 else []
            for i in range(8):
                add(("ar", t, J, i), V(f"v_accvgpr_read_b32 v{O(t-5, J)+i}, a{b+i}", [("a", b + i)], [O(t - 5, J) + i]), free + [("pv", 15, 2 * J + (i >> 2), t)])
    S.run(mf, keep=True)
    lateacc = [o for o in S.valu if o.key[0] == "ar"]
    S.valu = [o for o in S.valu if o.key[0] != "ar"]
    S.flush()
    mark(13)
    E = []; pend = []
    def drain(n):
        if pend:
            t, a = pend.pop()
            E.append(I(f"s_waitcnt lgkmcnt({n})", "w")); E.extend(out(t, a, nn, home[(t, 2 * a + nn)] + 4) for nn in (0, 1))
    for a in (0, 1):
        for t in G[1]:
            for J in (2 * a, 2 * a + 1):
                E += [o.ins for o in lateacc if o.key[1:3] == (t, J)]
                convert(E, home[(t, J)], vR[t]); E.append(o_write(t % 6, J, home[(t, J)]))
            E += [back(t, a, nn, home[(t, 2 * a + nn)] + 4) for nn in (0, 1)]
            drain(4); pend.append((t, a))
    drain(0)
    S.emit(I(".p2align 3", "#"))
    for x in align8(fix_hazards(E, S.out[-10:]), False): S.emit(x)
    pf = []
    if CFG["lpf"]:
        t = vTmp + 4
        pf = [V(f"v_lshlrev_b32 v{t}, 7, v0", [0], [t]), V(f"v_add_u32 v{t}, L_last7-L_pf, v{t}", [t], [t]), V(f"v_min_u32 v{t}, L_final-L_pf, v{t}", [t], [t]),
              I(f"global_load_dword a{aL+17}, v{t}, s[100:101]", "L", rd=[("v", t)])]
    return pf + S.out[start:]

class Job: pass
def build_job(NT):
    carry = find_carry(NT)
    S = Sched(NT)
    for ds in range(4): S.done.add(("kr", 0, 0, ds))
    st = run_phases(S, range(16), carry)
    st[16] = len(S.out)
    epi, lastepi = build_tail(S)
    for p in range(2, 18, 2):
        while S.out[st[p] - 1].k != "M": st[p] -= 1
    seg = lambda a, b: S.out[a:b]
    bodies = [seg(st[p], st[p + 2]) for p in range(2, 16, 2)]
    for b in bodies[1:]:
        assert [x.t for x in b] == [x.t for x in bodies[0]], "loop body not periodic"
    J = Job(); J.NT = NT; J.carry = carry
    J.head = seg(0, st[2]); J.body = bodies[0]; J.tail0 = seg(st[16], len(S.out)); J.tail = J.tail0 + epi; J.last = lastepi
    J.body.append(sc(f"s_cbranch_scc0 L_body{NT}"))
    if CFG["endsplit"]:
        J.last = build_last(NT, carry)
        J.tail = [sc(f"s_cmp_eq_u32 s{sJob}, 3"), sc(f"s_cbranch_scc1 L_last{NT}")] + J.tail
        J.tail0 = J.tail[:2]
    return J

def kv_batch(srd, blk, ldsbase, tag):
    L = []
    for a in (0, 1):
        L += [sc(f"s_add_u32 m0, s{sWoff}, {ldsbase + a*896}", wr=M0), sc(f"s_mov_b32 s{sT0}, {blk*8192}"), dma(vDKV, srd, sT0, a * 128, CFG["kv"], tag)]
    return L
def grp_batch(e): return kv_batch(sK, e + 1, (e & 3) * 16384, ("grp", e)) + kv_batch(sV, e, (e & 3) * 16384 + 2048, ("grp", e))
def q_batch(slot, base, o, tag):
    L = []
    for a in (0, 1):
        L += [sc(f"s_add_u32 m0, s{sStgB}, {slot*4096 + a*896}", wr=M0), sc(f"s_add_u32 s{sT1}, s{base}, {o}")]
        L += [dma(vQO, sQ, sT1, nn * 2048 + a * 128, CFG["q"], tag) for nn in (0, 1)]
    return L

def build_first(NT, carry):
    S = Sched(NT); S.th = CFG["fth"]
    forbid = {shift(k, 1) for k in carry}
    assert all(k[2:4] in ((1, NT - 1), (1, NT - 2)) for k in forbid if k[0] in ("mul", "exp", "cvt"))
    Kh = lambda p, kt, ds: aO + p * 32 + kt * 16 + ds * 4
    Vh = lambda dj: aV + dj * 4 if dj < 4 else aK + dj * 4
    em = lambda L: [S.emit(x) for x in L]
    em([I("s_waitcnt vmcnt(?)", "w", tag=("needgrp", 0)), I("s_barrier", "B")])
    em([ds128("a", Kh(p, kt, ds), vK + (ds & 1), (0 if p else 49152) + koff(kt, ds)) for p in (0, 1) for kt in (0, 1) for ds in range(4)])
    em([dstr(Vh(dj) + 2 * kt, vV + ((dj >> 1) & 1), voff(dj, kt)) for dj in range(8) for kt in (0, 1)])
    em([I("s_waitcnt lgkmcnt(0)", "w"), I("s_barrier", "B", tag=("bar", 0))])
    assert CFG["look"] <= 4
    batches = [q_batch(t, sCurO, t * 4096, ("q0", t)) for t in range(CFG["look"], 6)]
    batches += [[sc(f"s_cmp_eq_u32 s{sN7c}, 1"), sc(f"s_cselect_b32 s{sU0}, s{sCurO}, {OOB:#x}")] + q_batch(1, sU0, 24576, ("q0", 6)), grp_batch(1), grp_batch(2)]
    if CFG["g3"]: batches.append(grp_batch(3))
    lastbuf = {}
    def chain(p, kt, t, sb):
        add_softmax(S, p, [(kt, t, sb)])
        dep = lastbuf.get(sb, []); lastbuf[sb] = [("cvt", p, kt, t, h) for h in (0, 1)]
        return [(("qk", p, kt, t, ds), mfma(("v", sb), ("a", Kh(p, kt, ds)), ("a", Qreg(t, ds)), c0=(ds == 0)), dep if ds == 0 else []) for ds in range(4)]
    pv = lambda dj, t: (("pv", 0, dj, t), mfma(Oreg(t, dj), ("a", Vh(dj)), ("v", Preg(0, t)), c0=True), pdeps(0, t))
    sm = sums(NT, 0)
    for t in range(NT):
        if t == 4: split = len(S.out)
        end = t == NT - 1
        S.emit(I("s_waitcnt vmcnt(?)", "w", tag=("needq0", t)))
        em([q_read(t, ds, 1 if t == 6 else t) for ds in range(4)])
        while batches:
            em(batches.pop(0))
            if not end: break
        mf = []
        for i, (p, kt) in enumerate(((0, 0), (0, 1), (1, 0), (1, 1))):
            mf += chain(p, kt, t, vS + 4 * i if t < NT - 2 else (sbuf(NT, 1, 1, t) if i == 3 else vS + 4 * (i & 1)))
        S.forbid = forbid
        mine = [sm[t >> 1]] if t & 1 else []
        if not end:
            if t < 5: mf += [pv(dj, t) for dj in range(8)]
            S.run(mf + mine, keep=True); S.flush()
            continue
        g0 = S.gap; n1 = len(mf)
        mf += mine + [pv(dj, x) for dj in range(8) for x in range(5, NT)]
        S.add(S.scal, Op(("wb", 1), I("s_waitcnt vmcnt(?)", "w", tag=("needgrp", 1)), [], g0 + n1 - 4))
        S.add(S.fixed, Op(("bar", 1), I("s_barrier", "B", tag=("bar", 1)), [("wb", 1)], g0 + n1 - 3))
        prev = [("bar", 1)]
        for ds in range(4):
            S.add(S.fixed, Op(("kr", 2, 0, ds), k_read(2, 0, ds), prev, g0 + n1 - 2 + ds)); prev = [("kr", 2, 0, ds)]
        for dj in (0, 1):
            for kt in (0, 1):
                S.add(S.fixed, Op(("vr", 1, dj, kt), v_read(1, dj, kt), prev + [("pv", 0, dj, NT - 1)], g0)); prev = [("vr", 1, dj, kt)]
        S.run(mf, cut=True)
        while S.out[-1].k != "M": S.out.pop()
        T = [] if CFG["g3"] else grp_batch(3)
        for j in range(3):
            T += [sc(f"s_mov_b32 m0, s{sStg}", wr=M0), sc(f"s_add_u32 s{sStg}, s{sStg}, 1024"), dma(vQO, sQx, None, 0, CFG["q"], ("q", 0, j))]
            T += [sc(x) for x in bump(sQx, f"s{sD}") + [f"s_xor_b32 s{sD}, s{sD}, 0x700"]]
        groups = [T[i:i + 3] for i in range(0, len(T), 3)]
        ms = [i for i, x in enumerate(S.out) if x.k == "M"][-len(groups) - 1:-1]
        for i, g in reversed(list(zip(ms, groups))): S.out[i + 1:i + 1] = g
    return S.out[:split], S.out[split:]

def sigma(x, d, t):
    return [f"v_bfe_u32 v{d}, v{x}, 1, 1", f"v_lshrrev_b32 v{t}, 3, v{x}", f"v_xor_b32 v{t}, v{t}, v{x}", f"v_and_b32 v{t}, 1, v{t}",
            f"v_lshl_or_b32 v{d}, v{t}, 1, v{d}", f"v_and_b32 v{t}, 4, v{x}", f"v_or_b32 v{d}, v{d}, v{t}"]
def swz_addr(row, col, d, t):
    return sigma(row, d, t) + [f"v_xor_b32 v{d}, v{d}, v{col}", f"v_lshlrev_b32 v{d}, 4, v{d}", f"v_and_b32 v{t}, 7, v{row}",
                               f"v_lshl_add_u32 v{d}, v{t}, 7, v{d}", f"v_lshrrev_b32 v{t}, 3, v{row}"]
def stg_addr(row, col, d, t):
    return [f"v_and_b32 v{t}, 7, v{row}", f"v_xor_b32 v{d}, v{t}, v{col}", f"v_lshlrev_b32 v{d}, 4, v{d}", f"v_lshl_add_u32 v{d}, v{t}, 7, v{d}"]

def stamp():
    if not CFG["stamp"]: return []
    x = 254
    L = [sc(t) for t in (f"s_memtime s[{sTm}:{sTm+1}]", f"s_memrealtime s[{sTm+2}:{sTm+3}]", "s_waitcnt lgkmcnt(0)", "s_mov_b64 exec, 1")]
    for n, (a, b) in enumerate(((sTm, sTm + 2), (80, 82), (84, 86))):
        L += [sc(f"v_mov_b32 v{x}, s{a}"), sc(f"v_mov_b32 v{x+1}, s{b}"),
              I(f"buffer_store_dwordx2 v[{x}:{x+1}], off, s[{sDbg}:{sDbg+3}], s{sStampOff} offset:{8*n}", "S"), sc("s_nop 1")]
    return L + [sc("s_mov_b64 exec, -1"), sc(f"s_add_u32 s{sStampOff}, s{sStampOff}, 32"), sc("s_nop 3")]

def prologue():
    P = []
    A = lambda t: P.append(sc(t))
    if CFG["diag_tot"]: A("s_memrealtime s[96:97]")
    A("s_cmp_ge_u32 s2, 256"); A("s_cbranch_scc1 L_exit")
    if CFG["again"]:
        A(f"s_mov_b32 s90, {CFG['again']}"); P.append(I("L_again:", "#"))
    A("s_load_dwordx4 s[80:83], s[0:1], 0"); A("s_load_dwordx4 s[84:87], s[0:1], 16")
    if CFG["stamp"]: A("s_load_dwordx2 s[88:89], s[0:1], 40")
    if CFG["codepf"]:
        A("s_getpc_b64 s[100:101]"); P.append(I("L_pf:", "#")); A("v_lshlrev_b32 v20, 7, v0")
        for i in range(CFG["codepf"]):
            if i: A("v_add_u32 v20, 0x8000, v20")
            A("v_min_u32 v27, L_last7-L_pf, v20" if CFG["lpf"] and CFG["endsplit"] else "v_min_u32 v27, L_code_end-L_pf-4, v20")
            P.append(I("global_load_dword v26, v27, s[100:101]", "L"))
    A("v_lshrrev_b32 v20, 6, v0"); A("v_and_b32 v21, 63, v0"); A(f"v_readfirstlane_b32 s{sW}, v20")
    A(f"s_and_b32 s{sT0}, s2, 7"); A(f"s_lshr_b32 s{sT1}, s2, 3"); A(f"s_and_b32 s{sRole}, s{sT1}, 1"); A(f"s_lshr_b32 s{sT1}, s{sT1}, 1")
    A(f"s_lshl_b32 s{sT0}, s{sT0}, 4"); A(f"s_add_u32 s{sT0}, s{sT0}, s{sT1}")
    if CFG["samehead"]: A(f"s_mov_b32 s{sT0}, 0")
    A(f"s_mul_i32 s{sT1}, s{sT0}, {4*QH}"); A(f"s_lshl_b32 s{sT0}, s{sT0}, 19")
    A("v_lshrrev_b32 v22, 3, v21"); A("v_and_b32 v23, 7, v21")
    for x in sigma(22, 24, 25): A(x)
    A("v_xor_b32 v24, v24, v23"); A("v_lshlrev_b32 v24, 4, v24"); A(f"v_lshl_add_u32 v{vDKV}, v22, 8, v24")
    A("v_xor_b32 v24, v22, v23"); A("v_lshlrev_b32 v24, 4, v24"); A(f"v_lshl_add_u32 v{vQO}, v22, 8, v24")
    A(f"s_and_b32 s{sT2}, s{sW}, 1"); A(f"s_lshl_b32 s{sT2}, s{sT2}, 5"); A(f"s_lshl_b32 s{sT3}, s{sW}, 11"); A(f"s_lshl_b32 s{sWoff}, s{sW}, 12")
    A(f"v_xor_b32 v{vDKV}, s{sT2}, v{vDKV}"); A(f"v_add_u32 v{vDKV}, s{sT3}, v{vDKV}")
    A(f"s_mul_i32 s{sStgB}, s{sW}, 24576")
    for d, f, n7, base in ((sOffA, sN7A, CFG["split"] - 24, 0), (sOffB, sN7B, 53 - CFG["split"] - 24, CFG["split"] * 4096)):
        A(f"s_min_u32 s{d}, s{sW}, {n7}"); A(f"s_cselect_b32 s{f}, 1, 0"); A(f"s_lshl_b32 s{d}, s{d}, 12")
        A(f"s_add_u32 s{d}, s{d}, s{sStgB}"); A(f"s_add_u32 s{d}, s{d}, {base}")
    A(f"s_add_u32 s{sStgB}, s{sStgB}, 65536")
    A(f"s_mov_b32 s{sJob}, -1")
    P += params_next()
    A("s_waitcnt lgkmcnt(0)")
    for srd, src, o, n in ((sK, 82, sT0, 4 * KH), (sV, 84, sT0, 4 * KH), (sQ, 80, sT1, 4 * QH), (sO, 86, sT1, 0 if CFG["nostore"] else 4 * QH)):
        A(f"s_add_u32 s{srd}, s{src}, s{o}"); A(f"s_addc_u32 s{srd+1}, s{src+1}, 0"); A(f"s_mov_b32 s{srd+2}, {n}"); A(f"s_mov_b32 s{srd+3}, 0x20000")
    if CFG["stamp"]:
        A(f"s_mov_b32 s{sDbg}, s88"); A(f"s_mov_b32 s{sDbg+1}, s89"); A(f"s_mov_b32 s{sDbg+2}, 0x1000000"); A(f"s_mov_b32 s{sDbg+3}, 0x20000")
        A(f"s_lshl_b32 s{sStampOff}, s2, 2"); A(f"s_add_u32 s{sStampOff}, s{sStampOff}, s{sW}"); A(f"s_lshl_b32 s{sStampOff}, s{sStampOff}, 10")
        A(f"s_mov_b32 s91, s{sStampOff}")
    P += stamp()
    P += kv_batch(sK, 0, 3 * 16384, ("grp", -1)) + grp_batch(0)
    hold = {int(x[0]): int(x[1:]) for x in str(CFG["pri"]).split(",") if x}
    for t in range(CFG["look"]):
        if t in hold:
            A(f"s_and_b32 s{sT2}, s2, {CFG['prim']}"); A(f"s_cmp_eq_u32 s{sT2}, 0"); A(f"s_cbranch_scc1 L_deep{t}"); A(f"s_waitcnt vmcnt({hold[t]})"); P.append(I(f"L_deep{t}:", "#"))
        P += q_batch(t, sNxt, t * 4096, ("q0", t))
    A("v_and_b32 v22, 15, v21"); A("v_lshrrev_b32 v23, 4, v21")
    for x in swz_addr(22, 23, 24, 25): A(x)
    A(f"v_lshl_add_u32 v{vK}, v25, 12, v24"); A(f"v_xor_b32 v{vK+1}, 64, v{vK}")
    for x in stg_addr(22, 23, 24, 25): A(x)
    A("v_lshrrev_b32 v25, 1, v22"); A("v_xor_b32 v25, v25, v22"); A("v_bfe_u32 v25, v25, 2, 1"); A("v_lshl_add_u32 v24, v25, 11, v24")
    A(f"v_add_u32 v{vSt}, s{sStgB}, v24"); A(f"v_xor_b32 v{vSt+1}, 64, v{vSt}")
    A(f"s_add_u32 s{sT2}, s{sWoff}, 32768"); A(f"v_add_u32 v{vQ6}, s{sT2}, v24"); A(f"v_xor_b32 v{vQ6+1}, 64, v{vQ6}")
    A(f"v_lshl_add_u32 v{vLin}, v21, 4, s{sStgB}"); A(f"v_add_u32 v{vLin}, 3072, v{vLin}")
    A("v_lshrrev_b32 v22, 2, v21"); A("v_and_b32 v23, 3, v21")
    for x in swz_addr(22, 23, 24, 25): A(x)
    A(f"v_lshl_add_u32 v{vV}, v25, 12, v24"); A(f"v_xor_b32 v{vV+1}, 64, v{vV}")
    A(f"s_mov_b32 s{sC}, {f2u(1.0 if 'c1' in CFG['x'] else SCALE):#x}")
    A(f"s_mov_b32 s{sLo}, {f2u(2.0**CFG['lo']):#x}"); A(f"s_mov_b32 s{sHi}, {f2u(2.0**CFG['hi']):#x}")
    A(f"s_mov_b32 s{sFlag}, {CFG['forcefb']}")
    for d, b, blk in ((sVx, sV, 4), (sKx, sK, 5)):
        A(f"s_add_u32 s{d}, s{b}, {blk*8192}"); A(f"s_addc_u32 s{d+1}, s{b+1}, 0"); A(f"s_mov_b32 s{d+2}, 8192")
    for d in (sKx, sVx, sQx, sOx): A(f"s_mov_b32 s{d+3}, 0x20000")
    A(f"s_mov_b32 s{sCnt}, 5"); A(f"s_mov_b32 s{sM}, s{sWoff}"); A(f"s_mov_b32 s{sCurO}, 0")
    A("v_and_b32 v22, 1, v21"); A("v_mul_u32_u24 v22, 0xaaaa, v22"); A(f"v_add_u32 v{vIdx}, 0x4444, v22"); A(f"v_lshl_or_b32 v{vIdx}, v{vIdx}, 16, v{vIdx}")
    A("v_lshrrev_b32 v22, 4, v21"); A("v_xor_b32 v22, v22, v21"); A("v_and_b32 v23, 2, v22")
    if "row0" in CFG["x"]: A("v_mov_b32 v23, 1")
    if "row4" in CFG["x"]: A("v_and_b32 v22, 12, v21"); A("v_or_b32 v23, v23, v22")
    A("v_cmp_eq_u32 vcc, 0, v23"); A("v_mov_b32 v24, 0x3f803f80"); A("s_nop 0"); A("v_cndmask_b32 v22, 0, v24, vcc")
    for i in range(4): A(f"v_accvgpr_write_b32 a{aOne+i}, v22")
    for i in range(16): A(f"v_accvgpr_write_b32 a{aL+i}, 0")
    return P + advance()

def job_switch(NT):
    L = []
    if CFG["diag_mark"] > 0: L = [sc(f"s_cmp_lg_u32 s{sJob}, {CFG['diag_mark']}"), sc(f"s_cbranch_scc1 L_nomark{NT}"), sc("s_memrealtime s[96:97]"), I(f"L_nomark{NT}:", "#")]
    L += stamp() + [sc(f"s_cmp_eq_u32 s{sN7c}, 1"), sc("s_cbranch_scc1 L_job7")]
    return L + ([sc("s_branch L_job6")] if NT == 6 else [])

def final():
    L = [I("L_final:", "#")]
    if CFG["diag_mark"] == 4: L.append(sc("s_memrealtime s[96:97]"))
    if CFG["stamp"]: L += stamp() + stamp() + [I("s_waitcnt vmcnt(0)", "w")] + stamp()
    return L

def fallback():
    L = []; A = L.append
    q, k, s0, pb, vf, o, lacc, m, t0, va, pa, one = 20, 36, 52, 60, 64, 72, 104, 108, 109, 112, 114, 116
    sJ, sN, sRow, sKb, sI, sU = sU0, sU1, sU2, sU3, sLoop, sD
    MF = "v_mfma_f32_16x16x32_bf16"
    A(f"s_cmp_eq_u32 s{sFlag}, 0"); A("s_cbranch_scc1 L_done")
    A("s_waitcnt vmcnt(0) lgkmcnt(0)")
    A("v_and_b32 v21, 63, v0"); A("v_and_b32 v22, 15, v21"); A("v_lshrrev_b32 v23, 4, v21")
    A(f"v_lshlrev_b32 v{vDir}, 8, v22"); A(f"v_lshl_add_u32 v{vDir}, v23, 4, v{vDir}")
    A("v_lshrrev_b32 v22, 2, v21"); A("v_and_b32 v23, 3, v21")
    L += stg_addr(22, 23, 24, 25) + ["v_lshrrev_b32 v25, 3, v22"]
    A(f"v_lshl_add_u32 v{va}, v25, 11, v24"); A(f"v_add_u32 v{va}, s{sStgB}, v{va}"); A(f"v_xor_b32 v{va+1}, 64, v{va}")
    A(f"v_xor_b32 v{pa}, 16, v21"); A(f"v_lshlrev_b32 v{pa}, 2, v{pa}"); A(f"v_xor_b32 v{pa+1}, 32, v21"); A(f"v_lshlrev_b32 v{pa+1}, 2, v{pa+1}")
    for i in range(4): A(f"v_mov_b32 v{one+i}, 0x3f803f80")
    A(f"s_mov_b32 s{sJob}, -1")
    A("L_fb_job:")
    L += [x.t for x in params_next()]
    A(f"s_add_u32 s{sJob}, s{sJob}, 1"); A(f"s_cmp_eq_u32 s{sJob}, 4"); A("s_cbranch_scc1 L_done")
    A(f"s_lshr_b32 s{sJ}, s{sFlag}, s{sJob}"); A(f"s_and_b32 s{sJ}, s{sJ}, 1"); A("s_cbranch_scc0 L_fb_job")
    A(f"s_add_u32 s{sN}, s{sN7n}, 5"); A(f"s_mov_b32 s{sRow}, s{sNxt}")
    A("L_fb_tile:")
    for ds in range(4): A(f"buffer_load_dwordx4 {rs('v', q+4*ds, 4)}, v{vDir}, s[{sQ}:{sQ+3}], s{sRow} offen{off(ds*64)}")
    def scores(dst):
        for ds in range(4): A(f"buffer_load_dwordx4 {rs('v', k+4*ds, 4)}, v{vDir}, s[{sK}:{sK+3}], s{sKb} offen{off(ds*64)}")
        A("s_waitcnt vmcnt(0)")
        for ds in range(4): A(f"{MF} {rs('v', dst, 4)}, {rs('v', k+4*ds, 4)}, {rs('v', q+4*ds, 4)}, {'0' if ds == 0 else rs('v', dst, 4)}")
        A(f"s_add_u32 s{sKb}, s{sKb}, 4096"); A("s_nop 7")
    A(f"v_mov_b32 v{m}, 0xff800000"); A(f"s_lshl_b32 s{sKb}, s{sJob}, 17"); A(f"s_mov_b32 s{sI}, 31")
    A("L_fb_max:")
    scores(s0)
    A(f"v_max3_f32 v{m}, v{m}, v{s0}, v{s0+1}"); A(f"v_max3_f32 v{m}, v{m}, v{s0+2}, v{s0+3}")
    A(f"s_sub_u32 s{sI}, s{sI}, 1"); A("s_cbranch_scc0 L_fb_max")
    for i in (0, 1):
        A(f"ds_bpermute_b32 v{t0}, v{pa+i}, v{m}"); A("s_waitcnt lgkmcnt(0)"); A(f"v_max_f32 v{m}, v{m}, v{t0}")
    for i in range(36): A(f"v_mov_b32 v{o+i}, 0")
    A(f"s_lshl_b32 s{sKb}, s{sJob}, 17"); A(f"s_mov_b32 s{sI}, 15")
    A("L_fb_pv:")
    for kt in (0, 1):
        for a in (0, 1):
            A(f"s_add_u32 m0, s{sStgB}, {kt*4096 + a*896}"); A(f"s_add_u32 s{sU}, s{sKb}, {kt*4096}")
            for nn in (0, 1): A(f"buffer_load_dwordx4 v{vQO}, s[{sV}:{sV+3}], s{sU} offen{off(nn*2048 + a*128)} lds")
    scores(s0); scores(s0 + 4)
    for r in range(8): A(f"v_sub_f32 v{s0+r}, v{s0+r}, v{m}")
    for r in range(8): A(f"v_mul_f32 v{s0+r}, s{sC}, v{s0+r}")
    for r in range(8): A(f"v_exp_f32 v{s0+r}, v{s0+r}")
    A("s_nop 0")
    for r in range(4): A(f"v_cvt_pk_bf16_f32 v{pb+r}, v{s0+2*r}, v{s0+2*r+1}")
    A("s_nop 1")
    A(f"{MF} {rs('v', lacc, 4)}, {rs('v', one, 4)}, {rs('v', pb, 4)}, {rs('v', lacc, 4)}")
    for dj in range(8):
        J, h = dj >> 1, dj & 1; f = vf + 4 * (dj & 1)
        for kt in (0, 1): A(f"ds_read_b64_tr_b16 {rs('v', f+2*kt, 2)}, v{va + (J & 1)}{off(kt*4096 + (J >> 1)*1024 + 8*h)}")
        A("s_waitcnt lgkmcnt(0)")
        A(f"{MF} {rs('v', o+4*dj, 4)}, {rs('v', f, 4)}, {rs('v', pb, 4)}, {rs('v', o+4*dj, 4)}")
    A(f"s_sub_u32 s{sI}, s{sI}, 1"); A("s_cbranch_scc0 L_fb_pv")
    A("s_nop 7"); A(f"v_rcp_f32 v{t0}, v{lacc}"); A("s_nop 0")
    for i in range(32): A(f"v_mul_f32 v{o+i}, v{t0}, v{o+i}")
    for J in range(4):
        for i in range(4): A(f"v_cvt_pk_bf16_f32 v{o+8*J+i}, v{o+8*J+2*i}, v{o+8*J+2*i+1}")
        A(f"buffer_store_dwordx4 {rs('v', o+8*J, 4)}, v{vDir}, s[{sO}:{sO+3}], s{sRow} offen{off(J*64)}")
    A("s_waitcnt vmcnt(0)")
    A(f"s_add_u32 s{sRow}, s{sRow}, 4096"); A(f"s_sub_u32 s{sN}, s{sN}, 1"); A("s_cbranch_scc0 L_fb_tile")
    A("s_branch L_fb_job")
    A("L_done:")
    return [I(x, "#" if x.endswith(":") else "s") for x in L]

def resolve(pro, jobs, fin):
    best = {}
    for seqn in ([7, 7, 7, 7], [7, 6, 7, 6], [6, 7, 6, 7], [6, 6, 6, 6]):
        dyn = [(x, 0) for x in pro]
        for j, v in enumerate(seqn):
            J = jobs[v]; b = 16 * j
            dyn += [(x, b) for x in (jobs[7].fcom + J.first if j == 0 else J.head)]
            for it in range(6 if (j == 3 and CFG["endsplit"]) else 7): dyn += [(x, b + 2 * it) for x in J.body]
            dyn += [(x, b) for x in (J.tail + J.sw if j < 3 else J.tail0 + J.last)]
        dyn += [(x, 64) for x in fin]
        vm = []; epoch = -2
        for x, b in dyn:
            if x.k == "B": epoch = (x.tag[1] + b) if x.tag else -1
            if x.k == "D" and x.tag and x.tag[0] == "ring":
                assert x.tag[1] + b == epoch, ("ring read outside its epoch", x.t, x.tag, b, epoch)
            if x.k in "XLS":
                tg = x.tag
                if tg and tg[0] in ("grp", "q"): tg = shift(tg, b)
                if tg and tg[0] == "grp": assert epoch == -2 or tg[1] - 4 < epoch, ("dma overwrites live group", x.t)
                vm.append(tg)
            if x.k == "w" and x.tag:
                want = (x.tag[0][4:],) + tuple(x.tag[1:])
                if want[0] in ("grp", "q"): want = shift(want, b)
                idx = max(i for i, t in enumerate(vm) if t == want)
                n = min(63, len(vm) - 1 - idx)
                best[id(x)] = (x, min(n, best.get(id(x), (x, 99))[1]))
        seq = [x for x, _ in dyn]
        last = None
        for x in seq:
            op = x.t.split()[0]
            if op == "s_addc_u32":
                a = int(re.match(r"s_addc_u32 s(\d+)", x.t).group(1))
                assert last.startswith(f"s_add_u32 s{a-1},"), (last, x.t)
            if op == "s_cselect_b32": assert re.match(r"s_(cmp|and_b32|or_b64|min)", last), (last, x.t)
            if x.t.startswith("s_cbranch_scc0 L_body"): assert last.startswith(f"s_sub_u32 s{sLoop},"), last
            elif op.startswith("s_cbranch_scc"): assert last.startswith("s_cmp"), (last, x.t)
            if re.match(r"s_(add|sub|and|or|xor|lshl|lshr|cmp|min)", op): last = x.t
        check_lgkm(seq)
        bad = hazards(seq)
        assert not bad, bad[:5]
    for x, n in best.values(): x.t = x.t.replace("?", str(n))

def main():
    jobs = {nt: build_job(nt) for nt in (7, 6)}
    mt = lambda i: [sc(f"s_memtime s[{80+2*i}:{81+2*i}]")] if CFG["stamp"] else []
    for nt, J in jobs.items():
        J.fcom, J.first = build_first(nt, J.carry)
        assert [x.t for x in J.fcom] == [x.t for x in jobs[7].fcom]
        if CFG["diag_mark"] == 0: J.first.append(sc("s_memrealtime s[96:97]"))
        J.first += stamp() + mt(0) + mt(1) + [sc("s_nop 3"), sc(f"s_branch L_body{nt}")]
        J.sw = job_switch(nt)
    jobs[7].fcom += [sc(f"s_cmp_eq_u32 s{sN7c}, 0"), sc("s_cbranch_scc1 L_first6")]
    pro = prologue(); fin = final()
    resolve(pro, jobs, fin)
    info = []
    for nt, J in jobs.items():
        nm = lambda s: sum(x.k == "M" for x in s)
        t = " ".join(f"{n}: {cycles(s)}c iss {issue_sum(s)} pipe {nm(s)*16} |" for n, s in (("head", J.head), ("body", J.body), ("tail", J.tail), ("last", J.last)))
        info.append(f"NT={nt} carry={len(J.carry)} {t} total={cycles(J.head + 7 * J.body + J.tail + J.sw)}")
    o = open("header.txt").read().rstrip("\n").split("\n")
    o += ['.amdgcn_target "amdgcn-amd-amdhsa--gfx950"', ".text", f".globl {NAME}_kernel", ".p2align 8", f".type {NAME}_kernel,@function", f"{NAME}_kernel:"]
    X = CFG["x"].split()
    def keep(x):
        if "mul" in X and x.t.startswith("v_mul_f32") and f"s{sC}," in x.t and x.k == "V": return None
        if "sum" in X and "smfmac" in x.t: return None
        if "nofb" in X and x.t == f"s_cmp_eq_u32 s{sFlag}, 0": return "s_cmp_eq_u32 0, 0"
        if "norcp" in X and x.t.startswith("v_rcp_f32") and x.k == "E": return x.t.split(",")[0].replace("v_rcp_f32", "v_sqrt_f32") + ", 1.0"
        if inbody[0]:
            if "ds" in X and x.k == "D": return "v_mov_b32 v12, v12"
            if "kvdma" in X and x.k == "X" and x.tag[0] == "grp": return "v_mov_b32 v12, v12"
            if "st" in X and x.k == "S": return "v_mov_b32 v12, v12"
            if "bar" in X and x.k == "B": return "s_nop 2"
        return x.t
    inbody = [False]
    put = lambda s: o.extend(("" if x.k == "#" else "    ") + keep(x) for x in s if keep(x) is not None)
    put(pro); put(jobs[7].fcom)
    for nt, J in jobs.items():
        o.append(f"L_first{nt}:"); put(J.first)
    for nt, J in jobs.items():
        o.append(f"L_job{nt}:"); put(mt(0)); put(J.head); put(mt(1))
        o.append(f"L_body{nt}:"); inbody[0] = True; put(J.body); inbody[0] = False; put(mt(2)); put(mt(3)); put(J.tail); put(J.sw)
    for nt, J in jobs.items():
        o.append(f"L_last{nt}:"); put(J.last)
        if nt == 7: o.append("    s_branch L_final")
    put(fin); put(fallback())
    if CFG["again"]:
        o += ["    s_waitcnt vmcnt(0) lgkmcnt(0)", "    s_barrier", "    s_sub_u32 s90, s90, 1", "    s_cbranch_scc0 L_again"]
    if CFG["diag_tot"]:
        o += ["    s_waitcnt vmcnt(0) lgkmcnt(0)", "L_diag:", "    s_memrealtime s[94:95]", "    s_waitcnt lgkmcnt(0)",
              "    s_sub_u32 s94, s94, s96", f"    s_cmp_lt_u32 s94, {CFG['diag_tot']}", "    s_cbranch_scc1 L_diag"]
    o += ["L_exit:", "    s_endpgm", "L_code_end:"]
    for nt in jobs:
        while True:
            pos = 0; at = {}
            for l in o[o.index(f"{NAME}_kernel:"):]:
                t = l.strip(); at[t] = pos
                if t.startswith(".p2align"): a = 1 << int(t.split()[1]); pos = (pos + a - 1) // a * a
                elif not t.endswith(":"): pos += size(t)
            if at[f"L_body{nt}:"] % 32 != 28 and at[f"s_cbranch_scc0 L_body{nt}"] % 32 != 0: break
            k = max(i for i in range(o.index(f"L_body{nt}:")) if o[i].startswith("    v_exp_f32 "))
            o[k] = o[k].replace("v_exp_f32 ", "v_exp_f32_e64 ")
    info.append(f"code bytes {pos}")
    o += ['.section .rodata,"a"', ".p2align 6", f".amdhsa_kernel {NAME}_kernel",
          "  .amdhsa_next_free_vgpr 512", "  .amdhsa_next_free_sgpr 102", "  .amdhsa_accum_offset 256",
          "  .amdhsa_group_segment_fixed_size 0", "  .amdhsa_kernarg_size 48", "  .amdhsa_user_sgpr_count 2",
          "  .amdhsa_user_sgpr_kernarg_segment_ptr 1", "  .amdhsa_system_sgpr_workgroup_id_x 1", ".end_amdhsa_kernel"]
    open(sys.argv[1], "w").write("\n".join(o) + "\n")
    print("\n".join(info), file=sys.stderr)

main()
```

```python
import sys, math, struct, re
from asmlib import *

NAME = "standalone__gqa_softmax__near_ridge"
CFG = dict(kv="", q="nt", o="nt", ol="nt", th=44, hth=30, tth=12, fth=16, lth=24, sp=7, sh6=3, sroom=4, pre=2, ord=0, pfpos=0, split=27, total=53,
           phi=2, dd=9, fpipe=1, fm="", qo0=12, kw=3, lo=-30, hi=30,
           stamp=0, samehead=0, nostore=0, again=0, tmark=-1, x="", diag_tot=0, diag_mark=-1, forcefb=0)
for a in sys.argv[2:]:
    k, v = a.split("=", 1)
    assert k in CFG, k
    CFG[k] = int(v) if re.fullmatch(r"-?\d+", v) else v.replace("+", " ")

QH, KH = 217088, 131072
SCALE = math.log2(math.e) / math.sqrt(128.0)
def f2u(x): return struct.unpack("<I", struct.pack("<f", x))[0]

vK, vV, vDKV, vQO, vLin, vSt, vQ6 = 1, 3, 5, 6, 7, 8, 10
vTmp, vOne = 12, 16
vS = 20
vP = 36
vO = 92
vIdx, vDir = 252, 253
vPf, vPt, vSink = 253, 254, 255
aQ, aK, aV, aL, aO = 0, 112, 144, 176, 192
sQ, sK, sV, sO = 4, 8, 12, 16
(sC, sW, sJob, sCnt, sU0, sU1, sU2, sM, sU3, sD, sOp, sStg, sLoop, sCurO, sNxt, sN7c, sN7n, sFlag, sRole,
 sT0, sT1, sT2, sT3, sWoff, sStgB, sOffA, sOffB, sLo, sHi, sBit, sN7A, sN7B) = range(20, 52)
sPfA, sPfB = 52, 54
sPair = 56
sStampOff = 58
sDbg = 60
sKx, sVa, sQx, sOx, sVb = 64, 68, 72, 76, 88
sTm = 92
OOB = 0x100000

def Oreg(t, dj):
    return ("v", vO + t * 32 + dj * 4) if t < 5 else ("a", aO + (t - 5) * 32 + dj * 4)
def Preg(p, t):
    return vP + t * 4 if not p & 1 else vP + 28 + ((t + 1) % 7) * 4
def Qreg(t, ds): return aQ + (t * 4 + ds) * 4
def sbuf(NT, p, kt, t): return vS + (((p * NT + t) * 2 + kt) & 3) * 4
def pdeps(p, t): return [("cvt", p, kt, t, h) for kt in (0, 1) for h in (0, 1)]
def sc(t, rd=(), wr=()): return I(t, "s", rd=rd, wr=wr)
def fl(x): return (" " + x) if x else ""
def off(x): return f" offset:{x}" if x else ""
def V(t, rd, wr, k="V"): return I(t, k, rd=[("v", r) if isinstance(r, int) else r for r in rd], wr=[("v", r) if isinstance(r, int) else r for r in wr])
COST = {"V": 1, "E": 2, "D": 1}
M0 = [("m", 0)]

class Op:
    def __init__(self, key, ins, deps=(), target=None, rel=None):
        self.key = key; self.ins = ins; self.deps = list(deps); self.target = target; self.rel = rel

class Sched:
    def __init__(self, NT):
        self.NT = NT
        self.out = []; self.done = set(); self.pend = []
        self.valu = []; self.fixed = []; self.scal = []; self.flex = []
        self.forbid = set(); self.gap = 0
        self.bykey = {}; self.th = CFG["th"]; self.mode = "oq"
    def add(self, q, op):
        q.append(op); self.bykey[op.key] = op
    def emit(self, ins, key=None):
        if ins.k == "w":
            m = re.search(r"lgkmcnt\((\d+)\)", ins.t)
            if m:
                n = int(m.group(1))
                if n < len(self.pend): self.pend = self.pend[len(self.pend) - n:] if n else []
        self.out.append(ins)
        if ins.k in "DW": self.pend.append(ins)
        if key is not None: self.done.add(key)
    def haz(self, ins):
        dist = 0; miss = 0
        for p in reversed(self.out):
            miss = max(miss, need(p, ins) - dist)
            dist += states(p)
            if dist >= 8: break
        return miss
    def lgkm_need(self, inss):
        idx = -1
        for ins in inss:
            t = set(ins.rd) | set(ins.c) | set(ins.wr)
            for i, p in enumerate(self.pend):
                if set(p.wr) & t: idx = max(idx, i)
        return None if idx < 0 else min(15, len(self.pend) - 1 - idx)
    def ready(self, op):
        return op.key not in self.forbid and all(d in self.done for d in op.deps) and \
            (op.target is None or op.target <= self.gap) and self.haz(op.ins) <= 0
    def put(self, op):
        for q in (self.valu, self.fixed, self.scal, self.flex):
            if op in q: q.remove(op)
        n = self.lgkm_need([op.ins])
        if n is not None: self.emit(I(f"s_waitcnt lgkmcnt({n})", "w"))
        m = self.haz(op.ins)
        if m > 0: self.emit(I(f"s_nop {m-1}", "s"))
        self.emit(op.ins, op.key)
    def force(self, key):
        if key in self.done: return
        op = self.bykey[key]
        assert key not in self.forbid, key
        for d in op.deps: self.force(d)
        self.put(op)
    def pick(self, kinds, n):
        r = []
        for op in self.valu[:48]:
            if op.ins.k in kinds and self.ready(op):
                r.append(op)
                if len(r) == n: break
        return r
    def backlog(self):
        return sum(COST[o.ins.k] for o in self.valu if o.rel is not None and o.rel in self.done)
    def fill(self, room):
        while room > 0:
            e = self.pick("E", 1); v = self.pick("V", 2)
            if room >= 2 and e and (len(v) < 2 or self.valu.index(e[0]) < self.valu.index(v[0])):
                self.put(e[0]); room -= 2
            elif v:
                self.put(v[0]); room -= 1
            elif e and self.backlog() > self.th - 4:
                self.put(e[0]); room -= 2
            else: break
        while self.backlog() > self.th:
            c = self.pick("EV", 1)
            if not c: break
            self.put(c[0])
    def run(self, mf, look=(), cut=False, keep=False):
        allm = list(mf) + list(look)
        for i, (key, ins, deps) in enumerate(mf):
            for d in deps: self.force(d)
            if i == len(mf) - 1 and not keep:
                if cut: self.flush()
                self.forbid = set()
                self.left = [o.key for q in (self.valu, self.fixed, self.scal) for o in q]
            n = self.lgkm_need([ins])
            if n is not None: self.emit(I(f"s_waitcnt lgkmcnt({n})", "w"))
            m = self.haz(ins)
            if m > 0: self.emit(I(f"s_nop {m-1}", "s"))
            self.emit(ins, key)
            afterw = len(self.out) > 1 and self.out[-2].k == "W"
            fx = next((o for o in self.fixed if self.ready(o) and not (afterw and o.ins.k in "DW")), None)
            slot1 = False
            nxt = [x[1] for x in allm[i + 1:i + 2]]
            if self.lgkm_need(nxt) is not None:
                nxt = [x[1] for x in allm[i + 1:i + 5]]
            if fx is not None and fx.ins.k != "B": nxt = nxt + [fx.ins]
            n = self.lgkm_need(nxt)
            if n is not None:
                self.emit(I(f"s_waitcnt lgkmcnt({n})", "w")); slot1 = True
                if fx is not None and fx.ins.k == "B": fx = None
            if fx is not None and fx.ins.k == "B":
                self.put(fx); self.fill(1)
            else:
                if not slot1 and self.scal and self.ready(self.scal[0]):
                    if not (fx is not None and fx.ins.k == "X" and ("m", 0) in self.scal[0].ins.wr): self.put(self.scal[0])
                room = 1 if "smfmac" in ins.t else 2
                if fx is not None and room == 1 and fx.ins.k != "D": fx = None
                if fx is not None:
                    self.put(fx); room = {"D": room - 1, "X": 1, "L": 1, "S": CFG["sroom"], "W": 0}[fx.ins.k]
                if fx is not None and fx.ins.k == "D" and room == 1 and len(self.pick("V", CFG["dd"])) < CFG["dd"] and self.pick("E", 1):
                    self.gap += 1
                    f2 = next((o for o in self.fixed if o.ins.k == "D" and self.ready(o) and self.lgkm_need([o.ins]) is None), None)
                    self.gap -= 1
                    if f2 is not None: self.put(f2); room = 0
                if self.flex and fx is None and room == 2 and self.backlog() == 0 and not self.pick("E", 1) and not afterw:
                    f = next((o for o in self.flex if self.ready(o)), None)
                    if f is not None: self.put(f); room -= 1
                if room: self.fill(room)
            self.gap += 1
    def flush(self):
        for q in (self.fixed, self.flex, self.scal, self.valu):
            for op in list(q):
                if op.key not in self.forbid and op.key not in self.done: self.force(op.key)

def ds128(k, r, ad, o, tag=None):
    return I(f"ds_read_b128 {rs(k, r, 4)}, v{ad}{off(o)}", "D", rd=[("v", ad)], wr=R(k, r, 4), tag=tag)
def dstr(k, r, ad, o, tag=None):
    return I(f"ds_read_b64_tr_b16 {rs(k, r, 2)}, v{ad}{off(o)}", "D", rd=[("v", ad)], wr=R(k, r, 2), tag=tag)
def koff(kt, ds): return kt * 8192 + (ds >> 1) * 1024
def voff(j, b, kt): return kt * 8192 + 2048 + b * 1024 + 8 * (j & 1)
def Kreg(kt, ds): return aK + kt * 16 + ds * 4
def Vreg(j, b): return aV + (2 * j + b) * 4
def k_read(p, kt, ds): return ds128("a", Kreg(kt, ds), vK + (ds & 1), ((p - 1) & 1) * 16384 + koff(kt, ds), ("ring", p - 1))
def v_read(r, j, b, kt): return dstr("a", Vreg(j, b) + 2 * kt, vV + (j >> 1), ((r - 1) & 1) * 16384 + voff(j, b, kt), ("ring", r - 1))
def q_read(t, ds, slot=None): return ds128("a", Qreg(t, ds), vSt + (ds & 1), (t if slot is None else slot) * 4096 + (ds >> 1) * 1024)
def so_(x): return "0" if x is None else f"s{x}"
def dma(vo, srd, so, o, flags, tag):
    return I(f"buffer_load_dwordx4 v{vo}, s[{srd}:{srd+3}], {so_(so)} offen{off(o)}{fl(flags)} lds", "X", rd=[("v", vo), ("m", 0)], tag=tag)
def o_store(r, srd, so, o, flags):
    return I(f"buffer_store_dwordx4 {rs('v', r, 4)}, v{vQO}, s[{srd}:{srd+3}], {so_(so)} offen{off(o)}{fl(flags)}", "S", rd=R("v", r, 4) + [("v", vQO)])
def o_write(slot, J, b):
    ad = vSt + (J & 1)
    return I(f"ds_write_b128 v{ad}, {rs('v', b, 4)}{off(slot*4096 + (J >> 1)*1024)}", "W", rd=R("v", b, 4) + [("v", ad)])
def code_touch(base): return I(f"global_load_dword v{vSink}, v{vPt}, s[{base}:{base+1}]", "L", rd=[("v", vPt)])
def bump(srd, by): return [f"s_add_u32 s{srd}, s{srd}, {by}", f"s_addc_u32 s{srd+1}, s{srd+1}, 0"]
def shift(key, p): return (key[0], key[1] + p) + tuple(key[2:])
PHI = CFG["phi"]
KORD = [(0, 0), (0, 1), (0, 2), (0, 3), (1, 3), (1, 2), (1, 1), (1, 0)]
VORD = [(0, 0), (0, 1), (1, 1), (1, 0), (2, 0), (2, 1), (3, 1), (3, 0)]
DEFER = [(t, J) for t in range(5) for J in range(4)]

def pv_tile(r, t, home=None, vkey="vr"):
    L = []; seen = set()
    for j, b in VORD:
        blk = r - 2 + b
        if not 0 <= blk < 16: continue
        dj = (r & 1) * 4 + j; first = r <= 2 and j not in seen; seen.add(j)
        deps = pdeps(blk, t) + ([(vkey, r, j, b, kt) for kt in (0, 1)] if vkey else [])
        if first and vkey and (t, dj >> 1) in DEFER: deps.append(("ow", t, dj >> 1))
        L.append((("pv", r, t, j, b), mfma(Oreg(t, dj), home(j, b) if home else ("a", Vreg(j, b)), ("v", Preg(blk, t)), c0=first), deps))
    return L
def sum_tile(r, t):
    if r > 16 or not (t & 1 or (t == 6 and not r & 1)): return []
    d = aL + 4 * (t >> 1); b = Preg(r - 1, t - 1) if t < 6 else Preg(0, 6)
    return [(("sum", r, t >> 1), I(f"v_smfmac_f32_16x16x64_bf16 {rs('a', d, 4)}, {rs('v', vOne, 4)}, {rs('v', b, 8)}, v{vIdx}", "M",
                                   rd=R("v", vOne, 4) + R("v", b, 8) + [("v", vIdx)], wr=R("a", d, 4), c=R("a", d, 4)),
             pdeps(r - 1, t) + (pdeps(r - 1, t - 1) if t < 6 else []))]
def qk_chain(p, kt, t, sb, deps0, home=None, kkey="kr"):
    return [(("qk", p, kt, t, i), mfma(("v", sb), home(kt, ds) if home else ("a", Kreg(kt, ds)), ("a", Qreg(t, ds)), c0=(i == 0)),
             ([(kkey, p, kt, ds)] if kkey else []) + (deps0 if i == 0 else []) + ([("q6r", ds)] if (p, kt, t) == (0, 0, 6) and kkey else []))
            for i, (_, ds) in enumerate(KORD[4 * kt:4 * kt + 4])]
def seg_slots(NT, k): return [divmod(s, NT) for s in range(max(0, k * NT - PHI), min(16 * NT, (k + 1) * NT - PHI))]
def seg_mf(NT, k):
    L = []; sl = dict(((p * NT + t + PHI) % NT, (p, t)) for p, t in seg_slots(NT, k))
    for tv in range(NT):
        if k >= 1: L += pv_tile(k, tv) + sum_tile(k, tv)
        if tv in sl:
            p, t = sl[tv]
            pp, tt = divmod(p * NT + t - 2, NT)
            for kt in (0, 1): L += qk_chain(p, kt, t, sbuf(NT, p, kt, t), [("cvt", pp, kt, tt, h) for h in (0, 1)] if pp >= 0 else [])
    return L

def add_softmax(S, p, kt, t, sb, war=()):
    rel = ("qk", p, kt, t, 3)
    mul = lambda r: Op(("mul", p, kt, t, r), V(f"v_mul_f32 v{sb+r}, s{sC}, v{sb+r}", [sb + r], [sb + r]), [rel], rel=rel)
    ex = lambda r: Op(("exp", p, kt, t, r), V(f"v_exp_f32 v{sb+r}, v{sb+r}", [sb + r], [sb + r], "E"), [("mul", p, kt, t, r)], rel=rel)
    def cv(h):
        d = Preg(p, t) + 2 * kt + h
        return Op(("cvt", p, kt, t, h), V(f"v_cvt_pk_bf16_f32 v{d}, v{sb+2*h}, v{sb+2*h+1}", [sb + 2 * h, sb + 2 * h + 1], [d]),
                  [("exp", p, kt, t, 2 * h), ("exp", p, kt, t, 2 * h + 1)] + list(war), rel=rel)
    for o in (mul(0), mul(1), ex(0), ex(1), mul(2), mul(3), ex(2), ex(3), cv(0), cv(1)): S.add(S.valu, o)

def add_seg_ops(S, k, mf):
    NT = S.NT; g0 = S.gap; keys = [m[0] for m in mf]; mode = S.mode if k >= 3 else "oq"
    at = lambda key: g0 + keys.index(key)
    for p, t in seg_slots(NT, k):
        for kt in (0, 1): add_softmax(S, p, kt, t, sbuf(NT, p, kt, t))
    fx = []; scal = []
    new = lambda lst, key, ins, deps, g: lst.append(Op(key, ins, deps, g))
    known = lambda x: [x] if (x in S.bykey or x in S.done) else []
    def chain(name, texts, deps, g):
        for i, t in enumerate(texts):
            new(scal, (name[0], k) + tuple(name[1:]) + (i,), sc(t), deps, g)
            deps = [(name[0], k) + tuple(name[1:]) + (i,)]
        return deps
    xor = lambda r: V(f"v_xor_b32 v{r}, 0x8000, v{r}", [r], [r])
    sp = CFG["sp"]; prev = []; rd = []
    if 1 <= k <= 16:
        g = g0 + 2 + (CFG["sh6"] if NT == 6 else 0)
        if k == 1:
            new(scal, ("w6",), I("s_waitcnt vmcnt(?)", "w", tag=("needq6",)), [], g0)
            prev = [("w6",)]
            if NT == 7:
                for ds in range(4): new(fx, ("q6r", ds), ds128("a", Qreg(6, ds), vQ6 + (ds & 1), (ds >> 1) * 1024), [("w6",)], g0 + 1 + ds)
                prev = [("qk", 0, 0, 6, 3)]; g = at(("qk", 0, 1, 6, 3)) + 8
        x = ((k + 3) & 1) * 128
        for i, (srd, o) in enumerate(((sKx, 0), (sKx, 128), (sVa, x), (sVb, x))):
            new(scal, ("m0", k, i), sc(f"s_add_u32 m0, s{sM}, {i*1024 - o}", wr=M0), prev, max(g0, g - 3))
            new(fx, ("dma", k, i), dma(vDKV, srd, None, o, CFG["kv"], ("grp", k + 2)), [("m0", k, i)], g)
            prev = [("dma", k, i)]; g += sp if k > 1 else 4
        prev = chain(("uk",), [f"s_add_u32 s{sM}, s{sM}, 16384", f"s_and_b32 s{sM}, s{sM}, 0xffff", f"s_mov_b64 s[{sVa}:{sVa+1}], s[{sVb}:{sVb+1}]",
                               f"s_mov_b32 s{sVa+2}, s{sVb+2}"] + bump(sVb, 8192) + [f"s_mov_b32 s{sVb+2}, s{sKx+2}"] + bump(sKx, 8192) +
                     [f"s_add_u32 s{sCnt}, s{sCnt}, 1", f"s_cmp_lt_u32 s{sCnt}, 64", f"s_cselect_b32 s{sKx+2}, 8192, 0"], prev, g - sp + 1)
        gk = at(("qk", k - 1, 0, NT - 1, 0))
        for n, (kt, ds) in enumerate(KORD):
            new(fx, ("kr", k, kt, ds), k_read(k, kt, ds), [("qk", k - 1, kt, NT - 1, n & 3)] + known(("xk", k - 1, ds & 1)), gk + (n * CFG["kw"]) // 2)
            rd.append(("kr", k, kt, ds))
        if k <= 14 and (k == 1 or not k & 1):
            g = max(g + 6, gk + 8 + CFG["qo0"])
            for j in range(3):
                flip = [f"s_xor_b32 s{sD}, s{sD}, 0x700"]
                if "o" in mode:
                    ready = [("ow", k - 1, J) for J in range(4)] if k <= 2 else []
                    new(fx, ("or", k, j), ds128("v", vTmp, vLin, j * 1024),
                        known(("ul", k - 2)) + known(("ul", k - 1)) + ready + ([("os", k, j - 1)] if j else []), g - 9)
                    new(fx, ("os", k, j), o_store(vTmp, sOx, None, 0, CFG["o" if "q" in mode else "ol"]), [("or", k, j)] + prev, g)
                    prev = chain(("uo", j), bump(sOx, f"s{sD}") + ([] if "q" in mode else flip), [("os", k, j)], g)
                    g += (sp if k > 1 else 5) if "q" in mode else 10
                if "q" in mode:
                    new(scal, ("qm", k, j), sc(f"s_mov_b32 m0, s{sStg}", wr=M0), prev, g - 3)
                    new(fx, ("qd", k, j), dma(vQO, sQx, None, 0, CFG["q"], ("q", k, j)), [("qm", k, j)], g)
                    prev = chain(("uq", j), bump(sQx, f"s{sD}") + flip + [f"s_add_u32 s{sStg}, s{sStg}, 1024"], [("qd", k, j)], g)
                    g += sp if k > 1 else 5
            if "o" in mode: S.add(S.valu, Op(("ul", k), V(f"v_add_u32 v{vLin}, 3072, v{vLin}", [vLin], [vLin]), [("or", k, 2)]))
        if mode != "oq" and k & 1 and k < 15:
            size_ = "L_end_code-L_job7" if mode == "q" else "L_final-L_end_code"
            prev = chain(("pl",), [f"s_cmp_eq_u32 s{sLoop}, 0", f"s_cselect_b32 s{sU3}, {size_}, 0"], prev, g)
            S.add(S.valu, Op(("ul2", k), V(f"v_min_u32 v{vPt}, s{sU3}, v{vPf}", [vPf], [vPt]), prev))
            new(fx, ("pf", k), code_touch(sPfA if mode == "q" else sPfB), [("ul2", k)], gk + 24)
        if not k & 1:
            for b in (0, 1):
                S.add(S.valu, Op(("xk", k, b), xor(vK + b), [x_ for x_ in rd if x_[3] & 1 == b]))
                S.add(S.valu, Op(("xv", k, b), xor(vV + b), [("vr", k, j, bb, kt) for j in (2 * b, 2 * b + 1) for bb in (0, 1) for kt in (0, 1)]))
        gv = at(next(x_ for x_ in keys if x_[:3] == ("pv", k, NT - 1)))
        gb = gv - 2 if k < 16 else gk + 20
        rd += [("vr", k, j, b, kt) for j, b in VORD for kt in (0, 1)]
        new(scal, ("wb", k), I("s_waitcnt vmcnt(?) lgkmcnt(0)", "w", tag=("needgrp", k)), rd + [("dma", k, 3)], gb - 1)
        new(fx, ("bar", k), I("s_barrier", "B", tag=("bar", k)), [("wb", k)], gb)
        order = VORD if k < 16 else sorted(VORD, key=lambda x_: x_[1])
        for n, (j, b, kt) in enumerate((j, b, kt) for j, b in order for kt in (0, 1)):
            war = [("pv", k, NT - 1, j, b)] if ("pv", k, NT - 1, j, b) in keys else []
            new(fx, ("vr", k + 1, j, b, kt), v_read(k + 1, j, b, kt), [("bar", k)] + war + ([] if k & 1 else [("xv", k, j >> 1)]), gv + (n if k > 1 else (n * 3) // 4))
        if k == 2 or (3 < k < 15 and not k & 1):
            new(scal, ("lp", k), sc(f"s_sub_u32 s{sLoop}, s{sLoop}, 1" if k > 2 else f"s_cmp_eq_u32 s{sJob}, 3"), [("wb", k)] + prev, g0 + len(mf) - 5)
    if k <= 1:
        todo = ([(0, 2), (0, 3), (1, 2), (1, 3), (0, 0), (0, 1), (2, 2), (2, 3), (3, 2), (3, 3)] if k == 0 else
                [(4, 2), (4, 3), (1, 0), (1, 1), (2, 0), (2, 1), (3, 0), (3, 1), (4, 0), (4, 1)])
        lo, hi = (1, len(mf) - 1) if k == 0 else (6, len(mf) - 16)
        for i, (t, J) in enumerate(todo): new(fx, ("ow", t, J), o_write(t, J, Oreg(t, 2 * J)[1]), [], g0 + lo + (hi - lo) * i // len(todo))
    for o in fx: S.add(S.fixed, o)
    S.fixed.sort(key=lambda o: o.target)
    scal.sort(key=lambda o: o.target)
    for o in scal: S.add(S.scal, o)
    misc = [o for o in S.valu if o.key[0] in ("xk", "xv", "ul", "ul2")]
    S.valu = misc + [o for o in S.valu if o not in misc]

def start_job(NT, mode):
    S = Sched(NT); S.mode = mode
    S.done |= {("kr", 0, kt, ds) for kt, ds in KORD} | {("vr", 1, j, b, kt) for j, b in VORD for kt in (0, 1)}
    return S
def run_segs(S, segs, carry):
    starts = {}
    for k in segs:
        starts[k] = len(S.out)
        mf = seg_mf(S.NT, k)
        S.forbid = set(); S.th = CFG["th"] if k >= 2 else CFG["hth"]
        add_seg_ops(S, k, mf)
        cut = carry is not None and k >= 2 and not k & 1
        if cut: S.forbid = {shift(x, k) for x in carry}
        S.run(mf, seg_mf(S.NT, k + 1)[:4], cut)
    return starts
def find_carry(NT):
    S = start_job(NT, "oq")
    run_segs(S, range(0, 9), None)
    c = [shift(x, -8) for x in S.left]
    assert all(x[0] in ("mul", "exp", "cvt", "vr") for x in c), c
    return c

def params_next():
    return [sc(x) for x in (
        f"s_add_u32 s{sT2}, s{sJob}, 1",
        f"s_xor_b32 s{sT3}, s{sT2}, s{sRole}",
        f"s_and_b32 s{sT3}, s{sT3}, 1",
        f"s_cselect_b32 s{sNxt}, s{sOffB}, s{sOffA}",
        f"s_cselect_b32 s{sN7n}, s{sN7B}, s{sN7A}",
        f"s_mul_i32 s{sT2}, s{sT2}, {QH}",
        f"s_add_u32 s{sNxt}, s{sNxt}, s{sT2}")]

def advance():
    return [sc(x) for x in (f"s_lshl_b32 s{sBit}, 1, s{sJob}", f"s_add_u32 s{sJob}, s{sJob}, 1", f"s_mov_b32 s{sOp}, s{sCurO}",
                            f"s_mov_b32 s{sCurO}, s{sNxt}", f"s_mov_b32 s{sN7c}, s{sN7n}")] + params_next() + \
           [sc(x) for x in (f"s_add_u32 s{sQx}, s{sQ}, s{sNxt}", f"s_addc_u32 s{sQx+1}, s{sQ+1}, 0", f"s_cmp_lt_u32 s{sJob}, 3", f"s_cselect_b32 s{sQx+2}, 4096, 0",
                            f"s_add_u32 s{sOx}, s{sO}, s{sOp}", f"s_addc_u32 s{sOx+1}, s{sO+1}, 0",
                            f"s_mov_b32 s{sD}, 128", f"s_mov_b32 s{sStg}, s{sStgB}", f"s_mov_b32 s{sLoop}, 5")]

def add_rows(S, tiles, vmx, zero):
    add = lambda key, ins, deps: S.add(S.valu, Op(key, ins, deps))
    for t in tiles:
        b = Preg(0, t)
        src = [aL + 2 * t, aL + 2 * t + 1] + ([aL + 14, aL + 15] if t == 6 else [])
        dst = [b + 2, b, b + 1, b + 3]
        for a, d in zip(src, dst): add(("la", a), V(f"v_accvgpr_read_b32 v{d}, a{a}", [("a", a)], [d]), [("sum", 16, t >> 1), ("pv", 16, t, 3, 0)])
        if t == 6:
            add(("l6", 0), V(f"v_add_f32 v{dst[0]}, v{dst[0]}, v{dst[3]}", [dst[0], dst[3]], [dst[0]]), [("la", a) for a in src])
            add(("l6", 1), V(f"v_add_f32 v{dst[1]}, v{dst[1]}, v{dst[2]}", [dst[1], dst[2]], [dst[1]]), [("l6", 0)])
        add(("lr", t), V(f"v_add_f32 v{dst[0]}, v{dst[0]}, v{dst[1]}", dst[:2], [dst[0]]), [("la", a) for a in src] + ([("l6", 1)] if t == 6 else []))
        add(("rc", t), V(f"v_rcp_f32 v{b}, v{b+2}", [b + 2], [b], "E"), [("lr", t)])
        m = vmx if t else b
        add(("mx", t), V(f"v_maximum3_f32 v{vmx}, v{m}, v{b}, v{b+2}", [m, b, b + 2], [vmx]), [("rc", t)] + ([("mx", t - 1)] if t else []))
        if zero:
            for a in src: add(("lz", a), V(f"v_accvgpr_write_b32 a{a}, 0", [], [("a", a)]), [("la", a)])
    if tiles[-1] == S.NT - 1: add(("c1",), V(f"v_cmp_ngt_f32 vcc, s{sHi}, v{vmx}", [vmx], [("s", "vcc")]), [("mx", S.NT - 1)])

def convert(E, b, r, skip=lambda i: False):
    for i in range(4):
        if not skip(i):
            E.append(V(f"v_pk_mul_f32 {rs('v', b+2*i, 2)}, {rs('v', b+2*i, 2)}, {rs('v', r, 2)} op_sel_hi:[1,0]",
                       [b + 2 * i, b + 2 * i + 1, r], [b + 2 * i, b + 2 * i + 1]))
    for i in range(4): E.append(V(f"v_cvt_pk_bf16_f32 v{b+i}, v{b+2*i}, v{b+2*i+1}", [b + 2 * i, b + 2 * i + 1], [b + i]))
def acc_copy(dst, src): return [V(f"v_accvgpr_read_b32 v{dst+i}, a{src+i}", [("a", src + i)], [dst + i]) for i in range(8)]
def final_pv(t, J, i): return ("pv", 16, t) + ((2 * J, 1), (2 * J + 1, 0))[i >> 2] if J < 2 else ("pv", 17, t, 2 * J - 4 + (i >> 2), 0)

def build_tail(S):
    NT = S.NT
    run_segs(S, [15], None)
    g0 = S.gap; mf = seg_mf(NT, 16)
    add_seg_ops(S, 16, mf)
    mf += seg_mf(NT, 17)
    S.add(S.scal, Op(("wq",), I("s_waitcnt vmcnt(?)", "w", tag=("needq", 12, 1)), [], g0)); S.scal.insert(0, S.scal.pop())
    nsc = [0]
    def scal(x, deps=()):
        i = nsc[0]; nsc[0] += 1
        S.add(S.scal, Op(("ts", i), x, ([("ts", i - 1)] if i else [("uk", 16, 11)]) + list(deps), g0)); return ("ts", i)
    scal(sc(f"s_mul_i32 s{sQx+2}, s{sQx+2}, s{sN7n}"))
    prev = [("bar", 16)]; gb = S.bykey[("bar", 16)].target
    for a in (0, 1):
        m = scal(sc(f"s_add_u32 m0, s{sWoff}, {49152 + a*896}", wr=M0), prev)
        for nn in (0, 1): S.add(S.fixed, Op(("q6", a, nn), dma(vQO, sQx, None, nn * 2048 + a * 128, CFG["q"], ("q6",)), [m], gb + 2 + 4 * (2 * a + nn)))
        prev = [("q6", a, 0), ("q6", a, 1)]
    S.add(S.valu, Op(("pa",), V(f"v_min_u32 v{vPt}, L_final-L_end_code, v{vPf}", [vPf], [vPt]), []))
    S.add(S.fixed, Op(("pf",), code_touch(sPfB), [("pa",)] + prev, gb + 18))
    S.fixed.sort(key=lambda o: o.target)
    for x in advance(): scal(x, prev); prev = []
    w5 = scal(I("s_waitcnt vmcnt(?)", "w", tag=("needq", 14, 2)))
    for t in range(6):
        for ds in range(4): S.add(S.flex, Op(("qr", t, ds), q_read(t, ds), [("wq",) if t < 5 else w5, ("qk", 15, 1, t, 3)]))
    add = lambda key, ins, deps: S.add(S.valu, Op(key, ins, deps))
    add(("vl",), V(f"v_add_u32 v{vLin}, {(-24576) & 0xffffffff:#x}, v{vLin}", [vLin], [vLin]), [])
    add_rows(S, list(range(NT)), vTmp, True)
    for x in ("s_cmp_lg_u64 vcc, 0", f"s_cselect_b32 s{sT2}, s{sBit}, 0", f"s_or_b32 s{sFlag}, s{sFlag}, s{sT2}"): scal(sc(x), [("c1",)])
    softdone = [("cvt", 15, kt, t, h) for t in (NT - 2, NT - 1) for kt in (0, 1) for h in (0, 1)]
    early = {(NT - 1, J): vb for J, vb in enumerate((vS, vS + 8))}
    for (t, J), vb in early.items():
        for i, x in enumerate(acc_copy(vb, Oreg(t, 2 * J)[1])): add(("ar", t, J, i), x, softdone + [final_pv(t, J, i)])
    for t in range(5):
        for J in range(2):
            b = Oreg(t, 2 * J)[1]; r = Preg(0, t)
            for i in range(8):
                add(("om", t, J, i), V(f"v_mul_f32 v{b+i}, v{r}, v{b+i}", [b + i, r], [b + i]), [("rc", t), final_pv(t, J, i)] + ([("om", t, J, i - 1)] if i else []))
            for i in range(4):
                add(("oc", t, J, i), V(f"v_cvt_pk_bf16_f32 v{b+i}, v{b+2*i}, v{b+2*i+1}", [b + 2 * i, b + 2 * i + 1], [b + i]), [("oc", t, J, i - 1) if i else ("om", t, J, 7)])
    n1 = max(i for i, m in enumerate(mf) if m[0][0] == "qk") + 1
    S.run(mf[:n1], mf[n1:n1 + 4], keep=True)
    S.th = CFG["tth"]
    S.run(mf[n1:], keep=True)
    begun = {x[1:3] for x in S.done if x[0] == "om"}
    S.valu = [o for o in S.valu if o.key[0] not in ("om", "oc") or o.key[1:3] in begun]
    S.flush()
    E = []
    if CFG["tmark"] == 0: E.append(sc("s_memtime s[86:87]"))
    vC = Preg(1, 0)
    spare = iter((vC, vC + 8, vC + 16, vS, vS + 8, vC))
    def piece(t, J):
        k, b = Oreg(t, 2 * J)
        if k == "a":
            if (t, J) in early: b = early[(t, J)]
            else:
                d = next(spare); E.extend(acc_copy(d, b)); b = d
        convert(E, b, Preg(0, t))
        if (t, J) not in DEFER: E.append(o_write(t % 6, J, b))
        return b
    plain = [x for x in DEFER if x not in begun]
    def some(n):
        for _ in range(n):
            if plain: piece(*plain.pop(0))
    if NT == 7:
        E.append(sc(f"s_add_u32 s{sT3}, s{sOp}, 24576")); regs = []
        for a in (0, 1):
            for J in (2 * a, 2 * a + 1): regs.append(piece(6, J) + 4); some(1)
            E += [ds128("v", regs[2 * a + nn], vLin, nn * 2048 + a * 1024) for nn in (0, 1)]
        for a in (0, 1):
            E.append(I(f"s_waitcnt lgkmcnt({4 - 4*a})", "w"))
            E += [o_store(regs[2 * a + nn], sO, sT3, nn * 2048 + a * 128, CFG["o"]) for nn in (0, 1)]
            some(3 - 3 * a)
    else:
        E.append(sc(f"s_mov_b32 s{sT3}, {OOB:#x}"))
        for i in range(4): E.append(o_store(vC, sO, sT3, 0, ""))
    for J in range(4): piece(5, J); some(2)
    some(20)
    E.append(I("s_waitcnt lgkmcnt(4)", "w"))
    return [I(".p2align 3", "#")] + align8(fix_hazards(E, S.out[-10:]), False)

def build_last(NT, carry):
    S = start_job(NT, "o")
    run_segs(S, range(15), carry)
    start = len(S.out)
    while S.out[start - 1].k != "M": start -= 1
    S.th = CFG["lth"]; g0 = S.gap
    G = [list(range(4)), list(range(4, NT))]
    assert NT - PHI >= 4
    fix = lambda key, ins, deps, g=0: S.add(S.fixed, Op(key, ins, deps, g))
    add = lambda key, ins, deps: S.add(S.valu, Op(key, ins, deps))
    nsc = [0]
    def scal(x, deps=(), g=0):
        i = nsc[0]; nsc[0] += 1
        S.add(S.scal, Op(("ts", i), x, ([("ts", i - 1)] if i else []) + list(deps), g)); return ("ts", i)
    def qk(p, t):
        pp, tt = divmod(p * NT + t - 2, NT); L = []
        for kt in (0, 1):
            add_softmax(S, p, kt, t, sbuf(NT, p, kt, t), [("pv", 15, t, 3, 0)] if p == 15 else [])
            L += qk_chain(p, kt, t, sbuf(NT, p, kt, t), [("cvt", pp, kt, tt, h) for h in (0, 1)])
        return L
    home = lambda r: (lambda j, b: ("a", Qreg(0, 0) + (2 * j + b) * 4)) if r == 16 else (lambda j, b: ("a", Qreg(2, j)))
    pv = lambda r, t: pv_tile(r, t, home(r) if r > 15 else None) + sum_tile(r, t)
    slots = [(14, t) for t in range(NT - PHI, NT)] + [(15, t) for t in G[0]]
    A = []
    for i, (p, t) in enumerate(slots): A += (pv(15, i) if i < 4 else []) + qk(p, t)
    keys = [m[0] for m in A]
    gk = g0 + keys.index(("qk", 14, 0, NT - 1, 0))
    for n, (kt, ds) in enumerate(KORD): fix(("kr", 15, kt, ds), k_read(15, kt, ds), [("qk", 14, kt, NT - 1, n & 3)], gk + n)
    for b in (0, 1):
        add(("xv", 16, b), V(f"v_xor_b32 v{vV+b}, 0x8000, v{vV+b}", [vV + b], [vV + b]), [("vr", 16, j, bb, kt) for j in (2 * b, 2 * b + 1) for bb in (0, 1) for kt in (0, 1)])
    for r, t in ((16, 0), (17, 2)):
        g = g0 + keys.index(("qk", 15, 1, t, 0))
        fix(("bar", r - 1), I("s_barrier", "B", tag=("bar", r - 1)), [scal(I("s_waitcnt vmcnt(?)", "w", tag=("needgrp", r - 1)), [], g)], g + 1)
        for j, b in VORD:
            if r == 17 and b: continue
            for kt in (0, 1):
                owner = j >> 1 if r == 16 else 2
                fix(("vr", r, j, b, kt), dstr("a", home(r)(j, b)[1] + 2 * kt, vV + (j >> 1), ((r - 1) & 1) * 16384 + voff(j, b, kt)),
                    [("bar", r - 1), ("qk", 15, 1, owner, 3)] + ([("xv", 16, j >> 1)] if r == 17 else []))
    add(("vl",), V(f"v_add_u32 v{vLin}, {(-24576) & 0xffffffff:#x}, v{vLin}", [vLin], [vLin]), [])
    S.valu = [o for o in S.valu if o.key[0] == "xv"] + [o for o in S.valu if o.key[0] != "xv"]
    add_rows(S, G[0], vTmp, False)
    for t in G[0]: A += pv(16, t)
    for t in G[0]: A += pv(17, t)
    S.run(A, keep=True); S.flush()
    def mark(i):
        if CFG["tmark"] == i: S.emit(sc("s_memtime s[86:87]")); print(f"NT={NT} model at mark {i}: {cycles(S.out[start:])}", file=sys.stderr)
    mark(11)
    so = lambda t: (sT0, sT1, sT2, sT3, sU0, sU1, sU2)[t]
    back = lambda t, a, nn, r: ds128("v", r, vLin, (t % 6) * 4096 + nn * 2048 + a * 1024)
    out = lambda t, a, nn, r: o_store(r, sO, so(t), nn * 2048 + a * 128, CFG["ol"])
    O = lambda t, J: Oreg(t, 2 * J)[1]
    E = [sc(f"s_add_u32 s{so(t)}, s{sCurO}, {t*4096}") for t in range(NT)]
    rest = [(t, J) for t in G[0][1:] for J in range(4)]
    def some(n):
        for _ in range(n):
            if rest: t, j = rest.pop(0); convert(E, O(t, j), Preg(0, t))
    for J in range(4):
        convert(E, O(0, J), Preg(0, 0)); E.append(o_write(0, J, O(0, J))); some(1 + (J & 1))
        if J & 1: E += [back(0, J >> 1, nn, O(0, J - 1 + nn) + 4) for nn in (0, 1)]
    for a in (0, 1):
        E.append(I(f"s_waitcnt lgkmcnt({4 - 4*a})", "w")); E += [out(0, a, nn, O(0, 2 * a + nn) + 4) for nn in (0, 1)]; some(3)
    S.emit(I(".p2align 3", "#"))
    for x in align8(fix_hazards(E, S.out[-10:]), False): S.emit(x)
    mark(12)
    B = []
    for t in G[1]: B += pv(15, t) + qk(15, t)
    for t in G[1]: B += pv(16, t)
    for t in G[1]: B += pv(17, t)
    g0 = S.gap
    halves = [(t, a) for t in G[0][1:] for a in (0, 1)]
    step = (len(B) - 14) / len(halves)
    for i, (t, a) in enumerate(halves):
        g = g0 + int(i * step)
        for k in (0, 1): fix(("lw", t, a, k), o_write(t, 2 * a + k, O(t, 2 * a + k)), [], g + 3 * k)
        for k in (0, 1): fix(("ob", t, a, k), back(t, a, k, O(t, 2 * a + k) + 4), [("lw", t, a, 0), ("lw", t, a, 1)], g + 5 + k)
        for k in (0, 1): fix(("oo", t, a, k), out(t, a, k, O(t, 2 * a + k) + 4), [("ob", t, a, k)], g + 11 + 2 * k)
    add_rows(S, G[1], vTmp, False)
    for x in ("s_cmp_lg_u64 vcc, 0", f"s_cselect_b32 s{sBit}, 8, 0", f"s_or_b32 s{sFlag}, s{sFlag}, s{sBit}"): scal(sc(x), [("c1",)])
    where = {}
    for J in range(4):
        for t in G[1]:
            k, b = Oreg(t, 2 * J)
            where[(t, J)] = b if k == "v" else O(t - 5, J)
            if k == "a":
                free = [("oo", 1, J >> 1, J & 1)] if t == 6 else []
                for i, x in enumerate(acc_copy(O(t - 5, J), b)): add(("ar", t, J, i), x, free + [final_pv(t, J, i)])
    S.run(B, keep=True)
    late = [o for o in S.valu if o.key[0] == "ar"]
    S.valu = [o for o in S.valu if o.key[0] != "ar"]
    S.flush()
    mark(13)
    E = []; pend = []
    def drain(n):
        if pend:
            t, a = pend.pop()
            E.append(I(f"s_waitcnt lgkmcnt({n})", "w")); E.extend(out(t, a, nn, where[(t, 2 * a + nn)] + 4) for nn in (0, 1))
    for a in (0, 1):
        for t in G[1]:
            for J in (2 * a, 2 * a + 1):
                E += [o.ins for o in late if o.key[1:3] == (t, J)]
                convert(E, where[(t, J)], Preg(0, t)); E.append(o_write(t % 6, J, where[(t, J)]))
            E += [back(t, a, nn, where[(t, 2 * a + nn)] + 4) for nn in (0, 1)]
            drain(4); pend.append((t, a))
    drain(0)
    S.emit(I(".p2align 3", "#"))
    for x in align8(fix_hazards(E, S.out[-10:]), False): S.emit(x)
    return S.out[start:]

class Job: pass
def build_job(NT):
    J = Job(); J.NT = NT; J.carry = carry = find_carry(NT); J.body = {}
    for mode in ("q", "o", "oq"):
        S = start_job(NT, mode)
        st = run_segs(S, range(15), carry)
        st[15] = len(S.out)
        for k in range(3, 17, 2):
            while S.out[st[k] - 1].k != "M": st[k] -= 1
        bodies = [S.out[st[k]:st[k + 2]] for k in range(3, 15, 2)]
        for b in bodies[1:]:
            assert [x.t for x in b] == [x.t for x in bodies[0]], "loop body not periodic"
        J.body[mode] = bodies[0] + [sc(f"s_cbranch_scc0 L_body{mode}{NT}")]
    epi = build_tail(S)
    J.head = S.out[:st[3]] + [sc(f"s_cbranch_scc1 L_bodyo{NT}")]
    J.tail = S.out[st[15]:] + epi
    J.last = build_last(NT, carry)
    return J

def grp_batch(e):
    L = []; x = ((e + 1) & 1) * 128
    for i, (srd, blk, o) in enumerate(((sK, e + 1, 0), (sK, e + 1, 128), (sV, e - 1, x), (sV, e, x))):
        if blk >= 0:
            L += [sc(f"s_add_u32 m0, s{sWoff}, {(e & 3)*16384 + i*1024 - o}", wr=M0), sc(f"s_mov_b32 s{sT0}, {blk*8192}"), dma(vDKV, srd, sT0, o, CFG["kv"], ("grp", e))]
    return L
def q_batch(slot, base, o, tag):
    L = []
    for a in (0, 1):
        L += [sc(f"s_add_u32 m0, s{sStgB}, {slot*4096 + a*896}", wr=M0), sc(f"s_add_u32 s{sT1}, s{base}, {o}")]
        L += [dma(vQO, sQ, sT1, nn * 2048 + a * 128, CFG["q"], tag) for nn in (0, 1)]
    return L

def build_first(NT, carry, early2):
    S = Sched(NT); S.th = CFG["fth"]
    forbid = {shift(x, 2) for x in carry}
    assert all(x[1] == 2 and x[3] >= early2 for x in forbid if x[0] in ("mul", "exp", "cvt"))
    Kh = lambda p: (lambda kt, ds: ("a", (aO, aO + 32, aK)[p] + kt * 16 + ds * 4))
    V1 = lambda j, b: Oreg(4, j)
    em = lambda L: [S.emit(x) for x in L]
    fm = CFG["fm"].split(",")
    mark = lambda n: S.emit(sc(f"s_memrealtime s[{80+2*fm.index(n)}:{81+2*fm.index(n)}]")) if n in fm else None
    mark("i")
    batches = [q_batch(t, sCurO, t * 4096, ("q0", t)) for t in range(CFG["pre"], 6)]
    while len(batches) < 4: batches.append([])
    batches += [[sc(f"s_cmp_eq_u32 s{sN7c}, 1"), sc(f"s_cselect_b32 s{sU0}, s{sCurO}, {OOB:#x}")] + q_batch(1, sU0, 24576, ("q0", 6))]
    batches += [grp_batch(e) for e in (2, 3, 4)]
    kreads = lambda p: [ds128("a", Kh(p)(kt, ds)[1], vK + (ds & 1), ((p - 1) & 3) * 16384 + koff(kt, ds)) for kt, ds in KORD]
    em([I("s_waitcnt vmcnt(?)", "w", tag=("needgrp", 0)), I("s_barrier", "B")]); mark("a")
    em(batches.pop(0) + kreads(0) + kreads(1))
    em([dstr("v", V1(j, 1)[1] + 2 * kt, vV + (j >> 1), voff(j, 1, kt)) for j in range(4) for kt in (0, 1)])
    def second():
        em([I("s_waitcnt vmcnt(?)", "w", tag=("needgrp", 1)), I("s_barrier", "B")]); mark("b")
        em(batches.pop(0))
        em([dstr("a", Vreg(j, b) + 2 * kt, vV + (j >> 1), 16384 + voff(j, b, kt)) for j, b in VORD for kt in (0, 1)] + kreads(2))
        em([V(f"v_xor_b32 v{r}, 0x8000, v{r}", [r], [r]) for r in (vK, vK + 1, vV, vV + 1)])
    lastbuf = {}
    def qk(p, t, bufs):
        L = []
        war = [("pv", 2, t, 3, 0), ("pv", 1, t, 3, 1), ("sum", 1, t >> 1)] if p == 2 else []
        for kt, sb in enumerate(bufs):
            add_softmax(S, p, kt, t, sb, war)
            L += qk_chain(p, kt, t, sb, lastbuf.get(sb, []), Kh(p), None); lastbuf[sb] = [("cvt", p, kt, t, h) for h in (0, 1)]
        return L
    r1 = lambda t: pv_tile(1, t, V1, None)
    r2 = lambda t: pv_tile(2, t, None, None)
    done2 = 0; held = []
    for t in range(NT):
        if t == 4: split = len(S.out)
        end = t == NT - 1
        if t == 1: second()
        if t == 2: em([I("s_waitcnt lgkmcnt(0)", "w"), I("s_barrier", "B", tag=("bar", 1))])
        mark(f"p{t}")
        S.emit(I("s_waitcnt vmcnt(?)", "w", tag=("needq0", t))); mark(f"w{t}")
        em([q_read(t, ds, 1 if t == 6 else t) for ds in range(4)])
        while batches:
            em(batches.pop(0))
            if not end: break
        mf = held + qk(0, t, (vS, vS + 4)) + qk(1, t, (vS + 8, vS + 12)); held = []
        S.forbid = forbid
        if not end:
            own = (r1(t) if t < 5 else []) + sum_tile(1, t) + (r2(t) if t < 4 else []) + sum_tile(2, t)
            late = t < CFG["fpipe"]
            if late: held = own
            else: mf += own
            lim = min(early2 if t < 4 else min(x[3] for x in forbid if x[0] == "cvt"), (t + 1 - late) & ~1, 4, done2 + 1 if late else 4)
            while done2 < lim: mf += qk(2, done2, (vS + 8 * (done2 & 1 and not late), vS + 4 + 8 * (done2 & 1 and not late))); done2 += 1
            S.run(mf, keep=True); S.flush()
            continue
        g0 = S.gap
        for x in range(5, NT): mf += r1(x)
        mf += sum_tile(1, t)
        left = list(range(done2, NT - PHI))
        for x in range(4, NT):
            mf += r2(x) + (sum_tile(2, x) if x == t else [])
            if x == NT - 1 or len(left) > NT - 1 - x:
                while left and (x == NT - 1 or len(left) > NT - 1 - x):
                    y = left.pop(0); mf += qk(2, y, (sbuf(NT, 2, 0, y), sbuf(NT, 2, 1, y)))
        gv = g0 + [m[0] for m in mf].index(("pv", 2, NT - 1, 0, 0))
        S.add(S.scal, Op(("wb", 2), I("s_waitcnt vmcnt(?)", "w", tag=("needgrp", 2)), [], gv - 3))
        S.add(S.fixed, Op(("bar", 2), I("s_barrier", "B", tag=("bar", 2)), [("wb", 2)], gv - 2))
        prev = [("bar", 2)]
        for j, b in VORD:
            for kt in (0, 1):
                S.add(S.fixed, Op(("vr", 3, j, b, kt), v_read(3, j, b, kt), prev + [("pv", 2, NT - 1, j, b)], gv)); prev = [("vr", 3, j, b, kt)]
        S.run(mf, cut=True)
        while S.out[-1].k != "M": S.out.pop()
        T = []
        for j in range(6):
            T.append([sc(f"s_mov_b32 m0, s{sStg}", wr=M0), sc(f"s_add_u32 s{sStg}, s{sStg}, 1024"), dma(vQO, sQx, None, 0, CFG["q"], ("q", 1 + j // 3, j % 3))])
            T.append([sc(x) for x in bump(sQx, f"s{sD}") + [f"s_xor_b32 s{sD}, s{sD}, 0x700"]])
        ms = [i for i, x in enumerate(S.out) if x.k == "M"][-len(mf) + 8:][:2 * len(T):2]
        assert len(ms) == len(T)
        for i, g in reversed(list(zip(ms, T))): S.out[i + 1:i + 1] = g
    return S.out[:split], S.out[split:]

def sigma(x, d, t):
    return [f"v_bfe_u32 v{d}, v{x}, 1, 1", f"v_lshrrev_b32 v{t}, 3, v{x}", f"v_xor_b32 v{t}, v{t}, v{x}", f"v_and_b32 v{t}, 1, v{t}",
            f"v_lshl_or_b32 v{d}, v{t}, 1, v{d}", f"v_and_b32 v{t}, 4, v{x}", f"v_or_b32 v{d}, v{d}, v{t}"]
def swz_addr(row, col, d, t):
    return sigma(row, d, t) + [f"v_xor_b32 v{d}, v{d}, v{col}", f"v_lshlrev_b32 v{d}, 4, v{d}", f"v_and_b32 v{t}, 7, v{row}",
                               f"v_lshl_add_u32 v{d}, v{t}, 7, v{d}", f"v_lshrrev_b32 v{t}, 3, v{row}"]
def stg_addr(row, col, d, t):
    return [f"v_and_b32 v{t}, 7, v{row}", f"v_xor_b32 v{d}, v{t}, v{col}", f"v_lshlrev_b32 v{d}, 4, v{d}", f"v_lshl_add_u32 v{d}, v{t}, 7, v{d}"]

def stamp():
    if not CFG["stamp"]: return []
    x = vTmp + 2
    L = [sc(t) for t in (f"s_memtime s[{sTm}:{sTm+1}]", f"s_memrealtime s[{sTm+2}:{sTm+3}]", "s_waitcnt lgkmcnt(0)", "s_mov_b64 exec, 1")]
    for n, (a, b) in enumerate(((sTm, sTm + 2), (80, 82), (84, 86))):
        L += [sc(f"v_mov_b32 v{x}, s{a}"), sc(f"v_mov_b32 v{x+1}, s{b}"),
              I(f"buffer_store_dwordx2 v[{x}:{x+1}], off, s[{sDbg}:{sDbg+3}], s{sStampOff} offset:{8*n}", "S"), sc("s_nop 1")]
    return L + [sc("s_mov_b64 exec, -1"), sc(f"s_add_u32 s{sStampOff}, s{sStampOff}, 32"), sc("s_nop 3")]

def prologue():
    P = []
    A = lambda t: P.append(sc(t))
    if CFG["diag_tot"]: A("s_memrealtime s[96:97]")
    pm = lambda i: A(f"s_memrealtime s[{92+2*i}:{93+2*i}]") if CFG["stamp"] == 3 else None
    pm(0)
    A("s_cmp_ge_u32 s2, 256"); A("s_cbranch_scc1 L_exit")
    if CFG["again"]:
        A(f"s_mov_b32 s3, {CFG['again']}"); P.append(I("L_again:", "#"))
    A("s_load_dwordx4 s[80:83], s[0:1], 0"); A("s_load_dwordx4 s[84:87], s[0:1], 16")
    if CFG["stamp"]: A(f"s_load_dwordx2 s[{sDbg}:{sDbg+1}], s[0:1], 40")
    A("s_getpc_b64 s[100:101]"); P.append(I("L_pf:", "#")); A(f"v_lshlrev_b32 v{vPf}, 7, v0")
    A(f"v_min_u32 v{vPt}, L_job7-L_pf, v{vPf}")
    if CFG["pfpos"] == 0: P.append(code_touch(100))
    for d, lab in ((sPfA, "L_job7"), (sPfB, "L_end_code")):
        A(f"s_add_u32 s{d}, s100, {lab}-L_pf"); A(f"s_addc_u32 s{d+1}, s101, 0")
    A("v_lshrrev_b32 v20, 6, v0"); A("v_and_b32 v21, 63, v0"); A(f"v_readfirstlane_b32 s{sW}, v20")
    A(f"s_and_b32 s{sT0}, s2, 7"); A(f"s_lshr_b32 s{sT1}, s2, 3"); A(f"s_and_b32 s{sRole}, s{sT1}, 1"); A(f"s_lshr_b32 s{sT1}, s{sT1}, 1")
    A(f"s_lshl_b32 s{sT0}, s{sT0}, 4"); A(f"s_add_u32 s{sT0}, s{sT0}, s{sT1}")
    if CFG["samehead"]: A(f"s_mov_b32 s{sT0}, 0")
    A(f"s_mul_i32 s{sT1}, s{sT0}, {4*QH}"); A(f"s_lshl_b32 s{sT0}, s{sT0}, 19")
    A("v_lshrrev_b32 v22, 3, v21"); A("v_and_b32 v23, 7, v21")
    for x in sigma(22, 24, 25): A(x)
    A("v_xor_b32 v24, v24, v23"); A("v_lshlrev_b32 v24, 4, v24"); A(f"v_lshl_add_u32 v{vDKV}, v22, 8, v24")
    A("v_xor_b32 v24, v22, v23"); A("v_lshlrev_b32 v24, 4, v24"); A(f"v_lshl_add_u32 v{vQO}, v22, 8, v24")
    A(f"s_and_b32 s{sT2}, s{sW}, 1"); A(f"s_lshl_b32 s{sT2}, s{sT2}, 5"); A(f"s_lshl_b32 s{sT3}, s{sW}, 11"); A(f"s_lshl_b32 s{sWoff}, s{sW}, 12")
    A(f"v_xor_b32 v{vDKV}, s{sT2}, v{vDKV}"); A(f"v_add_u32 v{vDKV}, s{sT3}, v{vDKV}")
    A(f"s_mul_i32 s{sStgB}, s{sW}, 24576")
    for d, f, n7, base in ((sOffA, sN7A, CFG["split"] - 24, 0), (sOffB, sN7B, CFG["total"] - CFG["split"] - 24, CFG["split"] * 4096)):
        A(f"s_min_u32 s{d}, s{sW}, {n7}"); A(f"s_cselect_b32 s{f}, 1, 0"); A(f"s_lshl_b32 s{d}, s{d}, 12")
        A(f"s_add_u32 s{d}, s{d}, s{sStgB}"); A(f"s_add_u32 s{d}, s{d}, {base}")
    A(f"s_add_u32 s{sStgB}, s{sStgB}, 65536")
    A(f"s_mov_b32 s{sJob}, -1")
    P += params_next()
    pm(1)
    A("s_waitcnt lgkmcnt(0)")
    for srd, src, o, n in ((sK, 82, sT0, 4 * KH), (sV, 84, sT0, 4 * KH), (sQ, 80, sT1, 4 * QH), (sO, 86, sT1, 0 if CFG["nostore"] else 4 * QH)):
        A(f"s_add_u32 s{srd}, s{src}, s{o}"); A(f"s_addc_u32 s{srd+1}, s{src+1}, 0"); A(f"s_mov_b32 s{srd+2}, {n}"); A(f"s_mov_b32 s{srd+3}, 0x20000")
    if CFG["stamp"]:
        A(f"s_mov_b32 s{sDbg+2}, 0x1000000"); A(f"s_mov_b32 s{sDbg+3}, 0x20000")
        A(f"s_lshl_b32 s{sStampOff}, s2, 2"); A(f"s_add_u32 s{sStampOff}, s{sStampOff}, s{sW}"); A(f"s_lshl_b32 s{sStampOff}, s{sStampOff}, 10")
    P += stamp() if CFG["stamp"] == 1 else []
    pm(2)
    ga, gb, q0 = grp_batch(-1), grp_batch(0), q_batch(0, sNxt, 0, ("q0", 0))
    if CFG["ord"] == 0: P += ga + gb + q0
    elif CFG["ord"] == 1: P += q0[:4] + ga[:3] + gb[6:] + ga[3:] + gb[:6] + q0[4:]
    elif CFG["ord"] == 2: P += q0 + gb[6:] + ga + gb[:6]
    if CFG["pfpos"] == 3: P.append(code_touch(100))
    P += grp_batch(1)
    for t in range(1, CFG["pre"]): P += q_batch(t, sNxt, t * 4096, ("q0", t))
    pm(3)
    if CFG["stamp"] == 3:
        A("s_waitcnt lgkmcnt(0)")
        for i in range(4): A(f"s_mov_b32 s{80+2*i}, s{92+2*i}")
        P += stamp()
    A("v_and_b32 v22, 15, v21"); A("v_lshrrev_b32 v23, 4, v21")
    for x in swz_addr(22, 23, 24, 25): A(x)
    A(f"v_lshl_add_u32 v{vK}, v25, 12, v24"); A(f"v_xor_b32 v{vK+1}, 64, v{vK}")
    for x in stg_addr(22, 23, 24, 25): A(x)
    A("v_lshrrev_b32 v25, 1, v22"); A("v_xor_b32 v25, v25, v22"); A("v_bfe_u32 v25, v25, 2, 1"); A("v_lshl_add_u32 v24, v25, 11, v24")
    A(f"v_add_u32 v{vSt}, s{sStgB}, v24"); A(f"v_xor_b32 v{vSt+1}, 64, v{vSt}")
    A(f"s_add_u32 s{sT2}, s{sWoff}, 49152"); A(f"v_add_u32 v{vQ6}, s{sT2}, v24"); A(f"v_xor_b32 v{vQ6+1}, 64, v{vQ6}")
    A(f"v_lshl_add_u32 v{vLin}, v21, 4, s{sStgB}"); A(f"v_add_u32 v{vLin}, 24576, v{vLin}")
    A("v_lshrrev_b32 v22, 2, v21"); A("v_and_b32 v23, 3, v21")
    for x in swz_addr(22, 23, 24, 25): A(x)
    A(f"v_lshl_add_u32 v{vV}, v25, 12, v24"); A(f"v_xor_b32 v{vV+1}, 64, v{vV}")
    if "vcf" in CFG["x"]:
        A("v_and_b32 v24, 1, v21"); A(f"v_lshl_add_u32 v{vV}, v24, 3, v{vV}"); A(f"v_lshl_add_u32 v{vV+1}, v24, 3, v{vV+1}")
    A(f"s_mov_b32 s{sC}, {f2u(1.0 if 'c1' in CFG['x'] else SCALE):#x}")
    A(f"s_mov_b32 s{sHi}, {f2u(2.0**CFG['hi']):#x}")
    A(f"s_mov_b32 s{sFlag}, {CFG['forcefb']}")
    for d, b, blk in ((sVa, sV, 4), (sVb, sV, 5), (sKx, sK, 6)):
        A(f"s_add_u32 s{d}, s{b}, {blk*8192}"); A(f"s_addc_u32 s{d+1}, s{b+1}, 0"); A(f"s_mov_b32 s{d+2}, 8192")
    for d in (sKx, sVa, sVb, sQx, sOx): A(f"s_mov_b32 s{d+3}, 0x20000")
    A(f"s_mov_b32 s{sCnt}, 6"); A(f"s_add_u32 s{sM}, s{sWoff}, 16384"); A(f"s_mov_b32 s{sCurO}, 0"); A(f"s_mov_b32 s{sOx+2}, {0 if CFG['nostore'] else 4096}")
    A("v_and_b32 v22, 1, v21"); A("v_mul_u32_u24 v22, 0xaaaa, v22"); A(f"v_add_u32 v{vIdx}, 0x4444, v22"); A(f"v_lshl_or_b32 v{vIdx}, v{vIdx}, 16, v{vIdx}")
    A("v_lshrrev_b32 v22, 4, v21"); A("v_xor_b32 v22, v22, v21"); A("v_and_b32 v23, 2, v22")
    A("v_cmp_eq_u32 vcc, 0, v23"); A("v_mov_b32 v24, 0x3f803f80"); A("s_nop 0"); A("v_cndmask_b32 v22, 0, v24, vcc")
    for i in range(4): A(f"v_mov_b32 v{vOne+i}, v22")
    for i in range(16): A(f"v_accvgpr_write_b32 a{aL+i}, 0")
    return P + advance()

def job_switch(NT):
    L = []
    if CFG["diag_mark"] > 0: L = [sc(f"s_cmp_lg_u32 s{sJob}, {CFG['diag_mark']}"), sc(f"s_cbranch_scc1 L_nomark{NT}"), sc("s_memrealtime s[96:97]"), I(f"L_nomark{NT}:", "#")]
    L += stamp() + [sc(f"s_cmp_eq_u32 s{sN7c}, 1"), sc("s_cbranch_scc1 L_job7")]
    return L + ([sc("s_branch L_job6")] if NT == 6 else [])

def final():
    L = [I("L_final:", "#")]
    if CFG["diag_mark"] == 4: L.append(sc("s_memrealtime s[96:97]"))
    if CFG["stamp"]: L += stamp() + stamp() + [I("s_waitcnt vmcnt(0)", "w")] + stamp()
    return L

def fallback():
    L = []; A = L.append
    q, k, s0, pb, vf, o, lacc, m, t0, va, pa, one = 20, 36, 52, 60, 64, 72, 104, 108, 109, 112, 114, 116
    sJ, sN, sRow, sKb, sI, sU = sU0, sU1, sU2, sU3, sLoop, sD
    MF = "v_mfma_f32_16x16x32_bf16"
    A(f"s_cmp_eq_u32 s{sFlag}, 0"); A("s_cbranch_scc1 L_done")
    A("s_waitcnt vmcnt(0) lgkmcnt(0)")
    A("v_and_b32 v21, 63, v0"); A("v_and_b32 v22, 15, v21"); A("v_lshrrev_b32 v23, 4, v21")
    A(f"v_lshlrev_b32 v{vDir}, 8, v22"); A(f"v_lshl_add_u32 v{vDir}, v23, 4, v{vDir}")
    A("v_lshrrev_b32 v22, 2, v21"); A("v_and_b32 v23, 3, v21")
    L += stg_addr(22, 23, 24, 25) + ["v_lshrrev_b32 v25, 3, v22"]
    A(f"v_lshl_add_u32 v{va}, v25, 11, v24"); A(f"v_add_u32 v{va}, s{sStgB}, v{va}"); A(f"v_xor_b32 v{va+1}, 64, v{va}")
    A(f"v_xor_b32 v{pa}, 16, v21"); A(f"v_lshlrev_b32 v{pa}, 2, v{pa}"); A(f"v_xor_b32 v{pa+1}, 32, v21"); A(f"v_lshlrev_b32 v{pa+1}, 2, v{pa+1}")
    for i in range(4): A(f"v_mov_b32 v{one+i}, 0x3f803f80")
    A(f"s_mov_b32 s{sJob}, -1")
    A("L_fb_job:")
    L += [x.t for x in params_next()]
    A(f"s_add_u32 s{sJob}, s{sJob}, 1"); A(f"s_cmp_eq_u32 s{sJob}, 4"); A("s_cbranch_scc1 L_done")
    A(f"s_lshr_b32 s{sJ}, s{sFlag}, s{sJob}"); A(f"s_and_b32 s{sJ}, s{sJ}, 1"); A("s_cbranch_scc0 L_fb_job")
    A(f"s_add_u32 s{sN}, s{sN7n}, 5"); A(f"s_mov_b32 s{sRow}, s{sNxt}")
    A("L_fb_tile:")
    for ds in range(4): A(f"buffer_load_dwordx4 {rs('v', q+4*ds, 4)}, v{vDir}, s[{sQ}:{sQ+3}], s{sRow} offen{off(ds*64)}")
    def scores(dst):
        for ds in range(4): A(f"buffer_load_dwordx4 {rs('v', k+4*ds, 4)}, v{vDir}, s[{sK}:{sK+3}], s{sKb} offen{off(ds*64)}")
        A("s_waitcnt vmcnt(0)")
        for ds in range(4): A(f"{MF} {rs('v', dst, 4)}, {rs('v', k+4*ds, 4)}, {rs('v', q+4*ds, 4)}, {'0' if ds == 0 else rs('v', dst, 4)}")
        A(f"s_add_u32 s{sKb}, s{sKb}, 4096"); A("s_nop 7")
    A(f"v_mov_b32 v{m}, 0xff800000"); A(f"s_lshl_b32 s{sKb}, s{sJob}, 17"); A(f"s_mov_b32 s{sI}, 31")
    A("L_fb_max:")
    scores(s0)
    A(f"v_max3_f32 v{m}, v{m}, v{s0}, v{s0+1}"); A(f"v_max3_f32 v{m}, v{m}, v{s0+2}, v{s0+3}")
    A(f"s_sub_u32 s{sI}, s{sI}, 1"); A("s_cbranch_scc0 L_fb_max")
    for i in (0, 1):
        A(f"ds_bpermute_b32 v{t0}, v{pa+i}, v{m}"); A("s_waitcnt lgkmcnt(0)"); A(f"v_max_f32 v{m}, v{m}, v{t0}")
    for i in range(36): A(f"v_mov_b32 v{o+i}, 0")
    A(f"s_lshl_b32 s{sKb}, s{sJob}, 17"); A(f"s_mov_b32 s{sI}, 15")
    A("L_fb_pv:")
    for kt in (0, 1):
        for a in (0, 1):
            A(f"s_add_u32 m0, s{sStgB}, {kt*4096 + a*896}"); A(f"s_add_u32 s{sU}, s{sKb}, {kt*4096}")
            for nn in (0, 1): A(f"buffer_load_dwordx4 v{vQO}, s[{sV}:{sV+3}], s{sU} offen{off(nn*2048 + a*128)} lds")
    scores(s0); scores(s0 + 4)
    for r in range(8): A(f"v_sub_f32 v{s0+r}, v{s0+r}, v{m}")
    for r in range(8): A(f"v_mul_f32 v{s0+r}, s{sC}, v{s0+r}")
    for r in range(8): A(f"v_exp_f32 v{s0+r}, v{s0+r}")
    A("s_nop 0")
    for r in range(4): A(f"v_cvt_pk_bf16_f32 v{pb+r}, v{s0+2*r}, v{s0+2*r+1}")
    A("s_nop 1")
    A(f"{MF} {rs('v', lacc, 4)}, {rs('v', one, 4)}, {rs('v', pb, 4)}, {rs('v', lacc, 4)}")
    for dj in range(8):
        J, h = dj >> 1, dj & 1; f = vf + 4 * (dj & 1)
        for kt in (0, 1): A(f"ds_read_b64_tr_b16 {rs('v', f+2*kt, 2)}, v{va + (J & 1)}{off(kt*4096 + (J >> 1)*1024 + 8*h)}")
        A("s_waitcnt lgkmcnt(0)")
        A(f"{MF} {rs('v', o+4*dj, 4)}, {rs('v', f, 4)}, {rs('v', pb, 4)}, {rs('v', o+4*dj, 4)}")
    A(f"s_sub_u32 s{sI}, s{sI}, 1"); A("s_cbranch_scc0 L_fb_pv")
    A("s_nop 7"); A(f"v_rcp_f32 v{t0}, v{lacc}"); A("s_nop 0")
    for i in range(32): A(f"v_mul_f32 v{o+i}, v{t0}, v{o+i}")
    for J in range(4):
        for i in range(4): A(f"v_cvt_pk_bf16_f32 v{o+8*J+i}, v{o+8*J+2*i}, v{o+8*J+2*i+1}")
        A(f"buffer_store_dwordx4 {rs('v', o+8*J, 4)}, v{vDir}, s[{sO}:{sO+3}], s{sRow} offen{off(J*64)}")
    A("s_waitcnt vmcnt(0)")
    A(f"s_add_u32 s{sRow}, s{sRow}, 4096"); A(f"s_sub_u32 s{sN}, s{sN}, 1"); A("s_cbranch_scc0 L_fb_tile")
    A("s_branch L_fb_job")
    A("L_done:")
    return [I(x, "#" if x.endswith(":") else "s") for x in L]

def resolve(pro, jobs, fin):
    best = {}
    for seqn in ([7, 7, 7, 7], [7, 6, 7, 6], [6, 7, 6, 7], [6, 6, 6, 6]):
        dyn = [(x, 0) for x in pro]
        for j, v in enumerate(seqn):
            J = jobs[v]; b = 16 * j
            dyn += [(x, b) for x in (jobs[7].fcom + J.first if j == 0 else J.head)]
            for it in range(6): dyn += [(x, b + 2 * it) for x in J.body[("q", "oq", "oq", "o")[j]]]
            dyn += [(x, b) for x in (J.tail + J.sw if j < 3 else J.last)]
        dyn += [(x, 64) for x in fin]
        vm = []; epoch = -2
        for x, b in dyn:
            if x.k == "B": epoch = (x.tag[1] + b) if x.tag else -1
            if x.k == "D" and x.tag and x.tag[0] == "ring":
                assert x.tag[1] + b == epoch, ("ring read outside its epoch", x.t, x.tag, b, epoch)
            if x.k in "XLS":
                tg = x.tag
                if tg and tg[0] in ("grp", "q"): tg = shift(tg, b)
                if tg and tg[0] == "grp": assert epoch == -2 or tg[1] - 4 < epoch, ("dma overwrites live group", x.t)
                vm.append(tg)
            if x.k == "w" and x.tag:
                want = (x.tag[0][4:],) + tuple(x.tag[1:])
                if want[0] in ("grp", "q"): want = shift(want, b)
                idx = max(i for i, t in enumerate(vm) if t == want)
                n = min(63, len(vm) - 1 - idx)
                best[id(x)] = (x, min(n, best.get(id(x), (x, 99))[1]))
        seq = [x for x, _ in dyn]
        last = None
        for x in seq:
            op = x.t.split()[0]
            if op == "s_addc_u32":
                a = int(re.match(r"s_addc_u32 s(\d+)", x.t).group(1))
                assert last.startswith(f"s_add_u32 s{a-1},"), (last, x.t)
            if op == "s_cselect_b32": assert re.match(r"s_(cmp|and_b32|or_b64|min)", last), (last, x.t)
            if x.t.startswith("s_cbranch_scc0 L_body"): assert last.startswith(f"s_sub_u32 s{sLoop},"), last
            elif op.startswith("s_cbranch_scc"): assert last.startswith("s_cmp"), (last, x.t)
            if re.match(r"s_(add|sub|and|or|xor|lshl|lshr|cmp|min)", op): last = x.t
        check_lgkm(seq)
        bad = hazards(seq)
        assert not bad, bad[:5]
    for x, n in best.values(): x.t = x.t.replace("?", str(n))

def main():
    jobs = {nt: build_job(nt) for nt in (7, 6)}
    mt = lambda i: [sc(f"s_memtime s[{80+2*i}:{81+2*i}]")] if CFG["stamp"] else []
    for nt, J in jobs.items():
        J.fcom, J.first = build_first(nt, J.carry, min(x[3] for K in jobs.values() for x in K.carry if x[0] == "cvt"))
        assert [x.t for x in J.fcom] == [x.t for x in jobs[7].fcom]
        if CFG["diag_mark"] == 0: J.first.append(sc("s_memrealtime s[96:97]"))
        J.first += stamp() + mt(0) + mt(1) + [sc("s_nop 4")]
        J.sw = job_switch(nt)
    jobs[7].fcom += [sc(f"s_cmp_eq_u32 s{sN7c}, 0"), sc("s_cbranch_scc1 L_first6")]
    pro = prologue(); fin = final()
    resolve(pro, jobs, fin)
    info = []
    for nt, J in jobs.items():
        nm = lambda s: sum(x.k == "M" for x in s)
        t = " ".join(f"{n}: {cycles(s)}c iss {issue_sum(s)} pipe {nm(s)*16} |" for n, s in (("head", J.head), *J.body.items(), ("tail", J.tail), ("last", J.last), ("first", jobs[7].fcom + J.first)))
        info.append(f"NT={nt} carry={len(J.carry)} {t} total={cycles(J.head + 6 * J.body['oq'] + J.tail + J.sw)}")
    o = open("header.txt").read().rstrip("\n").split("\n")
    o += ['.amdgcn_target "amdgcn-amd-amdhsa--gfx950"', ".text", f".globl {NAME}_kernel", ".p2align 8", f".type {NAME}_kernel,@function", f"{NAME}_kernel:"]
    X = CFG["x"].split()
    def keep(x):
        if "mul" in X and x.t.startswith("v_mul_f32") and f"s{sC}," in x.t and x.k == "V": return None
        if "sum" in X and "smfmac" in x.t: return None
        if "nofb" in X and x.t == f"s_cmp_eq_u32 s{sFlag}, 0": return "s_cmp_eq_u32 0, 0"
        if "norcp" in X and x.t.startswith("v_rcp_f32") and x.k == "E": return x.t.split(",")[0].replace("v_rcp_f32", "v_sqrt_f32") + ", 1.0"
        if inbody[0]:
            if "ds" in X and x.k == "D": return "v_mov_b32 v12, v12"
            if "kvdma" in X and x.k == "X" and x.tag[0] == "grp": return "v_mov_b32 v12, v12"
            if "st" in X and x.k == "S": return "v_mov_b32 v12, v12"
            if "bar" in X and x.k == "B": return "s_nop 2"
        return x.t
    inbody = [False]; intail = [False]
    put = lambda s: o.extend(("" if x.k == "#" else "    ") + keep(x) for x in s if keep(x) is not None)
    def loop(J, mode):
        o.append(f"L_body{mode}{J.NT}:"); inbody[0] = True; put(J.body[mode]); inbody[0] = False
    put(pro); put(jobs[7].fcom)
    for nt, J in jobs.items():
        o.append(f"L_first{nt}:"); put(J.first); loop(J, "q"); o.append(f"    s_branch L_tail{nt}")
    for nt, J in jobs.items():
        o.append(f"L_job{nt}:"); put(mt(0)); put(J.head[:-1] + mt(1) + J.head[-1:]); loop(J, "oq")
        o.append(f"L_tail{nt}:"); put(mt(2)); put(mt(3)); intail[0] = True; put(J.tail); intail[0] = False; put(J.sw)
    o.append("L_end_code:")
    for nt, J in jobs.items():
        loop(J, "o"); put(mt(2)); put(mt(3)); put(J.last)
        if nt == 7: o.append("    s_branch L_final")
    put(fin); put(fallback())
    if CFG["again"]:
        o += ["    s_waitcnt vmcnt(0) lgkmcnt(0)", "    s_barrier", "    s_sub_u32 s3, s3, 1", "    s_cbranch_scc0 L_again"]
    if CFG["diag_tot"]:
        o += ["    s_waitcnt vmcnt(0) lgkmcnt(0)", "L_diag:", "    s_memrealtime s[94:95]", "    s_waitcnt lgkmcnt(0)",
              "    s_sub_u32 s94, s94, s96", f"    s_cmp_lt_u32 s94, {CFG['diag_tot']}", "    s_cbranch_scc1 L_diag"]
    o += ["L_exit:", "    s_endpgm", "L_code_end:"]
    while True:
        pos = 0; fixat = None
        for k in range(o.index(f"{NAME}_kernel:"), len(o)):
            t = o[k].strip()
            if fixat is None and k < o.index("L_final:"):
                if t.startswith("s_cbranch_scc0 L_body") and pos % 32 == 0: fixat = o.index(t.split()[1] + ":")
                elif ("branch" in t and pos % 32 == 0) or (t.endswith(":") and t != "L_pf:" and pos % 32 == 28): fixat = k
            if t.startswith(".p2align"): a = 1 << int(t.split()[1]); pos = (pos + a - 1) // a * a
            elif not t.endswith(":"): pos += size(t)
        if fixat is None: break
        o.insert(fixat, "    s_nop 0")
    info.append(f"code bytes {pos}")
    o += ['.section .rodata,"a"', ".p2align 6", f".amdhsa_kernel {NAME}_kernel",
          "  .amdhsa_next_free_vgpr 512", "  .amdhsa_next_free_sgpr 102", "  .amdhsa_accum_offset 256",
          "  .amdhsa_group_segment_fixed_size 0", "  .amdhsa_kernarg_size 48", "  .amdhsa_user_sgpr_count 2",
          "  .amdhsa_user_sgpr_kernarg_segment_ptr 1", "  .amdhsa_system_sgpr_workgroup_id_x 1", ".end_amdhsa_kernel"]
    open(sys.argv[1], "w").write("\n".join(o) + "\n")
    print("\n".join(info), file=sys.stderr)

main()
```

```python
import sys, math, struct, re
from asmlib import *

NAME = "standalone__gqa_softmax__near_ridge"
CFG = dict(k="", v="", lastdef=1, q="nt", o="nt", ol="nt", th=44, hth=30, tth=12, fth=16, lth=24, sp=7, sh6=3, sroom=4, pre=2, ord=0, pfpos=0, split=27, total=53,
           phi=2, q4=1, kvpf=11, kvsh=5, less=0, zz=1, dd=9, fpipe=1, fm="", qo0=12, kw=3, lo=-30, hi=30,
           stamp=0, samehead=0, nostore=0, again=0, tmark=-1, x="", diag_tot=0, diag_mark=-1, forcefb=0)
for a in sys.argv[2:]:
    k, v = a.split("=", 1)
    assert k in CFG, k
    CFG[k] = int(v) if re.fullmatch(r"-?\d+", v) else v.replace("+", " ")

QH, KH = 217088, 131072
SCALE = math.log2(math.e) / math.sqrt(128.0)
def f2u(x): return struct.unpack("<I", struct.pack("<f", x))[0]

vK, vV, vDKV, vQO, vLin, vSt, vQ6 = 1, 3, 5, 6, 7, 8, 10
vTmp, vOne = 12, 16
vS = 20
vP = 36
vO = 92
vIdx, vDir = 252, 253
vPf, vPt, vSink = 253, 254, 255
aQ, aK, aV, aL, aO = 0, 112, 144, 176, 192
sQ, sK, sV, sO = 4, 8, 12, 16
(sC, sW, sJob, sCnt, sU0, sU1, sU2, sM, sU3, sD, sOp, sStg, sLoop, sCurO, sNxt, sN7c, sN7n, sFlag, sRole,
 sT0, sT1, sT2, sT3, sWoff, sStgB, sOffA, sOffB, sLo, sHi, sBit, sN7A, sN7B) = range(20, 52)
sPfA, sPfB = 52, 54
sPair = 56
sStampOff = 58
sDbg = 60
sKx, sVa, sQx, sOx, sVb = 64, 68, 72, 76, 88
sTm = 92
OOB = 0x100000

def Oreg(t, dj):
    return ("v", vO + t * 32 + dj * 4) if t < 5 else ("a", aO + (t - 5) * 32 + dj * 4)
def Preg(p, t):
    return vP + t * 4 if not p & 1 else vP + 28 + ((t + 1) % 7) * 4
def Qreg(t, ds): return aQ + (t * 4 + ds) * 4
def sbuf(NT, p, kt, t): return vS + (((p * NT + t) * 2 + kt) & 3) * 4
def pdeps(p, t): return [("cvt", p, kt, t, h) for kt in (0, 1) for h in (0, 1)]
def sc(t, rd=(), wr=()): return I(t, "s", rd=rd, wr=wr)
def fl(x): return (" " + x) if x else ""
def off(x): return f" offset:{x}" if x else ""
def V(t, rd, wr, k="V"): return I(t, k, rd=[("v", r) if isinstance(r, int) else r for r in rd], wr=[("v", r) if isinstance(r, int) else r for r in wr])
COST = {"V": 1, "E": 2, "D": 1}
M0 = [("m", 0)]

class Op:
    def __init__(self, key, ins, deps=(), target=None, rel=None):
        self.key = key; self.ins = ins; self.deps = list(deps); self.target = target; self.rel = rel

class Sched:
    def __init__(self, NT):
        self.NT = NT
        self.out = []; self.done = set(); self.pend = []
        self.valu = []; self.fixed = []; self.scal = []; self.flex = []
        self.forbid = set(); self.gap = 0
        self.bykey = {}; self.th = CFG["th"]; self.mode = "oq"
    def add(self, q, op):
        q.append(op); self.bykey[op.key] = op
    def emit(self, ins, key=None):
        if ins.k == "w":
            m = re.search(r"lgkmcnt\((\d+)\)", ins.t)
            if m:
                n = int(m.group(1))
                if n < len(self.pend): self.pend = self.pend[len(self.pend) - n:] if n else []
        self.out.append(ins)
        if ins.k in "DW": self.pend.append(ins)
        if key is not None: self.done.add(key)
    def haz(self, ins):
        dist = 0; miss = 0
        for p in reversed(self.out):
            miss = max(miss, need(p, ins) - dist)
            dist += states(p)
            if dist >= 8: break
        return miss
    def lgkm_need(self, inss):
        idx = -1
        for ins in inss:
            t = set(ins.rd) | set(ins.c) | set(ins.wr)
            for i, p in enumerate(self.pend):
                if set(p.wr) & t: idx = max(idx, i)
        return None if idx < 0 else min(15, len(self.pend) - 1 - idx)
    def ready(self, op):
        return op.key not in self.forbid and all(d in self.done for d in op.deps) and \
            (op.target is None or op.target <= self.gap) and self.haz(op.ins) <= 0
    def put(self, op):
        for q in (self.valu, self.fixed, self.scal, self.flex):
            if op in q: q.remove(op)
        n = self.lgkm_need([op.ins])
        if n is not None: self.emit(I(f"s_waitcnt lgkmcnt({n})", "w"))
        m = self.haz(op.ins)
        if m > 0: self.emit(I(f"s_nop {m-1}", "s"))
        self.emit(op.ins, op.key)
    def force(self, key):
        if key in self.done: return
        op = self.bykey[key]
        assert key not in self.forbid, key
        for d in op.deps: self.force(d)
        self.put(op)
    def pick(self, kinds, n):
        r = []
        for op in self.valu[:48]:
            if op.ins.k in kinds and self.ready(op):
                r.append(op)
                if len(r) == n: break
        return r
    def backlog(self):
        return sum(COST[o.ins.k] for o in self.valu if o.rel is not None and o.rel in self.done)
    def fill(self, room):
        while room > 0:
            e = self.pick("E", 1); v = self.pick("V", 2)
            if room >= 2 and e and (len(v) < 2 or self.valu.index(e[0]) < self.valu.index(v[0])):
                self.put(e[0]); room -= 2
            elif v:
                self.put(v[0]); room -= 1
            elif e and self.backlog() > self.th - 4:
                self.put(e[0]); room -= 2
            else: break
        while self.backlog() > self.th:
            c = self.pick("EV", 1)
            if not c: break
            self.put(c[0])
    def run(self, mf, look=(), cut=False, keep=False):
        allm = list(mf) + list(look)
        for i, (key, ins, deps) in enumerate(mf):
            for d in deps: self.force(d)
            if i == len(mf) - 1 and not keep:
                if cut: self.flush()
                self.forbid = set()
                self.left = [o.key for q in (self.valu, self.fixed, self.scal) for o in q]
            n = self.lgkm_need([ins])
            if n is not None: self.emit(I(f"s_waitcnt lgkmcnt({n})", "w"))
            m = self.haz(ins)
            if m > 0: self.emit(I(f"s_nop {m-1}", "s"))
            self.emit(ins, key)
            afterw = len(self.out) > 1 and self.out[-2].k == "W"
            fx = next((o for o in self.fixed if self.ready(o) and not (afterw and o.ins.k in "DW")), None)
            slot1 = False
            nxt = [x[1] for x in allm[i + 1:i + 2]]
            if self.lgkm_need(nxt) is not None:
                nxt = [x[1] for x in allm[i + 1:i + 5]]
            if fx is not None and fx.ins.k != "B": nxt = nxt + [fx.ins]
            n = self.lgkm_need(nxt)
            if n is not None:
                self.emit(I(f"s_waitcnt lgkmcnt({n})", "w")); slot1 = True
                if fx is not None and fx.ins.k == "B": fx = None
            if fx is not None and fx.ins.k == "B":
                self.put(fx); self.fill(1)
            else:
                if not slot1 and self.scal and self.ready(self.scal[0]):
                    if not (fx is not None and fx.ins.k == "X" and ("m", 0) in self.scal[0].ins.wr): self.put(self.scal[0])
                room = 1 if "smfmac" in ins.t else 2
                if fx is not None and room == 1 and fx.ins.k != "D": fx = None
                if fx is not None:
                    self.put(fx); room = {"D": room - 1, "X": 1, "L": 1, "S": CFG["sroom"], "W": 0}[fx.ins.k]
                if fx is not None and fx.ins.k == "D" and room == 1 and len(self.pick("V", CFG["dd"])) < CFG["dd"] and self.pick("E", 1):
                    self.gap += 1
                    f2 = next((o for o in self.fixed if o.ins.k == "D" and self.ready(o) and self.lgkm_need([o.ins]) is None), None)
                    self.gap -= 1
                    if f2 is not None: self.put(f2); room = 0
                if self.flex and fx is None and room == 2 and self.backlog() == 0 and not self.pick("E", 1) and not afterw:
                    f = next((o for o in self.flex if self.ready(o)), None)
                    if f is not None: self.put(f); room -= 1
                if room: self.fill(room)
            self.gap += 1
    def flush(self):
        for q in (self.fixed, self.flex, self.scal, self.valu):
            for op in list(q):
                if op.key not in self.forbid and op.key not in self.done: self.force(op.key)

def ds128(k, r, ad, o, tag=None):
    return I(f"ds_read_b128 {rs(k, r, 4)}, v{ad}{off(o)}", "D", rd=[("v", ad)], wr=R(k, r, 4), tag=tag)
def dstr(k, r, ad, o, tag=None):
    return I(f"ds_read_b64_tr_b16 {rs(k, r, 2)}, v{ad}{off(o)}", "D", rd=[("v", ad)], wr=R(k, r, 2), tag=tag)
def koff(kt, ds): return kt * 8192 + (ds >> 1) * 1024
def voff(j, b, kt): return kt * 8192 + 2048 + b * 1024 + 8 * (j & 1)
def Kreg(kt, ds): return aK + kt * 16 + ds * 4
def Vreg(j, b): return aV + (2 * j + b) * 4
def k_read(p, kt, ds): return ds128("a", Kreg(kt, ds), vK + (ds & 1), ((p - 1) & 1) * 16384 + koff(kt, ds), ("ring", p - 1))
def v_read(r, j, b, kt): return dstr("a", Vreg(j, b) + 2 * kt, vV + (j >> 1), ((r - 1) & 1) * 16384 + voff(j, b, kt), ("ring", r - 1))
def q_read(t, ds, slot=None): return ds128("a", Qreg(t, ds), vSt + (ds & 1), (t if slot is None else slot) * 4096 + (ds >> 1) * 1024)
def so_(x): return "0" if x is None else f"s{x}"
def dma(vo, srd, so, o, flags, tag):
    return I(f"buffer_load_dwordx4 v{vo}, s[{srd}:{srd+3}], {so_(so)} offen{off(o)}{fl(flags)} lds", "X", rd=[("v", vo), ("m", 0)], tag=tag)
def o_store(r, srd, so, o, flags):
    return I(f"buffer_store_dwordx4 {rs('v', r, 4)}, v{vQO}, s[{srd}:{srd+3}], {so_(so)} offen{off(o)}{fl(flags)}", "S", rd=R("v", r, 4) + [("v", vQO)])
def o_write(slot, J, b):
    ad = vSt + (J & 1)
    return I(f"ds_write_b128 v{ad}, {rs('v', b, 4)}{off(slot*4096 + (J >> 1)*1024)}", "W", rd=R("v", b, 4) + [("v", ad)])
def code_touch(base): return I(f"global_load_dword v{vSink}, v{vPt}, s[{base}:{base+1}]", "L", rd=[("v", vPt)])
def bump(srd, by): return [f"s_add_u32 s{srd}, s{srd}, {by}", f"s_addc_u32 s{srd+1}, s{srd+1}, 0"]
def shift(key, p): return (key[0], key[1] + p) + tuple(key[2:])
PHI = CFG["phi"]
KORD = [(0, 0), (0, 1), (0, 2), (0, 3), (1, 3), (1, 2), (1, 1), (1, 0)]
VORD = [(0, 0), (0, 1), (1, 1), (1, 0), (2, 0), (2, 1), (3, 1), (3, 0)]
DEFER = [(t, J) for t in range(5) for J in range(4)]

def pv_tile(r, t, home=None, vkey="vr"):
    L = []; seen = set()
    for j, b in VORD:
        blk = r - 2 + b
        if not 0 <= blk < 16: continue
        dj = (r & 1) * 4 + j; first = r <= 2 and j not in seen; seen.add(j)
        deps = pdeps(blk, t) + ([(vkey, r, j, b, kt) for kt in (0, 1)] if vkey else [])
        if first and vkey and (t, dj >> 1) in DEFER: deps.append(("ow", t, dj >> 1))
        L.append((("pv", r, t, j, b), mfma(Oreg(t, dj), home(j, b) if home else ("a", Vreg(j, b)), ("v", Preg(blk, t)), c0=first), deps))
    return L
def sum_tile(r, t):
    def one(blk):
        d = aL + 4 * (t >> 1); b = Preg(blk, t - 1) if t < 6 else Preg(0, 6)
        return (("sum", blk + 1, t >> 1), I(f"v_smfmac_f32_16x16x64_bf16 {rs('a', d, 4)}, {rs('v', vOne, 4)}, {rs('v', b, 8)}, v{vIdx}", "M",
                                            rd=R("v", vOne, 4) + R("v", b, 8) + [("v", vIdx)], wr=R("a", d, 4), c=R("a", d, 4)),
                pdeps(blk, t) + (pdeps(blk, t - 1) if t < 6 else []))
    if r > 16 or not (t & 1 or t == 6): return []
    if t == 6: return [] if r & 1 else [one(r - 1)]
    if CFG["zz"]: return [] if r & 1 else [one(r - 2), one(r - 1)]
    return [one(r - 1)]
def qk_chain(p, kt, t, sb, deps0, home=None, kkey="kr"):
    return [(("qk", p, kt, t, i), mfma(("v", sb), home(kt, ds) if home else ("a", Kreg(kt, ds)), ("a", Qreg(t, ds)), c0=(i == 0)),
             ([(kkey, p, kt, ds)] if kkey else []) + (deps0 if i == 0 else []) + ([("q6r", ds)] if (p, kt, t) == (0, 0, 6) and kkey else []))
            for i, (_, ds) in enumerate(KORD[4 * kt:4 * kt + 4])]
def seg_slots(NT, k): return [divmod(s, NT) for s in range(max(0, k * NT - PHI), min(16 * NT, (k + 1) * NT - PHI))]
def seg_mf(NT, k):
    L = []; sl = dict(((p * NT + t + PHI) % NT, (p, t)) for p, t in seg_slots(NT, k))
    for tv in range(NT):
        if k >= 1: L += pv_tile(k, tv) + sum_tile(k, tv)
        if tv in sl:
            p, t = sl[tv]
            pp, tt = divmod(p * NT + t - 2, NT)
            for kt in (0, 1): L += qk_chain(p, kt, t, sbuf(NT, p, kt, t), [("cvt", pp, kt, tt, h) for h in (0, 1)] if pp >= 0 else [])
    return L

def add_softmax(S, p, kt, t, sb, war=()):
    rel = ("qk", p, kt, t, 3)
    mul = lambda r: Op(("mul", p, kt, t, r), V(f"v_mul_f32 v{sb+r}, s{sC}, v{sb+r}", [sb + r], [sb + r]), [rel], rel=rel)
    ex = lambda r: Op(("exp", p, kt, t, r), V(f"v_exp_f32 v{sb+r}, v{sb+r}", [sb + r], [sb + r], "E"), [("mul", p, kt, t, r)], rel=rel)
    def cv(h):
        d = Preg(p, t) + 2 * kt + h
        return Op(("cvt", p, kt, t, h), V(f"v_cvt_pk_bf16_f32 v{d}, v{sb+2*h}, v{sb+2*h+1}", [sb + 2 * h, sb + 2 * h + 1], [d]),
                  [("exp", p, kt, t, 2 * h), ("exp", p, kt, t, 2 * h + 1)] + list(war), rel=rel)
    for o in (mul(0), mul(1), ex(0), ex(1), mul(2), mul(3), ex(2), ex(3), cv(0), cv(1)): S.add(S.valu, o)

def add_seg_ops(S, k, mf):
    NT = S.NT; g0 = S.gap; keys = [m[0] for m in mf]; mode = S.mode if k >= 3 else "oq"
    at = lambda key: g0 + keys.index(key)
    for p, t in seg_slots(NT, k):
        for kt in (0, 1): add_softmax(S, p, kt, t, sbuf(NT, p, kt, t), [("sum", p - (t < 6), t >> 1)] if p >= 2 and not p & 1 else [])
    fx = []; scal = []
    new = lambda lst, key, ins, deps, g: lst.append(Op(key, ins, deps, g))
    known = lambda x: [x] if (x in S.bykey or x in S.done) else []
    def chain(name, texts, deps, g):
        for i, t in enumerate(texts):
            new(scal, (name[0], k) + tuple(name[1:]) + (i,), sc(t), deps, g)
            deps = [(name[0], k) + tuple(name[1:]) + (i,)]
        return deps
    xor = lambda r: V(f"v_xor_b32 v{r}, 0x8000, v{r}", [r], [r])
    sp = CFG["sp"]; prev = []; rd = []
    if 1 <= k <= 16:
        g = g0 + 2 + (CFG["sh6"] if NT == 6 else 0)
        if k == 1:
            new(scal, ("w6",), I("s_waitcnt vmcnt(?)", "w", tag=("needq6",)), [], g0)
            prev = [("w6",)]
            if NT == 7:
                for ds in range(4): new(fx, ("q6r", ds), ds128("a", Qreg(6, ds), vQ6 + (ds & 1), (ds >> 1) * 1024), [("w6",)], g0 + 1 + ds)
                prev = [("qk", 0, 0, 6, 3)]; g = at(("qk", 0, 1, 6, 3)) + 8
        x = ((k + 3) & 1) * 128
        for i, (srd, o) in enumerate(((sKx, 0), (sKx, 128), (sVa, x), (sVb, x))):
            new(scal, ("m0", k, i), sc(f"s_add_u32 m0, s{sM}, {i*1024 - o}", wr=M0), prev, max(g0, g - 3))
            new(fx, ("dma", k, i), dma(vDKV, srd, None, o, "" if mode == "o" and CFG["lastdef"] else CFG["kv"[i >> 1]], ("grp", k + 2)), [("m0", k, i)], g)
            prev = [("dma", k, i)]; g += sp if k > 1 else 4
        if mode == "o" and CFG["kvpf"] and k < 15:
            step = 256 << CFG["kvsh"]
            new(fx, ("pk", k), I(f"buffer_load_dword v{vSink}, v{vQ6}, s[{sQx}:{sQx+3}], 0 offen", "L", rd=[("v", vQ6)]), prev, g)
            prev = chain(("pu",), bump(sQx, step) + [f"s_max_u32 s{sQx+2}, s{sQx+2}, {step}", f"s_sub_u32 s{sQx+2}, s{sQx+2}, {step}"], [("pk", k)], g)
            g += sp
        prev = chain(("uk",), [f"s_add_u32 s{sM}, s{sM}, 16384", f"s_and_b32 s{sM}, s{sM}, 0xffff", f"s_mov_b64 s[{sVa}:{sVa+1}], s[{sVb}:{sVb+1}]",
                               f"s_mov_b32 s{sVa+2}, s{sVb+2}"] + bump(sVb, 8192) + [f"s_mov_b32 s{sVb+2}, s{sKx+2}"] + bump(sKx, 8192) +
                     [f"s_add_u32 s{sCnt}, s{sCnt}, 1", f"s_cmp_lt_u32 s{sCnt}, 64", f"s_cselect_b32 s{sKx+2}, 8192, 0"], prev, g - sp + 1)
        gk = at(("qk", k - 1, 0, NT - 1, 0))
        for n, (kt, ds) in enumerate(KORD):
            new(fx, ("kr", k, kt, ds), k_read(k, kt, ds), [("qk", k - 1, kt, NT - 1, n & 3)] + known(("xk", k - 1, ds & 1)), gk + (n * CFG["kw"]) // 2)
            rd.append(("kr", k, kt, ds))
        if k <= 14 and (k == 1 or not k & 1):
            g = max(g + 6, gk + 8 + CFG["qo0"])
            for j in range(4 if mode == "q" and CFG["q4"] else 3):
                flip = [f"s_xor_b32 s{sD}, s{sD}, 0x700"]
                if "o" in mode:
                    ready = [("ow", k - 1, J) for J in range(4)] if k <= 2 else []
                    new(fx, ("or", k, j), ds128("v", vTmp, vLin, j * 1024),
                        known(("ul", k - 2)) + known(("ul", k - 1)) + ready + ([("os", k, j - 1)] if j else []), g - 9)
                    new(fx, ("os", k, j), o_store(vTmp, sOx, None, 0, CFG["o" if "q" in mode else "ol"]), [("or", k, j)] + prev, g)
                    prev = chain(("uo", j), bump(sOx, f"s{sD}") + ([] if "q" in mode else flip), [("os", k, j)], g)
                    g += (sp if k > 1 else 5) if "q" in mode else 10
                if "q" in mode:
                    new(scal, ("qm", k, j), sc(f"s_mov_b32 m0, s{sStg}", wr=M0), prev, g - 3)
                    new(fx, ("qd", k, j), dma(vQO, sQx, None, 0, CFG["q"], ("q", k)), [("qm", k, j)], g)
                    prev = chain(("uq", j), bump(sQx, f"s{sD}") + flip + [f"s_add_u32 s{sStg}, s{sStg}, 1024"], [("qd", k, j)], g)
                    g += sp if k > 1 else 5
            if "o" in mode: S.add(S.valu, Op(("ul", k), V(f"v_add_u32 v{vLin}, 3072, v{vLin}", [vLin], [vLin]), [("or", k, 2)]))
        if mode != "oq" and k & 1 and k < 15:
            size_ = "L_end_code-L_job7" if mode == "q" else "L_final-L_end_code"
            prev = chain(("pl",), [f"s_cmp_eq_u32 s{sLoop}, 0", f"s_cselect_b32 s{sU3}, {size_}, 0"], prev, g)
            S.add(S.valu, Op(("ul2", k), V(f"v_min_u32 v{vPt}, s{sU3}, v{vPf}", [vPf], [vPt]), prev))
            new(fx, ("pf", k), code_touch(sPfA if mode == "q" else sPfB), [("ul2", k)], gk + 24)
        if not k & 1:
            for b in (0, 1):
                S.add(S.valu, Op(("xk", k, b), xor(vK + b), [x_ for x_ in rd if x_[3] & 1 == b]))
                S.add(S.valu, Op(("xv", k, b), xor(vV + b), [("vr", k, j, bb, kt) for j in (2 * b, 2 * b + 1) for bb in (0, 1) for kt in (0, 1)]))
        gv = at(next(x_ for x_ in keys if x_[:3] == ("pv", k, NT - 1)))
        gb = gv - 2 if k < 16 else gk + 20
        rd += [("vr", k, j, b, kt) for j, b in VORD for kt in (0, 1)]
        new(scal, ("wb", k), I("s_waitcnt vmcnt(?) lgkmcnt(0)", "w", tag=("needgrp", k)), rd + [("dma", k, 3)], gb - 1)
        new(fx, ("bar", k), I("s_barrier", "B", tag=("bar", k)), [("wb", k)], gb)
        order = VORD if k < 16 else sorted(VORD, key=lambda x_: x_[1])
        for n, (j, b, kt) in enumerate((j, b, kt) for j, b in order for kt in (0, 1)):
            war = [("pv", k, NT - 1, j, b)] if ("pv", k, NT - 1, j, b) in keys else []
            new(fx, ("vr", k + 1, j, b, kt), v_read(k + 1, j, b, kt), [("bar", k)] + war + ([] if k & 1 else [("xv", k, j >> 1)]), gv + (n if k > 1 else (n * 3) // 4))
        if k == 2 or (3 < k < 15 and not k & 1):
            new(scal, ("lp", k), sc(f"s_sub_u32 s{sLoop}, s{sLoop}, 1" if k > 2 else f"s_cmp_eq_u32 s{sJob}, 3"), [("wb", k)] + prev, g0 + len(mf) - 5)
    if k <= 1:
        todo = ([(0, 2), (0, 3), (1, 2), (1, 3), (0, 0), (0, 1), (2, 2), (2, 3), (3, 2), (3, 3)] if k == 0 else
                [(4, 2), (4, 3), (1, 0), (1, 1), (2, 0), (2, 1), (3, 0), (3, 1), (4, 0), (4, 1)])
        lo, hi = (1, len(mf) - 1) if k == 0 else (6, len(mf) - 16)
        for i, (t, J) in enumerate(todo): new(fx, ("ow", t, J), o_write(t, J, Oreg(t, 2 * J)[1]), [], g0 + lo + (hi - lo) * i // len(todo))
    for o in fx: S.add(S.fixed, o)
    S.fixed.sort(key=lambda o: o.target)
    scal.sort(key=lambda o: o.target)
    for o in scal: S.add(S.scal, o)
    misc = [o for o in S.valu if o.key[0] in ("xk", "xv", "ul", "ul2")]
    S.valu = misc + [o for o in S.valu if o not in misc]

def start_job(NT, mode):
    S = Sched(NT); S.mode = mode
    S.done |= {("kr", 0, kt, ds) for kt, ds in KORD} | {("vr", 1, j, b, kt) for j, b in VORD for kt in (0, 1)}
    return S
def run_segs(S, segs, carry):
    starts = {}
    for k in segs:
        starts[k] = len(S.out)
        mf = seg_mf(S.NT, k)
        S.forbid = set(); S.th = CFG["th"] if k >= 2 else CFG["hth"]
        add_seg_ops(S, k, mf)
        cut = carry is not None and k >= 2 and not k & 1
        if cut: S.forbid = {shift(x, k) for x in carry}
        S.run(mf, seg_mf(S.NT, k + 1)[:4], cut)
    return starts
def find_carry(NT):
    S = start_job(NT, "oq")
    run_segs(S, range(0, 9), None)
    c = [shift(x, -8) for x in S.left]
    assert all(x[0] in ("mul", "exp", "cvt", "vr") for x in c), c
    return c

def params_next():
    return [sc(x) for x in (
        f"s_add_u32 s{sT2}, s{sJob}, 1",
        f"s_xor_b32 s{sT3}, s{sT2}, s{sRole}",
        f"s_and_b32 s{sT3}, s{sT3}, 1",
        f"s_cselect_b32 s{sNxt}, s{sOffB}, s{sOffA}",
        f"s_cselect_b32 s{sN7n}, s{sN7B}, s{sN7A}",
        f"s_mul_i32 s{sT2}, s{sT2}, {QH}",
        f"s_add_u32 s{sNxt}, s{sNxt}, s{sT2}")]

def advance():
    return [sc(x) for x in (f"s_lshl_b32 s{sBit}, 1, s{sJob}", f"s_add_u32 s{sJob}, s{sJob}, 1", f"s_mov_b32 s{sOp}, s{sCurO}",
                            f"s_mov_b32 s{sCurO}, s{sNxt}", f"s_mov_b32 s{sN7c}, s{sN7n}")] + params_next() + \
           [sc(x) for x in (f"s_add_u32 s{sQx}, s{sQ}, s{sNxt}", f"s_addc_u32 s{sQx+1}, s{sQ+1}, 0", f"s_cmp_lt_u32 s{sJob}, 3", f"s_cselect_b32 s{sQx+2}, 4096, 0",
                            f"s_add_u32 s{sOx}, s{sO}, s{sOp}", f"s_addc_u32 s{sOx+1}, s{sO+1}, 0",
                            f"s_mov_b32 s{sD}, 128", f"s_mov_b32 s{sStg}, s{sStgB}", f"s_mov_b32 s{sLoop}, 5")]

def add_rows(S, tiles, vmx, zero):
    add = lambda key, ins, deps: S.add(S.valu, Op(key, ins, deps))
    for t in tiles:
        b = Preg(0, t)
        src = [aL + 2 * t, aL + 2 * t + 1] + ([aL + 14, aL + 15] if t == 6 else [])
        dst = [b + 2, b, b + 1, b + 3]
        for a, d in zip(src, dst): add(("la", a), V(f"v_accvgpr_read_b32 v{d}, a{a}", [("a", a)], [d]), [("sum", 16, t >> 1), ("pv", 16, t, 3, 0)])
        if t == 6:
            add(("l6", 0), V(f"v_add_f32 v{dst[0]}, v{dst[0]}, v{dst[3]}", [dst[0], dst[3]], [dst[0]]), [("la", a) for a in src])
            add(("l6", 1), V(f"v_add_f32 v{dst[1]}, v{dst[1]}, v{dst[2]}", [dst[1], dst[2]], [dst[1]]), [("l6", 0)])
        add(("lr", t), V(f"v_add_f32 v{dst[0]}, v{dst[0]}, v{dst[1]}", dst[:2], [dst[0]]), [("la", a) for a in src] + ([("l6", 1)] if t == 6 else []))
        add(("rc", t), V(f"v_rcp_f32 v{b}, v{b+2}", [b + 2], [b], "E"), [("lr", t)])
        m = vmx if t else b
        add(("mx", t), V(f"v_maximum3_f32 v{vmx}, v{m}, v{b}, v{b+2}", [m, b, b + 2], [vmx]), [("rc", t)] + ([("mx", t - 1)] if t else []))
        if zero:
            for a in src: add(("lz", a), V(f"v_accvgpr_write_b32 a{a}, 0", [], [("a", a)]), [("la", a)])
    if tiles[-1] == S.NT - 1: add(("c1",), V(f"v_cmp_ngt_f32 vcc, s{sHi}, v{vmx}", [vmx], [("s", "vcc")]), [("mx", S.NT - 1)])

def convert(E, b, r, skip=lambda i: False):
    for i in range(4):
        if not skip(i):
            E.append(V(f"v_pk_mul_f32 {rs('v', b+2*i, 2)}, {rs('v', b+2*i, 2)}, {rs('v', r, 2)} op_sel_hi:[1,0]",
                       [b + 2 * i, b + 2 * i + 1, r], [b + 2 * i, b + 2 * i + 1]))
    for i in range(4): E.append(V(f"v_cvt_pk_bf16_f32 v{b+i}, v{b+2*i}, v{b+2*i+1}", [b + 2 * i, b + 2 * i + 1], [b + i]))
def acc_copy(dst, src): return [V(f"v_accvgpr_read_b32 v{dst+i}, a{src+i}", [("a", src + i)], [dst + i]) for i in range(8)]
def final_pv(t, J, i): return ("pv", 16, t) + ((2 * J, 1), (2 * J + 1, 0))[i >> 2] if J < 2 else ("pv", 17, t, 2 * J - 4 + (i >> 2), 0)

def build_tail(S):
    NT = S.NT
    run_segs(S, [15], None)
    g0 = S.gap; mf = seg_mf(NT, 16)
    add_seg_ops(S, 16, mf)
    mf += seg_mf(NT, 17)
    S.add(S.scal, Op(("wq",), I("s_waitcnt vmcnt(?)", "w", tag=("needq", 12)), [], g0)); S.scal.insert(0, S.scal.pop())
    nsc = [0]
    def scal(x, deps=()):
        i = nsc[0]; nsc[0] += 1
        S.add(S.scal, Op(("ts", i), x, ([("ts", i - 1)] if i else [("uk", 16, 11)]) + list(deps), g0)); return ("ts", i)
    scal(sc(f"s_mul_i32 s{sQx+2}, s{sQx+2}, s{sN7n}"))
    prev = [("bar", 16)]; gb = S.bykey[("bar", 16)].target
    for a in (0, 1):
        m = scal(sc(f"s_add_u32 m0, s{sWoff}, {49152 + a*896}", wr=M0), prev)
        for nn in (0, 1): S.add(S.fixed, Op(("q6", a, nn), dma(vQO, sQx, None, nn * 2048 + a * 128, CFG["q"], ("q6",)), [m], gb + 2 + 4 * (2 * a + nn)))
        prev = [("q6", a, 0), ("q6", a, 1)]
    S.add(S.valu, Op(("pa",), V(f"v_min_u32 v{vPt}, L_final-L_end_code, v{vPf}", [vPf], [vPt]), []))
    S.add(S.fixed, Op(("pf",), code_touch(sPfB), [("pa",)] + prev, gb + 18))
    S.fixed.sort(key=lambda o: o.target)
    for x in advance(): scal(x, prev); prev = []
    w5 = scal(I("s_waitcnt vmcnt(?)", "w", tag=("needq", 14)))
    for t in range(6):
        for ds in range(4): S.add(S.flex, Op(("qr", t, ds), q_read(t, ds), [("wq",) if t < 5 else w5, ("qk", 15, 1, t, 3)]))
    add = lambda key, ins, deps: S.add(S.valu, Op(key, ins, deps))
    add(("vl",), V(f"v_add_u32 v{vLin}, {(-24576) & 0xffffffff:#x}, v{vLin}", [vLin], [vLin]), [])
    add_rows(S, list(range(NT)), vTmp, True)
    for x in ("s_cmp_lg_u64 vcc, 0", f"s_cselect_b32 s{sT2}, s{sBit}, 0", f"s_or_b32 s{sFlag}, s{sFlag}, s{sT2}"): scal(sc(x), [("c1",)])
    softdone = [("cvt", 15, kt, t, h) for t in (NT - 2, NT - 1) for kt in (0, 1) for h in (0, 1)]
    early = {(NT - 1, J): vb for J, vb in enumerate((vS, vS + 8))}
    for (t, J), vb in early.items():
        for i, x in enumerate(acc_copy(vb, Oreg(t, 2 * J)[1])): add(("ar", t, J, i), x, softdone + [final_pv(t, J, i)])
    for t in range(5):
        for J in range(2):
            b = Oreg(t, 2 * J)[1]; r = Preg(0, t)
            for i in range(8):
                add(("om", t, J, i), V(f"v_mul_f32 v{b+i}, v{r}, v{b+i}", [b + i, r], [b + i]), [("rc", t), final_pv(t, J, i)] + ([("om", t, J, i - 1)] if i else []))
            for i in range(4):
                add(("oc", t, J, i), V(f"v_cvt_pk_bf16_f32 v{b+i}, v{b+2*i}, v{b+2*i+1}", [b + 2 * i, b + 2 * i + 1], [b + i]), [("oc", t, J, i - 1) if i else ("om", t, J, 7)])
    n1 = max(i for i, m in enumerate(mf) if m[0][0] == "qk") + 1
    S.run(mf[:n1], mf[n1:n1 + 4], keep=True)
    S.th = CFG["tth"]
    S.run(mf[n1:], keep=True)
    begun = {x[1:3] for x in S.done if x[0] == "om"}
    S.valu = [o for o in S.valu if o.key[0] not in ("om", "oc") or o.key[1:3] in begun]
    S.flush()
    E = []
    if CFG["tmark"] == 0: E.append(sc("s_memtime s[86:87]"))
    vC = Preg(1, 0)
    spare = iter((vC, vC + 8, vC + 16, vS, vS + 8, vC))
    def piece(t, J):
        k, b = Oreg(t, 2 * J)
        if k == "a":
            if (t, J) in early: b = early[(t, J)]
            else:
                d = next(spare); E.extend(acc_copy(d, b)); b = d
        convert(E, b, Preg(0, t))
        if (t, J) not in DEFER: E.append(o_write(t % 6, J, b))
        return b
    plain = [x for x in DEFER if x not in begun]
    def some(n):
        for _ in range(n):
            if plain: piece(*plain.pop(0))
    if NT == 7:
        E.append(sc(f"s_add_u32 s{sT3}, s{sOp}, 24576")); regs = []
        for a in (0, 1):
            for J in (2 * a, 2 * a + 1): regs.append(piece(6, J) + 4); some(1)
            E += [ds128("v", regs[2 * a + nn], vLin, nn * 2048 + a * 1024) for nn in (0, 1)]
        for a in (0, 1):
            E.append(I(f"s_waitcnt lgkmcnt({4 - 4*a})", "w"))
            E += [o_store(regs[2 * a + nn], sO, sT3, nn * 2048 + a * 128, CFG["o"]) for nn in (0, 1)]
            some(3 - 3 * a)
    else:
        E.append(sc(f"s_mov_b32 s{sT3}, {OOB:#x}"))
        for i in range(4): E.append(o_store(vC, sO, sT3, 0, ""))
    for J in range(4): piece(5, J); some(2)
    some(20)
    E.append(I("s_waitcnt lgkmcnt(4)", "w"))
    return [I(".p2align 3", "#")] + align8(fix_hazards(E, S.out[-10:]), False)

def build_last(NT, carry):
    S = start_job(NT, "o")
    run_segs(S, range(15), carry)
    start = len(S.out)
    while S.out[start - 1].k != "M": start -= 1
    S.th = CFG["lth"]; g0 = S.gap
    G = [list(range(4)), list(range(4, NT))]
    assert NT - PHI >= 4
    fix = lambda key, ins, deps, g=0: S.add(S.fixed, Op(key, ins, deps, g))
    add = lambda key, ins, deps: S.add(S.valu, Op(key, ins, deps))
    nsc = [0]
    def scal(x, deps=(), g=0):
        i = nsc[0]; nsc[0] += 1
        S.add(S.scal, Op(("ts", i), x, ([("ts", i - 1)] if i else []) + list(deps), g)); return ("ts", i)
    def qk(p, t):
        pp, tt = divmod(p * NT + t - 2, NT); L = []
        for kt in (0, 1):
            add_softmax(S, p, kt, t, sbuf(NT, p, kt, t), [("pv", 15, t, 3, 0)] if p == 15 else [])
            L += qk_chain(p, kt, t, sbuf(NT, p, kt, t), [("cvt", pp, kt, tt, h) for h in (0, 1)])
        return L
    home = lambda r: (lambda j, b: ("a", Qreg(0, 0) + (2 * j + b) * 4)) if r == 16 else (lambda j, b: ("a", Qreg(2, j)))
    pv = lambda r, t: pv_tile(r, t, home(r) if r > 15 else None) + sum_tile(r, t)
    slots = [(14, t) for t in range(NT - PHI, NT)] + [(15, t) for t in G[0]]
    A = []
    for i, (p, t) in enumerate(slots): A += (pv(15, i) if i < 4 else []) + qk(p, t)
    keys = [m[0] for m in A]
    gk = g0 + keys.index(("qk", 14, 0, NT - 1, 0))
    for n, (kt, ds) in enumerate(KORD): fix(("kr", 15, kt, ds), k_read(15, kt, ds), [("qk", 14, kt, NT - 1, n & 3)], gk + n)
    for b in (0, 1):
        add(("xv", 16, b), V(f"v_xor_b32 v{vV+b}, 0x8000, v{vV+b}", [vV + b], [vV + b]), [("vr", 16, j, bb, kt) for j in (2 * b, 2 * b + 1) for bb in (0, 1) for kt in (0, 1)])
    for r, t in ((16, 0), (17, 2)):
        g = g0 + keys.index(("qk", 15, 1, t, 0))
        fix(("bar", r - 1), I("s_barrier", "B", tag=("bar", r - 1)), [scal(I("s_waitcnt vmcnt(?)", "w", tag=("needgrp", r - 1)), [], g)], g + 1)
        for j, b in VORD:
            if r == 17 and b: continue
            for kt in (0, 1):
                owner = j >> 1 if r == 16 else 2
                fix(("vr", r, j, b, kt), dstr("a", home(r)(j, b)[1] + 2 * kt, vV + (j >> 1), ((r - 1) & 1) * 16384 + voff(j, b, kt)),
                    [("bar", r - 1), ("qk", 15, 1, owner, 3)] + ([("xv", 16, j >> 1)] if r == 17 else []))
    add(("vl",), V(f"v_add_u32 v{vLin}, {(-24576) & 0xffffffff:#x}, v{vLin}", [vLin], [vLin]), [])
    S.valu = [o for o in S.valu if o.key[0] == "xv"] + [o for o in S.valu if o.key[0] != "xv"]
    add_rows(S, G[0], vTmp, False)
    for t in G[0]: A += pv(16, t)
    for t in G[0]: A += pv(17, t)
    S.run(A, keep=True); S.flush()
    def mark(i):
        if CFG["tmark"] == i: S.emit(sc("s_memtime s[86:87]")); print(f"NT={NT} model at mark {i}: {cycles(S.out[start:])}", file=sys.stderr)
    mark(11)
    so = lambda t: (sT0, sT1, sT2, sT3, sU0, sU1, sU2)[t]
    back = lambda t, a, nn, r: ds128("v", r, vLin, (t % 6) * 4096 + nn * 2048 + a * 1024)
    out = lambda t, a, nn, r: o_store(r, sO, so(t), nn * 2048 + a * 128, CFG["ol"])
    O = lambda t, J: Oreg(t, 2 * J)[1]
    E = [sc(f"s_add_u32 s{so(t)}, s{sCurO}, {t*4096}") for t in range(NT)]
    rest = [(t, J) for t in G[0][1:] for J in range(4)]
    def some(n):
        for _ in range(n):
            if rest: t, j = rest.pop(0); convert(E, O(t, j), Preg(0, t))
    for J in range(4):
        convert(E, O(0, J), Preg(0, 0)); E.append(o_write(0, J, O(0, J))); some(1 + (J & 1))
        if J & 1: E += [back(0, J >> 1, nn, O(0, J - 1 + nn) + 4) for nn in (0, 1)]
    for a in (0, 1):
        E.append(I(f"s_waitcnt lgkmcnt({4 - 4*a})", "w")); E += [out(0, a, nn, O(0, 2 * a + nn) + 4) for nn in (0, 1)]; some(3)
    S.emit(I(".p2align 3", "#"))
    for x in align8(fix_hazards(E, S.out[-10:]), False): S.emit(x)
    mark(12)
    B = []
    for t in G[1]: B += pv(15, t) + qk(15, t)
    for t in G[1]: B += pv(16, t)
    for t in G[1]: B += pv(17, t)
    g0 = S.gap
    halves = [(t, a) for t in G[0][1:] for a in (0, 1)]
    step = (len(B) - 14) / len(halves)
    for i, (t, a) in enumerate(halves):
        g = g0 + int(i * step)
        for k in (0, 1): fix(("lw", t, a, k), o_write(t, 2 * a + k, O(t, 2 * a + k)), [], g + 3 * k)
        for k in (0, 1): fix(("ob", t, a, k), back(t, a, k, O(t, 2 * a + k) + 4), [("lw", t, a, 0), ("lw", t, a, 1)], g + 5 + k)
        for k in (0, 1): fix(("oo", t, a, k), out(t, a, k, O(t, 2 * a + k) + 4), [("ob", t, a, k)], g + 11 + 2 * k)
    add_rows(S, G[1], vTmp, False)
    for x in ("s_cmp_lg_u64 vcc, 0", f"s_cselect_b32 s{sBit}, 8, 0", f"s_or_b32 s{sFlag}, s{sFlag}, s{sBit}"): scal(sc(x), [("c1",)])
    where = {}
    for J in range(4):
        for t in G[1]:
            k, b = Oreg(t, 2 * J)
            where[(t, J)] = b if k == "v" else O(t - 5, J)
            if k == "a":
                free = [("oo", 1, J >> 1, J & 1)] if t == 6 else []
                for i, x in enumerate(acc_copy(O(t - 5, J), b)): add(("ar", t, J, i), x, free + [final_pv(t, J, i)])
    S.run(B, keep=True)
    late = [o for o in S.valu if o.key[0] == "ar"]
    S.valu = [o for o in S.valu if o.key[0] != "ar"]
    S.flush()
    mark(13)
    E = []; pend = []
    def drain(n):
        if pend:
            t, a = pend.pop()
            E.append(I(f"s_waitcnt lgkmcnt({n})", "w")); E.extend(out(t, a, nn, where[(t, 2 * a + nn)] + 4) for nn in (0, 1))
    for a in (0, 1):
        for t in G[1]:
            for J in (2 * a, 2 * a + 1):
                E += [o.ins for o in late if o.key[1:3] == (t, J)]
                convert(E, where[(t, J)], Preg(0, t)); E.append(o_write(t % 6, J, where[(t, J)]))
            E += [back(t, a, nn, where[(t, 2 * a + nn)] + 4) for nn in (0, 1)]
            drain(4); pend.append((t, a))
    drain(0)
    S.emit(I(".p2align 3", "#"))
    for x in align8(fix_hazards(E, S.out[-10:]), False): S.emit(x)
    return S.out[start:]

class Job: pass
def build_job(NT):
    J = Job(); J.NT = NT; J.carry = carry = find_carry(NT); J.body = {}
    for mode in ("q", "o", "oq"):
        S = start_job(NT, mode)
        st = run_segs(S, range(15), carry)
        st[15] = len(S.out)
        for k in range(3, 17, 2):
            while S.out[st[k] - 1].k != "M": st[k] -= 1
        bodies = [S.out[st[k]:st[k + 2]] for k in range(3, 15, 2)]
        for b in bodies[1:]:
            assert [x.t for x in b] == [x.t for x in bodies[0]], "loop body not periodic"
        J.body[mode] = bodies[0] + [sc(f"s_cbranch_scc0 L_body{mode}{NT}")]
    epi = build_tail(S)
    J.head = S.out[:st[3]] + [sc(f"s_cbranch_scc1 L_close{NT}")]
    J.close = [sc(x) for x in (f"s_cmp_eq_u32 s{sRole}, 0", f"s_cselect_b32 s{sQx}, s{sK}, s{sV}", f"s_cselect_b32 s{sQx+1}, s{sK+1}, s{sV+1}",
                               f"s_add_u32 s{sQx}, s{sQx}, {3*KH + CFG['kvpf']*8192}", f"s_addc_u32 s{sQx+1}, s{sQx+1}, 0", f"s_mov_b32 s{sQx+2}, {KH - CFG['kvpf']*8192}",
                               f"v_lshlrev_b32 v{vQ6}, {CFG['kvsh']}, v0")] if CFG["kvpf"] else []
    J.tail = S.out[st[15]:] + epi
    J.last = build_last(NT, carry)
    return J

def grp_batch(e):
    L = []; x = ((e + 1) & 1) * 128
    for i, (srd, blk, o) in enumerate(((sK, e + 1, 0), (sK, e + 1, 128), (sV, e - 1, x), (sV, e, x))):
        if blk >= 0:
            L += [sc(f"s_add_u32 m0, s{sWoff}, {(e & 3)*16384 + i*1024 - o}", wr=M0), sc(f"s_mov_b32 s{sT0}, {blk*8192}"), dma(vDKV, srd, sT0, o, CFG["kv"[i >> 1]], ("grp", e))]
    return L
def q_batch(slot, base, o, tag):
    L = []
    for a in (0, 1):
        L += [sc(f"s_add_u32 m0, s{sStgB}, {slot*4096 + a*896}", wr=M0), sc(f"s_add_u32 s{sT1}, s{base}, {o}")]
        L += [dma(vQO, sQ, sT1, nn * 2048 + a * 128, CFG["q"], tag) for nn in (0, 1)]
    return L

def build_first(NT, carry, early2):
    S = Sched(NT); S.th = CFG["fth"]
    forbid = {shift(x, 2) for x in carry}
    assert all(x[1] == 2 and x[3] >= early2 for x in forbid if x[0] in ("mul", "exp", "cvt"))
    Kh = lambda p: (lambda kt, ds: ("a", (aO, aO + 32, aK)[p] + kt * 16 + ds * 4))
    V1 = lambda j, b: Oreg(4, j)
    em = lambda L: [S.emit(x) for x in L]
    fm = CFG["fm"].split(",")
    mark = lambda n: S.emit(sc(f"s_memrealtime s[{80+2*fm.index(n)}:{81+2*fm.index(n)}]")) if n in fm else None
    mark("i")
    batches = [q_batch(t, sCurO, t * 4096, ("q0", t)) for t in range(CFG["pre"], 6)]
    while len(batches) < 4: batches.append([])
    batches += [[sc(f"s_cmp_eq_u32 s{sN7c}, 1"), sc(f"s_cselect_b32 s{sU0}, s{sCurO}, {OOB:#x}")] + q_batch(1, sU0, 24576, ("q0", 6))]
    batches += [grp_batch(e) for e in (2, 3, 4)]
    kreads = lambda p: [ds128("a", Kh(p)(kt, ds)[1], vK + (ds & 1), ((p - 1) & 3) * 16384 + koff(kt, ds)) for kt, ds in KORD]
    em([I("s_waitcnt vmcnt(?)", "w", tag=("needgrp", 0)), I("s_barrier", "B")]); mark("a")
    em(batches.pop(0) + kreads(0) + kreads(1))
    em([dstr("v", V1(j, 1)[1] + 2 * kt, vV + (j >> 1), voff(j, 1, kt)) for j in range(4) for kt in (0, 1)])
    def second():
        em([I("s_waitcnt vmcnt(?)", "w", tag=("needgrp", 1)), I("s_barrier", "B")]); mark("b")
        em(batches.pop(0))
        em([dstr("a", Vreg(j, b) + 2 * kt, vV + (j >> 1), 16384 + voff(j, b, kt)) for j, b in VORD for kt in (0, 1)] + kreads(2))
        em([V(f"v_xor_b32 v{r}, 0x8000, v{r}", [r], [r]) for r in (vK, vK + 1, vV, vV + 1)])
    lastbuf = {}
    def qk(p, t, bufs):
        L = []
        war = [("pv", 2, t, 3, 0), ("pv", 1, t, 3, 1), ("sum", 1, t >> 1)] if p == 2 else []
        for kt, sb in enumerate(bufs):
            add_softmax(S, p, kt, t, sb, war)
            L += qk_chain(p, kt, t, sb, lastbuf.get(sb, []), Kh(p), None); lastbuf[sb] = [("cvt", p, kt, t, h) for h in (0, 1)]
        return L
    r1 = lambda t: pv_tile(1, t, V1, None)
    r2 = lambda t: pv_tile(2, t, None, None)
    done2 = 0; held = []
    for t in range(NT):
        if t == 4: split = len(S.out)
        end = t == NT - 1
        if t == 1: second()
        if t == 2: em([I("s_waitcnt lgkmcnt(0)", "w"), I("s_barrier", "B", tag=("bar", 1))])
        mark(f"p{t}")
        S.emit(I("s_waitcnt vmcnt(?)", "w", tag=("needq0", t))); mark(f"w{t}")
        em([q_read(t, ds, 1 if t == 6 else t) for ds in range(4)])
        while batches:
            em(batches.pop(0))
            if not end: break
        mf = held + qk(0, t, (vS, vS + 4)) + qk(1, t, (vS + 8, vS + 12)); held = []
        S.forbid = forbid
        if not end:
            own = (r1(t) if t < 5 else []) + sum_tile(1, t) + (r2(t) if t < 4 else []) + sum_tile(2, t)
            late = t < CFG["fpipe"]
            if late: held = own
            else: mf += own
            lim = min(early2 if t < 4 else min(x[3] for x in forbid if x[0] == "cvt"), (t + 1 - late) & ~1, 4, done2 + 1 if late else 4)
            while done2 < lim: mf += qk(2, done2, (vS + 8 * (done2 & 1 and not late), vS + 4 + 8 * (done2 & 1 and not late))); done2 += 1
            S.run(mf, keep=True); S.flush()
            continue
        g0 = S.gap
        for x in range(5, NT): mf += r1(x)
        mf += sum_tile(1, t)
        left = list(range(done2, NT - PHI))
        for x in range(4, NT):
            mf += r2(x) + (sum_tile(2, x) if x == t else [])
            if x == NT - 1 or len(left) > NT - 1 - x:
                while left and (x == NT - 1 or len(left) > NT - 1 - x):
                    y = left.pop(0); mf += qk(2, y, (sbuf(NT, 2, 0, y), sbuf(NT, 2, 1, y)))
        gv = g0 + [m[0] for m in mf].index(("pv", 2, NT - 1, 0, 0))
        S.add(S.scal, Op(("wb", 2), I("s_waitcnt vmcnt(?)", "w", tag=("needgrp", 2)), [], gv - 3))
        S.add(S.fixed, Op(("bar", 2), I("s_barrier", "B", tag=("bar", 2)), [("wb", 2)], gv - 2))
        prev = [("bar", 2)]
        for j, b in VORD:
            for kt in (0, 1):
                S.add(S.fixed, Op(("vr", 3, j, b, kt), v_read(3, j, b, kt), prev + [("pv", 2, NT - 1, j, b)], gv)); prev = [("vr", 3, j, b, kt)]
        S.run(mf, cut=True)
        while S.out[-1].k != "M": S.out.pop()
        T = []
        for j in range(0 if CFG["q4"] else 6):
            T.append([sc(f"s_mov_b32 m0, s{sStg}", wr=M0), sc(f"s_add_u32 s{sStg}, s{sStg}, 1024"), dma(vQO, sQx, None, 0, CFG["q"], ("q", 1))])
            T.append([sc(x) for x in bump(sQx, f"s{sD}") + [f"s_xor_b32 s{sD}, s{sD}, 0x700"]])
        ms = [i for i, x in enumerate(S.out) if x.k == "M"][-len(mf) + 8:][:2 * len(T):2]
        assert len(ms) == len(T)
        for i, g in reversed(list(zip(ms, T))): S.out[i + 1:i + 1] = g
    return S.out[:split], S.out[split:]

def sigma(x, d, t):
    return [f"v_bfe_u32 v{d}, v{x}, 1, 1", f"v_lshrrev_b32 v{t}, 3, v{x}", f"v_xor_b32 v{t}, v{t}, v{x}", f"v_and_b32 v{t}, 1, v{t}",
            f"v_lshl_or_b32 v{d}, v{t}, 1, v{d}", f"v_and_b32 v{t}, 4, v{x}", f"v_or_b32 v{d}, v{d}, v{t}"]
def swz_addr(row, col, d, t):
    return sigma(row, d, t) + [f"v_xor_b32 v{d}, v{d}, v{col}", f"v_lshlrev_b32 v{d}, 4, v{d}", f"v_and_b32 v{t}, 7, v{row}",
                               f"v_lshl_add_u32 v{d}, v{t}, 7, v{d}", f"v_lshrrev_b32 v{t}, 3, v{row}"]
def stg_addr(row, col, d, t):
    return [f"v_and_b32 v{t}, 7, v{row}", f"v_xor_b32 v{d}, v{t}, v{col}", f"v_lshlrev_b32 v{d}, 4, v{d}", f"v_lshl_add_u32 v{d}, v{t}, 7, v{d}"]

def stamp():
    if not CFG["stamp"]: return []
    x = vTmp + 2
    L = [sc(t) for t in (f"s_memtime s[{sTm}:{sTm+1}]", f"s_memrealtime s[{sTm+2}:{sTm+3}]", "s_waitcnt lgkmcnt(0)", "s_mov_b64 exec, 1")]
    for n, (a, b) in enumerate(((sTm, sTm + 2), (80, 82), (84, 86))):
        L += [sc(f"v_mov_b32 v{x}, s{a}"), sc(f"v_mov_b32 v{x+1}, s{b}"),
              I(f"buffer_store_dwordx2 v[{x}:{x+1}], off, s[{sDbg}:{sDbg+3}], s{sStampOff} offset:{8*n}", "S"), sc("s_nop 1")]
    return L + [sc("s_mov_b64 exec, -1"), sc(f"s_add_u32 s{sStampOff}, s{sStampOff}, 32"), sc("s_nop 3")]

def prologue():
    P = []
    A = lambda t: P.append(sc(t))
    if CFG["diag_tot"]: A("s_memrealtime s[96:97]")
    pm = lambda i: A(f"s_memrealtime s[{92+2*i}:{93+2*i}]") if CFG["stamp"] == 3 else None
    pm(0)
    A("s_cmp_ge_u32 s2, 256"); A("s_cbranch_scc1 L_exit")
    if CFG["again"]:
        A(f"s_mov_b32 s3, {CFG['again']}"); P.append(I("L_again:", "#"))
    A("s_load_dwordx4 s[80:83], s[0:1], 0"); A("s_load_dwordx4 s[84:87], s[0:1], 16")
    if CFG["stamp"]: A(f"s_load_dwordx2 s[{sDbg}:{sDbg+1}], s[0:1], 40")
    A("s_getpc_b64 s[100:101]"); P.append(I("L_pf:", "#")); A(f"v_lshlrev_b32 v{vPf}, 7, v0")
    A(f"v_min_u32 v{vPt}, L_job7-L_pf, v{vPf}")
    if CFG["pfpos"] == 0: P.append(code_touch(100))
    for d, lab in ((sPfA, "L_job7"), (sPfB, "L_end_code")):
        A(f"s_add_u32 s{d}, s100, {lab}-L_pf"); A(f"s_addc_u32 s{d+1}, s101, 0")
    A("v_lshrrev_b32 v20, 6, v0"); A("v_and_b32 v21, 63, v0"); A(f"v_readfirstlane_b32 s{sW}, v20")
    A(f"s_and_b32 s{sT0}, s2, 7"); A(f"s_lshr_b32 s{sT1}, s2, 3"); A(f"s_and_b32 s{sRole}, s{sT1}, 1"); A(f"s_lshr_b32 s{sT1}, s{sT1}, 1")
    A(f"s_lshl_b32 s{sT0}, s{sT0}, 4"); A(f"s_add_u32 s{sT0}, s{sT0}, s{sT1}")
    if CFG["samehead"]: A(f"s_mov_b32 s{sT0}, 0")
    A(f"s_mul_i32 s{sT1}, s{sT0}, {4*QH}"); A(f"s_lshl_b32 s{sT0}, s{sT0}, 19")
    A("v_lshrrev_b32 v22, 3, v21"); A("v_and_b32 v23, 7, v21")
    for x in sigma(22, 24, 25): A(x)
    A("v_xor_b32 v24, v24, v23"); A("v_lshlrev_b32 v24, 4, v24"); A(f"v_lshl_add_u32 v{vDKV}, v22, 8, v24")
    A("v_xor_b32 v24, v22, v23"); A("v_lshlrev_b32 v24, 4, v24"); A(f"v_lshl_add_u32 v{vQO}, v22, 8, v24")
    A(f"s_and_b32 s{sT2}, s{sW}, 1"); A(f"s_lshl_b32 s{sT2}, s{sT2}, 5"); A(f"s_lshl_b32 s{sT3}, s{sW}, 11"); A(f"s_lshl_b32 s{sWoff}, s{sW}, 12")
    A(f"v_xor_b32 v{vDKV}, s{sT2}, v{vDKV}"); A(f"v_add_u32 v{vDKV}, s{sT3}, v{vDKV}")
    A(f"s_mul_i32 s{sStgB}, s{sW}, 24576")
    for d, f, n7, base in ((sOffA, sN7A, CFG["split"] - 24, 0), (sOffB, sN7B, CFG["total"] - CFG["split"] - 24, CFG["split"] * 4096)):
        A(f"s_min_u32 s{d}, s{sW}, {n7}"); A(f"s_cselect_b32 s{f}, 1, 0"); A(f"s_lshl_b32 s{d}, s{d}, 12")
        A(f"s_add_u32 s{d}, s{d}, s{sStgB}"); A(f"s_add_u32 s{d}, s{d}, {base}")
    A(f"s_add_u32 s{sStgB}, s{sStgB}, 65536")
    A(f"s_mov_b32 s{sJob}, -1")
    P += params_next()
    pm(1)
    A("s_waitcnt lgkmcnt(0)")
    for srd, src, o, n in ((sK, 82, sT0, 4 * KH), (sV, 84, sT0, 4 * KH), (sQ, 80, sT1, 4 * QH), (sO, 86, sT1, 0 if CFG["nostore"] else 4 * QH)):
        A(f"s_add_u32 s{srd}, s{src}, s{o}"); A(f"s_addc_u32 s{srd+1}, s{src+1}, 0"); A(f"s_mov_b32 s{srd+2}, {n}"); A(f"s_mov_b32 s{srd+3}, 0x20000")
    if CFG["stamp"]:
        A(f"s_mov_b32 s{sDbg+2}, 0x1000000"); A(f"s_mov_b32 s{sDbg+3}, 0x20000")
        A(f"s_lshl_b32 s{sStampOff}, s2, 2"); A(f"s_add_u32 s{sStampOff}, s{sStampOff}, s{sW}"); A(f"s_lshl_b32 s{sStampOff}, s{sStampOff}, 10")
    P += stamp() if CFG["stamp"] == 1 else []
    pm(2)
    ga, gb, q0 = grp_batch(-1), grp_batch(0), q_batch(0, sNxt, 0, ("q0", 0))
    if CFG["ord"] == 0: P += ga + gb + q0
    elif CFG["ord"] == 1: P += q0[:4] + ga[:3] + gb[6:] + ga[3:] + gb[:6] + q0[4:]
    elif CFG["ord"] == 2: P += q0 + gb[6:] + ga + gb[:6]
    if CFG["pfpos"] == 3: P.append(code_touch(100))
    P += grp_batch(1)
    for t in range(1, CFG["pre"]): P += q_batch(t, sNxt, t * 4096, ("q0", t))
    pm(3)
    if CFG["stamp"] == 3:
        A("s_waitcnt lgkmcnt(0)")
        for i in range(4): A(f"s_mov_b32 s{80+2*i}, s{92+2*i}")
        P += stamp()
    A("v_and_b32 v22, 15, v21"); A("v_lshrrev_b32 v23, 4, v21")
    for x in swz_addr(22, 23, 24, 25): A(x)
    A(f"v_lshl_add_u32 v{vK}, v25, 12, v24"); A(f"v_xor_b32 v{vK+1}, 64, v{vK}")
    for x in stg_addr(22, 23, 24, 25): A(x)
    A("v_lshrrev_b32 v25, 1, v22"); A("v_xor_b32 v25, v25, v22"); A("v_bfe_u32 v25, v25, 2, 1"); A("v_lshl_add_u32 v24, v25, 11, v24")
    A(f"v_add_u32 v{vSt}, s{sStgB}, v24"); A(f"v_xor_b32 v{vSt+1}, 64, v{vSt}")
    A(f"s_add_u32 s{sT2}, s{sWoff}, 49152"); A(f"v_add_u32 v{vQ6}, s{sT2}, v24"); A(f"v_xor_b32 v{vQ6+1}, 64, v{vQ6}")
    A(f"v_lshl_add_u32 v{vLin}, v21, 4, s{sStgB}"); A(f"v_add_u32 v{vLin}, 24576, v{vLin}")
    A("v_lshrrev_b32 v22, 2, v21"); A("v_and_b32 v23, 3, v21")
    for x in swz_addr(22, 23, 24, 25): A(x)
    A(f"v_lshl_add_u32 v{vV}, v25, 12, v24"); A(f"v_xor_b32 v{vV+1}, 64, v{vV}")
    if "vcf" in CFG["x"]:
        A("v_and_b32 v24, 1, v21"); A(f"v_lshl_add_u32 v{vV}, v24, 3, v{vV}"); A(f"v_lshl_add_u32 v{vV+1}, v24, 3, v{vV+1}")
    A(f"s_mov_b32 s{sC}, {f2u(1.0 if 'c1' in CFG['x'] else SCALE):#x}")
    A(f"s_mov_b32 s{sHi}, {f2u(2.0**CFG['hi']):#x}")
    A(f"s_mov_b32 s{sFlag}, {CFG['forcefb']}")
    for d, b, blk in ((sVa, sV, 4), (sVb, sV, 5), (sKx, sK, 6)):
        A(f"s_add_u32 s{d}, s{b}, {blk*8192}"); A(f"s_addc_u32 s{d+1}, s{b+1}, 0"); A(f"s_mov_b32 s{d+2}, 8192")
    for d in (sKx, sVa, sVb, sQx, sOx): A(f"s_mov_b32 s{d+3}, 0x20000")
    A(f"s_mov_b32 s{sCnt}, 6"); A(f"s_add_u32 s{sM}, s{sWoff}, 16384"); A(f"s_mov_b32 s{sCurO}, 0"); A(f"s_mov_b32 s{sOx+2}, {0 if CFG['nostore'] else 4096}")
    A("v_and_b32 v22, 1, v21"); A("v_mul_u32_u24 v22, 0xaaaa, v22"); A(f"v_add_u32 v{vIdx}, 0x4444, v22"); A(f"v_lshl_or_b32 v{vIdx}, v{vIdx}, 16, v{vIdx}")
    A("v_lshrrev_b32 v22, 4, v21"); A("v_xor_b32 v22, v22, v21"); A("v_and_b32 v23, 2, v22")
    A("v_cmp_eq_u32 vcc, 0, v23"); A("v_mov_b32 v24, 0x3f803f80"); A("s_nop 0"); A("v_cndmask_b32 v22, 0, v24, vcc")
    for i in range(4): A(f"v_mov_b32 v{vOne+i}, v22")
    for i in range(16): A(f"v_accvgpr_write_b32 a{aL+i}, 0")
    return P + advance()

def job_switch(NT):
    L = []
    if CFG["diag_mark"] > 0: L = [sc(f"s_cmp_lg_u32 s{sJob}, {CFG['diag_mark']}"), sc(f"s_cbranch_scc1 L_nomark{NT}"), sc("s_memrealtime s[96:97]"), I(f"L_nomark{NT}:", "#")]
    L += stamp() + [sc(f"s_cmp_eq_u32 s{sN7c}, 1"), sc("s_cbranch_scc1 L_job7")]
    return L + ([sc("s_branch L_job6")] if NT == 6 else [])

def final():
    L = [I("L_final:", "#")]
    if CFG["diag_mark"] == 4: L.append(sc("s_memrealtime s[96:97]"))
    if CFG["stamp"]: L += stamp() + stamp() + [I("s_waitcnt vmcnt(0)", "w")] + stamp()
    return L

def fallback():
    L = []; A = L.append
    q, k, s0, pb, vf, o, lacc, m, t0, va, pa, one = 20, 36, 52, 60, 64, 72, 104, 108, 109, 112, 114, 116
    sJ, sN, sRow, sKb, sI, sU = sU0, sU1, sU2, sU3, sLoop, sD
    MF = "v_mfma_f32_16x16x32_bf16"
    A(f"s_cmp_eq_u32 s{sFlag}, 0"); A("s_cbranch_scc1 L_done")
    A("s_waitcnt vmcnt(0) lgkmcnt(0)")
    A("v_and_b32 v21, 63, v0"); A("v_and_b32 v22, 15, v21"); A("v_lshrrev_b32 v23, 4, v21")
    A(f"v_lshlrev_b32 v{vDir}, 8, v22"); A(f"v_lshl_add_u32 v{vDir}, v23, 4, v{vDir}")
    A("v_lshrrev_b32 v22, 2, v21"); A("v_and_b32 v23, 3, v21")
    L += stg_addr(22, 23, 24, 25) + ["v_lshrrev_b32 v25, 3, v22"]
    A(f"v_lshl_add_u32 v{va}, v25, 11, v24"); A(f"v_add_u32 v{va}, s{sStgB}, v{va}"); A(f"v_xor_b32 v{va+1}, 64, v{va}")
    A(f"v_xor_b32 v{pa}, 16, v21"); A(f"v_lshlrev_b32 v{pa}, 2, v{pa}"); A(f"v_xor_b32 v{pa+1}, 32, v21"); A(f"v_lshlrev_b32 v{pa+1}, 2, v{pa+1}")
    for i in range(4): A(f"v_mov_b32 v{one+i}, 0x3f803f80")
    A(f"s_mov_b32 s{sJob}, -1")
    A("L_fb_job:")
    L += [x.t for x in params_next()]
    A(f"s_add_u32 s{sJob}, s{sJob}, 1"); A(f"s_cmp_eq_u32 s{sJob}, 4"); A("s_cbranch_scc1 L_done")
    A(f"s_lshr_b32 s{sJ}, s{sFlag}, s{sJob}"); A(f"s_and_b32 s{sJ}, s{sJ}, 1"); A("s_cbranch_scc0 L_fb_job")
    A(f"s_add_u32 s{sN}, s{sN7n}, 5"); A(f"s_mov_b32 s{sRow}, s{sNxt}")
    A("L_fb_tile:")
    for ds in range(4): A(f"buffer_load_dwordx4 {rs('v', q+4*ds, 4)}, v{vDir}, s[{sQ}:{sQ+3}], s{sRow} offen{off(ds*64)}")
    def scores(dst):
        for ds in range(4): A(f"buffer_load_dwordx4 {rs('v', k+4*ds, 4)}, v{vDir}, s[{sK}:{sK+3}], s{sKb} offen{off(ds*64)}")
        A("s_waitcnt vmcnt(0)")
        for ds in range(4): A(f"{MF} {rs('v', dst, 4)}, {rs('v', k+4*ds, 4)}, {rs('v', q+4*ds, 4)}, {'0' if ds == 0 else rs('v', dst, 4)}")
        A(f"s_add_u32 s{sKb}, s{sKb}, 4096"); A("s_nop 7")
    A(f"v_mov_b32 v{m}, 0xff800000"); A(f"s_lshl_b32 s{sKb}, s{sJob}, 17"); A(f"s_mov_b32 s{sI}, 31")
    A("L_fb_max:")
    scores(s0)
    A(f"v_max3_f32 v{m}, v{m}, v{s0}, v{s0+1}"); A(f"v_max3_f32 v{m}, v{m}, v{s0+2}, v{s0+3}")
    A(f"s_sub_u32 s{sI}, s{sI}, 1"); A("s_cbranch_scc0 L_fb_max")
    for i in (0, 1):
        A(f"ds_bpermute_b32 v{t0}, v{pa+i}, v{m}"); A("s_waitcnt lgkmcnt(0)"); A(f"v_max_f32 v{m}, v{m}, v{t0}")
    for i in range(36): A(f"v_mov_b32 v{o+i}, 0")
    A(f"s_lshl_b32 s{sKb}, s{sJob}, 17"); A(f"s_mov_b32 s{sI}, 15")
    A("L_fb_pv:")
    for kt in (0, 1):
        for a in (0, 1):
            A(f"s_add_u32 m0, s{sStgB}, {kt*4096 + a*896}"); A(f"s_add_u32 s{sU}, s{sKb}, {kt*4096}")
            for nn in (0, 1): A(f"buffer_load_dwordx4 v{vQO}, s[{sV}:{sV+3}], s{sU} offen{off(nn*2048 + a*128)} lds")
    scores(s0); scores(s0 + 4)
    for r in range(8): A(f"v_sub_f32 v{s0+r}, v{s0+r}, v{m}")
    for r in range(8): A(f"v_mul_f32 v{s0+r}, s{sC}, v{s0+r}")
    for r in range(8): A(f"v_exp_f32 v{s0+r}, v{s0+r}")
    A("s_nop 0")
    for r in range(4): A(f"v_cvt_pk_bf16_f32 v{pb+r}, v{s0+2*r}, v{s0+2*r+1}")
    A("s_nop 1")
    A(f"{MF} {rs('v', lacc, 4)}, {rs('v', one, 4)}, {rs('v', pb, 4)}, {rs('v', lacc, 4)}")
    for dj in range(8):
        J, h = dj >> 1, dj & 1; f = vf + 4 * (dj & 1)
        for kt in (0, 1): A(f"ds_read_b64_tr_b16 {rs('v', f+2*kt, 2)}, v{va + (J & 1)}{off(kt*4096 + (J >> 1)*1024 + 8*h)}")
        A("s_waitcnt lgkmcnt(0)")
        A(f"{MF} {rs('v', o+4*dj, 4)}, {rs('v', f, 4)}, {rs('v', pb, 4)}, {rs('v', o+4*dj, 4)}")
    A(f"s_sub_u32 s{sI}, s{sI}, 1"); A("s_cbranch_scc0 L_fb_pv")
    A("s_nop 7"); A(f"v_rcp_f32 v{t0}, v{lacc}"); A("s_nop 0")
    for i in range(32): A(f"v_mul_f32 v{o+i}, v{t0}, v{o+i}")
    for J in range(4):
        for i in range(4): A(f"v_cvt_pk_bf16_f32 v{o+8*J+i}, v{o+8*J+2*i}, v{o+8*J+2*i+1}")
        A(f"buffer_store_dwordx4 {rs('v', o+8*J, 4)}, v{vDir}, s[{sO}:{sO+3}], s{sRow} offen{off(J*64)}")
    A("s_waitcnt vmcnt(0)")
    A(f"s_add_u32 s{sRow}, s{sRow}, 4096"); A(f"s_sub_u32 s{sN}, s{sN}, 1"); A("s_cbranch_scc0 L_fb_tile")
    A("s_branch L_fb_job")
    A("L_done:")
    return [I(x, "#" if x.endswith(":") else "s") for x in L]

def resolve(pro, jobs, fin):
    best = {}
    for seqn in ([7, 7, 7, 7], [7, 6, 7, 6], [6, 7, 6, 7], [6, 6, 6, 6]):
        dyn = [(x, 0) for x in pro]
        for j, v in enumerate(seqn):
            J = jobs[v]; b = 16 * j
            dyn += [(x, b) for x in (jobs[7].fcom + J.first if j == 0 else J.head + (J.close if j == 3 else []))]
            for it in range(6): dyn += [(x, b + 2 * it) for x in J.body[("q", "oq", "oq", "o")[j]]]
            dyn += [(x, b) for x in (J.tail + J.sw if j < 3 else J.last)]
        dyn += [(x, 64) for x in fin]
        vm = []; epoch = -2
        for x, b in dyn:
            if x.k == "B": epoch = (x.tag[1] + b) if x.tag else -1
            if x.k == "D" and x.tag and x.tag[0] == "ring":
                assert x.tag[1] + b == epoch, ("ring read outside its epoch", x.t, x.tag, b, epoch)
            if x.k in "XLS":
                tg = x.tag
                if tg and tg[0] in ("grp", "q"): tg = shift(tg, b)
                if tg and tg[0] == "grp": assert epoch == -2 or tg[1] - 4 < epoch, ("dma overwrites live group", x.t)
                vm.append(tg)
            if x.k == "w" and x.tag:
                want = (x.tag[0][4:],) + tuple(x.tag[1:])
                if want[0] in ("grp", "q"): want = shift(want, b)
                idx = max(i for i, t in enumerate(vm) if t == want)
                n = min(63, len(vm) - 1 - idx)
                best[id(x)] = (x, min(n, best.get(id(x), (x, 99))[1]))
        seq = [x for x, _ in dyn]
        last = None
        for x in seq:
            op = x.t.split()[0]
            if op == "s_addc_u32":
                a = int(re.match(r"s_addc_u32 s(\d+)", x.t).group(1))
                assert last.startswith(f"s_add_u32 s{a-1},"), (last, x.t)
            if op == "s_cselect_b32": assert re.match(r"s_(cmp|and_b32|or_b64|min)", last), (last, x.t)
            if x.t.startswith("s_cbranch_scc0 L_body"): assert last.startswith(f"s_sub_u32 s{sLoop},"), last
            elif op.startswith("s_cbranch_scc"): assert last.startswith("s_cmp"), (last, x.t)
            if re.match(r"s_(add|sub|and|or|xor|lshl|lshr|cmp|min|max)", op): last = x.t
        check_lgkm(seq)
        bad = hazards(seq)
        assert not bad, bad[:5]
    for x, n in best.values():
        if CFG["less"] and x.tag[0] == "needgrp" and "lgkm" in x.t: n = max(0, n - (10 if n >= 19 else 4))
        x.t = x.t.replace("?", str(n))

def main():
    jobs = {nt: build_job(nt) for nt in (7, 6)}
    mt = lambda i: [sc(f"s_memtime s[{80+2*i}:{81+2*i}]")] if CFG["stamp"] else []
    for nt, J in jobs.items():
        J.fcom, J.first = build_first(nt, J.carry, min(x[3] for K in jobs.values() for x in K.carry if x[0] == "cvt"))
        assert [x.t for x in J.fcom] == [x.t for x in jobs[7].fcom]
        if CFG["diag_mark"] == 0: J.first.append(sc("s_memrealtime s[96:97]"))
        J.first += stamp() + mt(0) + mt(1) + [sc("s_nop 4")]
        J.sw = job_switch(nt)
    jobs[7].fcom += [sc(f"s_cmp_eq_u32 s{sN7c}, 0"), sc("s_cbranch_scc1 L_first6")]
    pro = prologue(); fin = final()
    resolve(pro, jobs, fin)
    info = []
    for nt, J in jobs.items():
        nm = lambda s: sum(x.k == "M" for x in s)
        t = " ".join(f"{n}: {cycles(s)}c iss {issue_sum(s)} pipe {nm(s)*16} |" for n, s in (("head", J.head), *J.body.items(), ("tail", J.tail), ("last", J.last), ("first", jobs[7].fcom + J.first)))
        info.append(f"NT={nt} carry={len(J.carry)} {t} total={cycles(J.head + 6 * J.body['oq'] + J.tail + J.sw)}")
    o = open("header.txt").read().rstrip("\n").split("\n")
    o += ['.amdgcn_target "amdgcn-amd-amdhsa--gfx950"', ".text", f".globl {NAME}_kernel", ".p2align 8", f".type {NAME}_kernel,@function", f"{NAME}_kernel:"]
    X = CFG["x"].split()
    def keep(x):
        if "mul" in X and x.t.startswith("v_mul_f32") and f"s{sC}," in x.t and x.k == "V": return None
        if "sum" in X and "smfmac" in x.t: return None
        if "nofb" in X and x.t == f"s_cmp_eq_u32 s{sFlag}, 0": return "s_cmp_eq_u32 0, 0"
        if "norcp" in X and x.t.startswith("v_rcp_f32") and x.k == "E": return x.t.split(",")[0].replace("v_rcp_f32", "v_sqrt_f32") + ", 1.0"
        if inbody[0]:
            if "ds" in X and x.k == "D": return "v_mov_b32 v12, v12"
            if "kvdma" in X and x.k == "X" and x.tag[0] == "grp": return "v_mov_b32 v12, v12"
            if "st" in X and x.k == "S": return "v_mov_b32 v12, v12"
            if "bar" in X and x.k == "B": return "s_nop 2"
        return x.t
    inbody = [False]; intail = [False]
    put = lambda s: o.extend(("" if x.k == "#" else "    ") + keep(x) for x in s if keep(x) is not None)
    def loop(J, mode):
        o.append(f"L_body{mode}{J.NT}:"); inbody[0] = True; put(J.body[mode]); inbody[0] = False
    put(pro); put(jobs[7].fcom)
    for nt, J in jobs.items():
        o.append(f"L_first{nt}:"); put(J.first); loop(J, "q"); o.append(f"    s_branch L_tail{nt}")
    for nt, J in jobs.items():
        o.append(f"L_job{nt}:"); put(mt(0)); put(J.head[:-1] + mt(1) + J.head[-1:]); loop(J, "oq")
        o.append(f"L_tail{nt}:"); put(mt(2)); put(mt(3)); intail[0] = True; put(J.tail); intail[0] = False; put(J.sw)
    o.append("L_end_code:")
    for nt, J in jobs.items():
        o.append(f"L_close{nt}:"); put(J.close); loop(J, "o"); put(mt(2)); put(mt(3)); put(J.last)
        if nt == 7: o.append("    s_branch L_final")
    put(fin); put(fallback())
    if CFG["again"]:
        o += ["    s_waitcnt vmcnt(0) lgkmcnt(0)", "    s_barrier", "    s_sub_u32 s3, s3, 1", "    s_cbranch_scc0 L_again"]
    if CFG["diag_tot"]:
        o += ["    s_waitcnt vmcnt(0) lgkmcnt(0)", "L_diag:", "    s_memrealtime s[94:95]", "    s_waitcnt lgkmcnt(0)",
              "    s_sub_u32 s94, s94, s96", f"    s_cmp_lt_u32 s94, {CFG['diag_tot']}", "    s_cbranch_scc1 L_diag"]
    o += ["L_exit:", "    s_endpgm", "L_code_end:"]
    while True:
        pos = 0; fixat = None
        for k in range(o.index(f"{NAME}_kernel:"), len(o)):
            t = o[k].strip()
            if fixat is None and k < o.index("L_final:"):
                if t.startswith("s_cbranch_scc0 L_body") and pos % 32 == 0: fixat = o.index(t.split()[1] + ":")
                elif ("branch" in t and pos % 32 == 0) or (t.endswith(":") and t != "L_pf:" and pos % 32 == 28): fixat = k
            if t.startswith(".p2align"): a = 1 << int(t.split()[1]); pos = (pos + a - 1) // a * a
            elif not t.endswith(":"): pos += size(t)
        if fixat is None: break
        o.insert(fixat, "    s_nop 0")
    info.append(f"code bytes {pos}")
    o += ['.section .rodata,"a"', ".p2align 6", f".amdhsa_kernel {NAME}_kernel",
          "  .amdhsa_next_free_vgpr 512", "  .amdhsa_next_free_sgpr 102", "  .amdhsa_accum_offset 256",
          "  .amdhsa_group_segment_fixed_size 0", "  .amdhsa_kernarg_size 48", "  .amdhsa_user_sgpr_count 2",
          "  .amdhsa_user_sgpr_kernarg_segment_ptr 1", "  .amdhsa_system_sgpr_workgroup_id_x 1", ".end_amdhsa_kernel"]
    open(sys.argv[1], "w").write("\n".join(o) + "\n")
    print("\n".join(info), file=sys.stderr)

main()
```

```python
import sys, math, struct, re
from asmlib import *

NAME = "standalone__gqa_softmax__near_ridge"
CFG = dict(k="", v="", lastdef=1, q="nt", o="nt", ol="nt", th=44, hth=30, tth=12, fth=16, lth=32, sp=7, sh6=3, sroom=4, pre=2, ord=0, split=27, total=53,
           phi=2, groups="01,23,45,6", ahead=0, now=0, lazy=1, q4=1, kvpf=12, kvsh=4, less=0, zz=1, dd=9, fpipe=1, fm="", qo0=12, kw=3, lo=-30, hi=30,
           stamp=0, samehead=0, nostore=0, again=0, tmark=-1, x="", diag_tot=0, diag_mark=-1, forcefb=0)
for a in sys.argv[2:]:
    k, v = a.split("=", 1)
    assert k in CFG, k
    CFG[k] = int(v) if re.fullmatch(r"-?\d+", v) else v.replace("+", " ")

QH, KH = 217088, 131072
SCALE = math.log2(math.e) / math.sqrt(128.0)
def f2u(x): return struct.unpack("<I", struct.pack("<f", x))[0]

vK, vV, vDKV, vQO, vLin, vSt, vQ6 = 1, 3, 5, 6, 7, 8, 10
vTmp, vOne = 12, 16
vS = 20
vP = 36
vO = 92
vIdx, vDir = 252, 253
vPf, vPt, vSink = 253, 254, 0
aQ, aK, aV, aL, aO = 0, 112, 144, 176, 192
sQ, sK, sV, sO = 4, 8, 12, 16
(sC, sW, sJob, sCnt, sU0, sU1, sU2, sM, sU3, sD, sOp, sStg, sLoop, sCurO, sNxt, sN7c, sN7n, sFlag, sRole,
 sT0, sT1, sT2, sT3, sWoff, sStgB, sOffA, sOffB, sLo, sHi, sBit, sN7A, sN7B) = range(20, 52)
sPfA, sPfB = 52, 54
sPair = 56
sStampOff = 58
sDbg = 60
sKx, sVa, sQx, sOx, sVb = 64, 68, 72, 76, 88
sTm = 92
OOB = 0x100000

def Oreg(t, dj):
    return ("v", vO + t * 32 + dj * 4) if t < 5 else ("a", aO + (t - 5) * 32 + dj * 4)
def Preg(p, t):
    return vP + t * 4 if not p & 1 else vP + 28 + ((t + 1) % 7) * 4
def Qreg(t, ds): return aQ + (t * 4 + ds) * 4
def sbuf(NT, p, kt, t): return vS + (((p * NT + t) * 2 + kt) & 3) * 4
def pdeps(p, t): return [("cvt", p, kt, t, h) for kt in (0, 1) for h in (0, 1)]
def sc(t, rd=(), wr=()): return I(t, "s", rd=rd, wr=wr)
def fl(x): return (" " + x) if x else ""
def off(x): return f" offset:{x}" if x else ""
def V(t, rd, wr, k="V"): return I(t, k, rd=[("v", r) if isinstance(r, int) else r for r in rd], wr=[("v", r) if isinstance(r, int) else r for r in wr])
COST = {"V": 1, "E": 2, "D": 1}
M0 = [("m", 0)]

class Op:
    def __init__(self, key, ins, deps=(), target=None, rel=None):
        self.key = key; self.ins = ins; self.deps = list(deps); self.target = target; self.rel = rel

class Sched:
    def __init__(self, NT):
        self.NT = NT
        self.out = []; self.done = set(); self.pend = []
        self.valu = []; self.fixed = []; self.scal = []; self.flex = []
        self.forbid = set(); self.gap = 0
        self.bykey = {}; self.th = CFG["th"]; self.mode = "oq"
    def add(self, q, op):
        q.append(op); self.bykey[op.key] = op
    def emit(self, ins, key=None):
        if ins.k == "w":
            m = re.search(r"lgkmcnt\((\d+)\)", ins.t)
            if m:
                n = int(m.group(1))
                if n < len(self.pend): self.pend = self.pend[len(self.pend) - n:] if n else []
        self.out.append(ins)
        if ins.k in "DW": self.pend.append(ins)
        if key is not None: self.done.add(key)
    def haz(self, ins):
        dist = 0; miss = 0
        for p in reversed(self.out):
            miss = max(miss, need(p, ins) - dist)
            dist += states(p)
            if dist >= 8: break
        return miss
    def lgkm_need(self, inss):
        idx = -1
        for ins in inss:
            t = set(ins.rd) | set(ins.c) | set(ins.wr)
            for i, p in enumerate(self.pend):
                if set(p.wr) & t: idx = max(idx, i)
        return None if idx < 0 else min(15, len(self.pend) - 1 - idx)
    def ready(self, op):
        return op.key not in self.forbid and all(d in self.done for d in op.deps) and \
            (op.target is None or op.target <= self.gap) and self.haz(op.ins) <= 0
    def put(self, op):
        for q in (self.valu, self.fixed, self.scal, self.flex):
            if op in q: q.remove(op)
        n = self.lgkm_need([op.ins])
        if n is not None: self.emit(I(f"s_waitcnt lgkmcnt({n})", "w"))
        m = self.haz(op.ins)
        if m > 0: self.emit(I(f"s_nop {m-1}", "s"))
        self.emit(op.ins, op.key)
    def force(self, key):
        if key in self.done: return
        op = self.bykey[key]
        assert key not in self.forbid, key
        for d in op.deps: self.force(d)
        self.put(op)
    def pick(self, kinds, n):
        r = []
        for op in self.valu[:48]:
            if op.ins.k in kinds and self.ready(op):
                r.append(op)
                if len(r) == n: break
        return r
    def backlog(self):
        return sum(COST[o.ins.k] for o in self.valu if o.rel is not None and o.rel in self.done)
    def fill(self, room):
        while room > 0:
            e = self.pick("E", 1); v = self.pick("V", 2)
            if room >= 2 and e and (len(v) < 2 or self.valu.index(e[0]) < self.valu.index(v[0])):
                self.put(e[0]); room -= 2
            elif v:
                self.put(v[0]); room -= 1
            elif e and self.backlog() > self.th - 4:
                self.put(e[0]); room -= 2
            else: break
        while self.backlog() > self.th:
            c = self.pick("EV", 1)
            if not c: break
            self.put(c[0])
    def run(self, mf, look=(), cut=False, keep=False):
        allm = list(mf) + list(look)
        for i, (key, ins, deps) in enumerate(mf):
            for d in deps: self.force(d)
            if i == len(mf) - 1 and not keep:
                if cut: self.flush()
                self.forbid = set()
                self.left = [o.key for q in (self.valu, self.fixed, self.scal) for o in q]
            n = self.lgkm_need([ins])
            if n is not None: self.emit(I(f"s_waitcnt lgkmcnt({n})", "w"))
            m = self.haz(ins)
            if m > 0: self.emit(I(f"s_nop {m-1}", "s"))
            self.emit(ins, key)
            afterw = len(self.out) > 1 and self.out[-2].k == "W"
            fx = next((o for o in self.fixed if self.ready(o) and not (afterw and o.ins.k in "DW")), None)
            slot1 = False
            nxt = [x[1] for x in allm[i + 1:i + 2]]
            if self.lgkm_need(nxt) is not None:
                nxt = [x[1] for x in allm[i + 1:i + 5]]
            if fx is not None and fx.ins.k != "B": nxt = nxt + [fx.ins]
            n = self.lgkm_need(nxt)
            if n is not None:
                self.emit(I(f"s_waitcnt lgkmcnt({n})", "w")); slot1 = True
                if fx is not None and fx.ins.k == "B": fx = None
            if fx is not None and fx.ins.k == "B":
                self.put(fx); self.fill(1)
            else:
                if not slot1 and self.scal and self.ready(self.scal[0]):
                    if not (fx is not None and fx.ins.k == "X" and ("m", 0) in self.scal[0].ins.wr): self.put(self.scal[0])
                room = 1 if "smfmac" in ins.t else 2
                if fx is not None and room == 1 and fx.ins.k != "D": fx = None
                if fx is not None:
                    self.put(fx); room = {"D": room - 1, "X": 1, "L": 1, "S": CFG["sroom"], "W": 0}[fx.ins.k]
                if fx is not None and fx.ins.k == "D" and room == 1 and len(self.pick("V", CFG["dd"])) < CFG["dd"] and self.pick("E", 1):
                    self.gap += 1
                    f2 = next((o for o in self.fixed if o.ins.k == "D" and self.ready(o) and self.lgkm_need([o.ins]) is None), None)
                    self.gap -= 1
                    if f2 is not None: self.put(f2); room = 0
                if self.flex and fx is None and room == 2 and self.backlog() == 0 and not self.pick("E", 1) and not afterw:
                    f = next((o for o in self.flex if self.ready(o)), None)
                    if f is not None: self.put(f); room -= 1
                if room: self.fill(room)
            self.gap += 1
    def flush(self):
        for q in (self.fixed, self.flex, self.scal, self.valu):
            for op in list(q):
                if op.key not in self.forbid and op.key not in self.done: self.force(op.key)

def ds128(k, r, ad, o, tag=None):
    return I(f"ds_read_b128 {rs(k, r, 4)}, v{ad}{off(o)}", "D", rd=[("v", ad)], wr=R(k, r, 4), tag=tag)
def dstr(k, r, ad, o, tag=None):
    return I(f"ds_read_b64_tr_b16 {rs(k, r, 2)}, v{ad}{off(o)}", "D", rd=[("v", ad)], wr=R(k, r, 2), tag=tag)
def koff(kt, ds): return kt * 8192 + (ds >> 1) * 1024
def voff(j, b, kt): return kt * 8192 + 2048 + b * 1024 + 8 * (j & 1)
def Kreg(kt, ds): return aK + kt * 16 + ds * 4
def Vreg(j, b): return aV + (2 * j + b) * 4
def k_read(p, kt, ds): return ds128("a", Kreg(kt, ds), vK + (ds & 1), ((p - 1) & 1) * 16384 + koff(kt, ds), ("ring", p - 1))
def v_read(r, j, b, kt): return dstr("a", Vreg(j, b) + 2 * kt, vV + (j >> 1), ((r - 1) & 1) * 16384 + voff(j, b, kt), ("ring", r - 1))
def q_read(t, ds, slot=None): return ds128("a", Qreg(t, ds), vSt + (ds & 1), (t if slot is None else slot) * 4096 + (ds >> 1) * 1024)
def so_(x): return "0" if x is None else f"s{x}"
def dma(vo, srd, so, o, flags, tag):
    return I(f"buffer_load_dwordx4 v{vo}, s[{srd}:{srd+3}], {so_(so)} offen{off(o)}{fl(flags)} lds", "X", rd=[("v", vo), ("m", 0)], tag=tag)
def o_store(r, srd, so, o, flags):
    return I(f"buffer_store_dwordx4 {rs('v', r, 4)}, v{vQO}, s[{srd}:{srd+3}], {so_(so)} offen{off(o)}{fl(flags)}", "S", rd=R("v", r, 4) + [("v", vQO)])
def o_write(slot, J, b):
    ad = vSt + (J & 1)
    return I(f"ds_write_b128 v{ad}, {rs('v', b, 4)}{off(slot*4096 + (J >> 1)*1024)}", "W", rd=R("v", b, 4) + [("v", ad)])
def code_touch(base, size_):
    return [V(f"v_min_u32 v{vPt}, {size_}, v{vPf}", [vPf], [vPt]), V(f"v_mov_b32 v{vPt+1}, 0", [], [vPt + 1]),
            V(f"v_lshl_add_u64 v[{vPt}:{vPt+1}], v[{vPt}:{vPt+1}], 0, s[{base}:{base+1}]", [vPt, vPt + 1], [vPt, vPt + 1]),
            I(f"global_load_dword v{vSink}, v[{vPt}:{vPt+1}], off", "L", rd=R("v", vPt, 2))]
def bump(srd, by): return [f"s_add_u32 s{srd}, s{srd}, {by}", f"s_addc_u32 s{srd+1}, s{srd+1}, 0"]
def shift(key, p): return (key[0], key[1] + p) + tuple(key[2:])
PHI = CFG["phi"]
KORD = [(0, 0), (0, 1), (0, 2), (0, 3), (1, 3), (1, 2), (1, 1), (1, 0)]
VORD = [(0, 0), (0, 1), (1, 1), (1, 0), (2, 0), (2, 1), (3, 1), (3, 0)]
DEFER = [(t, J) for t in range(5) for J in range(4)]

def pv_tile(r, t, home=None, vkey="vr"):
    L = []; seen = set()
    for j, b in VORD:
        blk = r - 2 + b
        if not 0 <= blk < 16: continue
        dj = (r & 1) * 4 + j; first = r <= 2 and j not in seen; seen.add(j)
        deps = pdeps(blk, t) + ([(vkey, r, j, b, kt) for kt in (0, 1)] if vkey else [])
        if first and vkey and (t, dj >> 1) in DEFER: deps.append(("ow", t, dj >> 1))
        L.append((("pv", r, t, j, b), mfma(Oreg(t, dj), home(j, b) if home else ("a", Vreg(j, b)), ("v", Preg(blk, t)), c0=first), deps))
    return L
def sum_tile(r, t):
    def one(blk):
        d = aL + 4 * (t >> 1); b = Preg(blk, t - 1) if t < 6 else Preg(0, 6)
        return (("sum", blk + 1, t >> 1), I(f"v_smfmac_f32_16x16x64_bf16 {rs('a', d, 4)}, {rs('v', vOne, 4)}, {rs('v', b, 8)}, v{vIdx}", "M",
                                            rd=R("v", vOne, 4) + R("v", b, 8) + [("v", vIdx)], wr=R("a", d, 4), c=R("a", d, 4)),
                pdeps(blk, t) + (pdeps(blk, t - 1) if t < 6 else []))
    if r > 16 or not (t & 1 or t == 6): return []
    if t == 6: return [] if r & 1 else [one(r - 1)]
    if CFG["zz"]: return [] if r & 1 else [one(r - 2), one(r - 1)]
    return [one(r - 1)]
def qk_chain(p, kt, t, sb, deps0, home=None, kkey="kr"):
    return [(("qk", p, kt, t, i), mfma(("v", sb), home(kt, ds) if home else ("a", Kreg(kt, ds)), ("a", Qreg(t, ds)), c0=(i == 0)),
             ([(kkey, p, kt, ds)] if kkey else []) + (deps0 if i == 0 else []) + ([("q6r", ds)] if (p, kt, t) == (0, 0, 6) and kkey else []))
            for i, (_, ds) in enumerate(KORD[4 * kt:4 * kt + 4])]
def seg_slots(NT, k): return [divmod(s, NT) for s in range(max(0, k * NT - PHI), min(16 * NT, (k + 1) * NT - PHI))]
def seg_mf(NT, k):
    L = []; sl = dict(((p * NT + t + PHI) % NT, (p, t)) for p, t in seg_slots(NT, k))
    for tv in range(NT):
        if k >= 1: L += pv_tile(k, tv) + sum_tile(k, tv)
        if tv in sl:
            p, t = sl[tv]
            pp, tt = divmod(p * NT + t - 2, NT)
            for kt in (0, 1): L += qk_chain(p, kt, t, sbuf(NT, p, kt, t), [("cvt", pp, kt, tt, h) for h in (0, 1)] if pp >= 0 else [])
    return L

def add_softmax(S, p, kt, t, sb, war=()):
    rel = ("qk", p, kt, t, 3)
    mul = lambda r: Op(("mul", p, kt, t, r), V(f"v_mul_f32 v{sb+r}, s{sC}, v{sb+r}", [sb + r], [sb + r]), [rel], rel=rel)
    ex = lambda r: Op(("exp", p, kt, t, r), V(f"v_exp_f32 v{sb+r}, v{sb+r}", [sb + r], [sb + r], "E"), [("mul", p, kt, t, r)], rel=rel)
    def cv(h):
        d = Preg(p, t) + 2 * kt + h
        return Op(("cvt", p, kt, t, h), V(f"v_cvt_pk_bf16_f32 v{d}, v{sb+2*h}, v{sb+2*h+1}", [sb + 2 * h, sb + 2 * h + 1], [d]),
                  [("exp", p, kt, t, 2 * h), ("exp", p, kt, t, 2 * h + 1)] + list(war), rel=rel)
    for o in (mul(0), mul(1), ex(0), ex(1), mul(2), mul(3), ex(2), ex(3), cv(0), cv(1)): S.add(S.valu, o)

def add_seg_ops(S, k, mf):
    NT = S.NT; g0 = S.gap; keys = [m[0] for m in mf]; mode = S.mode if k >= 3 else "oq"
    at = lambda key: g0 + keys.index(key)
    for p, t in seg_slots(NT, k):
        for kt in (0, 1): add_softmax(S, p, kt, t, sbuf(NT, p, kt, t), [("sum", p - (t < 6), t >> 1)] if p >= 2 and not p & 1 else [])
    fx = []; scal = []
    new = lambda lst, key, ins, deps, g: lst.append(Op(key, ins, deps, g))
    known = lambda x: [x] if (x in S.bykey or x in S.done) else []
    def chain(name, texts, deps, g):
        for i, t in enumerate(texts):
            new(scal, (name[0], k) + tuple(name[1:]) + (i,), sc(t), deps, g)
            deps = [(name[0], k) + tuple(name[1:]) + (i,)]
        return deps
    xor = lambda r: V(f"v_xor_b32 v{r}, 0x8000, v{r}", [r], [r])
    sp = CFG["sp"]; prev = []; rd = []
    if 1 <= k <= 16:
        g = g0 + 2 + (CFG["sh6"] if NT == 6 else 0)
        if k == 1:
            new(scal, ("w6",), I("s_waitcnt vmcnt(?)", "w", tag=("needq6",)), [], g0)
            prev = [("w6",)]
            if NT == 7:
                for ds in range(4): new(fx, ("q6r", ds), ds128("a", Qreg(6, ds), vQ6 + (ds & 1), (ds >> 1) * 1024), [("w6",)], g0 + 1 + ds)
                prev = [("qk", 0, 0, 6, 3)]; g = at(("qk", 0, 1, 6, 3)) + 8
        x = ((k + 3) & 1) * 128
        for i, (srd, o) in enumerate(((sKx, 0), (sKx, 128), (sVa, x), (sVb, x))):
            new(scal, ("m0", k, i), sc(f"s_add_u32 m0, s{sM}, {i*1024 - o}", wr=M0), prev, max(g0, g - 3))
            new(fx, ("dma", k, i), dma(vDKV, srd, None, o, "" if mode == "o" and CFG["lastdef"] else CFG["kv"[i >> 1]], ("grp", k + 2)), [("m0", k, i)], g)
            prev = [("dma", k, i)]; g += sp if k > 1 else 4
        prev = chain(("uk",), [f"s_add_u32 s{sM}, s{sM}, 16384", f"s_and_b32 s{sM}, s{sM}, 0xffff", f"s_mov_b64 s[{sVa}:{sVa+1}], s[{sVb}:{sVb+1}]",
                               f"s_mov_b32 s{sVa+2}, s{sVb+2}"] + bump(sVb, 8192) + [f"s_mov_b32 s{sVb+2}, s{sKx+2}"] + bump(sKx, 8192) +
                     [f"s_add_u32 s{sCnt}, s{sCnt}, 1", f"s_cmp_lt_u32 s{sCnt}, 64", f"s_cselect_b32 s{sKx+2}, 8192, 0"], prev, g - sp + 1)
        gk = at(("qk", k - 1, 0, NT - 1, 0))
        for n, (kt, ds) in enumerate(KORD):
            new(fx, ("kr", k, kt, ds), k_read(k, kt, ds), [("qk", k - 1, kt, NT - 1, n & 3)] + known(("xk", k - 1, ds & 1)), gk + (n * CFG["kw"]) // 2)
            rd.append(("kr", k, kt, ds))
        if k <= 14 and (k == 1 or not k & 1):
            g = max(g + 6, gk + 8 + CFG["qo0"])
            for j in range(4 if mode == "q" and CFG["q4"] else 3):
                flip = [f"s_xor_b32 s{sD}, s{sD}, 0x700"]
                if "o" in mode:
                    ready = [("ow", k - 1, J) for J in range(4)] if k <= 2 else []
                    new(fx, ("or", k, j), ds128("v", vTmp, vLin, j * 1024),
                        known(("ul", k - 2)) + known(("ul", k - 1)) + ready + ([("os", k, j - 1)] if j else []), g - 9)
                    new(fx, ("os", k, j), o_store(vTmp, sOx, None, 0, CFG["o" if "q" in mode else "ol"]), [("or", k, j)] + prev, g)
                    prev = chain(("uo", j), bump(sOx, f"s{sD}") + ([] if "q" in mode else flip), [("os", k, j)], g)
                    g += sp if k > 1 else 5
                if mode == "o":
                    step = 256 << CFG["kvsh"]
                    new(fx, ("pk", k, j), I(f"buffer_load_dword v{vSink}, v{vQ6}, s[{sQx}:{sQx+3}], 0 offen", "L", rd=[("v", vQ6)]), prev, g)
                    prev = chain(("pu", j), bump(sQx, step) + [f"s_max_u32 s{sQx+2}, s{sQx+2}, {step}", f"s_sub_u32 s{sQx+2}, s{sQx+2}, {step}"], [("pk", k, j)], g)
                    g += sp
                if "q" in mode:
                    new(scal, ("qm", k, j), sc(f"s_mov_b32 m0, s{sStg}", wr=M0), prev, g - 3)
                    new(fx, ("qd", k, j), dma(vQO, sQx, None, 0, CFG["q"], ("q", k)), [("qm", k, j)], g)
                    prev = chain(("uq", j), bump(sQx, f"s{sD}") + flip + [f"s_add_u32 s{sStg}, s{sStg}, 1024"], [("qd", k, j)], g)
                    g += sp if k > 1 else 5
            if "o" in mode: S.add(S.valu, Op(("ul", k), V(f"v_add_u32 v{vLin}, 3072, v{vLin}", [vLin], [vLin]), [("or", k, 2)]))
        if not k & 1:
            for b in (0, 1):
                S.add(S.valu, Op(("xk", k, b), xor(vK + b), [x_ for x_ in rd if x_[3] & 1 == b]))
                S.add(S.valu, Op(("xv", k, b), xor(vV + b), [("vr", k, j, bb, kt) for j in (2 * b, 2 * b + 1) for bb in (0, 1) for kt in (0, 1)]))
        gv = at(next(x_ for x_ in keys if x_[:3] == ("pv", k, NT - 1)))
        gb = gv - 2 if k < 16 else gk + 20
        rd += [("vr", k, j, b, kt) for j, b in VORD for kt in (0, 1)]
        new(scal, ("wb", k), I("s_waitcnt vmcnt(?) lgkmcnt(0)", "w", tag=("needgrp", k)), rd + [("dma", k, 3)], gb - 1)
        new(fx, ("bar", k), I("s_barrier", "B", tag=("bar", k)), [("wb", k)], gb)
        order = VORD if k < 16 else sorted(VORD, key=lambda x_: x_[1])
        for n, (j, b, kt) in enumerate((j, b, kt) for j, b in order for kt in (0, 1)):
            war = [("pv", k, NT - 1, j, b)] if ("pv", k, NT - 1, j, b) in keys else []
            new(fx, ("vr", k + 1, j, b, kt), v_read(k + 1, j, b, kt), [("bar", k)] + war + ([] if k & 1 else [("xv", k, j >> 1)]), gv + (n if k > 1 else (n * 3) // 4))
        if k == 2 or (3 < k < 15 and not k & 1):
            new(scal, ("lp", k), sc(f"s_sub_u32 s{sLoop}, s{sLoop}, 1" if k > 2 else f"s_cmp_eq_u32 s{sJob}, 3"), [("wb", k)] + prev, g0 + len(mf) - 5)
    if k <= 1:
        todo = ([(0, 2), (0, 3), (1, 2), (1, 3), (0, 0), (0, 1), (2, 2), (2, 3), (3, 2), (3, 3)] if k == 0 else
                [(4, 2), (4, 3), (1, 0), (1, 1), (2, 0), (2, 1), (3, 0), (3, 1), (4, 0), (4, 1)])
        lo, hi = (1, len(mf) - 1) if k == 0 else (6, len(mf) - 16)
        for i, (t, J) in enumerate(todo): new(fx, ("ow", t, J), o_write(t, J, Oreg(t, 2 * J)[1]), [], g0 + lo + (hi - lo) * i // len(todo))
    for o in fx: S.add(S.fixed, o)
    S.fixed.sort(key=lambda o: o.target)
    scal.sort(key=lambda o: o.target)
    for o in scal: S.add(S.scal, o)
    misc = [o for o in S.valu if o.key[0] in ("xk", "xv", "ul", "ul2")]
    S.valu = misc + [o for o in S.valu if o not in misc]

def start_job(NT, mode):
    S = Sched(NT); S.mode = mode
    S.done |= {("kr", 0, kt, ds) for kt, ds in KORD} | {("vr", 1, j, b, kt) for j, b in VORD for kt in (0, 1)}
    return S
def run_segs(S, segs, carry):
    starts = {}
    for k in segs:
        starts[k] = len(S.out)
        mf = seg_mf(S.NT, k)
        S.forbid = set(); S.th = CFG["th"] if k >= 2 else CFG["hth"]
        add_seg_ops(S, k, mf)
        cut = carry is not None and k >= 2 and not k & 1
        if cut: S.forbid = {shift(x, k) for x in carry}
        S.run(mf, seg_mf(S.NT, k + 1)[:4], cut)
    return starts
def find_carry(NT):
    S = start_job(NT, "oq")
    run_segs(S, range(0, 9), None)
    c = [shift(x, -8) for x in S.left]
    assert all(x[0] in ("mul", "exp", "cvt", "vr") for x in c), c
    return c

def params_next():
    return [sc(x) for x in (
        f"s_add_u32 s{sT2}, s{sJob}, 1",
        f"s_xor_b32 s{sT3}, s{sT2}, s{sRole}",
        f"s_and_b32 s{sT3}, s{sT3}, 1",
        f"s_cselect_b32 s{sNxt}, s{sOffB}, s{sOffA}",
        f"s_cselect_b32 s{sN7n}, s{sN7B}, s{sN7A}",
        f"s_mul_i32 s{sT2}, s{sT2}, {QH}",
        f"s_add_u32 s{sNxt}, s{sNxt}, s{sT2}")]

def advance():
    return [sc(x) for x in (f"s_lshl_b32 s{sBit}, 1, s{sJob}", f"s_add_u32 s{sJob}, s{sJob}, 1", f"s_mov_b32 s{sOp}, s{sCurO}",
                            f"s_mov_b32 s{sCurO}, s{sNxt}", f"s_mov_b32 s{sN7c}, s{sN7n}")] + params_next() + \
           [sc(x) for x in (f"s_add_u32 s{sQx}, s{sQ}, s{sNxt}", f"s_addc_u32 s{sQx+1}, s{sQ+1}, 0", f"s_cmp_lt_u32 s{sJob}, 3", f"s_cselect_b32 s{sQx+2}, 4096, 0",
                            f"s_add_u32 s{sOx}, s{sO}, s{sOp}", f"s_addc_u32 s{sOx+1}, s{sO+1}, 0",
                            f"s_mov_b32 s{sD}, 128", f"s_mov_b32 s{sStg}, s{sStgB}", f"s_mov_b32 s{sLoop}, 5")]

def add_rows(S, tiles, vmx, zero):
    add = lambda key, ins, deps: S.add(S.valu, Op(key, ins, deps))
    for t in tiles:
        b = Preg(0, t)
        src = [aL + 2 * t, aL + 2 * t + 1] + ([aL + 14, aL + 15] if t == 6 else [])
        dst = [b + 2, b, b + 1, b + 3]
        for a, d in zip(src, dst): add(("la", a), V(f"v_accvgpr_read_b32 v{d}, a{a}", [("a", a)], [d]), [("sum", 16, t >> 1), ("pv", 16, t, 3, 0)])
        if t == 6:
            add(("l6", 0), V(f"v_add_f32 v{dst[0]}, v{dst[0]}, v{dst[3]}", [dst[0], dst[3]], [dst[0]]), [("la", a) for a in src])
            add(("l6", 1), V(f"v_add_f32 v{dst[1]}, v{dst[1]}, v{dst[2]}", [dst[1], dst[2]], [dst[1]]), [("l6", 0)])
        add(("lr", t), V(f"v_add_f32 v{dst[0]}, v{dst[0]}, v{dst[1]}", dst[:2], [dst[0]]), [("la", a) for a in src] + ([("l6", 1)] if t == 6 else []))
        add(("rc", t), V(f"v_rcp_f32 v{b}, v{b+2}", [b + 2], [b], "E"), [("lr", t)])
        m = vmx if t else b
        add(("mx", t), V(f"v_maximum3_f32 v{vmx}, v{m}, v{b}, v{b+2}", [m, b, b + 2], [vmx]), [("rc", t)] + ([("mx", t - 1)] if t else []))
        if zero:
            for a in src: add(("lz", a), V(f"v_accvgpr_write_b32 a{a}, 0", [], [("a", a)]), [("la", a)])
    if tiles[-1] == S.NT - 1: add(("c1",), V(f"v_cmp_ngt_f32 vcc, s{sHi}, v{vmx}", [vmx], [("s", "vcc")]), [("mx", S.NT - 1)])

def convert(E, b, r, skip=lambda i: False):
    for i in range(4):
        if not skip(i):
            E.append(V(f"v_pk_mul_f32 {rs('v', b+2*i, 2)}, {rs('v', b+2*i, 2)}, {rs('v', r, 2)} op_sel_hi:[1,0]",
                       [b + 2 * i, b + 2 * i + 1, r], [b + 2 * i, b + 2 * i + 1]))
    for i in range(4): E.append(V(f"v_cvt_pk_bf16_f32 v{b+i}, v{b+2*i}, v{b+2*i+1}", [b + 2 * i, b + 2 * i + 1], [b + i]))
def acc_copy(dst, src): return [V(f"v_accvgpr_read_b32 v{dst+i}, a{src+i}", [("a", src + i)], [dst + i]) for i in range(8)]
def final_pv(t, J, i): return ("pv", 16, t) + ((2 * J, 1), (2 * J + 1, 0))[i >> 2] if J < 2 else ("pv", 17, t, 2 * J - 4 + (i >> 2), 0)

def build_tail(S):
    NT = S.NT
    run_segs(S, [15], None)
    g0 = S.gap; mf = seg_mf(NT, 16)
    add_seg_ops(S, 16, mf)
    mf += seg_mf(NT, 17)
    S.add(S.scal, Op(("wq",), I("s_waitcnt vmcnt(?)", "w", tag=("needq", 12)), [], g0)); S.scal.insert(0, S.scal.pop())
    nsc = [0]
    def scal(x, deps=()):
        i = nsc[0]; nsc[0] += 1
        S.add(S.scal, Op(("ts", i), x, ([("ts", i - 1)] if i else [("uk", 16, 11)]) + list(deps), g0)); return ("ts", i)
    scal(sc(f"s_mul_i32 s{sQx+2}, s{sQx+2}, s{sN7n}"))
    prev = [("bar", 16)]; gb = S.bykey[("bar", 16)].target
    for a in (0, 1):
        m = scal(sc(f"s_add_u32 m0, s{sWoff}, {49152 + a*896}", wr=M0), prev)
        for nn in (0, 1): S.add(S.fixed, Op(("q6", a, nn), dma(vQO, sQx, None, nn * 2048 + a * 128, CFG["q"], ("q6",)), [m], gb + 2 + 4 * (2 * a + nn)))
        prev = [("q6", a, 0), ("q6", a, 1)]
    ct = code_touch(sPfB, "L_final-L_end_code")
    for i, x in enumerate(ct[:3]): S.add(S.valu, Op(("pa", i), x, [("pa", i - 1)] if i else []))
    S.add(S.fixed, Op(("pf",), ct[3], [("pa", 2)] + prev, gb + 18))
    S.fixed.sort(key=lambda o: o.target)
    for x in advance(): scal(x, prev); prev = []
    w5 = scal(I("s_waitcnt vmcnt(?)", "w", tag=("needq", 14)))
    for t in range(6):
        for ds in range(4): S.add(S.flex, Op(("qr", t, ds), q_read(t, ds), [("wq",) if t < 5 else w5, ("qk", 15, 1, t, 3)]))
    add = lambda key, ins, deps: S.add(S.valu, Op(key, ins, deps))
    add(("vl",), V(f"v_add_u32 v{vLin}, {(-24576) & 0xffffffff:#x}, v{vLin}", [vLin], [vLin]), [])
    add_rows(S, list(range(NT)), vTmp, True)
    for x in ("s_cmp_lg_u64 vcc, 0", f"s_cselect_b32 s{sT2}, s{sBit}, 0", f"s_or_b32 s{sFlag}, s{sFlag}, s{sT2}"): scal(sc(x), [("c1",)])
    softdone = [("cvt", 15, kt, t, h) for t in (NT - 2, NT - 1) for kt in (0, 1) for h in (0, 1)]
    early = {(NT - 1, J): vb for J, vb in enumerate((vS, vS + 8))}
    for (t, J), vb in early.items():
        for i, x in enumerate(acc_copy(vb, Oreg(t, 2 * J)[1])): add(("ar", t, J, i), x, softdone + [final_pv(t, J, i)])
    for t in range(5):
        for J in range(2):
            b = Oreg(t, 2 * J)[1]; r = Preg(0, t)
            for i in range(8):
                add(("om", t, J, i), V(f"v_mul_f32 v{b+i}, v{r}, v{b+i}", [b + i, r], [b + i]), [("rc", t), final_pv(t, J, i)] + ([("om", t, J, i - 1)] if i else []))
            for i in range(4):
                add(("oc", t, J, i), V(f"v_cvt_pk_bf16_f32 v{b+i}, v{b+2*i}, v{b+2*i+1}", [b + 2 * i, b + 2 * i + 1], [b + i]), [("oc", t, J, i - 1) if i else ("om", t, J, 7)])
    n1 = max(i for i, m in enumerate(mf) if m[0][0] == "qk") + 1
    S.run(mf[:n1], mf[n1:n1 + 4], keep=True)
    S.th = CFG["tth"]
    S.run(mf[n1:], keep=True)
    begun = {x[1:3] for x in S.done if x[0] == "om"}
    S.valu = [o for o in S.valu if o.key[0] not in ("om", "oc") or o.key[1:3] in begun]
    S.flush()
    E = []
    if CFG["tmark"] == 0: E.append(sc("s_memtime s[86:87]"))
    vC = Preg(1, 0)
    spare = iter((vC, vC + 8, vC + 16, vS, vS + 8, vC))
    def piece(t, J):
        k, b = Oreg(t, 2 * J)
        if k == "a":
            if (t, J) in early: b = early[(t, J)]
            else:
                d = next(spare); E.extend(acc_copy(d, b)); b = d
        convert(E, b, Preg(0, t))
        if (t, J) not in DEFER: E.append(o_write(t % 6, J, b))
        return b
    plain = [x for x in DEFER if x not in begun]
    def some(n):
        for _ in range(n):
            if plain: piece(*plain.pop(0))
    if NT == 7:
        E.append(sc(f"s_add_u32 s{sT3}, s{sOp}, 24576")); regs = []
        for a in (0, 1):
            for J in (2 * a, 2 * a + 1): regs.append(piece(6, J) + 4); some(1)
            E += [ds128("v", regs[2 * a + nn], vLin, nn * 2048 + a * 1024) for nn in (0, 1)]
        for a in (0, 1):
            E.append(I(f"s_waitcnt lgkmcnt({4 - 4*a})", "w"))
            E += [o_store(regs[2 * a + nn], sO, sT3, nn * 2048 + a * 128, CFG["o"]) for nn in (0, 1)]
            some(3 - 3 * a)
    else:
        E.append(sc(f"s_mov_b32 s{sT3}, {OOB:#x}"))
        for i in range(4): E.append(o_store(vC, sO, sT3, 0, ""))
    for J in range(4): piece(5, J); some(2)
    some(20)
    E.append(I("s_waitcnt lgkmcnt(4)", "w"))
    return [I(".p2align 3", "#")] + align8(fix_hazards(E, S.out[-10:]), False)

def build_last(NT, carry):
    S = start_job(NT, "o")
    run_segs(S, range(15), carry)
    start = len(S.out)
    while S.out[start - 1].k != "M": start -= 1
    S.th = CFG["lth"]; g0 = S.gap
    assert NT - PHI >= 4 and PHI <= 3
    fix = lambda key, ins, deps, g=0: S.add(S.fixed, Op(key, ins, deps, g))
    add = lambda key, ins, deps: S.add(S.valu, Op(key, ins, deps))
    nsc = [0]
    def scal(x, deps=(), g=0):
        i = nsc[0]; nsc[0] += 1
        S.add(S.scal, Op(("ts", i), x, ([("ts", i - 1)] if i else []) + list(deps), g)); return ("ts", i)
    def qk(p, t):
        pp, tt = divmod(p * NT + t - 2, NT); L = []
        for kt in (0, 1):
            add_softmax(S, p, kt, t, sbuf(NT, p, kt, t), [("pv", 15, t, 3, 0)] if p == 15 else [])
            L += qk_chain(p, kt, t, sbuf(NT, p, kt, t), [("cvt", pp, kt, tt, h) for h in (0, 1)])
        return L
    home = lambda r: (lambda j, b: ("a", Qreg(0, 0) + (2 * j + b) * 4)) if r == 16 else (lambda j, b: ("a", Qreg(2, j)))
    pv = lambda r, t: pv_tile(r, t, home(r) if r > 15 else None) + sum_tile(r, t)
    G = [[int(c) for c in g if int(c) < NT] for g in CFG["groups"].split(",")]
    G = [g for g in G if g]
    did = set()
    def work(g, ahead):
        L = []
        for t in list(range(g[-1] + 1)):
            if t not in did: L += pv(15, t) + qk(15, t); did.add(t)
        tailpv = [pv(16, t) for t in g] + [pv(17, t) for t in g]
        for t in range(g[-1] + 1, min(NT, g[-1] + 1 + ahead)):
            if t not in did: L += pv(15, t) + qk(15, t); did.add(t)
        return L + sum(tailpv, [])
    A = []
    for i, t in enumerate(range(NT - PHI, NT)): A += pv(15, i) + qk(14, t)
    for t in range(3): A += (pv(15, t + PHI) if t + PHI < 3 else []) + qk(15, t); did.add(t)
    A += work(G[0], 0)
    keys = [m[0] for m in A]
    gk = g0 + keys.index(("qk", 14, 0, NT - 1, 0))
    for n, (kt, ds) in enumerate(KORD): fix(("kr", 15, kt, ds), k_read(15, kt, ds), [("qk", 14, kt, NT - 1, n & 3)], gk + n)
    for b in (0, 1):
        add(("xv", 16, b), V(f"v_xor_b32 v{vV+b}, 0x8000, v{vV+b}", [vV + b], [vV + b]), [("vr", 16, j, bb, kt) for j in (2 * b, 2 * b + 1) for bb in (0, 1) for kt in (0, 1)])
    for r, t in ((16, 0), (17, 2)):
        g = g0 + keys.index(("qk", 15, 1, t, 0))
        fix(("bar", r - 1), I("s_barrier", "B", tag=("bar", r - 1)), [scal(I("s_waitcnt vmcnt(?)", "w", tag=("needgrp", r - 1)), [], g)], g + 1)
        for j, b in VORD:
            if r == 17 and b: continue
            for kt in (0, 1):
                owner = j >> 1 if r == 16 else 2
                fix(("vr", r, j, b, kt), dstr("a", home(r)(j, b)[1] + 2 * kt, vV + (j >> 1), ((r - 1) & 1) * 16384 + voff(j, b, kt)),
                    [("bar", r - 1), ("qk", 15, 1, owner, 3)] + ([("xv", 16, j >> 1)] if r == 17 else []))
    add(("vl",), V(f"v_add_u32 v{vLin}, {(-24576) & 0xffffffff:#x}, v{vLin}", [vLin], [vLin]), [])
    S.valu = [o for o in S.valu if o.key[0] == "xv"] + [o for o in S.valu if o.key[0] != "xv"]
    so = lambda t: (sT0, sT1, sT2, sT3, sU0, sU1, sU2)[t]
    for t in range(NT): scal(sc(f"s_add_u32 s{so(t)}, s{sCurO}, {t*4096}"))
    O = lambda t, J: Oreg(t % 5, 2 * J)[1]
    back = lambda t, a, nn: ds128("v", O(t, 2 * a + nn) + 4, vLin, (t % 6) * 4096 + nn * 2048 + a * 1024)
    out = lambda t, a, nn: o_store(O(t, 2 * a + nn) + 4, sO, so(t), nn * 2048 + a * 128, CFG["ol"])
    def mark(i):
        if CFG["tmark"] == i: S.emit(sc("s_memtime s[86:87]")); print(f"NT={NT} model at mark {i}: {cycles(S.out[start:])}", file=sys.stderr)
    parked = []; lazy = set()
    for gi, g in enumerate(G):
        end = gi == len(G) - 1
        mf = A if gi == 0 else work(g, CFG["ahead"])
        g0 = S.gap; front = []
        for i, (t, a) in enumerate(parked):
            x = g0 + int(i * (len(mf) - 10) / len(parked))
            for k in (0, 1):
                dep = []
                if (t, a) in lazy:
                    C = []; convert(C, O(t, 2 * a + k), 0, lambda i_: True)
                    for n, c_ in enumerate(C):
                        S.add(front, Op(("lc", t, a, k, n), c_, dep)); dep = [("lc", t, a, k, n)]
                fix(("lw", t, a, k), o_write(t, 2 * a + k, O(t, 2 * a + k)), dep, x + 2 * k)
            for k in (0, 1): fix(("ob", t, a, k), back(t, a, k), [("lw", t, a, 0), ("lw", t, a, 1)], x + 4 + k)
            for k in (0, 1): fix(("oo", t, a, k), out(t, a, k), [("ob", t, a, k)], x + 9 + 2 * k)
        S.fixed.sort(key=lambda o: o.target)
        S.valu = front + S.valu
        add_rows(S, g, vTmp, False)
        if end:
            for x in ("s_cmp_lg_u64 vcc, 0", f"s_cselect_b32 s{sBit}, 8, 0", f"s_or_b32 s{sFlag}, s{sFlag}, s{sBit}"): scal(sc(x), [("c1",)])
        for J in range(4):
            for t in g:
                if t >= 5:
                    free = [("oo", t - 5, J >> 1, J & 1)] if ("oo", t - 5, J >> 1, J & 1) in S.bykey else []
                    for i, x in enumerate(acc_copy(O(t, J), Oreg(t, 2 * J)[1])): add(("ar", t, J, i), x, free + [final_pv(t, J, i)])
        S.run(mf, keep=True)
        late = [o for o in S.valu if o.key[0] == "ar"]
        keepv = [o for o in S.valu if o.key[0] in ("mul", "exp", "cvt")]
        S.valu = [o for o in S.valu if o not in late and o not in keepv]
        S.flush(); S.valu = [o for o in keepv if o.key not in S.done]
        mark(11 + 2 * gi)
        E = []; pend = []
        def drain(n):
            if pend:
                t, a = pend.pop()
                E.append(I(f"s_waitcnt lgkmcnt({n})", "w")); E.extend(out(t, a, nn) for nn in (0, 1))
        halves = [(t, a) for a in (0, 1) for t in g] if end else [(t, a) for t in g for a in (0, 1)]
        now = len(halves) if end else CFG["now"]
        for i, (t, a) in enumerate(halves):
            for J in (2 * a, 2 * a + 1):
                E += [o.ins for o in late if o.key[1:3] == (t, J)]
                convert(E, O(t, J), Preg(0, t))
                if i >= now + CFG["lazy"]: del E[-4:]; lazy.add((t, a))
                if i < now: E.append(o_write(t % 6, J, O(t, J)))
            if i < now:
                E += [back(t, a, nn) for nn in (0, 1)]
                drain(4); pend.append((t, a))
            elif i == now: drain(0)
        drain(0)
        parked = halves[now:]
        S.emit(I(".p2align 3", "#"))
        for x in align8(fix_hazards(E, S.out[-10:]), False): S.emit(x)
        mark(12 + 2 * gi)
    return S.out[start:]

class Job: pass
def build_job(NT):
    J = Job(); J.NT = NT; J.carry = carry = find_carry(NT); J.body = {}
    for mode in ("q", "o", "oq"):
        S = start_job(NT, mode)
        st = run_segs(S, range(15), carry)
        st[15] = len(S.out)
        for k in range(3, 17, 2):
            while S.out[st[k] - 1].k != "M": st[k] -= 1
        bodies = [S.out[st[k]:st[k + 2]] for k in range(3, 15, 2)]
        for b in bodies[1:]:
            assert [x.t for x in b] == [x.t for x in bodies[0]], "loop body not periodic"
        J.body[mode] = bodies[0] + [sc(f"s_cbranch_scc0 L_body{mode}{NT}")]
    epi = build_tail(S)
    J.head = S.out[:st[3]] + [sc(f"s_cbranch_scc1 L_close{NT}")]
    J.close = [sc(x) for x in (f"s_cmp_eq_u32 s{sRole}, 0", f"s_cselect_b32 s{sQx}, s{sK}, s{sV}", f"s_cselect_b32 s{sQx+1}, s{sK+1}, s{sV+1}",
                               f"s_add_u32 s{sQx}, s{sQx}, {3*KH + CFG['kvpf']*8192}", f"s_addc_u32 s{sQx+1}, s{sQx+1}, 0", f"s_mov_b32 s{sQx+2}, {KH - CFG['kvpf']*8192}",
                               f"v_lshrrev_b32 v{vQ6}, {7 - CFG['kvsh']}, v{vPf}", f"s_mov_b32 s{sLoop}, 4", f"s_mov_b32 s{sU3}, 0")]
    J.again = {m: [sc(f"s_xor_b32 s{sU3}, s{sU3}, 1"), sc(f"s_cbranch_scc0 {lab}")] + code_touch(base, size_) + [sc(f"s_mov_b32 s{sLoop}, 0"), sc(f"s_branch L_body{m}{NT}")]
               for m, lab, base, size_ in (("q", f"L_tail{NT}", sPfA, "L_end_code-L_job7"), ("o", f"L_last{NT}", sPfB, "L_final-L_end_code"))}
    J.tail = S.out[st[15]:] + epi
    J.last = build_last(NT, carry)
    return J

def grp_batch(e):
    L = []; x = ((e + 1) & 1) * 128
    for i, (srd, blk, o) in enumerate(((sK, e + 1, 0), (sK, e + 1, 128), (sV, e - 1, x), (sV, e, x))):
        if blk >= 0:
            L += [sc(f"s_add_u32 m0, s{sWoff}, {(e & 3)*16384 + i*1024 - o}", wr=M0), sc(f"s_mov_b32 s{sT0}, {blk*8192}"), dma(vDKV, srd, sT0, o, CFG["kv"[i >> 1]], ("grp", e))]
    return L
def q_batch(slot, base, o, tag):
    L = []
    for a in (0, 1):
        L += [sc(f"s_add_u32 m0, s{sStgB}, {slot*4096 + a*896}", wr=M0), sc(f"s_add_u32 s{sT1}, s{base}, {o}")]
        L += [dma(vQO, sQ, sT1, nn * 2048 + a * 128, CFG["q"], tag) for nn in (0, 1)]
    return L

def build_first(NT, carry, early2):
    S = Sched(NT); S.th = CFG["fth"]
    forbid = {shift(x, 2) for x in carry}
    assert all(x[1] == 2 and x[3] >= early2 for x in forbid if x[0] in ("mul", "exp", "cvt"))
    Kh = lambda p: (lambda kt, ds: ("a", (aO, aO + 32, aK)[p] + kt * 16 + ds * 4))
    V1 = lambda j, b: Oreg(4, j)
    em = lambda L: [S.emit(x) for x in L]
    fm = CFG["fm"].split(",")
    mark = lambda n: S.emit(sc(f"s_memrealtime s[{80+2*fm.index(n)}:{81+2*fm.index(n)}]")) if n in fm else None
    mark("i")
    batches = [q_batch(t, sCurO, t * 4096, ("q0", t)) for t in range(CFG["pre"], 6)]
    while len(batches) < 4: batches.append([])
    batches += [[sc(f"s_cmp_eq_u32 s{sN7c}, 1"), sc(f"s_cselect_b32 s{sU0}, s{sCurO}, {OOB:#x}")] + q_batch(1, sU0, 24576, ("q0", 6))]
    batches += [grp_batch(e) for e in (2, 3, 4)]
    kreads = lambda p: [ds128("a", Kh(p)(kt, ds)[1], vK + (ds & 1), ((p - 1) & 3) * 16384 + koff(kt, ds)) for kt, ds in KORD]
    em([I("s_waitcnt vmcnt(?)", "w", tag=("needgrp", 0)), I("s_barrier", "B")]); mark("a")
    em(batches.pop(0) + kreads(0) + kreads(1))
    em([dstr("v", V1(j, 1)[1] + 2 * kt, vV + (j >> 1), voff(j, 1, kt)) for j in range(4) for kt in (0, 1)])
    def second():
        em([I("s_waitcnt vmcnt(?)", "w", tag=("needgrp", 1)), I("s_barrier", "B")]); mark("b")
        em(batches.pop(0))
        em([dstr("a", Vreg(j, b) + 2 * kt, vV + (j >> 1), 16384 + voff(j, b, kt)) for j, b in VORD for kt in (0, 1)] + kreads(2))
        em([V(f"v_xor_b32 v{r}, 0x8000, v{r}", [r], [r]) for r in (vK, vK + 1, vV, vV + 1)])
    lastbuf = {}
    def qk(p, t, bufs):
        L = []
        war = [("pv", 2, t, 3, 0), ("pv", 1, t, 3, 1), ("sum", 1, t >> 1)] if p == 2 else []
        for kt, sb in enumerate(bufs):
            add_softmax(S, p, kt, t, sb, war)
            L += qk_chain(p, kt, t, sb, lastbuf.get(sb, []), Kh(p), None); lastbuf[sb] = [("cvt", p, kt, t, h) for h in (0, 1)]
        return L
    r1 = lambda t: pv_tile(1, t, V1, None)
    r2 = lambda t: pv_tile(2, t, None, None)
    done2 = 0; held = []
    for t in range(NT):
        if t == 4: split = len(S.out)
        end = t == NT - 1
        if t == 1: second()
        if t == 2: em([I("s_waitcnt lgkmcnt(0)", "w"), I("s_barrier", "B", tag=("bar", 1))])
        mark(f"p{t}")
        S.emit(I("s_waitcnt vmcnt(?)", "w", tag=("needq0", t))); mark(f"w{t}")
        em([q_read(t, ds, 1 if t == 6 else t) for ds in range(4)])
        while batches:
            em(batches.pop(0))
            if not end: break
        mf = held + qk(0, t, (vS, vS + 4)) + qk(1, t, (vS + 8, vS + 12)); held = []
        S.forbid = forbid
        if not end:
            own = (r1(t) if t < 5 else []) + sum_tile(1, t) + (r2(t) if t < 4 else []) + sum_tile(2, t)
            late = t < CFG["fpipe"]
            if late: held = own
            else: mf += own
            lim = min(early2 if t < 4 else min(x[3] for x in forbid if x[0] == "cvt"), (t + 1 - late) & ~1, 4, done2 + 1 if late else 4)
            while done2 < lim: mf += qk(2, done2, (vS + 8 * (done2 & 1 and not late), vS + 4 + 8 * (done2 & 1 and not late))); done2 += 1
            S.run(mf, keep=True); S.flush()
            continue
        g0 = S.gap
        for x in range(5, NT): mf += r1(x)
        mf += sum_tile(1, t)
        left = list(range(done2, NT - PHI))
        for x in range(4, NT):
            mf += r2(x) + (sum_tile(2, x) if x == t else [])
            if x == NT - 1 or len(left) > NT - 1 - x:
                while left and (x == NT - 1 or len(left) > NT - 1 - x):
                    y = left.pop(0); mf += qk(2, y, (sbuf(NT, 2, 0, y), sbuf(NT, 2, 1, y)))
        gv = g0 + [m[0] for m in mf].index(("pv", 2, NT - 1, 0, 0))
        S.add(S.scal, Op(("wb", 2), I("s_waitcnt vmcnt(?)", "w", tag=("needgrp", 2)), [], gv - 3))
        S.add(S.fixed, Op(("bar", 2), I("s_barrier", "B", tag=("bar", 2)), [("wb", 2)], gv - 2))
        prev = [("bar", 2)]
        for j, b in VORD:
            for kt in (0, 1):
                S.add(S.fixed, Op(("vr", 3, j, b, kt), v_read(3, j, b, kt), prev + [("pv", 2, NT - 1, j, b)], gv)); prev = [("vr", 3, j, b, kt)]
        S.run(mf, cut=True)
        while S.out[-1].k != "M": S.out.pop()
        T = []
        for j in range(0 if CFG["q4"] else 6):
            T.append([sc(f"s_mov_b32 m0, s{sStg}", wr=M0), sc(f"s_add_u32 s{sStg}, s{sStg}, 1024"), dma(vQO, sQx, None, 0, CFG["q"], ("q", 1))])
            T.append([sc(x) for x in bump(sQx, f"s{sD}") + [f"s_xor_b32 s{sD}, s{sD}, 0x700"]])
        ms = [i for i, x in enumerate(S.out) if x.k == "M"][-len(mf) + 8:][:2 * len(T):2]
        assert len(ms) == len(T)
        for i, g in reversed(list(zip(ms, T))): S.out[i + 1:i + 1] = g
    return S.out[:split], S.out[split:]

def sigma(x, d, t):
    return [f"v_bfe_u32 v{d}, v{x}, 1, 1", f"v_lshrrev_b32 v{t}, 3, v{x}", f"v_xor_b32 v{t}, v{t}, v{x}", f"v_and_b32 v{t}, 1, v{t}",
            f"v_lshl_or_b32 v{d}, v{t}, 1, v{d}", f"v_and_b32 v{t}, 4, v{x}", f"v_or_b32 v{d}, v{d}, v{t}"]
def swz_addr(row, col, d, t):
    return sigma(row, d, t) + [f"v_xor_b32 v{d}, v{d}, v{col}", f"v_lshlrev_b32 v{d}, 4, v{d}", f"v_and_b32 v{t}, 7, v{row}",
                               f"v_lshl_add_u32 v{d}, v{t}, 7, v{d}", f"v_lshrrev_b32 v{t}, 3, v{row}"]
def stg_addr(row, col, d, t):
    return [f"v_and_b32 v{t}, 7, v{row}", f"v_xor_b32 v{d}, v{t}, v{col}", f"v_lshlrev_b32 v{d}, 4, v{d}", f"v_lshl_add_u32 v{d}, v{t}, 7, v{d}"]

def stamp():
    if not CFG["stamp"]: return []
    x = vTmp + 2
    L = [sc(t) for t in (f"s_memtime s[{sTm}:{sTm+1}]", f"s_memrealtime s[{sTm+2}:{sTm+3}]", "s_waitcnt lgkmcnt(0)", "s_mov_b64 exec, 1")]
    for n, (a, b) in enumerate(((sTm, sTm + 2), (80, 82), (84, 86))):
        L += [sc(f"v_mov_b32 v{x}, s{a}"), sc(f"v_mov_b32 v{x+1}, s{b}"),
              I(f"buffer_store_dwordx2 v[{x}:{x+1}], off, s[{sDbg}:{sDbg+3}], s{sStampOff} offset:{8*n}", "S"), sc("s_nop 1")]
    return L + [sc("s_mov_b64 exec, -1"), sc(f"s_add_u32 s{sStampOff}, s{sStampOff}, 32"), sc("s_nop 3")]

def prologue():
    P = []
    A = lambda t: P.append(sc(t))
    if CFG["diag_tot"]: A("s_memrealtime s[96:97]")
    pm = lambda i: A(f"s_memrealtime s[{92+2*i}:{93+2*i}]") if CFG["stamp"] == 3 else None
    pm(0)
    A("s_cmp_ge_u32 s2, 256"); A("s_cbranch_scc1 L_exit")
    if CFG["again"]:
        A(f"s_mov_b32 s3, {CFG['again']}"); P.append(I("L_again:", "#"))
    A("s_load_dwordx4 s[80:83], s[0:1], 0"); A("s_load_dwordx4 s[84:87], s[0:1], 16")
    if CFG["stamp"]: A(f"s_load_dwordx2 s[{sDbg}:{sDbg+1}], s[0:1], 40")
    A("s_getpc_b64 s[100:101]"); P.append(I("L_pf:", "#")); A(f"v_lshlrev_b32 v{vPf}, 7, v0")
    A("v_lshrrev_b32 v20, 6, v0"); A("v_and_b32 v21, 63, v0")
    P += code_touch(100, "L_job7-L_pf")
    for d, lab in ((sPfA, "L_job7"), (sPfB, "L_end_code")):
        A(f"s_add_u32 s{d}, s100, {lab}-L_pf"); A(f"s_addc_u32 s{d+1}, s101, 0")
    A(f"v_readfirstlane_b32 s{sW}, v20")
    A(f"s_and_b32 s{sT0}, s2, 7"); A(f"s_lshr_b32 s{sT1}, s2, 3"); A(f"s_and_b32 s{sRole}, s{sT1}, 1"); A(f"s_lshr_b32 s{sT1}, s{sT1}, 1")
    A(f"s_lshl_b32 s{sT0}, s{sT0}, 4"); A(f"s_add_u32 s{sT0}, s{sT0}, s{sT1}")
    if CFG["samehead"]: A(f"s_mov_b32 s{sT0}, 0")
    A(f"s_mul_i32 s{sT1}, s{sT0}, {4*QH}"); A(f"s_lshl_b32 s{sT0}, s{sT0}, 19")
    A("v_lshrrev_b32 v22, 3, v21"); A("v_and_b32 v23, 7, v21")
    for x in sigma(22, 24, 25): A(x)
    A("v_xor_b32 v24, v24, v23"); A("v_lshlrev_b32 v24, 4, v24"); A(f"v_lshl_add_u32 v{vDKV}, v22, 8, v24")
    A("v_xor_b32 v24, v22, v23"); A("v_lshlrev_b32 v24, 4, v24"); A(f"v_lshl_add_u32 v{vQO}, v22, 8, v24")
    A(f"s_and_b32 s{sT2}, s{sW}, 1"); A(f"s_lshl_b32 s{sT2}, s{sT2}, 5"); A(f"s_lshl_b32 s{sT3}, s{sW}, 11"); A(f"s_lshl_b32 s{sWoff}, s{sW}, 12")
    A(f"v_xor_b32 v{vDKV}, s{sT2}, v{vDKV}"); A(f"v_add_u32 v{vDKV}, s{sT3}, v{vDKV}")
    A(f"s_mul_i32 s{sStgB}, s{sW}, 24576")
    for d, f, n7, base in ((sOffA, sN7A, CFG["split"] - 24, 0), (sOffB, sN7B, CFG["total"] - CFG["split"] - 24, CFG["split"] * 4096)):
        A(f"s_min_u32 s{d}, s{sW}, {n7}"); A(f"s_cselect_b32 s{f}, 1, 0"); A(f"s_lshl_b32 s{d}, s{d}, 12")
        A(f"s_add_u32 s{d}, s{d}, s{sStgB}"); A(f"s_add_u32 s{d}, s{d}, {base}")
    A(f"s_add_u32 s{sStgB}, s{sStgB}, 65536")
    A(f"s_mov_b32 s{sJob}, -1")
    P += params_next()
    pm(1)
    A("s_waitcnt lgkmcnt(0)")
    for srd, src, o, n in ((sK, 82, sT0, 4 * KH), (sV, 84, sT0, 4 * KH), (sQ, 80, sT1, 4 * QH), (sO, 86, sT1, 0 if CFG["nostore"] else 4 * QH)):
        A(f"s_add_u32 s{srd}, s{src}, s{o}"); A(f"s_addc_u32 s{srd+1}, s{src+1}, 0"); A(f"s_mov_b32 s{srd+2}, {n}"); A(f"s_mov_b32 s{srd+3}, 0x20000")
    if CFG["stamp"]:
        A(f"s_mov_b32 s{sDbg+2}, 0x1000000"); A(f"s_mov_b32 s{sDbg+3}, 0x20000")
        A(f"s_lshl_b32 s{sStampOff}, s2, 2"); A(f"s_add_u32 s{sStampOff}, s{sStampOff}, s{sW}"); A(f"s_lshl_b32 s{sStampOff}, s{sStampOff}, 10")
    P += stamp() if CFG["stamp"] == 1 else []
    pm(2)
    ga, gb, q0 = grp_batch(-1), grp_batch(0), q_batch(0, sNxt, 0, ("q0", 0))
    if CFG["ord"] == 0: P += ga + gb + q0
    elif CFG["ord"] == 1: P += q0[:4] + ga[:3] + gb[6:] + ga[3:] + gb[:6] + q0[4:]
    elif CFG["ord"] == 2: P += q0 + gb[6:] + ga + gb[:6]
    P += grp_batch(1)
    for t in range(1, CFG["pre"]): P += q_batch(t, sNxt, t * 4096, ("q0", t))
    pm(3)
    if CFG["stamp"] == 3:
        A("s_waitcnt lgkmcnt(0)")
        for i in range(4): A(f"s_mov_b32 s{80+2*i}, s{92+2*i}")
        P += stamp()
    A("v_and_b32 v22, 15, v21"); A("v_lshrrev_b32 v23, 4, v21")
    for x in swz_addr(22, 23, 24, 25): A(x)
    A(f"v_lshl_add_u32 v{vK}, v25, 12, v24"); A(f"v_xor_b32 v{vK+1}, 64, v{vK}")
    for x in stg_addr(22, 23, 24, 25): A(x)
    A("v_lshrrev_b32 v25, 1, v22"); A("v_xor_b32 v25, v25, v22"); A("v_bfe_u32 v25, v25, 2, 1"); A("v_lshl_add_u32 v24, v25, 11, v24")
    A(f"v_add_u32 v{vSt}, s{sStgB}, v24"); A(f"v_xor_b32 v{vSt+1}, 64, v{vSt}")
    A(f"s_add_u32 s{sT2}, s{sWoff}, 49152"); A(f"v_add_u32 v{vQ6}, s{sT2}, v24"); A(f"v_xor_b32 v{vQ6+1}, 64, v{vQ6}")
    A(f"v_lshl_add_u32 v{vLin}, v21, 4, s{sStgB}"); A(f"v_add_u32 v{vLin}, 24576, v{vLin}")
    A("v_lshrrev_b32 v22, 2, v21"); A("v_and_b32 v23, 3, v21")
    for x in swz_addr(22, 23, 24, 25): A(x)
    A(f"v_lshl_add_u32 v{vV}, v25, 12, v24"); A(f"v_xor_b32 v{vV+1}, 64, v{vV}")
    if "vcf" in CFG["x"]:
        A("v_and_b32 v24, 1, v21"); A(f"v_lshl_add_u32 v{vV}, v24, 3, v{vV}"); A(f"v_lshl_add_u32 v{vV+1}, v24, 3, v{vV+1}")
    A(f"s_mov_b32 s{sC}, {f2u(1.0 if 'c1' in CFG['x'] else SCALE):#x}")
    A(f"s_mov_b32 s{sHi}, {f2u(2.0**CFG['hi']):#x}")
    A(f"s_mov_b32 s{sFlag}, {CFG['forcefb']}")
    for d, b, blk in ((sVa, sV, 4), (sVb, sV, 5), (sKx, sK, 6)):
        A(f"s_add_u32 s{d}, s{b}, {blk*8192}"); A(f"s_addc_u32 s{d+1}, s{b+1}, 0"); A(f"s_mov_b32 s{d+2}, 8192")
    for d in (sKx, sVa, sVb, sQx, sOx): A(f"s_mov_b32 s{d+3}, 0x20000")
    A(f"s_mov_b32 s{sCnt}, 6"); A(f"s_add_u32 s{sM}, s{sWoff}, 16384"); A(f"s_mov_b32 s{sCurO}, 0"); A(f"s_mov_b32 s{sOx+2}, {0 if CFG['nostore'] else 4096}")
    A("v_and_b32 v22, 1, v21"); A("v_mul_u32_u24 v22, 0xaaaa, v22"); A(f"v_add_u32 v{vIdx}, 0x4444, v22"); A(f"v_lshl_or_b32 v{vIdx}, v{vIdx}, 16, v{vIdx}")
    A("v_lshrrev_b32 v22, 4, v21"); A("v_xor_b32 v22, v22, v21"); A("v_and_b32 v23, 2, v22")
    A("v_cmp_eq_u32 vcc, 0, v23"); A("v_mov_b32 v24, 0x3f803f80"); A("s_nop 0"); A("v_cndmask_b32 v22, 0, v24, vcc")
    for i in range(4): A(f"v_mov_b32 v{vOne+i}, v22")
    for i in range(16): A(f"v_accvgpr_write_b32 a{aL+i}, 0")
    return P + advance() + [sc(f"s_mov_b32 s{sLoop}, 4"), sc(f"s_mov_b32 s{sU3}, 0")]

def job_switch(NT):
    L = []
    if CFG["diag_mark"] > 0: L = [sc(f"s_cmp_lg_u32 s{sJob}, {CFG['diag_mark']}"), sc(f"s_cbranch_scc1 L_nomark{NT}"), sc("s_memrealtime s[96:97]"), I(f"L_nomark{NT}:", "#")]
    L += stamp() + [sc(f"s_cmp_eq_u32 s{sN7c}, 1"), sc("s_cbranch_scc1 L_job7")]
    return L + ([sc("s_branch L_job6")] if NT == 6 else [])

def final():
    L = [I("L_final:", "#")]
    if CFG["diag_mark"] == 4: L.append(sc("s_memrealtime s[96:97]"))
    if CFG["stamp"]: L += stamp() + stamp() + [I("s_waitcnt vmcnt(0)", "w")] + stamp()
    return L

def fallback():
    L = []; A = L.append
    q, k, s0, pb, vf, o, lacc, m, t0, va, pa, one = 20, 36, 52, 60, 64, 72, 104, 108, 109, 112, 114, 116
    sJ, sN, sRow, sKb, sI, sU = sU0, sU1, sU2, sU3, sLoop, sD
    MF = "v_mfma_f32_16x16x32_bf16"
    A(f"s_cmp_eq_u32 s{sFlag}, 0"); A("s_cbranch_scc1 L_done")
    A("s_waitcnt vmcnt(0) lgkmcnt(0)")
    A(f"v_bfe_u32 v21, v{vPf}, 7, 6"); A("v_and_b32 v22, 15, v21"); A("v_lshrrev_b32 v23, 4, v21")
    A(f"v_lshlrev_b32 v{vDir}, 8, v22"); A(f"v_lshl_add_u32 v{vDir}, v23, 4, v{vDir}")
    A("v_lshrrev_b32 v22, 2, v21"); A("v_and_b32 v23, 3, v21")
    L += stg_addr(22, 23, 24, 25) + ["v_lshrrev_b32 v25, 3, v22"]
    A(f"v_lshl_add_u32 v{va}, v25, 11, v24"); A(f"v_add_u32 v{va}, s{sStgB}, v{va}"); A(f"v_xor_b32 v{va+1}, 64, v{va}")
    A(f"v_xor_b32 v{pa}, 16, v21"); A(f"v_lshlrev_b32 v{pa}, 2, v{pa}"); A(f"v_xor_b32 v{pa+1}, 32, v21"); A(f"v_lshlrev_b32 v{pa+1}, 2, v{pa+1}")
    for i in range(4): A(f"v_mov_b32 v{one+i}, 0x3f803f80")
    A(f"s_mov_b32 s{sJob}, -1")
    A("L_fb_job:")
    L += [x.t for x in params_next()]
    A(f"s_add_u32 s{sJob}, s{sJob}, 1"); A(f"s_cmp_eq_u32 s{sJob}, 4"); A("s_cbranch_scc1 L_done")
    A(f"s_lshr_b32 s{sJ}, s{sFlag}, s{sJob}"); A(f"s_and_b32 s{sJ}, s{sJ}, 1"); A("s_cbranch_scc0 L_fb_job")
    A(f"s_add_u32 s{sN}, s{sN7n}, 5"); A(f"s_mov_b32 s{sRow}, s{sNxt}")
    A("L_fb_tile:")
    for ds in range(4): A(f"buffer_load_dwordx4 {rs('v', q+4*ds, 4)}, v{vDir}, s[{sQ}:{sQ+3}], s{sRow} offen{off(ds*64)}")
    def scores(dst):
        for ds in range(4): A(f"buffer_load_dwordx4 {rs('v', k+4*ds, 4)}, v{vDir}, s[{sK}:{sK+3}], s{sKb} offen{off(ds*64)}")
        A("s_waitcnt vmcnt(0)")
        for ds in range(4): A(f"{MF} {rs('v', dst, 4)}, {rs('v', k+4*ds, 4)}, {rs('v', q+4*ds, 4)}, {'0' if ds == 0 else rs('v', dst, 4)}")
        A(f"s_add_u32 s{sKb}, s{sKb}, 4096"); A("s_nop 7")
    A(f"v_mov_b32 v{m}, 0xff800000"); A(f"s_lshl_b32 s{sKb}, s{sJob}, 17"); A(f"s_mov_b32 s{sI}, 31")
    A("L_fb_max:")
    scores(s0)
    A(f"v_max3_f32 v{m}, v{m}, v{s0}, v{s0+1}"); A(f"v_max3_f32 v{m}, v{m}, v{s0+2}, v{s0+3}")
    A(f"s_sub_u32 s{sI}, s{sI}, 1"); A("s_cbranch_scc0 L_fb_max")
    for i in (0, 1):
        A(f"ds_bpermute_b32 v{t0}, v{pa+i}, v{m}"); A("s_waitcnt lgkmcnt(0)"); A(f"v_max_f32 v{m}, v{m}, v{t0}")
    for i in range(36): A(f"v_mov_b32 v{o+i}, 0")
    A(f"s_lshl_b32 s{sKb}, s{sJob}, 17"); A(f"s_mov_b32 s{sI}, 15")
    A("L_fb_pv:")
    for kt in (0, 1):
        for a in (0, 1):
            A(f"s_add_u32 m0, s{sStgB}, {kt*4096 + a*896}"); A(f"s_add_u32 s{sU}, s{sKb}, {kt*4096}")
            for nn in (0, 1): A(f"buffer_load_dwordx4 v{vQO}, s[{sV}:{sV+3}], s{sU} offen{off(nn*2048 + a*128)} lds")
    scores(s0); scores(s0 + 4)
    for r in range(8): A(f"v_sub_f32 v{s0+r}, v{s0+r}, v{m}")
    for r in range(8): A(f"v_mul_f32 v{s0+r}, s{sC}, v{s0+r}")
    for r in range(8): A(f"v_exp_f32 v{s0+r}, v{s0+r}")
    A("s_nop 0")
    for r in range(4): A(f"v_cvt_pk_bf16_f32 v{pb+r}, v{s0+2*r}, v{s0+2*r+1}")
    A("s_nop 1")
    A(f"{MF} {rs('v', lacc, 4)}, {rs('v', one, 4)}, {rs('v', pb, 4)}, {rs('v', lacc, 4)}")
    for dj in range(8):
        J, h = dj >> 1, dj & 1; f = vf + 4 * (dj & 1)
        for kt in (0, 1): A(f"ds_read_b64_tr_b16 {rs('v', f+2*kt, 2)}, v{va + (J & 1)}{off(kt*4096 + (J >> 1)*1024 + 8*h)}")
        A("s_waitcnt lgkmcnt(0)")
        A(f"{MF} {rs('v', o+4*dj, 4)}, {rs('v', f, 4)}, {rs('v', pb, 4)}, {rs('v', o+4*dj, 4)}")
    A(f"s_sub_u32 s{sI}, s{sI}, 1"); A("s_cbranch_scc0 L_fb_pv")
    A("s_nop 7"); A(f"v_rcp_f32 v{t0}, v{lacc}"); A("s_nop 0")
    for i in range(32): A(f"v_mul_f32 v{o+i}, v{t0}, v{o+i}")
    for J in range(4):
        for i in range(4): A(f"v_cvt_pk_bf16_f32 v{o+8*J+i}, v{o+8*J+2*i}, v{o+8*J+2*i+1}")
        A(f"buffer_store_dwordx4 {rs('v', o+8*J, 4)}, v{vDir}, s[{sO}:{sO+3}], s{sRow} offen{off(J*64)}")
    A("s_waitcnt vmcnt(0)")
    A(f"s_add_u32 s{sRow}, s{sRow}, 4096"); A(f"s_sub_u32 s{sN}, s{sN}, 1"); A("s_cbranch_scc0 L_fb_tile")
    A("s_branch L_fb_job")
    A("L_done:")
    return [I(x, "#" if x.endswith(":") else "s") for x in L]

def resolve(pro, jobs, fin):
    best = {}
    for seqn in ([7, 7, 7, 7], [7, 6, 7, 6], [6, 7, 6, 7], [6, 6, 6, 6]):
        dyn = [(x, 0) for x in pro]
        for j, v in enumerate(seqn):
            J = jobs[v]; b = 16 * j
            dyn += [(x, b) for x in (jobs[7].fcom + J.first if j == 0 else J.head + (J.close if j == 3 else []))]
            m = ("q", "oq", "oq", "o")[j]
            for it in range(6): dyn += [(x, b + 2 * it) for x in J.body[m] + ([] if m == "oq" or it < 4 else J.again[m][:9 if it == 4 else 2])]
            dyn += [(x, b) for x in (J.tail + J.sw if j < 3 else J.last)]
        dyn += [(x, 64) for x in fin]
        vm = []; epoch = -2
        for x, b in dyn:
            if x.k == "B": epoch = (x.tag[1] + b) if x.tag else -1
            if x.k == "D" and x.tag and x.tag[0] == "ring":
                assert x.tag[1] + b == epoch, ("ring read outside its epoch", x.t, x.tag, b, epoch)
            if x.k in "XLS":
                tg = x.tag
                if tg and tg[0] in ("grp", "q"): tg = shift(tg, b)
                if tg and tg[0] == "grp": assert epoch == -2 or tg[1] - 4 < epoch, ("dma overwrites live group", x.t)
                vm.append(tg)
            if x.k == "w" and x.tag:
                want = (x.tag[0][4:],) + tuple(x.tag[1:])
                if want[0] in ("grp", "q"): want = shift(want, b)
                idx = max(i for i, t in enumerate(vm) if t == want)
                n = min(63, len(vm) - 1 - idx)
                best[id(x)] = (x, min(n, best.get(id(x), (x, 99))[1]))
        seq = [x for x, _ in dyn]
        last = None
        for x in seq:
            op = x.t.split()[0]
            if op == "s_addc_u32":
                a = int(re.match(r"s_addc_u32 s(\d+)", x.t).group(1))
                assert last.startswith(f"s_add_u32 s{a-1},"), (last, x.t)
            if op == "s_cselect_b32": assert re.match(r"s_(cmp|and_b32|or_b64|min)", last), (last, x.t)
            if x.t.startswith("s_cbranch_scc0 L_body"): assert last.startswith(f"s_sub_u32 s{sLoop},"), last
            elif op.startswith("s_cbranch_scc"): assert last.startswith(("s_cmp", f"s_xor_b32 s{sU3},")), (last, x.t)
            if re.match(r"s_(add|sub|and|or|xor|lshl|lshr|cmp|min|max)", op): last = x.t
        check_lgkm(seq)
        bad = hazards(seq)
        assert not bad, bad[:5]
    for x, n in best.values():
        if CFG["less"] and x.tag[0] == "needgrp" and "lgkm" in x.t: n = max(0, n - (10 if n >= 19 else 4))
        x.t = x.t.replace("?", str(n))

def main():
    jobs = {nt: build_job(nt) for nt in (7, 6)}
    mt = lambda i: [sc(f"s_memtime s[{80+2*i}:{81+2*i}]")] if CFG["stamp"] else []
    for nt, J in jobs.items():
        J.fcom, J.first = build_first(nt, J.carry, min(x[3] for K in jobs.values() for x in K.carry if x[0] == "cvt"))
        assert [x.t for x in J.fcom] == [x.t for x in jobs[7].fcom]
        if CFG["diag_mark"] == 0: J.first.append(sc("s_memrealtime s[96:97]"))
        J.first += stamp() + mt(0) + mt(1) + [sc("s_nop 4")]
        J.sw = job_switch(nt)
    jobs[7].fcom += [sc(f"s_cmp_eq_u32 s{sN7c}, 0"), sc("s_cbranch_scc1 L_first6")]
    pro = prologue(); fin = final()
    resolve(pro, jobs, fin)
    info = []
    for nt, J in jobs.items():
        nm = lambda s: sum(x.k == "M" for x in s)
        t = " ".join(f"{n}: {cycles(s)}c iss {issue_sum(s)} pipe {nm(s)*16} |" for n, s in (("head", J.head), *J.body.items(), ("tail", J.tail), ("last", J.last), ("first", jobs[7].fcom + J.first)))
        info.append(f"NT={nt} carry={len(J.carry)} {t} total={cycles(J.head + 6 * J.body['oq'] + J.tail + J.sw)}")
    o = open("header.txt").read().rstrip("\n").split("\n")
    o += ['.amdgcn_target "amdgcn-amd-amdhsa--gfx950"', ".text", f".globl {NAME}_kernel", ".p2align 8", f".type {NAME}_kernel,@function", f"{NAME}_kernel:"]
    X = CFG["x"].split()
    def keep(x):
        if "mul" in X and x.t.startswith("v_mul_f32") and f"s{sC}," in x.t and x.k == "V": return None
        if "sum" in X and "smfmac" in x.t: return None
        if "nofb" in X and x.t == f"s_cmp_eq_u32 s{sFlag}, 0": return "s_cmp_eq_u32 0, 0"
        if "norcp" in X and x.t.startswith("v_rcp_f32") and x.k == "E": return x.t.split(",")[0].replace("v_rcp_f32", "v_sqrt_f32") + ", 1.0"
        if inbody[0]:
            if "ds" in X and x.k == "D": return "v_mov_b32 v12, v12"
            if "kvdma" in X and x.k == "X" and x.tag[0] == "grp": return "v_mov_b32 v12, v12"
            if "st" in X and x.k == "S": return "v_mov_b32 v12, v12"
            if "bar" in X and x.k == "B": return "s_nop 2"
        return x.t
    inbody = [False]; intail = [False]
    put = lambda s: o.extend(("" if x.k == "#" else "    ") + keep(x) for x in s if keep(x) is not None)
    def loop(J, mode):
        o.append(f"L_body{mode}{J.NT}:"); inbody[0] = True; put(J.body[mode]); inbody[0] = False
    put(pro); put(jobs[7].fcom)
    for nt, J in jobs.items():
        o.append(f"L_first{nt}:"); put(J.first); loop(J, "q"); put(J.again["q"])
    for nt, J in jobs.items():
        o.append(f"L_job{nt}:"); put(mt(0)); put(J.head[:-1] + mt(1) + J.head[-1:]); loop(J, "oq")
        o.append(f"L_tail{nt}:"); put(mt(2)); put(mt(3)); intail[0] = True; put(J.tail); intail[0] = False; put(J.sw)
    o.append("L_end_code:")
    for nt, J in jobs.items():
        o.append(f"L_close{nt}:"); put(J.close); loop(J, "o"); put(J.again["o"]); o.append(f"L_last{nt}:"); put(mt(2)); put(mt(3)); put(J.last)
        if nt == 7: o.append("    s_branch L_final")
    put(fin); put(fallback())
    if CFG["again"]:
        o += ["    s_waitcnt vmcnt(0) lgkmcnt(0)", "    s_barrier", f"    v_lshrrev_b32 v0, 7, v{vPf}", "    s_sub_u32 s3, s3, 1", "    s_cbranch_scc0 L_again"]
    if CFG["diag_tot"]:
        o += ["    s_waitcnt vmcnt(0) lgkmcnt(0)", "L_diag:", "    s_memrealtime s[94:95]", "    s_waitcnt lgkmcnt(0)",
              "    s_sub_u32 s94, s94, s96", f"    s_cmp_lt_u32 s94, {CFG['diag_tot']}", "    s_cbranch_scc1 L_diag"]
    o += ["L_exit:", "    s_endpgm", "L_code_end:"]
    while True:
        pos = 0; fixat = None
        for k in range(o.index(f"{NAME}_kernel:"), len(o)):
            t = o[k].strip()
            if fixat is None and k < o.index("L_final:"):
                if t.startswith("s_cbranch_scc0 L_body") and pos % 32 == 0: fixat = o.index(t.split()[1] + ":")
                elif ("branch" in t and pos % 32 == 0) or (t.endswith(":") and t != "L_pf:" and pos % 32 == 28): fixat = k
            if t.startswith(".p2align"): a = 1 << int(t.split()[1]); pos = (pos + a - 1) // a * a
            elif not t.endswith(":"): pos += size(t)
        if fixat is None: break
        o.insert(fixat, "    s_nop 0")
    info.append(f"code bytes {pos}")
    o += ['.section .rodata,"a"', ".p2align 6", f".amdhsa_kernel {NAME}_kernel",
          "  .amdhsa_next_free_vgpr 512", "  .amdhsa_next_free_sgpr 102", "  .amdhsa_accum_offset 256",
          "  .amdhsa_group_segment_fixed_size 0", "  .amdhsa_kernarg_size 48", "  .amdhsa_user_sgpr_count 2",
          "  .amdhsa_user_sgpr_kernarg_segment_ptr 1", "  .amdhsa_system_sgpr_workgroup_id_x 1", ".end_amdhsa_kernel"]
    open(sys.argv[1], "w").write("\n".join(o) + "\n")
    print("\n".join(info), file=sys.stderr)

main()
```

```python
import sys, math, struct, re
from asmlib import *

NAME = "standalone__gqa_softmax__near_ridge"
CFG = dict(k="", v="", lastdef=1, q="nt", o="nt", ol="nt", oe="nt", oe2="nt", th=44, hth=24, tth=12, fth=24, lth=32, sp=7, sh6=3, sroom=4, pre=2, ord=0, split=27, total=53,
           phi=2, hold="", groups="01,23,45,6", ahead=0, now=0, lazy=1, q4=1, kvpf=12, kvsh=4, less=0, zz=1, dd=9, fpipe=1, fm="", qo0=12, kw=3, lo=-30, hi=30,
           stamp=0, samehead=0, nostore=0, again=0, tmark=-1, x="", diag_tot=0, diag_mark=-1, forcefb=0)
for a in sys.argv[2:]:
    k, v = a.split("=", 1)
    assert k in CFG, k
    CFG[k] = int(v) if re.fullmatch(r"-?\d+", v) else v.replace("+", " ")

QH, KH = 217088, 131072
SCALE = math.log2(math.e) / math.sqrt(128.0)
def f2u(x): return struct.unpack("<I", struct.pack("<f", x))[0]

vK, vV, vDKV, vQO, vLin, vSt, vQ6 = 1, 3, 5, 6, 7, 8, 10
vTmp, vOne = 12, 16
vS = 20
vP = 36
vO = 92
vIdx, vDir = 252, 253
vPf, vPt, vSink = 253, 254, 0
aQ, aK, aV, aL, aO = 0, 112, 144, 176, 192
sQ, sK, sV, sO = 4, 8, 12, 16
(sC, sW, sJob, sCnt, sU0, sU1, sU2, sM, sU3, sD, sOp, sStg, sLoop, sCurO, sNxt, sN7c, sN7n, sFlag, sRole,
 sT0, sT1, sT2, sT3, sWoff, sStgB, sOffA, sOffB, sLo, sHi, sBit, sN7A, sN7B) = range(20, 52)
sPfA, sPfB = 52, 54
sPair = 56
sStampOff = 58
sDbg = 60
sKx, sVa, sQx, sOx, sVb = 64, 68, 72, 76, 88
sTm = 92
OOB = 0x100000

def Oreg(t, dj):
    return ("v", vO + t * 32 + dj * 4) if t < 5 else ("a", aO + (t - 5) * 32 + dj * 4)
def Preg(p, t):
    return vP + t * 4 if not p & 1 else vP + 28 + ((t + 1) % 7) * 4
def Qreg(t, ds): return aQ + (t * 4 + ds) * 4
def sbuf(NT, p, kt, t): return vS + (((p * NT + t) * 2 + kt) & 3) * 4
def pdeps(p, t): return [("cvt", p, kt, t, h) for kt in (0, 1) for h in (0, 1)]
def sc(t, rd=(), wr=()): return I(t, "s", rd=rd, wr=wr)
def fl(x): return (" " + x) if x else ""
def off(x): return f" offset:{x}" if x else ""
def V(t, rd, wr, k="V"): return I(t, k, rd=[("v", r) if isinstance(r, int) else r for r in rd], wr=[("v", r) if isinstance(r, int) else r for r in wr])
COST = {"V": 1, "E": 2, "D": 1}
M0 = [("m", 0)]

class Op:
    def __init__(self, key, ins, deps=(), target=None, rel=None):
        self.key = key; self.ins = ins; self.deps = list(deps); self.target = target; self.rel = rel

class Sched:
    def __init__(self, NT):
        self.NT = NT
        self.out = []; self.done = set(); self.pend = []
        self.valu = []; self.fixed = []; self.scal = []; self.flex = []
        self.forbid = set(); self.gap = 0
        self.bykey = {}; self.th = CFG["th"]; self.mode = "oq"
    def add(self, q, op):
        q.append(op); self.bykey[op.key] = op
    def emit(self, ins, key=None):
        if ins.k == "w":
            m = re.search(r"lgkmcnt\((\d+)\)", ins.t)
            if m:
                n = int(m.group(1))
                if n < len(self.pend): self.pend = self.pend[len(self.pend) - n:] if n else []
        self.out.append(ins)
        if ins.k in "DW": self.pend.append(ins)
        if key is not None: self.done.add(key)
    def haz(self, ins):
        dist = 0; miss = 0
        for p in reversed(self.out):
            miss = max(miss, need(p, ins) - dist)
            dist += states(p)
            if dist >= 8: break
        return miss
    def lgkm_need(self, inss):
        idx = -1
        for ins in inss:
            t = set(ins.rd) | set(ins.c) | set(ins.wr)
            for i, p in enumerate(self.pend):
                if set(p.wr) & t: idx = max(idx, i)
        return None if idx < 0 else min(15, len(self.pend) - 1 - idx)
    def ready(self, op):
        return op.key not in self.forbid and all(d in self.done for d in op.deps) and \
            (op.target is None or op.target <= self.gap) and self.haz(op.ins) <= 0
    def put(self, op):
        for q in (self.valu, self.fixed, self.scal, self.flex):
            if op in q: q.remove(op)
        n = self.lgkm_need([op.ins])
        if n is not None: self.emit(I(f"s_waitcnt lgkmcnt({n})", "w"))
        m = self.haz(op.ins)
        if m > 0: self.emit(I(f"s_nop {m-1}", "s"))
        self.emit(op.ins, op.key)
    def force(self, key):
        if key in self.done: return
        op = self.bykey[key]
        assert key not in self.forbid, key
        for d in op.deps: self.force(d)
        self.put(op)
    def pick(self, kinds, n):
        r = []
        for op in self.valu[:48]:
            if op.ins.k in kinds and self.ready(op):
                r.append(op)
                if len(r) == n: break
        return r
    def backlog(self):
        return sum(COST[o.ins.k] for o in self.valu if o.rel is not None and o.rel in self.done)
    def fill(self, room):
        while room > 0:
            e = self.pick("E", 1); v = self.pick("V", 2)
            if room >= 2 and e and (len(v) < 2 or self.valu.index(e[0]) < self.valu.index(v[0])):
                self.put(e[0]); room -= 2
            elif v:
                self.put(v[0]); room -= 1
            elif e and self.backlog() > self.th - 4:
                self.put(e[0]); room -= 2
            else: break
        while self.backlog() > self.th:
            c = self.pick("EV", 1)
            if not c: break
            self.put(c[0])
    def run(self, mf, look=(), cut=False, keep=False):
        allm = list(mf) + list(look)
        for i, (key, ins, deps) in enumerate(mf):
            for d in deps: self.force(d)
            if i == len(mf) - 1 and not keep:
                if cut: self.flush()
                self.forbid = set()
                self.left = [o.key for q in (self.valu, self.fixed, self.scal) for o in q]
            n = self.lgkm_need([ins])
            if n is not None: self.emit(I(f"s_waitcnt lgkmcnt({n})", "w"))
            m = self.haz(ins)
            if m > 0: self.emit(I(f"s_nop {m-1}", "s"))
            self.emit(ins, key)
            afterw = len(self.out) > 1 and self.out[-2].k == "W"
            fx = next((o for o in self.fixed if self.ready(o) and not (afterw and o.ins.k in "DW")), None)
            slot1 = False
            nxt = [x[1] for x in allm[i + 1:i + 2]]
            if self.lgkm_need(nxt) is not None:
                nxt = [x[1] for x in allm[i + 1:i + 5]]
            if fx is not None and fx.ins.k != "B": nxt = nxt + [fx.ins]
            n = self.lgkm_need(nxt)
            if n is not None:
                self.emit(I(f"s_waitcnt lgkmcnt({n})", "w")); slot1 = True
                if fx is not None and fx.ins.k == "B": fx = None
            if fx is not None and fx.ins.k == "B":
                self.put(fx); self.fill(1)
            else:
                if not slot1 and self.scal and self.ready(self.scal[0]):
                    if not (fx is not None and fx.ins.k == "X" and ("m", 0) in self.scal[0].ins.wr): self.put(self.scal[0])
                room = 1 if "smfmac" in ins.t else 2
                if fx is not None and room == 1 and fx.ins.k != "D": fx = None
                if fx is not None:
                    self.put(fx); room = {"D": room - 1, "X": 1, "L": 1, "S": CFG["sroom"], "W": 0}[fx.ins.k]
                if fx is not None and fx.ins.k == "D" and room == 1 and len(self.pick("V", CFG["dd"])) < CFG["dd"] and self.pick("E", 1):
                    self.gap += 1
                    f2 = next((o for o in self.fixed if o.ins.k == "D" and self.ready(o) and self.lgkm_need([o.ins]) is None), None)
                    self.gap -= 1
                    if f2 is not None: self.put(f2); room = 0
                if self.flex and fx is None and room == 2 and self.backlog() == 0 and not self.pick("E", 1) and not afterw:
                    f = next((o for o in self.flex if self.ready(o)), None)
                    if f is not None: self.put(f); room -= 1
                if room: self.fill(room)
                if self.out[-1].k in "Msw":
                    miss = [self.haz(o.ins) for o in self.valu[:16] if o.key not in self.forbid and all(d in self.done for d in o.deps)]
                    if miss and min(miss) > 1: self.emit(I(f"s_nop {min(min(miss) - 1, 3 - (self.out[-1].k != 'M')) - 1}", "s"))
            self.gap += 1
    def flush(self):
        for q in (self.fixed, self.flex, self.scal, self.valu):
            for op in list(q):
                if op.key not in self.forbid and op.key not in self.done: self.force(op.key)

def ds128(k, r, ad, o, tag=None):
    return I(f"ds_read_b128 {rs(k, r, 4)}, v{ad}{off(o)}", "D", rd=[("v", ad)], wr=R(k, r, 4), tag=tag)
def dstr(k, r, ad, o, tag=None):
    return I(f"ds_read_b64_tr_b16 {rs(k, r, 2)}, v{ad}{off(o)}", "D", rd=[("v", ad)], wr=R(k, r, 2), tag=tag)
def koff(kt, ds): return kt * 8192 + (ds >> 1) * 1024
def voff(j, b, kt): return kt * 8192 + 2048 + b * 1024 + 8 * (j & 1)
def Kreg(kt, ds): return aK + kt * 16 + ds * 4
def Vreg(j, b): return aV + (2 * j + b) * 4
def k_read(p, kt, ds): return ds128("a", Kreg(kt, ds), vK + (ds & 1), ((p - 1) & 1) * 16384 + koff(kt, ds), ("ring", p - 1))
def v_read(r, j, b, kt): return dstr("a", Vreg(j, b) + 2 * kt, vV + (j >> 1), ((r - 1) & 1) * 16384 + voff(j, b, kt), ("ring", r - 1))
def q_read(t, ds, slot=None): return ds128("a", Qreg(t, ds), vSt + (ds & 1), (t if slot is None else slot) * 4096 + (ds >> 1) * 1024)
def so_(x): return "0" if x is None else f"s{x}"
def dma(vo, srd, so, o, flags, tag):
    return I(f"buffer_load_dwordx4 v{vo}, s[{srd}:{srd+3}], {so_(so)} offen{off(o)}{fl(flags)} lds", "X", rd=[("v", vo), ("m", 0)], tag=tag)
def o_store(r, srd, so, o, flags):
    return I(f"buffer_store_dwordx4 {rs('v', r, 4)}, v{vQO}, s[{srd}:{srd+3}], {so_(so)} offen{off(o)}{fl(flags)}", "S", rd=R("v", r, 4) + [("v", vQO)])
def o_write(slot, J, b):
    ad = vSt + (J & 1)
    return I(f"ds_write_b128 v{ad}, {rs('v', b, 4)}{off(slot*4096 + (J >> 1)*1024)}", "W", rd=R("v", b, 4) + [("v", ad)])
def code_touch(base, size_):
    return [V(f"v_min_u32 v{vPt}, {size_}, v{vPf}", [vPf], [vPt]), V(f"v_mov_b32 v{vPt+1}, 0", [], [vPt + 1]),
            V(f"v_lshl_add_u64 v[{vPt}:{vPt+1}], v[{vPt}:{vPt+1}], 0, s[{base}:{base+1}]", [vPt, vPt + 1], [vPt, vPt + 1]),
            I(f"global_load_dword v{vSink}, v[{vPt}:{vPt+1}], off", "L", rd=R("v", vPt, 2))]
def bump(srd, by): return [f"s_add_u32 s{srd}, s{srd}, {by}", f"s_addc_u32 s{srd+1}, s{srd+1}, 0"]
def shift(key, p): return (key[0], key[1] + p) + tuple(key[2:])
PHI = CFG["phi"]
KORD = [(0, 0), (0, 1), (0, 2), (0, 3), (1, 3), (1, 2), (1, 1), (1, 0)]
VORD = [(0, 0), (0, 1), (1, 1), (1, 0), (2, 0), (2, 1), (3, 1), (3, 0)]
DEFER = [(t, J) for t in range(5) for J in range(4)]

def pv_tile(r, t, home=None, vkey="vr"):
    L = []; seen = set()
    for j, b in VORD:
        blk = r - 2 + b
        if not 0 <= blk < 16: continue
        dj = (r & 1) * 4 + j; first = r <= 2 and j not in seen; seen.add(j)
        deps = pdeps(blk, t) + ([(vkey, r, j, b, kt) for kt in (0, 1)] if vkey else [])
        if first and vkey and (t, dj >> 1) in DEFER: deps.append(("ow", t, dj >> 1))
        L.append((("pv", r, t, j, b), mfma(Oreg(t, dj), home(j, b) if home else ("a", Vreg(j, b)), ("v", Preg(blk, t)), c0=first), deps))
    return L
def sum_tile(r, t):
    def one(blk):
        d = aL + 4 * (t >> 1); b = Preg(blk, t - 1) if t < 6 else Preg(0, 6)
        return (("sum", blk + 1, t >> 1), I(f"v_smfmac_f32_16x16x64_bf16 {rs('a', d, 4)}, {rs('v', vOne, 4)}, {rs('v', b, 8)}, v{vIdx}", "M",
                                            rd=R("v", vOne, 4) + R("v", b, 8) + [("v", vIdx)], wr=R("a", d, 4), c=R("a", d, 4)),
                pdeps(blk, t) + (pdeps(blk, t - 1) if t < 6 else []))
    if r > 16 or not (t & 1 or t == 6): return []
    if t == 6: return [] if r & 1 else [one(r - 1)]
    if CFG["zz"]: return [] if r & 1 else [one(r - 2), one(r - 1)]
    return [one(r - 1)]
def qk_chain(p, kt, t, sb, deps0, home=None, kkey="kr"):
    return [(("qk", p, kt, t, i), mfma(("v", sb), home(kt, ds) if home else ("a", Kreg(kt, ds)), ("a", Qreg(t, ds)), c0=(i == 0)),
             ([(kkey, p, kt, ds)] if kkey else []) + (deps0 if i == 0 else []) + ([("q6r", ds)] if (p, kt, t) == (0, 0, 6) and kkey else []))
            for i, (_, ds) in enumerate(KORD[4 * kt:4 * kt + 4])]
def seg_slots(NT, k): return [divmod(s, NT) for s in range(max(0, k * NT - PHI), min(16 * NT, (k + 1) * NT - PHI))]
def seg_mf(NT, k):
    L = []; sl = dict(((p * NT + t + PHI) % NT, (p, t)) for p, t in seg_slots(NT, k))
    for tv in range(NT):
        if k >= 1: L += pv_tile(k, tv) + sum_tile(k, tv)
        if tv in sl:
            p, t = sl[tv]
            pp, tt = divmod(p * NT + t - 2, NT)
            for kt in (0, 1): L += qk_chain(p, kt, t, sbuf(NT, p, kt, t), [("cvt", pp, kt, tt, h) for h in (0, 1)] if pp >= 0 else [])
    return L

def add_softmax(S, p, kt, t, sb, war=()):
    rel = ("qk", p, kt, t, 3)
    mul = lambda r: Op(("mul", p, kt, t, r), V(f"v_mul_f32 v{sb+r}, s{sC}, v{sb+r}", [sb + r], [sb + r]), [rel], rel=rel)
    ex = lambda r: Op(("exp", p, kt, t, r), V(f"v_exp_f32 v{sb+r}, v{sb+r}", [sb + r], [sb + r], "E"), [("mul", p, kt, t, r)], rel=rel)
    def cv(h):
        d = Preg(p, t) + 2 * kt + h
        return Op(("cvt", p, kt, t, h), V(f"v_cvt_pk_bf16_f32 v{d}, v{sb+2*h}, v{sb+2*h+1}", [sb + 2 * h, sb + 2 * h + 1], [d]),
                  [("exp", p, kt, t, 2 * h), ("exp", p, kt, t, 2 * h + 1)] + list(war), rel=rel)
    for o in (mul(0), mul(1), ex(0), ex(1), mul(2), mul(3), ex(2), ex(3), cv(0), cv(1)): S.add(S.valu, o)

def add_seg_ops(S, k, mf):
    NT = S.NT; g0 = S.gap; keys = [m[0] for m in mf]; mode = S.mode if k >= 3 else "oq"
    at = lambda key: g0 + keys.index(key)
    for p, t in seg_slots(NT, k):
        for kt in (0, 1): add_softmax(S, p, kt, t, sbuf(NT, p, kt, t), [("sum", p - (t < 6), t >> 1)] if p >= 2 and not p & 1 else [])
    fx = []; scal = []
    new = lambda lst, key, ins, deps, g: lst.append(Op(key, ins, deps, g))
    known = lambda x: [x] if (x in S.bykey or x in S.done) else []
    def chain(name, texts, deps, g):
        for i, t in enumerate(texts):
            new(scal, (name[0], k) + tuple(name[1:]) + (i,), sc(t), deps, g)
            deps = [(name[0], k) + tuple(name[1:]) + (i,)]
        return deps
    xor = lambda r: V(f"v_xor_b32 v{r}, 0x8000, v{r}", [r], [r])
    sp = CFG["sp"]; prev = []; rd = []
    if 1 <= k <= 16:
        g = g0 + 2 + (CFG["sh6"] if NT == 6 else 0)
        if k == 1:
            new(scal, ("w6",), I("s_waitcnt vmcnt(?)", "w", tag=("needq6",)), [], g0)
            prev = [("w6",)]
            if NT == 7:
                for ds in range(4): new(fx, ("q6r", ds), ds128("a", Qreg(6, ds), vQ6 + (ds & 1), (ds >> 1) * 1024), [("w6",)], g0 + 1 + ds)
                prev = [("qk", 0, 0, 6, 3)]; g = at(("qk", 0, 1, 6, 3)) + 8
        x = ((k + 3) & 1) * 128
        for i, (srd, o) in enumerate(((sKx, 0), (sKx, 128), (sVa, x), (sVb, x))):
            new(scal, ("m0", k, i), sc(f"s_add_u32 m0, s{sM}, {i*1024 - o}", wr=M0), prev, max(g0, g - 3))
            new(fx, ("dma", k, i), dma(vDKV, srd, None, o, "" if mode == "o" and CFG["lastdef"] else CFG["kv"[i >> 1]], ("grp", k + 2)), [("m0", k, i)], g)
            prev = [("dma", k, i)]; g += sp if k > 1 else 4
        prev = chain(("uk",), [f"s_add_u32 s{sM}, s{sM}, 16384", f"s_and_b32 s{sM}, s{sM}, 0xffff", f"s_mov_b64 s[{sVa}:{sVa+1}], s[{sVb}:{sVb+1}]",
                               f"s_mov_b32 s{sVa+2}, s{sVb+2}"] + bump(sVb, 8192) + [f"s_mov_b32 s{sVb+2}, s{sKx+2}"] + bump(sKx, 8192) +
                     [f"s_add_u32 s{sCnt}, s{sCnt}, 1", f"s_cmp_lt_u32 s{sCnt}, 64", f"s_cselect_b32 s{sKx+2}, 8192, 0"], prev, g - sp + 1)
        gk = at(("qk", k - 1, 0, NT - 1, 0))
        for n, (kt, ds) in enumerate(KORD):
            new(fx, ("kr", k, kt, ds), k_read(k, kt, ds), [("qk", k - 1, kt, NT - 1, n & 3)] + known(("xk", k - 1, ds & 1)), gk + (n * CFG["kw"]) // 2)
            rd.append(("kr", k, kt, ds))
        if k <= 14 and (k == 1 or not k & 1):
            g = max(g + 6, gk + 8 + CFG["qo0"])
            for j in range(4 if mode == "q" and CFG["q4"] else 3):
                flip = [f"s_xor_b32 s{sD}, s{sD}, 0x700"]
                if "o" in mode:
                    ready = [("ow", k - 1, J) for J in range(4)] if k <= 2 else []
                    new(fx, ("or", k, j), ds128("v", vTmp, vLin, j * 1024),
                        known(("ul", k - 2)) + known(("ul", k - 1)) + ready + ([("os", k, j - 1)] if j else []), g - 9)
                    new(fx, ("os", k, j), o_store(vTmp, sOx, None, 0, CFG["o" if "q" in mode else "ol"]), [("or", k, j)] + prev, g)
                    prev = chain(("uo", j), bump(sOx, f"s{sD}") + ([] if "q" in mode else flip), [("os", k, j)], g)
                    g += sp if k > 1 else 5
                if mode == "o":
                    step = 256 << CFG["kvsh"]
                    new(fx, ("pk", k, j), I(f"buffer_load_dword v{vSink}, v{vQ6}, s[{sQx}:{sQx+3}], 0 offen", "L", rd=[("v", vQ6)]), prev, g)
                    prev = chain(("pu", j), bump(sQx, step) + [f"s_max_u32 s{sQx+2}, s{sQx+2}, {step}", f"s_sub_u32 s{sQx+2}, s{sQx+2}, {step}"], [("pk", k, j)], g)
                    g += sp
                if "q" in mode:
                    new(scal, ("qm", k, j), sc(f"s_mov_b32 m0, s{sStg}", wr=M0), prev, g - 3)
                    new(fx, ("qd", k, j), dma(vQO, sQx, None, 0, CFG["q"], ("q", k)), [("qm", k, j)], g)
                    prev = chain(("uq", j), bump(sQx, f"s{sD}") + flip + [f"s_add_u32 s{sStg}, s{sStg}, 1024"], [("qd", k, j)], g)
                    g += sp if k > 1 else 5
            if "o" in mode: S.add(S.valu, Op(("ul", k), V(f"v_add_u32 v{vLin}, 3072, v{vLin}", [vLin], [vLin]), [("or", k, 2)]))
        if not k & 1:
            for b in (0, 1):
                S.add(S.valu, Op(("xk", k, b), xor(vK + b), [x_ for x_ in rd if x_[3] & 1 == b]))
                S.add(S.valu, Op(("xv", k, b), xor(vV + b), [("vr", k, j, bb, kt) for j in (2 * b, 2 * b + 1) for bb in (0, 1) for kt in (0, 1)]))
        gv = at(next(x_ for x_ in keys if x_[:3] == ("pv", k, NT - 1)))
        gb = gv - 2 if k < 16 else gk + 20
        rd += [("vr", k, j, b, kt) for j, b in VORD for kt in (0, 1)]
        new(scal, ("wb", k), I("s_waitcnt vmcnt(?) lgkmcnt(0)", "w", tag=("needgrp", k)), rd + [("dma", k, 3)], gb - 1)
        new(fx, ("bar", k), I("s_barrier", "B", tag=("bar", k)), [("wb", k)], gb)
        order = VORD if k < 16 else sorted(VORD, key=lambda x_: x_[1])
        for n, (j, b, kt) in enumerate((j, b, kt) for j, b in order for kt in (0, 1)):
            war = [("pv", k, NT - 1, j, b)] if ("pv", k, NT - 1, j, b) in keys else []
            new(fx, ("vr", k + 1, j, b, kt), v_read(k + 1, j, b, kt), [("bar", k)] + war + ([] if k & 1 else [("xv", k, j >> 1)]), gv + (n if k > 1 else (n * 3) // 4))
        if k == 2 or (3 < k < 15 and not k & 1):
            new(scal, ("lp", k), sc(f"s_sub_u32 s{sLoop}, s{sLoop}, 1" if k > 2 else f"s_cmp_eq_u32 s{sJob}, 3"), [("wb", k)] + prev, g0 + len(mf) - 5)
    if k <= 1:
        todo = ([(0, 2), (0, 3), (1, 2), (1, 3), (0, 0), (0, 1), (2, 2), (2, 3), (3, 2), (3, 3)] if k == 0 else
                [(4, 2), (4, 3), (1, 0), (1, 1), (2, 0), (2, 1), (3, 0), (3, 1), (4, 0), (4, 1)])
        lo, hi = (1, len(mf) - 1) if k == 0 else (6, len(mf) - 16)
        for i, (t, J) in enumerate(todo): new(fx, ("ow", t, J), o_write(t, J, Oreg(t, 2 * J)[1]), [], g0 + lo + (hi - lo) * i // len(todo))
    for o in fx: S.add(S.fixed, o)
    S.fixed.sort(key=lambda o: o.target)
    scal.sort(key=lambda o: o.target)
    for o in scal: S.add(S.scal, o)
    misc = [o for o in S.valu if o.key[0] in ("xk", "xv", "ul", "ul2")]
    S.valu = misc + [o for o in S.valu if o not in misc]

def start_job(NT, mode):
    S = Sched(NT); S.mode = mode
    S.done |= {("kr", 0, kt, ds) for kt, ds in KORD} | {("vr", 1, j, b, kt) for j, b in VORD for kt in (0, 1)}
    return S
def run_segs(S, segs, carry):
    starts = {}
    for k in segs:
        starts[k] = len(S.out)
        mf = seg_mf(S.NT, k)
        S.forbid = set(); S.th = CFG["th"] if k >= 2 else CFG["hth"]
        add_seg_ops(S, k, mf)
        cut = carry is not None and k >= 2 and not k & 1
        if cut: S.forbid = {shift(x, k) for x in carry}
        S.run(mf, seg_mf(S.NT, k + 1)[:4], cut)
    return starts
def find_carry(NT):
    S = start_job(NT, "oq")
    run_segs(S, range(0, 9), None)
    c = [shift(x, -8) for x in S.left]
    assert all(x[0] in ("mul", "exp", "cvt", "vr") for x in c), c
    return c

def params_next():
    return [sc(x) for x in (
        f"s_add_u32 s{sT2}, s{sJob}, 1",
        f"s_xor_b32 s{sT3}, s{sT2}, s{sRole}",
        f"s_and_b32 s{sT3}, s{sT3}, 1",
        f"s_cselect_b32 s{sNxt}, s{sOffB}, s{sOffA}",
        f"s_cselect_b32 s{sN7n}, s{sN7B}, s{sN7A}",
        f"s_mul_i32 s{sT2}, s{sT2}, {QH}",
        f"s_add_u32 s{sNxt}, s{sNxt}, s{sT2}")]

def advance():
    return [sc(x) for x in (f"s_lshl_b32 s{sBit}, 1, s{sJob}", f"s_add_u32 s{sJob}, s{sJob}, 1", f"s_mov_b32 s{sOp}, s{sCurO}",
                            f"s_mov_b32 s{sCurO}, s{sNxt}", f"s_mov_b32 s{sN7c}, s{sN7n}")] + params_next() + \
           [sc(x) for x in (f"s_add_u32 s{sQx}, s{sQ}, s{sNxt}", f"s_addc_u32 s{sQx+1}, s{sQ+1}, 0", f"s_cmp_lt_u32 s{sJob}, 3", f"s_cselect_b32 s{sQx+2}, 4096, 0",
                            f"s_add_u32 s{sOx}, s{sO}, s{sOp}", f"s_addc_u32 s{sOx+1}, s{sO+1}, 0",
                            f"s_mov_b32 s{sD}, 128", f"s_mov_b32 s{sStg}, s{sStgB}", f"s_mov_b32 s{sLoop}, 5")]

def add_rows(S, tiles, vmx, zero):
    add = lambda key, ins, deps: S.add(S.valu, Op(key, ins, deps))
    for t in tiles:
        b = Preg(0, t)
        src = [aL + 2 * t, aL + 2 * t + 1] + ([aL + 14, aL + 15] if t == 6 else [])
        dst = [b + 2, b, b + 1, b + 3]
        for a, d in zip(src, dst): add(("la", a), V(f"v_accvgpr_read_b32 v{d}, a{a}", [("a", a)], [d]), [("sum", 16, t >> 1), ("pv", 16, t, 3, 0)])
        if t == 6:
            add(("l6", 0), V(f"v_add_f32 v{dst[0]}, v{dst[0]}, v{dst[3]}", [dst[0], dst[3]], [dst[0]]), [("la", a) for a in src])
            add(("l6", 1), V(f"v_add_f32 v{dst[1]}, v{dst[1]}, v{dst[2]}", [dst[1], dst[2]], [dst[1]]), [("l6", 0)])
        add(("lr", t), V(f"v_add_f32 v{dst[0]}, v{dst[0]}, v{dst[1]}", dst[:2], [dst[0]]), [("la", a) for a in src] + ([("l6", 1)] if t == 6 else []))
        add(("rc", t), V(f"v_rcp_f32 v{b}, v{b+2}", [b + 2], [b], "E"), [("lr", t)])
        m = vmx if t else b
        add(("mx", t), V(f"v_maximum3_f32 v{vmx}, v{m}, v{b}, v{b+2}", [m, b, b + 2], [vmx]), [("rc", t)] + ([("mx", t - 1)] if t else []))
        if zero:
            for a in src: add(("lz", a), V(f"v_accvgpr_write_b32 a{a}, 0", [], [("a", a)]), [("la", a)])
    if tiles[-1] == S.NT - 1: add(("c1",), V(f"v_cmp_ngt_f32 vcc, s{sHi}, v{vmx}", [vmx], [("s", "vcc")]), [("mx", S.NT - 1)])

def convert(E, b, r, skip=lambda i: False):
    for i in range(4):
        if not skip(i):
            E.append(V(f"v_pk_mul_f32 {rs('v', b+2*i, 2)}, {rs('v', b+2*i, 2)}, {rs('v', r, 2)} op_sel_hi:[1,0]",
                       [b + 2 * i, b + 2 * i + 1, r], [b + 2 * i, b + 2 * i + 1]))
    for i in range(4): E.append(V(f"v_cvt_pk_bf16_f32 v{b+i}, v{b+2*i}, v{b+2*i+1}", [b + 2 * i, b + 2 * i + 1], [b + i]))
def acc_copy(dst, src): return [V(f"v_accvgpr_read_b32 v{dst+i}, a{src+i}", [("a", src + i)], [dst + i]) for i in range(8)]
def final_pv(t, J, i): return ("pv", 16, t) + ((2 * J, 1), (2 * J + 1, 0))[i >> 2] if J < 2 else ("pv", 17, t, 2 * J - 4 + (i >> 2), 0)

def build_tail(S):
    NT = S.NT
    run_segs(S, [15], None)
    g0 = S.gap; mf = seg_mf(NT, 16)
    add_seg_ops(S, 16, mf)
    mf += seg_mf(NT, 17)
    S.add(S.scal, Op(("wq",), I("s_waitcnt vmcnt(?)", "w", tag=("needq", 12)), [], g0)); S.scal.insert(0, S.scal.pop())
    nsc = [0]
    def scal(x, deps=()):
        i = nsc[0]; nsc[0] += 1
        S.add(S.scal, Op(("ts", i), x, ([("ts", i - 1)] if i else [("uk", 16, 11)]) + list(deps), g0)); return ("ts", i)
    scal(sc(f"s_mul_i32 s{sQx+2}, s{sQx+2}, s{sN7n}"))
    prev = [("bar", 16)]; gb = S.bykey[("bar", 16)].target
    for a in (0, 1):
        m = scal(sc(f"s_add_u32 m0, s{sWoff}, {49152 + a*896}", wr=M0), prev)
        for nn in (0, 1): S.add(S.fixed, Op(("q6", a, nn), dma(vQO, sQx, None, nn * 2048 + a * 128, CFG["q"], ("q6",)), [m], gb + 2 + 4 * (2 * a + nn)))
        prev = [("q6", a, 0), ("q6", a, 1)]
    ct = code_touch(sPfB, "L_final-L_end_code")
    for i, x in enumerate(ct[:3]): S.add(S.valu, Op(("pa", i), x, [("pa", i - 1)] if i else []))
    S.add(S.fixed, Op(("pf",), ct[3], [("pa", 2)] + prev, gb + 18))
    S.fixed.sort(key=lambda o: o.target)
    for x in advance(): scal(x, prev); prev = []
    w5 = scal(I("s_waitcnt vmcnt(?)", "w", tag=("needq", 14)))
    for t in range(6):
        for ds in range(4): S.add(S.flex, Op(("qr", t, ds), q_read(t, ds), [("wq",) if t < 5 else w5, ("qk", 15, 1, t, 3)]))
    add = lambda key, ins, deps: S.add(S.valu, Op(key, ins, deps))
    add(("vl",), V(f"v_add_u32 v{vLin}, {(-24576) & 0xffffffff:#x}, v{vLin}", [vLin], [vLin]), [])
    add_rows(S, list(range(NT)), vTmp, True)
    for x in ("s_cmp_lg_u64 vcc, 0", f"s_cselect_b32 s{sT2}, s{sBit}, 0", f"s_or_b32 s{sFlag}, s{sFlag}, s{sT2}"): scal(sc(x), [("c1",)])
    softdone = [("cvt", 15, kt, t, h) for t in (NT - 2, NT - 1) for kt in (0, 1) for h in (0, 1)]
    early = {(NT - 1, J): vb for J, vb in enumerate((vS, vS + 8))}
    for (t, J), vb in early.items():
        for i, x in enumerate(acc_copy(vb, Oreg(t, 2 * J)[1])): add(("ar", t, J, i), x, softdone + [final_pv(t, J, i)])
    for t in range(5):
        for J in range(2):
            b = Oreg(t, 2 * J)[1]; r = Preg(0, t)
            for i in range(8):
                add(("om", t, J, i), V(f"v_mul_f32 v{b+i}, v{r}, v{b+i}", [b + i, r], [b + i]), [("rc", t), final_pv(t, J, i)] + ([("om", t, J, i - 1)] if i else []))
            for i in range(4):
                add(("oc", t, J, i), V(f"v_cvt_pk_bf16_f32 v{b+i}, v{b+2*i}, v{b+2*i+1}", [b + 2 * i, b + 2 * i + 1], [b + i]), [("oc", t, J, i - 1) if i else ("om", t, J, 7)])
    n1 = max(i for i, m in enumerate(mf) if m[0][0] == "qk") + 1
    S.run(mf[:n1], mf[n1:n1 + 4], keep=True)
    S.th = CFG["tth"]
    S.run(mf[n1:], keep=True)
    begun = {x[1:3] for x in S.done if x[0] == "om"}
    S.valu = [o for o in S.valu if o.key[0] not in ("om", "oc") or o.key[1:3] in begun]
    S.flush()
    E = []
    if CFG["tmark"] == 0: E.append(sc("s_memtime s[86:87]"))
    vC = Preg(1, 0)
    spare = iter((vC, vC + 8, vC + 16, vS, vS + 8, vC))
    def piece(t, J):
        k, b = Oreg(t, 2 * J)
        if k == "a":
            if (t, J) in early: b = early[(t, J)]
            else:
                d = next(spare); E.extend(acc_copy(d, b)); b = d
        convert(E, b, Preg(0, t))
        if (t, J) not in DEFER: E.append(o_write(t % 6, J, b))
        return b
    plain = [x for x in DEFER if x not in begun]
    def some(n):
        for _ in range(n):
            if plain: piece(*plain.pop(0))
    if NT == 7:
        E.append(sc(f"s_add_u32 s{sT3}, s{sOp}, 24576")); regs = []
        for a in (0, 1):
            for J in (2 * a, 2 * a + 1): regs.append(piece(6, J) + 4); some(1)
            E += [ds128("v", regs[2 * a + nn], vLin, nn * 2048 + a * 1024) for nn in (0, 1)]
        for a in (0, 1):
            E.append(I(f"s_waitcnt lgkmcnt({4 - 4*a})", "w"))
            E += [o_store(regs[2 * a + nn], sO, sT3, nn * 2048 + a * 128, CFG["o"]) for nn in (0, 1)]
            some(3 - 3 * a)
    else:
        E.append(sc(f"s_mov_b32 s{sT3}, {OOB:#x}"))
        for i in range(4): E.append(o_store(vC, sO, sT3, 0, ""))
    for J in range(4): piece(5, J); some(2)
    some(20)
    E.append(I("s_waitcnt lgkmcnt(4)", "w"))
    return [I(".p2align 3", "#")] + align8(fix_hazards(E, S.out[-10:]), False)

def build_last(NT, carry):
    S = start_job(NT, "o")
    run_segs(S, range(15), carry)
    start = len(S.out)
    while S.out[start - 1].k != "M": start -= 1
    S.th = CFG["lth"]; g0 = S.gap
    assert NT - PHI >= 4 and PHI <= 3
    fix = lambda key, ins, deps, g=0: S.add(S.fixed, Op(key, ins, deps, g))
    add = lambda key, ins, deps: S.add(S.valu, Op(key, ins, deps))
    nsc = [0]
    def scal(x, deps=(), g=0):
        i = nsc[0]; nsc[0] += 1
        S.add(S.scal, Op(("ts", i), x, ([("ts", i - 1)] if i else []) + list(deps), g)); return ("ts", i)
    def qk(p, t):
        pp, tt = divmod(p * NT + t - 2, NT); L = []
        for kt in (0, 1):
            add_softmax(S, p, kt, t, sbuf(NT, p, kt, t), [("pv", 15, t, 3, 0)] if p == 15 else [])
            L += qk_chain(p, kt, t, sbuf(NT, p, kt, t), [("cvt", pp, kt, tt, h) for h in (0, 1)])
        return L
    home = lambda r: (lambda j, b: ("a", Qreg(0, 0) + (2 * j + b) * 4)) if r == 16 else (lambda j, b: ("a", Qreg(2, j)))
    pv = lambda r, t: pv_tile(r, t, home(r) if r > 15 else None) + sum_tile(r, t)
    G = [[int(c) for c in g if int(c) < NT] for g in CFG["groups"].split(",")]
    G = [g for g in G if g]
    did = set()
    def work(g, ahead):
        L = []
        for t in list(range(g[-1] + 1)):
            if t not in did: L += pv(15, t) + qk(15, t); did.add(t)
        tailpv = [pv(16, t) for t in g] + [pv(17, t) for t in g]
        for t in range(g[-1] + 1, min(NT, g[-1] + 1 + ahead)):
            if t not in did: L += pv(15, t) + qk(15, t); did.add(t)
        return L + sum(tailpv, [])
    A = []
    for i, t in enumerate(range(NT - PHI, NT)): A += pv(15, i) + qk(14, t)
    for t in range(3): A += (pv(15, t + PHI) if t + PHI < 3 else []) + qk(15, t); did.add(t)
    A += work(G[0], 0)
    keys = [m[0] for m in A]
    gk = g0 + keys.index(("qk", 14, 0, NT - 1, 0))
    for n, (kt, ds) in enumerate(KORD): fix(("kr", 15, kt, ds), k_read(15, kt, ds), [("qk", 14, kt, NT - 1, n & 3)], gk + n)
    for b in (0, 1):
        add(("xv", 16, b), V(f"v_xor_b32 v{vV+b}, 0x8000, v{vV+b}", [vV + b], [vV + b]), [("vr", 16, j, bb, kt) for j in (2 * b, 2 * b + 1) for bb in (0, 1) for kt in (0, 1)])
    for r, t in ((16, 0), (17, 2)):
        g = g0 + keys.index(("qk", 15, 1, t, 0))
        fix(("bar", r - 1), I("s_barrier", "B", tag=("bar", r - 1)), [scal(I("s_waitcnt vmcnt(?)", "w", tag=("needgrp", r - 1)), [], g)], g + 1)
        for j, b in VORD:
            if r == 17 and b: continue
            for kt in (0, 1):
                owner = j >> 1 if r == 16 else 2
                fix(("vr", r, j, b, kt), dstr("a", home(r)(j, b)[1] + 2 * kt, vV + (j >> 1), ((r - 1) & 1) * 16384 + voff(j, b, kt)),
                    [("bar", r - 1), ("qk", 15, 1, owner, 3)] + ([("xv", 16, j >> 1)] if r == 17 else []))
    add(("vl",), V(f"v_add_u32 v{vLin}, {(-24576) & 0xffffffff:#x}, v{vLin}", [vLin], [vLin]), [])
    S.valu = [o for o in S.valu if o.key[0] == "xv"] + [o for o in S.valu if o.key[0] != "xv"]
    so = lambda t: (sT0, sT1, sT2, sT3, sU0, sU1, sU2)[t]
    for t in range(NT): scal(sc(f"s_add_u32 s{so(t)}, s{sCurO}, {t*4096}"))
    O = lambda t, J: Oreg(t % 5, 2 * J)[1]
    back = lambda t, a, nn: ds128("v", O(t, 2 * a + nn) + 4, vLin, (t % 6) * 4096 + nn * 2048 + a * 1024)
    out = lambda t, a, nn: o_store(O(t, 2 * a + nn) + 4, sO, so(t), nn * 2048 + a * 128, CFG["oe2" if a else "oe"])
    def mark(i):
        if CFG["tmark"] == i: S.emit(sc("s_memtime s[86:87]")); print(f"NT={NT} model at mark {i}: {cycles(S.out[start:])}", file=sys.stderr)
    parked = []; lazy = set()
    for gi, g in enumerate(G):
        end = gi == len(G) - 1
        mf = A if gi == 0 else work(g, CFG["ahead"])
        g0 = S.gap; front = []
        for i, (t, a) in enumerate(parked):
            x = g0 + int(i * (len(mf) - 10) / len(parked))
            for k in (0, 1):
                dep = []
                if (t, a) in lazy:
                    C = []; convert(C, O(t, 2 * a + k), 0, lambda i_: True)
                    for n, c_ in enumerate(C):
                        S.add(front, Op(("lc", t, a, k, n), c_, dep)); dep = [("lc", t, a, k, n)]
                fix(("lw", t, a, k), o_write(t, 2 * a + k, O(t, 2 * a + k)), dep, x + 2 * k)
            for k in (0, 1): fix(("ob", t, a, k), back(t, a, k), [("lw", t, a, 0), ("lw", t, a, 1)], x + 4 + k)
            for k in (0, 1): fix(("oo", t, a, k), out(t, a, k), [("ob", t, a, k)], x + 9 + 2 * k)
        S.fixed.sort(key=lambda o: o.target)
        S.valu = front + S.valu
        add_rows(S, g, vTmp, False)
        if end:
            for x in ("s_cmp_lg_u64 vcc, 0", f"s_cselect_b32 s{sBit}, 8, 0", f"s_or_b32 s{sFlag}, s{sFlag}, s{sBit}"): scal(sc(x), [("c1",)])
        for J in range(4):
            for t in g:
                if t >= 5:
                    free = [("oo", t - 5, J >> 1, J & 1)] if ("oo", t - 5, J >> 1, J & 1) in S.bykey else []
                    for i, x in enumerate(acc_copy(O(t, J), Oreg(t, 2 * J)[1])): add(("ar", t, J, i), x, free + [final_pv(t, J, i)])
        S.run(mf, keep=True)
        late = [o for o in S.valu if o.key[0] == "ar"]
        keepv = [o for o in S.valu if o.key[0] in ("mul", "exp", "cvt")]
        S.valu = [o for o in S.valu if o not in late and o not in keepv]
        S.flush(); S.valu = [o for o in keepv if o.key not in S.done]
        mark(11 + 2 * gi)
        E = []; pend = []
        def drain(n):
            if pend:
                t, a = pend.pop()
                E.append(I(f"s_waitcnt lgkmcnt({n})", "w")); E.extend(out(t, a, nn) for nn in (0, 1))
        halves = [(t, a) for a in (0, 1) for t in g] if end else [(t, a) for t in g for a in (0, 1)]
        now = len(halves) if end else CFG["now"]
        for i, (t, a) in enumerate(halves):
            for J in (2 * a, 2 * a + 1):
                E += [o.ins for o in late if o.key[1:3] == (t, J)]
                convert(E, O(t, J), Preg(0, t))
                if i >= now + CFG["lazy"]: del E[-4:]; lazy.add((t, a))
                if i < now: E.append(o_write(t % 6, J, O(t, J)))
            if i < now:
                E += [back(t, a, nn) for nn in (0, 1)]
                drain(4); pend.append((t, a))
            elif i == now: drain(0)
        drain(0)
        parked = halves[now:]
        S.emit(I(".p2align 3", "#"))
        for x in align8(fix_hazards(E, S.out[-10:]), False): S.emit(x)
        mark(12 + 2 * gi)
    return S.out[start:]

class Job: pass
def build_job(NT):
    J = Job(); J.NT = NT; J.carry = carry = find_carry(NT); J.body = {}
    for mode in ("q", "o", "oq"):
        S = start_job(NT, mode)
        st = run_segs(S, range(15), carry)
        st[15] = len(S.out)
        for k in range(3, 17, 2):
            while S.out[st[k] - 1].k != "M": st[k] -= 1
        bodies = [S.out[st[k]:st[k + 2]] for k in range(3, 15, 2)]
        for b in bodies[1:]:
            assert [x.t for x in b] == [x.t for x in bodies[0]], "loop body not periodic"
        J.body[mode] = bodies[0] + [sc(f"s_cbranch_scc0 L_body{mode}{NT}")]
    epi = build_tail(S)
    J.head = S.out[:st[3]] + [sc(f"s_cbranch_scc1 L_close{NT}")]
    J.close = [sc(x) for x in (f"s_cmp_eq_u32 s{sRole}, 0", f"s_cselect_b32 s{sQx}, s{sK}, s{sV}", f"s_cselect_b32 s{sQx+1}, s{sK+1}, s{sV+1}",
                               f"s_add_u32 s{sQx}, s{sQx}, {3*KH + CFG['kvpf']*8192}", f"s_addc_u32 s{sQx+1}, s{sQx+1}, 0", f"s_mov_b32 s{sQx+2}, {KH - CFG['kvpf']*8192}",
                               f"v_lshrrev_b32 v{vQ6}, {7 - CFG['kvsh']}, v{vPf}", f"s_mov_b32 s{sLoop}, 4", f"s_mov_b32 s{sU3}, 0")]
    J.again = {m: [sc(f"s_xor_b32 s{sU3}, s{sU3}, 1"), sc(f"s_cbranch_scc0 {lab}")] + code_touch(base, size_) + [sc(f"s_mov_b32 s{sLoop}, 0"), sc(f"s_branch L_body{m}{NT}")]
               for m, lab, base, size_ in (("q", f"L_tail{NT}", sPfA, "L_end_code-L_job7"), ("o", f"L_last{NT}", sPfB, "L_final-L_end_code"))}
    J.tail = S.out[st[15]:] + epi
    J.last = build_last(NT, carry)
    return J

def grp_batch(e):
    L = []; x = ((e + 1) & 1) * 128
    for i, (srd, blk, o) in enumerate(((sK, e + 1, 0), (sK, e + 1, 128), (sV, e - 1, x), (sV, e, x))):
        if blk >= 0:
            L += [sc(f"s_add_u32 m0, s{sWoff}, {(e & 3)*16384 + i*1024 - o}", wr=M0), sc(f"s_mov_b32 s{sT0}, {blk*8192}"), dma(vDKV, srd, sT0, o, CFG["kv"[i >> 1]], ("grp", e))]
    return L
def q_batch(slot, base, o, tag):
    L = []
    hold = {int(x[1]): int(x[2:]) for x in CFG["hold"].split(",") if x}
    if tag[1] in hold:
        L += [sc("s_bitcmp1_b32 s2, 0"), sc(f"s_cbranch_scc1 L_deep{tag[1]}"), sc(f"s_waitcnt vmcnt({hold[tag[1]]})"), I(f"L_deep{tag[1]}:", "#")]
    for a in (0, 1):
        L += [sc(f"s_add_u32 m0, s{sStgB}, {slot*4096 + a*896}", wr=M0), sc(f"s_add_u32 s{sT1}, s{base}, {o}")]
        L += [dma(vQO, sQ, sT1, nn * 2048 + a * 128, CFG["q"], tag) for nn in (0, 1)]
    return L

def build_first(NT, carry, early2):
    S = Sched(NT); S.th = CFG["fth"]
    forbid = {shift(x, 2) for x in carry}
    assert all(x[1] == 2 and x[3] >= early2 for x in forbid if x[0] in ("mul", "exp", "cvt"))
    Kh = lambda p: (lambda kt, ds: ("a", (aO, aO + 32, aK)[p] + kt * 16 + ds * 4))
    V1 = lambda j, b: Oreg(4, j)
    em = lambda L: [S.emit(x) for x in L]
    fm = CFG["fm"].split(",")
    mark = lambda n: S.emit(sc(f"s_memrealtime s[{80+2*fm.index(n)}:{81+2*fm.index(n)}]")) if n in fm else None
    mark("i")
    batches = [q_batch(t, sCurO, t * 4096, ("q0", t)) for t in range(CFG["pre"], 6)]
    while len(batches) < 4: batches.append([])
    batches += [[sc(f"s_cmp_eq_u32 s{sN7c}, 1"), sc(f"s_cselect_b32 s{sU0}, s{sCurO}, {OOB:#x}")] + q_batch(1, sU0, 24576, ("q0", 6))]
    batches += [grp_batch(e) for e in (2, 3, 4)]
    kreads = lambda p: [ds128("a", Kh(p)(kt, ds)[1], vK + (ds & 1), ((p - 1) & 3) * 16384 + koff(kt, ds)) for kt, ds in KORD]
    em([I("s_waitcnt vmcnt(?)", "w", tag=("needgrp", 0)), I("s_barrier", "B")]); mark("a")
    em(batches.pop(0) + kreads(0) + kreads(1))
    em([dstr("v", V1(j, 1)[1] + 2 * kt, vV + (j >> 1), voff(j, 1, kt)) for j in range(4) for kt in (0, 1)])
    def second():
        em([I("s_waitcnt vmcnt(?)", "w", tag=("needgrp", 1)), I("s_barrier", "B")]); mark("b")
        em(batches.pop(0))
        em([dstr("a", Vreg(j, b) + 2 * kt, vV + (j >> 1), 16384 + voff(j, b, kt)) for j, b in VORD for kt in (0, 1)] + kreads(2))
        em([V(f"v_xor_b32 v{r}, 0x8000, v{r}", [r], [r]) for r in (vK, vK + 1, vV, vV + 1)])
    lastbuf = {}
    def qk(p, t, bufs):
        L = []
        war = [("pv", 2, t, 3, 0), ("pv", 1, t, 3, 1), ("sum", 1, t >> 1)] if p == 2 else []
        for kt, sb in enumerate(bufs):
            add_softmax(S, p, kt, t, sb, war)
            L += qk_chain(p, kt, t, sb, lastbuf.get(sb, []), Kh(p), None); lastbuf[sb] = [("cvt", p, kt, t, h) for h in (0, 1)]
        return L
    r1 = lambda t: pv_tile(1, t, V1, None)
    r2 = lambda t: pv_tile(2, t, None, None)
    done2 = 0; held = []
    for t in range(NT):
        if t == 4: split = len(S.out)
        end = t == NT - 1
        if t == 1: second()
        if t == 2: em([I("s_waitcnt lgkmcnt(0)", "w"), I("s_barrier", "B", tag=("bar", 1))])
        mark(f"p{t}")
        S.emit(I("s_waitcnt vmcnt(?)", "w", tag=("needq0", t))); mark(f"w{t}")
        em([q_read(t, ds, 1 if t == 6 else t) for ds in range(4)])
        while batches:
            em(batches.pop(0))
            if not end: break
        mf = held + qk(0, t, (vS, vS + 4)) + qk(1, t, (vS + 8, vS + 12)); held = []
        S.forbid = forbid
        if not end:
            own = (r1(t) if t < 5 else []) + sum_tile(1, t) + (r2(t) if t < 4 else []) + sum_tile(2, t)
            late = t < CFG["fpipe"]
            if late: held = own
            else: mf += own
            lim = min(early2 if t < 4 else min(x[3] for x in forbid if x[0] == "cvt"), (t + 1 - late) & ~1, 4, done2 + 1 if late else 4)
            while done2 < lim: mf += qk(2, done2, (vS + 8 * (done2 & 1 and not late), vS + 4 + 8 * (done2 & 1 and not late))); done2 += 1
            S.run(mf, keep=True); S.flush()
            continue
        g0 = S.gap
        for x in range(5, NT): mf += r1(x)
        mf += sum_tile(1, t)
        left = list(range(done2, NT - PHI))
        for x in range(4, NT):
            mf += r2(x) + (sum_tile(2, x) if x == t else [])
            if x == NT - 1 or len(left) > NT - 1 - x:
                while left and (x == NT - 1 or len(left) > NT - 1 - x):
                    y = left.pop(0); mf += qk(2, y, (sbuf(NT, 2, 0, y), sbuf(NT, 2, 1, y)))
        gv = g0 + [m[0] for m in mf].index(("pv", 2, NT - 1, 0, 0))
        S.add(S.scal, Op(("wb", 2), I("s_waitcnt vmcnt(?)", "w", tag=("needgrp", 2)), [], gv - 3))
        S.add(S.fixed, Op(("bar", 2), I("s_barrier", "B", tag=("bar", 2)), [("wb", 2)], gv - 2))
        prev = [("bar", 2)]
        for j, b in VORD:
            for kt in (0, 1):
                S.add(S.fixed, Op(("vr", 3, j, b, kt), v_read(3, j, b, kt), prev + [("pv", 2, NT - 1, j, b)], gv)); prev = [("vr", 3, j, b, kt)]; gv += 1
        S.run(mf, cut=True)
        while S.out[-1].k != "M": S.out.pop()
        T = []
        for j in range(0 if CFG["q4"] else 6):
            T.append([sc(f"s_mov_b32 m0, s{sStg}", wr=M0), sc(f"s_add_u32 s{sStg}, s{sStg}, 1024"), dma(vQO, sQx, None, 0, CFG["q"], ("q", 1))])
            T.append([sc(x) for x in bump(sQx, f"s{sD}") + [f"s_xor_b32 s{sD}, s{sD}, 0x700"]])
        ms = [i for i, x in enumerate(S.out) if x.k == "M"][-len(mf) + 8:][:2 * len(T):2]
        assert len(ms) == len(T)
        for i, g in reversed(list(zip(ms, T))): S.out[i + 1:i + 1] = g
    return S.out[:split], S.out[split:]

def sigma(x, d, t):
    return [f"v_bfe_u32 v{d}, v{x}, 1, 1", f"v_lshrrev_b32 v{t}, 3, v{x}", f"v_xor_b32 v{t}, v{t}, v{x}", f"v_and_b32 v{t}, 1, v{t}",
            f"v_lshl_or_b32 v{d}, v{t}, 1, v{d}", f"v_and_b32 v{t}, 4, v{x}", f"v_or_b32 v{d}, v{d}, v{t}"]
def swz_addr(row, col, d, t):
    return sigma(row, d, t) + [f"v_xor_b32 v{d}, v{d}, v{col}", f"v_lshlrev_b32 v{d}, 4, v{d}", f"v_and_b32 v{t}, 7, v{row}",
                               f"v_lshl_add_u32 v{d}, v{t}, 7, v{d}", f"v_lshrrev_b32 v{t}, 3, v{row}"]
def stg_addr(row, col, d, t):
    return [f"v_and_b32 v{t}, 7, v{row}", f"v_xor_b32 v{d}, v{t}, v{col}", f"v_lshlrev_b32 v{d}, 4, v{d}", f"v_lshl_add_u32 v{d}, v{t}, 7, v{d}"]

def stamp():
    if not CFG["stamp"]: return []
    x = vTmp + 2
    L = [sc(t) for t in (f"s_memtime s[{sTm}:{sTm+1}]", f"s_memrealtime s[{sTm+2}:{sTm+3}]", "s_waitcnt lgkmcnt(0)", "s_mov_b64 exec, 1")]
    for n, (a, b) in enumerate(((sTm, sTm + 2), (80, 82), (84, 86))):
        L += [sc(f"v_mov_b32 v{x}, s{a}"), sc(f"v_mov_b32 v{x+1}, s{b}"),
              I(f"buffer_store_dwordx2 v[{x}:{x+1}], off, s[{sDbg}:{sDbg+3}], s{sStampOff} offset:{8*n}", "S"), sc("s_nop 1")]
    return L + [sc("s_mov_b64 exec, -1"), sc(f"s_add_u32 s{sStampOff}, s{sStampOff}, 32"), sc("s_nop 3")]

def prologue():
    P = []
    A = lambda t: P.append(sc(t))
    if CFG["diag_tot"]: A("s_memrealtime s[96:97]")
    pm = lambda i: A(f"s_memrealtime s[{92+2*i}:{93+2*i}]") if CFG["stamp"] == 3 else None
    pm(0)
    A("s_cmp_ge_u32 s2, 256"); A("s_cbranch_scc1 L_exit")
    if CFG["again"]:
        A(f"s_mov_b32 s3, {CFG['again']}"); P.append(I("L_again:", "#"))
    A("s_load_dwordx4 s[80:83], s[0:1], 0"); A("s_load_dwordx4 s[84:87], s[0:1], 16")
    if CFG["stamp"]: A(f"s_load_dwordx2 s[{sDbg}:{sDbg+1}], s[0:1], 40")
    A("s_getpc_b64 s[100:101]"); P.append(I("L_pf:", "#")); A(f"v_lshlrev_b32 v{vPf}, 7, v0")
    A("v_lshrrev_b32 v20, 6, v0"); A("v_and_b32 v21, 63, v0")
    P += code_touch(100, "L_job7-L_pf")
    for d, lab in ((sPfA, "L_job7"), (sPfB, "L_end_code")):
        A(f"s_add_u32 s{d}, s100, {lab}-L_pf"); A(f"s_addc_u32 s{d+1}, s101, 0")
    A(f"v_readfirstlane_b32 s{sW}, v20")
    A(f"s_and_b32 s{sT0}, s2, 7"); A(f"s_lshr_b32 s{sT1}, s2, 3"); A(f"s_and_b32 s{sRole}, s{sT1}, 1"); A(f"s_lshr_b32 s{sT1}, s{sT1}, 1")
    A(f"s_lshl_b32 s{sT0}, s{sT0}, 4"); A(f"s_add_u32 s{sT0}, s{sT0}, s{sT1}")
    if CFG["samehead"]: A(f"s_mov_b32 s{sT0}, 0")
    A(f"s_mul_i32 s{sT1}, s{sT0}, {4*QH}"); A(f"s_lshl_b32 s{sT0}, s{sT0}, 19")
    A("v_lshrrev_b32 v22, 3, v21"); A("v_and_b32 v23, 7, v21")
    for x in sigma(22, 24, 25): A(x)
    A("v_xor_b32 v24, v24, v23"); A("v_lshlrev_b32 v24, 4, v24"); A(f"v_lshl_add_u32 v{vDKV}, v22, 8, v24")
    A("v_xor_b32 v24, v22, v23"); A("v_lshlrev_b32 v24, 4, v24"); A(f"v_lshl_add_u32 v{vQO}, v22, 8, v24")
    A(f"s_and_b32 s{sT2}, s{sW}, 1"); A(f"s_lshl_b32 s{sT2}, s{sT2}, 5"); A(f"s_lshl_b32 s{sT3}, s{sW}, 11"); A(f"s_lshl_b32 s{sWoff}, s{sW}, 12")
    A(f"v_xor_b32 v{vDKV}, s{sT2}, v{vDKV}"); A(f"v_add_u32 v{vDKV}, s{sT3}, v{vDKV}")
    A(f"s_mul_i32 s{sStgB}, s{sW}, 24576")
    for d, f, n7, base in ((sOffA, sN7A, CFG["split"] - 24, 0), (sOffB, sN7B, CFG["total"] - CFG["split"] - 24, CFG["split"] * 4096)):
        A(f"s_min_u32 s{d}, s{sW}, {n7}"); A(f"s_cselect_b32 s{f}, 1, 0"); A(f"s_lshl_b32 s{d}, s{d}, 12")
        A(f"s_add_u32 s{d}, s{d}, s{sStgB}"); A(f"s_add_u32 s{d}, s{d}, {base}")
    A(f"s_add_u32 s{sStgB}, s{sStgB}, 65536")
    A(f"s_mov_b32 s{sJob}, -1")
    P += params_next()
    pm(1)
    A("s_waitcnt lgkmcnt(0)")
    for srd, src, o, n in ((sK, 82, sT0, 4 * KH), (sV, 84, sT0, 4 * KH), (sQ, 80, sT1, 4 * QH), (sO, 86, sT1, 0 if CFG["nostore"] else 4 * QH)):
        A(f"s_add_u32 s{srd}, s{src}, s{o}"); A(f"s_addc_u32 s{srd+1}, s{src+1}, 0"); A(f"s_mov_b32 s{srd+2}, {n}"); A(f"s_mov_b32 s{srd+3}, 0x20000")
    if CFG["stamp"]:
        A(f"s_mov_b32 s{sDbg+2}, 0x1000000"); A(f"s_mov_b32 s{sDbg+3}, 0x20000")
        A(f"s_lshl_b32 s{sStampOff}, s2, 2"); A(f"s_add_u32 s{sStampOff}, s{sStampOff}, s{sW}"); A(f"s_lshl_b32 s{sStampOff}, s{sStampOff}, 10")
    P += stamp() if CFG["stamp"] == 1 else []
    pm(2)
    ga, gb, q0 = grp_batch(-1), grp_batch(0), q_batch(0, sNxt, 0, ("q0", 0))
    if CFG["ord"] == 0: P += ga + gb + q0
    elif CFG["ord"] == 1: P += q0[:4] + ga[:3] + gb[6:] + ga[3:] + gb[:6] + q0[4:]
    elif CFG["ord"] == 2: P += q0 + gb[6:] + ga + gb[:6]
    P += grp_batch(1)
    for t in range(1, CFG["pre"]): P += q_batch(t, sNxt, t * 4096, ("q0", t))
    pm(3)
    if CFG["stamp"] == 3:
        A("s_waitcnt lgkmcnt(0)")
        for i in range(4): A(f"s_mov_b32 s{80+2*i}, s{92+2*i}")
        P += stamp()
    A("v_and_b32 v22, 15, v21"); A("v_lshrrev_b32 v23, 4, v21")
    for x in swz_addr(22, 23, 24, 25): A(x)
    A(f"v_lshl_add_u32 v{vK}, v25, 12, v24"); A(f"v_xor_b32 v{vK+1}, 64, v{vK}")
    for x in stg_addr(22, 23, 24, 25): A(x)
    A("v_lshrrev_b32 v25, 1, v22"); A("v_xor_b32 v25, v25, v22"); A("v_bfe_u32 v25, v25, 2, 1"); A("v_lshl_add_u32 v24, v25, 11, v24")
    A(f"v_add_u32 v{vSt}, s{sStgB}, v24"); A(f"v_xor_b32 v{vSt+1}, 64, v{vSt}")
    A(f"s_add_u32 s{sT2}, s{sWoff}, 49152"); A(f"v_add_u32 v{vQ6}, s{sT2}, v24"); A(f"v_xor_b32 v{vQ6+1}, 64, v{vQ6}")
    A(f"v_lshl_add_u32 v{vLin}, v21, 4, s{sStgB}"); A(f"v_add_u32 v{vLin}, 24576, v{vLin}")
    A("v_lshrrev_b32 v22, 2, v21"); A("v_and_b32 v23, 3, v21")
    for x in swz_addr(22, 23, 24, 25): A(x)
    A(f"v_lshl_add_u32 v{vV}, v25, 12, v24"); A(f"v_xor_b32 v{vV+1}, 64, v{vV}")
    if "vcf" in CFG["x"]:
        A("v_and_b32 v24, 1, v21"); A(f"v_lshl_add_u32 v{vV}, v24, 3, v{vV}"); A(f"v_lshl_add_u32 v{vV+1}, v24, 3, v{vV+1}")
    A(f"s_mov_b32 s{sC}, {f2u(1.0 if 'c1' in CFG['x'] else SCALE):#x}")
    A(f"s_mov_b32 s{sHi}, {f2u(2.0**CFG['hi']):#x}")
    A(f"s_mov_b32 s{sFlag}, {CFG['forcefb']}")
    for d, b, blk in ((sVa, sV, 4), (sVb, sV, 5), (sKx, sK, 6)):
        A(f"s_add_u32 s{d}, s{b}, {blk*8192}"); A(f"s_addc_u32 s{d+1}, s{b+1}, 0"); A(f"s_mov_b32 s{d+2}, 8192")
    for d in (sKx, sVa, sVb, sQx, sOx): A(f"s_mov_b32 s{d+3}, 0x20000")
    A(f"s_mov_b32 s{sCnt}, 6"); A(f"s_add_u32 s{sM}, s{sWoff}, 16384"); A(f"s_mov_b32 s{sCurO}, 0"); A(f"s_mov_b32 s{sOx+2}, {0 if CFG['nostore'] else 4096}")
    A("v_and_b32 v22, 1, v21"); A("v_mul_u32_u24 v22, 0xaaaa, v22"); A(f"v_add_u32 v{vIdx}, 0x4444, v22"); A(f"v_lshl_or_b32 v{vIdx}, v{vIdx}, 16, v{vIdx}")
    A("v_lshrrev_b32 v22, 4, v21"); A("v_xor_b32 v22, v22, v21"); A("v_and_b32 v23, 2, v22")
    A("v_cmp_eq_u32 vcc, 0, v23"); A("v_mov_b32 v24, 0x3f803f80"); A("s_nop 0"); A("v_cndmask_b32 v22, 0, v24, vcc")
    for i in range(4): A(f"v_mov_b32 v{vOne+i}, v22")
    for i in range(16): A(f"v_accvgpr_write_b32 a{aL+i}, 0")
    return P + advance() + [sc(f"s_mov_b32 s{sLoop}, 4"), sc(f"s_mov_b32 s{sU3}, 0")]

def job_switch(NT):
    L = []
    if CFG["diag_mark"] > 0: L = [sc(f"s_cmp_lg_u32 s{sJob}, {CFG['diag_mark']}"), sc(f"s_cbranch_scc1 L_nomark{NT}"), sc("s_memrealtime s[96:97]"), I(f"L_nomark{NT}:", "#")]
    L += stamp() + [sc(f"s_cmp_eq_u32 s{sN7c}, 1"), sc("s_cbranch_scc1 L_job7")]
    return L + ([sc("s_branch L_job6")] if NT == 6 else [])

def final():
    L = [I("L_final:", "#")]
    if CFG["diag_mark"] == 4: L.append(sc("s_memrealtime s[96:97]"))
    if CFG["stamp"]: L += stamp() + stamp() + [I("s_waitcnt vmcnt(0)", "w")] + stamp()
    return L

def fallback():
    L = []; A = L.append
    q, k, s0, pb, vf, o, lacc, m, t0, va, pa, one = 20, 36, 52, 60, 64, 72, 104, 108, 109, 112, 114, 116
    sJ, sN, sRow, sKb, sI, sU = sU0, sU1, sU2, sU3, sLoop, sD
    MF = "v_mfma_f32_16x16x32_bf16"
    A(f"s_cmp_eq_u32 s{sFlag}, 0"); A("s_cbranch_scc1 L_done")
    A("s_waitcnt vmcnt(0) lgkmcnt(0)")
    A(f"v_bfe_u32 v21, v{vPf}, 7, 6"); A("v_and_b32 v22, 15, v21"); A("v_lshrrev_b32 v23, 4, v21")
    A(f"v_lshlrev_b32 v{vDir}, 8, v22"); A(f"v_lshl_add_u32 v{vDir}, v23, 4, v{vDir}")
    A("v_lshrrev_b32 v22, 2, v21"); A("v_and_b32 v23, 3, v21")
    L += stg_addr(22, 23, 24, 25) + ["v_lshrrev_b32 v25, 3, v22"]
    A(f"v_lshl_add_u32 v{va}, v25, 11, v24"); A(f"v_add_u32 v{va}, s{sStgB}, v{va}"); A(f"v_xor_b32 v{va+1}, 64, v{va}")
    A(f"v_xor_b32 v{pa}, 16, v21"); A(f"v_lshlrev_b32 v{pa}, 2, v{pa}"); A(f"v_xor_b32 v{pa+1}, 32, v21"); A(f"v_lshlrev_b32 v{pa+1}, 2, v{pa+1}")
    for i in range(4): A(f"v_mov_b32 v{one+i}, 0x3f803f80")
    A(f"s_mov_b32 s{sJob}, -1")
    A("L_fb_job:")
    L += [x.t for x in params_next()]
    A(f"s_add_u32 s{sJob}, s{sJob}, 1"); A(f"s_cmp_eq_u32 s{sJob}, 4"); A("s_cbranch_scc1 L_done")
    A(f"s_lshr_b32 s{sJ}, s{sFlag}, s{sJob}"); A(f"s_and_b32 s{sJ}, s{sJ}, 1"); A("s_cbranch_scc0 L_fb_job")
    A(f"s_add_u32 s{sN}, s{sN7n}, 5"); A(f"s_mov_b32 s{sRow}, s{sNxt}")
    A("L_fb_tile:")
    for ds in range(4): A(f"buffer_load_dwordx4 {rs('v', q+4*ds, 4)}, v{vDir}, s[{sQ}:{sQ+3}], s{sRow} offen{off(ds*64)}")
    def scores(dst):
        for ds in range(4): A(f"buffer_load_dwordx4 {rs('v', k+4*ds, 4)}, v{vDir}, s[{sK}:{sK+3}], s{sKb} offen{off(ds*64)}")
        A("s_waitcnt vmcnt(0)")
        for ds in range(4): A(f"{MF} {rs('v', dst, 4)}, {rs('v', k+4*ds, 4)}, {rs('v', q+4*ds, 4)}, {'0' if ds == 0 else rs('v', dst, 4)}")
        A(f"s_add_u32 s{sKb}, s{sKb}, 4096"); A("s_nop 7")
    A(f"v_mov_b32 v{m}, 0xff800000"); A(f"s_lshl_b32 s{sKb}, s{sJob}, 17"); A(f"s_mov_b32 s{sI}, 31")
    A("L_fb_max:")
    scores(s0)
    A(f"v_max3_f32 v{m}, v{m}, v{s0}, v{s0+1}"); A(f"v_max3_f32 v{m}, v{m}, v{s0+2}, v{s0+3}")
    A(f"s_sub_u32 s{sI}, s{sI}, 1"); A("s_cbranch_scc0 L_fb_max")
    for i in (0, 1):
        A(f"ds_bpermute_b32 v{t0}, v{pa+i}, v{m}"); A("s_waitcnt lgkmcnt(0)"); A(f"v_max_f32 v{m}, v{m}, v{t0}")
    for i in range(36): A(f"v_mov_b32 v{o+i}, 0")
    A(f"s_lshl_b32 s{sKb}, s{sJob}, 17"); A(f"s_mov_b32 s{sI}, 15")
    A("L_fb_pv:")
    for kt in (0, 1):
        for a in (0, 1):
            A(f"s_add_u32 m0, s{sStgB}, {kt*4096 + a*896}"); A(f"s_add_u32 s{sU}, s{sKb}, {kt*4096}")
            for nn in (0, 1): A(f"buffer_load_dwordx4 v{vQO}, s[{sV}:{sV+3}], s{sU} offen{off(nn*2048 + a*128)} lds")
    scores(s0); scores(s0 + 4)
    for r in range(8): A(f"v_sub_f32 v{s0+r}, v{s0+r}, v{m}")
    for r in range(8): A(f"v_mul_f32 v{s0+r}, s{sC}, v{s0+r}")
    for r in range(8): A(f"v_exp_f32 v{s0+r}, v{s0+r}")
    A("s_nop 0")
    for r in range(4): A(f"v_cvt_pk_bf16_f32 v{pb+r}, v{s0+2*r}, v{s0+2*r+1}")
    A("s_nop 1")
    A(f"{MF} {rs('v', lacc, 4)}, {rs('v', one, 4)}, {rs('v', pb, 4)}, {rs('v', lacc, 4)}")
    for dj in range(8):
        J, h = dj >> 1, dj & 1; f = vf + 4 * (dj & 1)
        for kt in (0, 1): A(f"ds_read_b64_tr_b16 {rs('v', f+2*kt, 2)}, v{va + (J & 1)}{off(kt*4096 + (J >> 1)*1024 + 8*h)}")
        A("s_waitcnt lgkmcnt(0)")
        A(f"{MF} {rs('v', o+4*dj, 4)}, {rs('v', f, 4)}, {rs('v', pb, 4)}, {rs('v', o+4*dj, 4)}")
    A(f"s_sub_u32 s{sI}, s{sI}, 1"); A("s_cbranch_scc0 L_fb_pv")
    A("s_nop 7"); A(f"v_rcp_f32 v{t0}, v{lacc}"); A("s_nop 0")
    for i in range(32): A(f"v_mul_f32 v{o+i}, v{t0}, v{o+i}")
    for J in range(4):
        for i in range(4): A(f"v_cvt_pk_bf16_f32 v{o+8*J+i}, v{o+8*J+2*i}, v{o+8*J+2*i+1}")
        A(f"buffer_store_dwordx4 {rs('v', o+8*J, 4)}, v{vDir}, s[{sO}:{sO+3}], s{sRow} offen{off(J*64)}")
    A("s_waitcnt vmcnt(0)")
    A(f"s_add_u32 s{sRow}, s{sRow}, 4096"); A(f"s_sub_u32 s{sN}, s{sN}, 1"); A("s_cbranch_scc0 L_fb_tile")
    A("s_branch L_fb_job")
    A("L_done:")
    return [I(x, "#" if x.endswith(":") else "s") for x in L]

def resolve(pro, jobs, fin):
    best = {}
    for seqn in ([7, 7, 7, 7], [7, 6, 7, 6], [6, 7, 6, 7], [6, 6, 6, 6]):
        dyn = [(x, 0) for x in pro]
        for j, v in enumerate(seqn):
            J = jobs[v]; b = 16 * j
            dyn += [(x, b) for x in (jobs[7].fcom + J.first if j == 0 else J.head + (J.close if j == 3 else []))]
            m = ("q", "oq", "oq", "o")[j]
            for it in range(6): dyn += [(x, b + 2 * it) for x in J.body[m] + ([] if m == "oq" or it < 4 else J.again[m][:9 if it == 4 else 2])]
            dyn += [(x, b) for x in (J.tail + J.sw if j < 3 else J.last)]
        dyn += [(x, 64) for x in fin]
        vm = []; epoch = -2
        for x, b in dyn:
            if x.k == "B": epoch = (x.tag[1] + b) if x.tag else -1
            if x.k == "D" and x.tag and x.tag[0] == "ring":
                assert x.tag[1] + b == epoch, ("ring read outside its epoch", x.t, x.tag, b, epoch)
            if x.k in "XLS":
                tg = x.tag
                if tg and tg[0] in ("grp", "q"): tg = shift(tg, b)
                if tg and tg[0] == "grp": assert epoch == -2 or tg[1] - 4 < epoch, ("dma overwrites live group", x.t)
                vm.append(tg)
            if x.k == "w" and x.tag:
                want = (x.tag[0][4:],) + tuple(x.tag[1:])
                if want[0] in ("grp", "q"): want = shift(want, b)
                idx = max(i for i, t in enumerate(vm) if t == want)
                n = min(63, len(vm) - 1 - idx)
                best[id(x)] = (x, min(n, best.get(id(x), (x, 99))[1]))
        seq = [x for x, _ in dyn]
        last = None
        for x in seq:
            op = x.t.split()[0]
            if op == "s_addc_u32":
                a = int(re.match(r"s_addc_u32 s(\d+)", x.t).group(1))
                assert last.startswith(f"s_add_u32 s{a-1},"), (last, x.t)
            if op == "s_cselect_b32": assert re.match(r"s_(cmp|and_b32|or_b64|min)", last), (last, x.t)
            if x.t.startswith("s_cbranch_scc0 L_body"): assert last.startswith(f"s_sub_u32 s{sLoop},"), last
            elif op.startswith("s_cbranch_scc"): assert last.startswith(("s_cmp", "s_bitcmp", f"s_xor_b32 s{sU3},")), (last, x.t)
            if re.match(r"s_(add|sub|and|or|xor|lshl|lshr|cmp|min|max|bitcmp)", op): last = x.t
        check_lgkm(seq)
        bad = hazards(seq)
        assert not bad, bad[:5]
    for x, n in best.values():
        if CFG["less"] and x.tag[0] == "needgrp" and "lgkm" in x.t: n = max(0, n - (10 if n >= 19 else 4))
        x.t = x.t.replace("?", str(n))

def main():
    jobs = {nt: build_job(nt) for nt in (7, 6)}
    mt = lambda i: [sc(f"s_memtime s[{80+2*i}:{81+2*i}]")] if CFG["stamp"] else []
    for nt, J in jobs.items():
        J.fcom, J.first = build_first(nt, J.carry, min(x[3] for K in jobs.values() for x in K.carry if x[0] == "cvt"))
        assert [x.t for x in J.fcom] == [x.t for x in jobs[7].fcom]
        if CFG["diag_mark"] == 0: J.first.append(sc("s_memrealtime s[96:97]"))
        J.first += stamp() + mt(0) + mt(1) + [sc("s_nop 4")]
        J.sw = job_switch(nt)
    jobs[7].fcom += [sc(f"s_cmp_eq_u32 s{sN7c}, 0"), sc("s_cbranch_scc1 L_first6")]
    pro = prologue(); fin = final()
    resolve(pro, jobs, fin)
    info = []
    for nt, J in jobs.items():
        nm = lambda s: sum(x.k == "M" for x in s)
        t = " ".join(f"{n}: {cycles(s)}c iss {issue_sum(s)} pipe {nm(s)*16} |" for n, s in (("head", J.head), *J.body.items(), ("tail", J.tail), ("last", J.last), ("first", jobs[7].fcom + J.first)))
        info.append(f"NT={nt} carry={len(J.carry)} {t} total={cycles(J.head + 6 * J.body['oq'] + J.tail + J.sw)}")
    o = open("header.txt").read().rstrip("\n").split("\n")
    o += ['.amdgcn_target "amdgcn-amd-amdhsa--gfx950"', ".text", f".globl {NAME}_kernel", ".p2align 8", f".type {NAME}_kernel,@function", f"{NAME}_kernel:"]
    X = CFG["x"].split()
    def keep(x):
        if "mul" in X and x.t.startswith("v_mul_f32") and f"s{sC}," in x.t and x.k == "V": return None
        if "sum" in X and "smfmac" in x.t: return None
        if "nofb" in X and x.t == f"s_cmp_eq_u32 s{sFlag}, 0": return "s_cmp_eq_u32 0, 0"
        if "norcp" in X and x.t.startswith("v_rcp_f32") and x.k == "E": return x.t.split(",")[0].replace("v_rcp_f32", "v_sqrt_f32") + ", 1.0"
        if inbody[0]:
            if "ds" in X and x.k == "D": return "v_mov_b32 v12, v12"
            if "kvdma" in X and x.k == "X" and x.tag[0] == "grp": return "v_mov_b32 v12, v12"
            if "st" in X and x.k == "S": return "v_mov_b32 v12, v12"
            if "bar" in X and x.k == "B": return "s_nop 2"
        return x.t
    inbody = [False]; intail = [False]
    put = lambda s: o.extend(("" if x.k == "#" else "    ") + keep(x) for x in s if keep(x) is not None)
    def loop(J, mode):
        o.append(f"L_body{mode}{J.NT}:"); inbody[0] = True; put(J.body[mode]); inbody[0] = False
    put(pro); put(jobs[7].fcom)
    for nt, J in jobs.items():
        o.append(f"L_first{nt}:"); put(J.first); loop(J, "q"); put(J.again["q"])
    for nt, J in jobs.items():
        o.append(f"L_job{nt}:"); put(mt(0)); put(J.head[:-1] + mt(1) + J.head[-1:]); loop(J, "oq")
        o.append(f"L_tail{nt}:"); put(mt(2)); put(mt(3)); intail[0] = True; put(J.tail); intail[0] = False; put(J.sw)
    o.append("L_end_code:")
    for nt, J in jobs.items():
        o.append(f"L_close{nt}:"); put(J.close); loop(J, "o"); put(J.again["o"]); o.append(f"L_last{nt}:"); put(mt(2)); put(mt(3)); put(J.last)
        if nt == 7: o.append("    s_branch L_final")
    put(fin); put(fallback())
    if CFG["again"]:
        o += ["    s_waitcnt vmcnt(0) lgkmcnt(0)", "    s_barrier", f"    v_lshrrev_b32 v0, 7, v{vPf}", "    s_sub_u32 s3, s3, 1", "    s_cbranch_scc0 L_again"]
    if CFG["diag_tot"]:
        o += ["    s_waitcnt vmcnt(0) lgkmcnt(0)", "L_diag:", "    s_memrealtime s[94:95]", "    s_waitcnt lgkmcnt(0)",
              "    s_sub_u32 s94, s94, s96", f"    s_cmp_lt_u32 s94, {CFG['diag_tot']}", "    s_cbranch_scc1 L_diag"]
    o += ["L_exit:", "    s_endpgm", "L_code_end:"]
    while True:
        pos = 0; fixat = None
        for k in range(o.index(f"{NAME}_kernel:"), len(o)):
            t = o[k].strip()
            if fixat is None and k < o.index("L_final:"):
                if t.startswith("s_cbranch_scc0 L_body") and pos % 32 == 0: fixat = o.index(t.split()[1] + ":")
                elif ("branch" in t and pos % 32 == 0) or (t.endswith(":") and t != "L_pf:" and pos % 32 == 28): fixat = k
            if t.startswith(".p2align"): a = 1 << int(t.split()[1]); pos = (pos + a - 1) // a * a
            elif not t.endswith(":"): pos += size(t)
        if fixat is None: break
        o.insert(fixat, "    s_nop 0")
    info.append(f"code bytes {pos}")
    notes = {"L_first": "first job: key blocks 0..2 tile by tile while the queries arrive (last tiles)", "L_bodyq": "first job: main loop, two key blocks per pass",
             "L_job": "later jobs: opening key blocks", "L_bodyoq": "middle jobs: main loop, two key blocks per pass",
             "L_tail": "closing key blocks, range check of the row sums, normalisation, next job's queries", "L_close": "last job",
             "L_bodyo": "last job: main loop", "L_last": "last job: tiles finish in groups and are stored at once",
             "L_final": "jobs whose row sums left the safe window are redone below", "L_fb_job": "exact-maximum path: next recorded job",
             "L_fb_tile": "one query tile", "L_fb_max": "pass 1: true row maximum", "L_fb_pv": "pass 2: exp2((s - max) * c), row sum, P V"}
    for k in range(len(o) - 1, -1, -1):
        m = re.fullmatch(r"(L_[a-z_]+?)(\d?):", o[k])
        if m and m.group(1) in notes: o.insert(k, "; " + notes[m.group(1)] + (f" ({m.group(2)} tiles per wave)" if m.group(2) else ""))
    o += ['.section .rodata,"a"', ".p2align 6", f".amdhsa_kernel {NAME}_kernel",
          "  .amdhsa_next_free_vgpr 512", "  .amdhsa_next_free_sgpr 102", "  .amdhsa_accum_offset 256",
          "  .amdhsa_group_segment_fixed_size 0", "  .amdhsa_kernarg_size 48", "  .amdhsa_user_sgpr_count 2",
          "  .amdhsa_user_sgpr_kernarg_segment_ptr 1", "  .amdhsa_system_sgpr_workgroup_id_x 1", ".end_amdhsa_kernel"]
    open(sys.argv[1], "w").write("\n".join(o) + "\n")
    print("\n".join(info), file=sys.stderr)

main()
```

```python
import sys, math, struct, re
from asmlib import *

NAME = "standalone__gqa_softmax__near_ridge"
CFG = dict(k="", v="", lastdef=1, q="nt", o="nt", ol="nt", oe="nt", oe2="nt", th=44, hth=30, tth=20, fth=24, lth=44, sp=8, sh6=3, sroom=4, pre=2, ord=0, split=27, total=53,
           phi=2, park=1, nlazy=2, w0=12, w2=0, hold="", groups="01,23,45,6", ahead=0, now=0, lazy=1, q4=1, kvpf=12, kvsh=4, less=0, zz=1, dd=1, hdd=9, e1=0, d1=10, slice=3, fpipe=1, fm="", qo0=6, kw=3, lo=-30, hi=30,
           stamp=0, samehead=0, nostore=0, again=0, tmark=-1, x="", diag_tot=0, diag_mark=-1, forcefb=0)
for a in sys.argv[2:]:
    k, v = a.split("=", 1)
    assert k in CFG, k
    CFG[k] = int(v) if re.fullmatch(r"-?\d+", v) else v.replace("+", " ")

QH, KH = 217088, 131072
SCALE = math.log2(math.e) / math.sqrt(128.0)
def f2u(x): return struct.unpack("<I", struct.pack("<f", x))[0]

vK, vV, vDKV, vQO, vLin, vSt, vQ6 = 1, 3, 5, 6, 7, 8, 10
vTmp, vOne = 12, 16
vS = 20
vP = 36
vO = 92
vIdx, vDir = 252, 253
vPf, vPt, vSink = 253, 254, 0
aQ, aK, aV, aL, aO = 0, 112, 144, 176, 192
sQ, sK, sV, sO = 4, 8, 12, 16
(sC, sW, sJob, sCnt, sU0, sU1, sU2, sM, sU3, sD, sOp, sStg, sLoop, sCurO, sNxt, sN7c, sN7n, sFlag, sRole,
 sT0, sT1, sT2, sT3, sWoff, sStgB, sOffA, sOffB, sLo, sHi, sBit, sN7A, sN7B) = range(20, 52)
sPfA, sPfB = 52, 54
sPair = 56
sStampOff = 58
sDbg = 60
sKx, sVa, sQx, sOx, sVb = 64, 68, 72, 76, 88
sTm = 92
OOB = 0x100000

def Oreg(t, dj):
    return ("v", vO + t * 32 + dj * 4) if t < 5 else ("a", aO + (t - 5) * 32 + dj * 4)
def Preg(p, t):
    return vP + t * 4 if not p & 1 else vP + 28 + ((t + 1) % 7) * 4
def Qreg(t, ds): return aQ + (t * 4 + ds) * 4
def sbuf(NT, p, kt, t): return vS + (((p * NT + t) * 2 + kt) & 3) * 4
def pdeps(p, t): return [("cvt", p, kt, t, h) for kt in (0, 1) for h in (0, 1)]
def sc(t, rd=(), wr=()): return I(t, "s", rd=rd, wr=wr)
def fl(x): return (" " + x) if x else ""
def off(x): return f" offset:{x}" if x else ""
def V(t, rd, wr, k="V"): return I(t, k, rd=[("v", r) if isinstance(r, int) else r for r in rd], wr=[("v", r) if isinstance(r, int) else r for r in wr])
COST = {"V": 1, "E": 2, "D": 1}
M0 = [("m", 0)]

class Op:
    def __init__(self, key, ins, deps=(), target=None, rel=None):
        self.key = key; self.ins = ins; self.deps = list(deps); self.target = target; self.rel = rel

class Sched:
    def __init__(self, NT):
        self.NT = NT
        self.out = []; self.done = set(); self.pend = []
        self.valu = []; self.fixed = []; self.scal = []; self.flex = []
        self.forbid = set(); self.gap = 0
        self.bykey = {}; self.th = CFG["th"]; self.mode = "oq"; self.dd = CFG["hdd"]
    def add(self, q, op):
        q.append(op); self.bykey[op.key] = op
    def emit(self, ins, key=None):
        if ins.k == "w":
            m = re.search(r"lgkmcnt\((\d+)\)", ins.t)
            if m:
                n = int(m.group(1))
                if n < len(self.pend): self.pend = self.pend[len(self.pend) - n:] if n else []
        self.out.append(ins)
        if ins.k in "DW": self.pend.append(ins)
        if key is not None: self.done.add(key)
    def haz(self, ins):
        dist = 0; miss = 0
        for p in reversed(self.out):
            miss = max(miss, need(p, ins) - dist)
            dist += states(p)
            if dist >= 8: break
        return miss
    def lgkm_need(self, inss):
        idx = -1
        for ins in inss:
            t = set(ins.rd) | set(ins.c) | set(ins.wr)
            for i, p in enumerate(self.pend):
                if set(p.wr) & t: idx = max(idx, i)
        return None if idx < 0 else min(15, len(self.pend) - 1 - idx)
    def ready(self, op):
        return op.key not in self.forbid and all(d in self.done for d in op.deps) and \
            (op.target is None or op.target <= self.gap) and self.haz(op.ins) <= 0
    def put(self, op):
        for q in (self.valu, self.fixed, self.scal, self.flex):
            if op in q: q.remove(op)
        n = self.lgkm_need([op.ins])
        if n is not None: self.emit(I(f"s_waitcnt lgkmcnt({n})", "w"))
        m = self.haz(op.ins)
        if m > 0: self.emit(I(f"s_nop {m-1}", "s"))
        self.emit(op.ins, op.key)
    def force(self, key):
        if key in self.done: return
        op = self.bykey[key]
        assert key not in self.forbid, key
        for d in op.deps: self.force(d)
        self.put(op)
    def pick(self, kinds, n):
        r = []
        for op in self.valu[:48]:
            if op.ins.k in kinds and self.ready(op):
                r.append(op)
                if len(r) == n: break
        return r
    def backlog(self):
        return sum(COST[o.ins.k] for o in self.valu if o.rel is not None and o.rel in self.done)
    def fill(self, room):
        while room > 0:
            e = self.pick("E", 1); v = self.pick("V", 2)
            if room >= 2 and e and (len(v) < 2 or self.valu.index(e[0]) < self.valu.index(v[0])):
                self.put(e[0]); room -= 2
            elif v:
                self.put(v[0]); room -= 1
            elif e and self.backlog() > self.th - 4:
                self.put(e[0]); room -= 2
            else: break
        while self.backlog() > self.th:
            c = self.pick("EV", 1)
            if not c: break
            self.put(c[0])
    def run(self, mf, look=(), cut=False, keep=False):
        allm = list(mf) + list(look)
        for i, (key, ins, deps) in enumerate(mf):
            for d in deps: self.force(d)
            if i == len(mf) - 1 and not keep:
                if cut: self.flush()
                self.forbid = set()
                self.left = [o.key for q in (self.valu, self.fixed, self.scal) for o in q]
            n = self.lgkm_need([ins])
            if n is not None: self.emit(I(f"s_waitcnt lgkmcnt({n})", "w"))
            m = self.haz(ins)
            if m > 0: self.emit(I(f"s_nop {m-1}", "s"))
            self.emit(ins, key)
            afterw = len(self.out) > 1 and self.out[-2].k == "W"
            fx = next((o for o in self.fixed if self.ready(o) and not (afterw and o.ins.k in "DW")), None)
            slot1 = False
            nxt = [x[1] for x in allm[i + 1:i + 2]]
            if self.lgkm_need(nxt) is not None:
                nxt = [x[1] for x in allm[i + 1:i + 5]]
            if fx is not None and fx.ins.k != "B": nxt = nxt + [fx.ins]
            n = self.lgkm_need(nxt)
            if n is not None:
                self.emit(I(f"s_waitcnt lgkmcnt({n})", "w")); slot1 = True
                if fx is not None and fx.ins.k == "B": fx = None
            if fx is not None and fx.ins.k == "B":
                self.put(fx); self.fill(1)
            else:
                if not slot1 and self.scal and self.ready(self.scal[0]):
                    if not (fx is not None and fx.ins.k == "X" and ("m", 0) in self.scal[0].ins.wr): self.put(self.scal[0])
                room = 1 if "smfmac" in ins.t else 2
                if fx is not None and room == 1 and fx.ins.k != "D": fx = None
                if fx is not None:
                    self.put(fx); room = {"D": room - 1, "X": 1, "L": 1, "S": CFG["sroom"], "W": 0}[fx.ins.k]
                if fx is not None and fx.ins.k == "D" and room == 1 and len(self.pick("V", self.dd)) < self.dd and self.pick("E", 1):
                    self.gap += 1
                    f2 = next((o for o in self.fixed if o.ins.k == "D" and self.ready(o) and self.lgkm_need([o.ins]) is None), None)
                    self.gap -= 1
                    if f2 is not None: self.put(f2); room = 0
                if self.flex and fx is None and room == 2 and self.backlog() == 0 and not self.pick("E", 1) and not afterw:
                    f = next((o for o in self.flex if self.ready(o)), None)
                    if f is not None: self.put(f); room -= 1
                if room: self.fill(room)
                if self.out[-1].k in "Msw":
                    miss = [self.haz(o.ins) for o in self.valu[:16] if o.key not in self.forbid and all(d in self.done for d in o.deps)]
                    if miss and min(miss) > 1: self.emit(I(f"s_nop {min(min(miss) - 1, 3 - (self.out[-1].k != 'M')) - 1}", "s"))
            self.gap += 1
    def flush(self):
        for q in (self.fixed, self.flex, self.scal, self.valu):
            for op in list(q):
                if op.key not in self.forbid and op.key not in self.done: self.force(op.key)

def ds128(k, r, ad, o, tag=None):
    return I(f"ds_read_b128 {rs(k, r, 4)}, v{ad}{off(o)}", "D", rd=[("v", ad)], wr=R(k, r, 4), tag=tag)
def dstr(k, r, ad, o, tag=None):
    return I(f"ds_read_b64_tr_b16 {rs(k, r, 2)}, v{ad}{off(o)}", "D", rd=[("v", ad)], wr=R(k, r, 2), tag=tag)
def koff(kt, ds): return kt * 8192 + (ds >> 1) * 1024
def voff(j, b, kt): return kt * 8192 + 2048 + b * 1024 + 8 * (j & 1)
def Kreg(kt, ds): return aK + kt * 16 + ds * 4
def Vreg(j, b): return aV + (2 * j + b) * 4
def k_read(p, kt, ds): return ds128("a", Kreg(kt, ds), vK + (ds & 1), ((p - 1) & 1) * 16384 + koff(kt, ds), ("ring", p - 1))
def v_read(r, j, b, kt): return dstr("a", Vreg(j, b) + 2 * kt, vV + (j >> 1), ((r - 1) & 1) * 16384 + voff(j, b, kt), ("ring", r - 1))
def q_read(t, ds, slot=None): return ds128("a", Qreg(t, ds), vSt + (ds & 1), (t if slot is None else slot) * 4096 + (ds >> 1) * 1024)
def so_(x): return "0" if x is None else f"s{x}"
def dma(vo, srd, so, o, flags, tag):
    return I(f"buffer_load_dwordx4 v{vo}, s[{srd}:{srd+3}], {so_(so)} offen{off(o)}{fl(flags)} lds", "X", rd=[("v", vo), ("m", 0)], tag=tag)
def o_store(r, srd, so, o, flags):
    return I(f"buffer_store_dwordx4 {rs('v', r, 4)}, v{vQO}, s[{srd}:{srd+3}], {so_(so)} offen{off(o)}{fl(flags)}", "S", rd=R("v", r, 4) + [("v", vQO)])
def o_write(slot, J, b):
    ad = vSt + (J & 1)
    return I(f"ds_write_b128 v{ad}, {rs('v', b, 4)}{off(slot*4096 + (J >> 1)*1024)}", "W", rd=R("v", b, 4) + [("v", ad)])
def code_touch(base, size_):
    return [V(f"v_min_u32 v{vPt}, {size_}, v{vPf}", [vPf], [vPt]), V(f"v_mov_b32 v{vPt+1}, 0", [], [vPt + 1]),
            V(f"v_lshl_add_u64 v[{vPt}:{vPt+1}], v[{vPt}:{vPt+1}], 0, s[{base}:{base+1}]", [vPt, vPt + 1], [vPt, vPt + 1]),
            I(f"global_load_dword v{vSink}, v[{vPt}:{vPt+1}], off", "L", rd=R("v", vPt, 2))]
def bump(srd, by): return [f"s_add_u32 s{srd}, s{srd}, {by}", f"s_addc_u32 s{srd+1}, s{srd+1}, 0"]
def shift(key, p): return (key[0], key[1] + p) + tuple(key[2:])
PHI = CFG["phi"]
KORD = [(0, 0), (0, 1), (0, 2), (0, 3), (1, 3), (1, 2), (1, 1), (1, 0)]
VORD = [(0, 0), (0, 1), (1, 1), (1, 0), (2, 0), (2, 1), (3, 1), (3, 0)]
DEFER = [(t, J) for t in range(5) for J in range(4)]

def parked(t, J): return Oreg(2 * (t - 5) + (J >> 1), 2 * (J & 1) + 1)[1]
PARKED = {(2 * (t - 5) + (J >> 1), 2 * (J & 1) + 1): (("ow", 5, J) if t == 5 else ("o6s", J)) for t in (5, 6) for J in range(4)} if CFG["park"] else {}
LAZY = [(4, 0), (4, 1), (4, 2), (4, 3)][:CFG["nlazy"]]
def pv_tile(r, t, home=None, vkey="vr"):
    L = []; seen = set()
    for j, b in VORD:
        blk = r - 2 + b
        if not 0 <= blk < 16: continue
        dj = (r & 1) * 4 + j; first = r <= 2 and j not in seen; seen.add(j)
        deps = pdeps(blk, t) + ([(vkey, r, j, b, kt) for kt in (0, 1)] if vkey else [])
        if first and vkey and (t, dj >> 1) in DEFER: deps.append(("ow", t, dj >> 1))
        if first and vkey and (t, dj) in PARKED: deps.append(PARKED[(t, dj)])
        L.append((("pv", r, t, j, b), mfma(Oreg(t, dj), home(j, b) if home else ("a", Vreg(j, b)), ("v", Preg(blk, t)), c0=first), deps))
    return L
def sum_tile(r, t):
    def one(blk):
        d = aL + 4 * (t >> 1); b = Preg(blk, t - 1) if t < 6 else Preg(0, 6)
        return (("sum", blk + 1, t >> 1), I(f"v_smfmac_f32_16x16x64_bf16 {rs('a', d, 4)}, {rs('v', vOne, 4)}, {rs('v', b, 8)}, v{vIdx}", "M",
                                            rd=R("v", vOne, 4) + R("v", b, 8) + [("v", vIdx)], wr=R("a", d, 4), c=R("a", d, 4)),
                pdeps(blk, t) + (pdeps(blk, t - 1) if t < 6 else []))
    if r > 16 or not (t & 1 or t == 6): return []
    if t == 6: return [] if r & 1 else [one(r - 1)]
    if CFG["zz"]: return [] if r & 1 else [one(r - 2), one(r - 1)]
    return [one(r - 1)]
def qk_chain(p, kt, t, sb, deps0, home=None, kkey="kr"):
    return [(("qk", p, kt, t, i), mfma(("v", sb), home(kt, ds) if home else ("a", Kreg(kt, ds)), ("a", Qreg(t, ds)), c0=(i == 0)),
             ([(kkey, p, kt, ds)] if kkey else []) + (deps0 if i == 0 else []) + ([("q6r", ds)] if (p, kt, t) == (0, 0, 6) and kkey else []))
            for i, (_, ds) in enumerate(KORD[4 * kt:4 * kt + 4])]
def seg_slots(NT, k): return [divmod(s, NT) for s in range(max(0, k * NT - PHI), min(16 * NT, (k + 1) * NT - PHI))]
def seg_mf(NT, k):
    L = []; sl = dict(((p * NT + t + PHI) % NT, (p, t)) for p, t in seg_slots(NT, k))
    for tv in range(NT):
        if k >= 1: L += pv_tile(k, tv) + sum_tile(k, tv)
        if tv in sl:
            p, t = sl[tv]
            pp, tt = divmod(p * NT + t - 2, NT)
            for kt in (0, 1): L += qk_chain(p, kt, t, sbuf(NT, p, kt, t), [("cvt", pp, kt, tt, h) for h in (0, 1)] if pp >= 0 else [])
    return L

def add_softmax(S, p, kt, t, sb, war=()):
    rel = ("qk", p, kt, t, 3)
    mul = lambda r: Op(("mul", p, kt, t, r), V(f"v_mul_f32 v{sb+r}, s{sC}, v{sb+r}", [sb + r], [sb + r]), [rel], rel=rel)
    ex = lambda r: Op(("exp", p, kt, t, r), V(f"v_exp_f32 v{sb+r}, v{sb+r}", [sb + r], [sb + r], "E"), [("mul", p, kt, t, r)], rel=rel)
    def cv(h):
        d = Preg(p, t) + 2 * kt + h
        return Op(("cvt", p, kt, t, h), V(f"v_cvt_pk_bf16_f32 v{d}, v{sb+2*h}, v{sb+2*h+1}", [sb + 2 * h, sb + 2 * h + 1], [d]),
                  [("exp", p, kt, t, 2 * h), ("exp", p, kt, t, 2 * h + 1)] + list(war), rel=rel)
    for o in (mul(0), mul(1), ex(0), ex(1), mul(2), mul(3), ex(2), ex(3), cv(0), cv(1)): S.add(S.valu, o)

def add_seg_ops(S, k, mf):
    NT = S.NT; g0 = S.gap; keys = [m[0] for m in mf]; mode = S.mode if k >= 3 else "oq"
    at = lambda key: g0 + keys.index(key)
    for p, t in seg_slots(NT, k):
        for kt in (0, 1): add_softmax(S, p, kt, t, sbuf(NT, p, kt, t), [("sum", p - (t < 6), t >> 1)] if p >= 2 and not p & 1 else [])
    fx = []; scal = []
    new = lambda lst, key, ins, deps, g: lst.append(Op(key, ins, deps, g))
    known = lambda x: [x] if (x in S.bykey or x in S.done) else []
    def chain(name, texts, deps, g):
        for i, t in enumerate(texts):
            new(scal, (name[0], k) + tuple(name[1:]) + (i,), sc(t), deps, g)
            deps = [(name[0], k) + tuple(name[1:]) + (i,)]
        return deps
    xor = lambda r: V(f"v_xor_b32 v{r}, 0x8000, v{r}", [r], [r])
    sp = CFG["sp"]; prev = []; rd = []
    if 1 <= k <= 16:
        g = g0 + 2 + (CFG["sh6"] if NT == 6 else 0)
        if k == 1:
            new(scal, ("w6",), I("s_waitcnt vmcnt(?)", "w", tag=("needq6",)), [], g0)
            prev = [("w6",)]
            if NT == 7:
                for ds in range(4): new(fx, ("q6r", ds), ds128("a", Qreg(6, ds), vQ6 + (ds & 1), (ds >> 1) * 1024), [("w6",)], g0 + 1 + ds)
                prev = [("q6r", ds) for ds in range(4)]; g = g0 + CFG["d1"]
        x = ((k + 3) & 1) * 128
        for i, (srd, o) in enumerate(((sKx, 0), (sKx, 128), (sVa, x), (sVb, x))):
            new(scal, ("m0", k, i), sc(f"s_add_u32 m0, s{sM}, {i*1024 - o}", wr=M0), prev, max(g0, g - 3))
            new(fx, ("dma", k, i), dma(vDKV, srd, None, o, "" if mode == "o" and CFG["lastdef"] else CFG["kv"[i >> 1]], ("grp", k + 2)), [("m0", k, i)], g)
            if k == 1 and i == 0: fx[-1].ins.rd += R("a", Qreg(6, 0), 16)
            prev = [("dma", k, i)]; g += sp if k > 1 else 4
        prev = chain(("uk",), [f"s_add_u32 s{sM}, s{sM}, 16384", f"s_and_b32 s{sM}, s{sM}, 0xffff", f"s_mov_b64 s[{sVa}:{sVa+1}], s[{sVb}:{sVb+1}]",
                               f"s_mov_b32 s{sVa+2}, s{sVb+2}"] + bump(sVb, 8192) + [f"s_mov_b32 s{sVb+2}, s{sKx+2}"] + bump(sKx, 8192) +
                     [f"s_add_u32 s{sCnt}, s{sCnt}, 1", f"s_cmp_lt_u32 s{sCnt}, 64", f"s_cselect_b32 s{sKx+2}, 8192, 0"], prev, g - sp + 1)
        gk = at(("qk", k - 1, 0, NT - 1, 0))
        for n, (kt, ds) in enumerate(KORD):
            new(fx, ("kr", k, kt, ds), k_read(k, kt, ds), [("qk", k - 1, kt, NT - 1, n & 3)] + known(("xk", k - 1, ds & 1)), gk + (n * CFG["kw"]) // 2)
            rd.append(("kr", k, kt, ds))
        if k <= 14 and (k == 1 or not k & 1):
            g = max(g + 6, gk + 8 + CFG["qo0"])
            for j in range(4 if mode == "q" and CFG["q4"] else 3):
                flip = [f"s_xor_b32 s{sD}, s{sD}, 0x700"]
                if "o" in mode:
                    ready = [("ow", k - 1, J) for J in range(4)] if k <= 2 else []
                    new(fx, ("or", k, j), ds128("v", vTmp, vLin, j * 1024),
                        known(("ul", k - 2)) + known(("ul", k - 1)) + ready + ([("os", k, j - 1)] if j else []), g - 9)
                    new(fx, ("os", k, j), o_store(vTmp, sOx, None, 0, CFG["o" if "q" in mode else "ol"]), [("or", k, j)] + prev, g)
                    prev = chain(("uo", j), bump(sOx, f"s{sD}") + ([] if "q" in mode else flip), [("os", k, j)], g)
                    g += sp if k > 1 else 5
                if mode == "o":
                    step = 256 << CFG["kvsh"]
                    new(fx, ("pk", k, j), I(f"buffer_load_dword v{vSink}, v{vQ6}, s[{sQx}:{sQx+3}], 0 offen", "L", rd=[("v", vQ6)]), prev, g)
                    prev = chain(("pu", j), bump(sQx, step) + [f"s_max_u32 s{sQx+2}, s{sQx+2}, {step}", f"s_sub_u32 s{sQx+2}, s{sQx+2}, {step}"], [("pk", k, j)], g)
                    g += sp
                if "q" in mode:
                    new(scal, ("qm", k, j), sc(f"s_mov_b32 m0, s{sStg}", wr=M0), prev, g - 3)
                    new(fx, ("qd", k, j), dma(vQO, sQx, None, 0, CFG["q"], ("q", k)), [("qm", k, j)], g)
                    prev = chain(("uq", j), bump(sQx, f"s{sD}") + flip + [f"s_add_u32 s{sStg}, s{sStg}, 1024"], [("qd", k, j)], g)
                    g += sp if k > 1 else 5
            if "o" in mode: S.add(S.valu, Op(("ul", k), V(f"v_add_u32 v{vLin}, 3072, v{vLin}", [vLin], [vLin]), [("or", k, 2)] + [x_ for J in range(4) for x_ in known(("o6r", J))]))
        if not k & 1:
            for b in (0, 1):
                S.add(S.valu, Op(("xk", k, b), xor(vK + b), [x_ for x_ in rd if x_[3] & 1 == b]))
                S.add(S.valu, Op(("xv", k, b), xor(vV + b), [("vr", k, j, bb, kt) for j in (2 * b, 2 * b + 1) for bb in (0, 1) for kt in (0, 1)]))
        gv = at(next(x_ for x_ in keys if x_[:3] == ("pv", k, NT - 1)))
        gb = gv - 2 if k < 16 else gk + 20
        if k == 1 and CFG["e1"]: gb = gv - CFG["e1"]
        rd += [("vr", k, j, b, kt) for j, b in VORD for kt in (0, 1)]
        new(scal, ("wb", k), I("s_waitcnt vmcnt(?) lgkmcnt(0)", "w", tag=("needgrp", k)), rd + [("dma", k, 3)], gb - 1)
        new(fx, ("bar", k), I("s_barrier", "B", tag=("bar", k)), [("wb", k)], gb)
        order = VORD if 1 < k < 16 or (k == 1 and not CFG["e1"]) else sorted(VORD, key=lambda x_: x_[1])
        for n, (j, b, kt) in enumerate((j, b, kt) for j, b in order for kt in (0, 1)):
            war = [("pv", k, NT - 1, j, b)] if ("pv", k, NT - 1, j, b) in keys else []
            new(fx, ("vr", k + 1, j, b, kt), v_read(k + 1, j, b, kt), [("bar", k)] + war + ([] if k & 1 else [("xv", k, j >> 1)]), gv + n if k > 1 else (gb + 1 + n if CFG["e1"] else gv + (n * 3) // 4))
        if k == 2 or (3 < k < 15 and not k & 1):
            new(scal, ("lp", k), sc(f"s_sub_u32 s{sLoop}, s{sLoop}, 1" if k > 2 else f"s_cmp_eq_u32 s{sJob}, 3"), [("wb", k)] + prev, g0 + len(mf) - 5)
    if k <= 2:
        todo = [(0, 2), (0, 3), (1, 2), (1, 3), (0, 0), (0, 1), (2, 2), (2, 3), (3, 2), (3, 3), (4, 2), (4, 3), (1, 0), (1, 1), (2, 0), (2, 1), (3, 0), (3, 1), (4, 0), (4, 1)]
        if CFG["park"]:
            todo[2:2] = [(6, 0), (6, 1)]; todo[6:6] = [(6, 2), (6, 3)]; todo[18:18] = [(5, J) for J in range(4)]
        n0 = CFG["w0"] if CFG["park"] else 10
        n2 = len(todo) - CFG["w2"]
        todo = (todo[:n0], todo[n0:n2], todo[n2:])[k]
        lo, hi = ((0, len(mf) - 1), (6, len(mf) - 14), (5, 5 + 8 * CFG["w2"]))[k]
        for i, (t, J) in enumerate(todo):
            g = g0 + lo + (hi - lo) * i // len(todo)
            dep = [("lc", t, J, 3)] if (t, J) in LAZY else [("o6r", x_) for x_ in range(4)] if t == 5 else []
            new(fx, ("ow", t, J), o_write(min(t, 5), J, Oreg(t, 2 * J)[1] if t < 5 else parked(t, J)), dep, g)
            if t == 6 and J & 1:
                for nn in (0, 1):
                    r = parked(6, J - 1 + nn)
                    new(fx, ("o6r", J - 1 + nn), ds128("v", r, vLin, 5 * 4096 + nn * 2048 + (J >> 1) * 1024), [("ow", 6, J - 1), ("ow", 6, J)], g + 2)
                    new(fx, ("o6s", J - 1 + nn), o_store(r, sO, sT1, nn * 2048 + (J >> 1) * 128, CFG["o"]), [("o6r", J - 1 + nn)], g + 8 + 3 * nn)
        if k == 0:
            for t, J in LAZY:
                C = []; convert(C, Oreg(t, 2 * J)[1], 0, lambda i_: True)
                for n, c_ in enumerate(C): S.add(S.valu, Op(("lc", t, J, n), c_, [("lc", t, J, n - 1)] if n else []))
    for o in fx: S.add(S.fixed, o)
    S.fixed.sort(key=lambda o: o.target)
    scal.sort(key=lambda o: o.target)
    for o in scal: S.add(S.scal, o)
    misc = [o for o in S.valu if o.key[0] in ("xk", "xv", "ul", "ul2", "lc")]
    S.valu = misc + [o for o in S.valu if o not in misc]

def start_job(NT, mode):
    S = Sched(NT); S.mode = mode
    S.done |= {("kr", 0, kt, ds) for kt, ds in KORD} | {("vr", 1, j, b, kt) for j, b in VORD for kt in (0, 1)}
    return S
def run_segs(S, segs, carry):
    starts = {}
    for k in segs:
        starts[k] = len(S.out)
        mf = seg_mf(S.NT, k)
        S.forbid = set(); S.th = CFG["th"] if k >= 2 else CFG["hth"]; S.dd = CFG["dd"] if k >= 2 else CFG["hdd"]
        add_seg_ops(S, k, mf)
        cut = carry is not None and k >= 2 and not k & 1
        if cut: S.forbid = {shift(x, k) for x in carry}
        S.run(mf, seg_mf(S.NT, k + 1)[:4], cut)
    return starts
def find_carry(NT):
    S = start_job(NT, "oq")
    run_segs(S, range(0, 9), None)
    c = [shift(x, -8) for x in S.left]
    assert all(x[0] in ("mul", "exp", "cvt", "vr") for x in c), c
    return c

def params_next():
    return [sc(x) for x in (
        f"s_add_u32 s{sT2}, s{sJob}, 1",
        f"s_xor_b32 s{sT3}, s{sT2}, s{sRole}",
        f"s_and_b32 s{sT3}, s{sT3}, 1",
        f"s_cselect_b32 s{sNxt}, s{sOffB}, s{sOffA}",
        f"s_cselect_b32 s{sN7n}, s{sN7B}, s{sN7A}",
        f"s_mul_i32 s{sT2}, s{sT2}, {QH}",
        f"s_add_u32 s{sNxt}, s{sNxt}, s{sT2}")]

def advance():
    return [sc(x) for x in (f"s_lshl_b32 s{sBit}, 1, s{sJob}", f"s_add_u32 s{sJob}, s{sJob}, 1", f"s_mov_b32 s{sOp}, s{sCurO}",
                            f"s_mov_b32 s{sCurO}, s{sNxt}", f"s_mov_b32 s{sN7c}, s{sN7n}")] + params_next() + \
           [sc(x) for x in (f"s_add_u32 s{sQx}, s{sQ}, s{sNxt}", f"s_addc_u32 s{sQx+1}, s{sQ+1}, 0", f"s_cmp_lt_u32 s{sJob}, 3", f"s_cselect_b32 s{sQx+2}, 4096, 0",
                            f"s_add_u32 s{sOx}, s{sO}, s{sOp}", f"s_addc_u32 s{sOx+1}, s{sO+1}, 0",
                            f"s_mov_b32 s{sD}, 128", f"s_mov_b32 s{sStg}, s{sStgB}", f"s_mov_b32 s{sLoop}, 5")]

def add_rows(S, tiles, vmx, zero):
    add = lambda key, ins, deps: S.add(S.valu, Op(key, ins, deps))
    for t in tiles:
        b = Preg(0, t)
        src = [aL + 2 * t, aL + 2 * t + 1] + ([aL + 14, aL + 15] if t == 6 else [])
        dst = [b + 2, b, b + 1, b + 3]
        for a, d in zip(src, dst): add(("la", a), V(f"v_accvgpr_read_b32 v{d}, a{a}", [("a", a)], [d]), [("sum", 16, t >> 1), ("pv", 16, t, 3, 0)])
        if t == 6:
            add(("l6", 0), V(f"v_add_f32 v{dst[0]}, v{dst[0]}, v{dst[3]}", [dst[0], dst[3]], [dst[0]]), [("la", a) for a in src])
            add(("l6", 1), V(f"v_add_f32 v{dst[1]}, v{dst[1]}, v{dst[2]}", [dst[1], dst[2]], [dst[1]]), [("l6", 0)])
        add(("lr", t), V(f"v_add_f32 v{dst[0]}, v{dst[0]}, v{dst[1]}", dst[:2], [dst[0]]), [("la", a) for a in src] + ([("l6", 1)] if t == 6 else []))
        add(("rc", t), V(f"v_rcp_f32 v{b}, v{b+2}", [b + 2], [b], "E"), [("lr", t)])
        m = vmx if t else b
        add(("mx", t), V(f"v_maximum3_f32 v{vmx}, v{m}, v{b}, v{b+2}", [m, b, b + 2], [vmx]), [("rc", t)] + ([("mx", t - 1)] if t else []))
        if zero:
            for a in src: add(("lz", a), V(f"v_accvgpr_write_b32 a{a}, 0", [], [("a", a)]), [("la", a)])
    if tiles[-1] == S.NT - 1: add(("c1",), V(f"v_cmp_ngt_f32 vcc, s{sHi}, v{vmx}", [vmx], [("s", "vcc")]), [("mx", S.NT - 1)])

def convert(E, b, r, skip=lambda i: False, dst=None):
    for i in range(4):
        if not skip(i):
            E.append(V(f"v_pk_mul_f32 {rs('v', b+2*i, 2)}, {rs('v', b+2*i, 2)}, {rs('v', r, 2)} op_sel_hi:[1,0]",
                       [b + 2 * i, b + 2 * i + 1, r], [b + 2 * i, b + 2 * i + 1]))
    d = b if dst is None else dst
    for i in range(4): E.append(V(f"v_cvt_pk_bf16_f32 v{d+i}, v{b+2*i}, v{b+2*i+1}", [b + 2 * i, b + 2 * i + 1], [d + i]))
def acc_copy(dst, src): return [V(f"v_accvgpr_read_b32 v{dst+i}, a{src+i}", [("a", src + i)], [dst + i]) for i in range(8)]
def final_pv(t, J, i): return ("pv", 16, t) + ((2 * J, 1), (2 * J + 1, 0))[i >> 2] if J < 2 else ("pv", 17, t, 2 * J - 4 + (i >> 2), 0)

def build_tail(S):
    NT = S.NT
    run_segs(S, [15], None)
    g0 = S.gap; mf = seg_mf(NT, 16)
    add_seg_ops(S, 16, mf)
    mf += seg_mf(NT, 17)
    S.add(S.scal, Op(("wq",), I("s_waitcnt vmcnt(?)", "w", tag=("needq", 12)), [], g0)); S.scal.insert(0, S.scal.pop())
    nsc = [0]
    def scal(x, deps=()):
        i = nsc[0]; nsc[0] += 1
        S.add(S.scal, Op(("ts", i), x, ([("ts", i - 1)] if i else [("uk", 16, 11)]) + list(deps), g0)); return ("ts", i)
    scal(sc(f"s_mul_i32 s{sQx+2}, s{sQx+2}, s{sN7n}"))
    prev = [("bar", 16)]; gb = S.bykey[("bar", 16)].target
    for a in (0, 1):
        m = scal(sc(f"s_add_u32 m0, s{sWoff}, {49152 + a*896}", wr=M0), prev)
        for nn in (0, 1): S.add(S.fixed, Op(("q6", a, nn), dma(vQO, sQx, None, nn * 2048 + a * 128, CFG["q"], ("q6",)), [m], gb + 2 + 4 * (2 * a + nn)))
        prev = [("q6", a, 0), ("q6", a, 1)]
    ct = code_touch(sPfB, "L_final-L_end_code")
    for i, x in enumerate(ct[:3]): S.add(S.valu, Op(("pa", i), x, [("pa", i - 1)] if i else []))
    S.add(S.fixed, Op(("pf",), ct[3], [("pa", 2)] + prev, gb + 18))
    S.fixed.sort(key=lambda o: o.target)
    scal(sc(f"s_add_u32 s{sT1}, s{sCurO}, 24576" if NT == 7 else f"s_mov_b32 s{sT1}, {OOB:#x}"))
    for x in advance(): scal(x, prev); prev = []
    w5 = scal(I("s_waitcnt vmcnt(?)", "w", tag=("needq", 14)))
    for t in range(6):
        for ds in range(4): S.add(S.flex, Op(("qr", t, ds), q_read(t, ds), [("wq",) if t < 5 else w5, ("qk", 15, 1, t, 3)]))
    add = lambda key, ins, deps: S.add(S.valu, Op(key, ins, deps))
    add(("vl",), V(f"v_add_u32 v{vLin}, {(-24576) & 0xffffffff:#x}, v{vLin}", [vLin], [vLin]), [])
    add_rows(S, list(range(NT)), vTmp, True)
    for x in ("s_cmp_lg_u64 vcc, 0", f"s_cselect_b32 s{sT2}, s{sBit}, 0", f"s_or_b32 s{sFlag}, s{sFlag}, s{sT2}"): scal(sc(x), [("c1",)])
    softdone = [("cvt", 15, kt, t, h) for t in (NT - 2, NT - 1) for kt in (0, 1) for h in (0, 1)]
    early = {(NT - 1, J): vb for J, vb in enumerate((vS, vS + 8))}
    for (t, J), vb in early.items():
        for i, x in enumerate(acc_copy(vb, Oreg(t, 2 * J)[1])): add(("ar", t, J, i), x, softdone + [final_pv(t, J, i)])
    for t in range(5):
        for J in range(2):
            b = Oreg(t, 2 * J)[1]; r = Preg(0, t)
            for i in range(8):
                add(("om", t, J, i), V(f"v_mul_f32 v{b+i}, v{r}, v{b+i}", [b + i, r], [b + i]), [("rc", t), final_pv(t, J, i)] + ([("om", t, J, i - 1)] if i else []))
            for i in range(4):
                add(("oc", t, J, i), V(f"v_cvt_pk_bf16_f32 v{b+i}, v{b+2*i}, v{b+2*i+1}", [b + 2 * i, b + 2 * i + 1], [b + i]), [("oc", t, J, i - 1) if i else ("om", t, J, 7)])
    n1 = max(i for i, m in enumerate(mf) if m[0][0] == "qk") + 1
    S.run(mf[:n1], mf[n1:n1 + 4], keep=True)
    S.th = CFG["tth"]
    S.run(mf[n1:], keep=True)
    begun = {x[1:3] for x in S.done if x[0] == "om"}
    S.valu = [o for o in S.valu if o.key[0] not in ("om", "oc") or o.key[1:3] in begun]
    S.flush()
    E = []
    if CFG["tmark"] == 0: E.append(sc("s_memtime s[86:87]"))
    vC = Preg(1, 0)
    spare = iter((vC, vC + 8, vC + 16, vS, vS + 8, vC))
    def piece(t, J):
        k, b = Oreg(t, 2 * J)
        if k == "a":
            if (t, J) in early: b = early[(t, J)]
            else:
                d = next(spare); E.extend(acc_copy(d, b)); b = d
        convert(E, b, Preg(0, t))
        if (t, J) not in DEFER: E.append(o_write(t % 6, J, b))
        return b
    assert not begun & set(LAZY)
    if CFG["park"]:
        for t, J in DEFER:
            if (t, J) not in begun:
                convert(E, Oreg(t, 2 * J)[1], Preg(0, t))
                if (t, J) in LAZY: del E[-4:]
        for t in range(NT - 1, 4, -1):
            for J in range(4):
                b = early.get((t, J), vC + 8 * (J & 1))
                if (t, J) not in early: E.extend(acc_copy(b, Oreg(t, 2 * J)[1]))
                convert(E, b, Preg(0, t), dst=parked(t, J))
        E.append(I("s_waitcnt lgkmcnt(0)", "w"))
        return [I(".p2align 3", "#")] + align8(fix_hazards(E, S.out[-10:]), False)
    assert not LAZY
    plain = [x for x in DEFER if x not in begun]
    def some(n):
        for _ in range(n):
            if plain: piece(*plain.pop(0))
    if NT == 7:
        E.append(sc(f"s_add_u32 s{sT3}, s{sOp}, 24576")); regs = []
        for a in (0, 1):
            for J in (2 * a, 2 * a + 1): regs.append(piece(6, J) + 4); some(1)
            E += [ds128("v", regs[2 * a + nn], vLin, nn * 2048 + a * 1024) for nn in (0, 1)]
        for a in (0, 1):
            E.append(I(f"s_waitcnt lgkmcnt({4 - 4*a})", "w"))
            E += [o_store(regs[2 * a + nn], sO, sT3, nn * 2048 + a * 128, CFG["o"]) for nn in (0, 1)]
            some(3 - 3 * a)
    else:
        E.append(sc(f"s_mov_b32 s{sT3}, {OOB:#x}"))
        for i in range(4): E.append(o_store(vC, sO, sT3, 0, ""))
    for J in range(4): piece(5, J); some(2)
    some(20)
    E.append(I("s_waitcnt lgkmcnt(4)", "w"))
    return [I(".p2align 3", "#")] + align8(fix_hazards(E, S.out[-10:]), False)

def build_last(NT, carry):
    S = start_job(NT, "o")
    run_segs(S, range(15), carry)
    start = len(S.out)
    while S.out[start - 1].k != "M": start -= 1
    S.th = CFG["lth"]; S.dd = CFG["hdd"]; g0 = S.gap
    assert NT - PHI >= 4 and PHI <= 3
    fix = lambda key, ins, deps, g=0: S.add(S.fixed, Op(key, ins, deps, g))
    add = lambda key, ins, deps: S.add(S.valu, Op(key, ins, deps))
    nsc = [0]
    def scal(x, deps=(), g=0):
        i = nsc[0]; nsc[0] += 1
        S.add(S.scal, Op(("ts", i), x, ([("ts", i - 1)] if i else []) + list(deps), g)); return ("ts", i)
    def qk(p, t):
        pp, tt = divmod(p * NT + t - 2, NT); L = []
        for kt in (0, 1):
            add_softmax(S, p, kt, t, sbuf(NT, p, kt, t), [("pv", 15, t, 3, 0)] if p == 15 else [])
            L += qk_chain(p, kt, t, sbuf(NT, p, kt, t), [("cvt", pp, kt, tt, h) for h in (0, 1)])
        return L
    home = lambda r: (lambda j, b: ("a", Qreg(0, 0) + (2 * j + b) * 4)) if r == 16 else (lambda j, b: ("a", Qreg(2, j)))
    pv = lambda r, t: pv_tile(r, t, home(r) if r > 15 else None) + sum_tile(r, t)
    G = [[int(c) for c in g if int(c) < NT] for g in CFG["groups"].split(",")]
    G = [g for g in G if g]
    did = set()
    def work(g, ahead):
        L = []
        for t in list(range(g[-1] + 1)):
            if t not in did: L += pv(15, t) + qk(15, t); did.add(t)
        tailpv = [pv(16, t) for t in g] + [pv(17, t) for t in g]
        for t in range(g[-1] + 1, min(NT, g[-1] + 1 + ahead)):
            if t not in did: L += pv(15, t) + qk(15, t); did.add(t)
        return L + sum(tailpv, [])
    A = []
    for i, t in enumerate(range(NT - PHI, NT)): A += pv(15, i) + qk(14, t)
    for t in range(3): A += (pv(15, t + PHI) if t + PHI < 3 else []) + qk(15, t); did.add(t)
    A += work(G[0], 0)
    keys = [m[0] for m in A]
    gk = g0 + keys.index(("qk", 14, 0, NT - 1, 0))
    for n, (kt, ds) in enumerate(KORD): fix(("kr", 15, kt, ds), k_read(15, kt, ds), [("qk", 14, kt, NT - 1, n & 3)], gk + n)
    for b in (0, 1):
        add(("xv", 16, b), V(f"v_xor_b32 v{vV+b}, 0x8000, v{vV+b}", [vV + b], [vV + b]), [("vr", 16, j, bb, kt) for j in (2 * b, 2 * b + 1) for bb in (0, 1) for kt in (0, 1)])
    for r, t in ((16, 0), (17, 2)):
        g = g0 + keys.index(("qk", 15, 1, t, 0))
        fix(("bar", r - 1), I("s_barrier", "B", tag=("bar", r - 1)), [scal(I("s_waitcnt vmcnt(?)", "w", tag=("needgrp", r - 1)), [], g)], g + 1)
        for j, b in VORD:
            if r == 17 and b: continue
            for kt in (0, 1):
                owner = j >> 1 if r == 16 else 2
                fix(("vr", r, j, b, kt), dstr("a", home(r)(j, b)[1] + 2 * kt, vV + (j >> 1), ((r - 1) & 1) * 16384 + voff(j, b, kt)),
                    [("bar", r - 1), ("qk", 15, 1, owner, 3)] + ([("xv", 16, j >> 1)] if r == 17 else []))
    add(("vl",), V(f"v_add_u32 v{vLin}, {(-24576) & 0xffffffff:#x}, v{vLin}", [vLin], [vLin]), [])
    S.valu = [o for o in S.valu if o.key[0] == "xv"] + [o for o in S.valu if o.key[0] != "xv"]
    so = lambda t: (sT0, sT1, sT2, sT3, sU0, sU1, sU2)[t]
    for t in range(NT): scal(sc(f"s_add_u32 s{so(t)}, s{sCurO}, {t*4096}"))
    O = lambda t, J: Oreg(t % 5, 2 * J)[1]
    back = lambda t, a, nn: ds128("v", O(t, 2 * a + nn) + 4, vLin, (t % 6) * 4096 + nn * 2048 + a * 1024)
    out = lambda t, a, nn: o_store(O(t, 2 * a + nn) + 4, sO, so(t), nn * 2048 + a * 128, CFG["oe2" if a else "oe"])
    def mark(i):
        if CFG["tmark"] == i: S.emit(sc("s_memtime s[86:87]")); print(f"NT={NT} model at mark {i}: {cycles(S.out[start:])}", file=sys.stderr)
    parked = []; lazy = set()
    for gi, g in enumerate(G):
        end = gi == len(G) - 1
        mf = A if gi == 0 else work(g, CFG["ahead"])
        g0 = S.gap; front = []
        for i, (t, a) in enumerate(parked):
            x = g0 + int(i * (len(mf) - 10) / len(parked))
            for k in (0, 1):
                dep = []
                if (t, a) in lazy:
                    C = []; convert(C, O(t, 2 * a + k), 0, lambda i_: True)
                    for n, c_ in enumerate(C):
                        S.add(front, Op(("lc", t, a, k, n), c_, dep)); dep = [("lc", t, a, k, n)]
                fix(("lw", t, a, k), o_write(t, 2 * a + k, O(t, 2 * a + k)), dep, x + 2 * k)
            for k in (0, 1): fix(("ob", t, a, k), back(t, a, k), [("lw", t, a, 0), ("lw", t, a, 1)], x + 4 + k)
            for k in (0, 1): fix(("oo", t, a, k), out(t, a, k), [("ob", t, a, k)], x + 9 + 2 * k)
        S.fixed.sort(key=lambda o: o.target)
        S.valu = front + S.valu
        add_rows(S, g, vTmp, False)
        if end:
            for x in ("s_cmp_lg_u64 vcc, 0", f"s_cselect_b32 s{sBit}, 8, 0", f"s_or_b32 s{sFlag}, s{sFlag}, s{sBit}"): scal(sc(x), [("c1",)])
        for J in range(4):
            for t in g:
                if t >= 5:
                    free = [("oo", t - 5, J >> 1, J & 1)] if ("oo", t - 5, J >> 1, J & 1) in S.bykey else []
                    for i, x in enumerate(acc_copy(O(t, J), Oreg(t, 2 * J)[1])): add(("ar", t, J, i), x, free + [final_pv(t, J, i)])
        S.run(mf, keep=True)
        late = [o for o in S.valu if o.key[0] == "ar"]
        keepv = [o for o in S.valu if o.key[0] in ("mul", "exp", "cvt")]
        S.valu = [o for o in S.valu if o not in late and o not in keepv]
        S.flush(); S.valu = [o for o in keepv if o.key not in S.done]
        mark(11 + 2 * gi)
        E = []; pend = []
        def drain(n):
            if pend:
                t, a = pend.pop()
                E.append(I(f"s_waitcnt lgkmcnt({n})", "w")); E.extend(out(t, a, nn) for nn in (0, 1))
        halves = [(t, a) for a in (0, 1) for t in g] if end else [(t, a) for t in g for a in (0, 1)]
        now = len(halves) if end else CFG["now"]
        for i, (t, a) in enumerate(halves):
            for J in (2 * a, 2 * a + 1):
                E += [o.ins for o in late if o.key[1:3] == (t, J)]
                convert(E, O(t, J), Preg(0, t))
                if i >= now + CFG["lazy"]: del E[-4:]; lazy.add((t, a))
                if i < now: E.append(o_write(t % 6, J, O(t, J)))
            if i < now:
                E += [back(t, a, nn) for nn in (0, 1)]
                drain(4); pend.append((t, a))
            elif i == now: drain(0)
        drain(0)
        parked = halves[now:]
        S.emit(I(".p2align 3", "#"))
        for x in align8(fix_hazards(E, S.out[-10:]), False): S.emit(x)
        mark(12 + 2 * gi)
    return S.out[start:]

class Job: pass
def build_job(NT):
    J = Job(); J.NT = NT; J.carry = carry = find_carry(NT); J.body = {}
    for mode in ("q", "o", "oq"):
        S = start_job(NT, mode)
        st = run_segs(S, range(15), carry)
        st[15] = len(S.out)
        for k in range(3, 17, 2):
            while S.out[st[k] - 1].k != "M": st[k] -= 1
        bodies = [S.out[st[k]:st[k + 2]] for k in range(3, 15, 2)]
        for b in bodies[1:]:
            assert [x.t for x in b] == [x.t for x in bodies[0]], "loop body not periodic"
        J.body[mode] = bodies[0] + [sc(f"s_cbranch_scc0 L_body{mode}{NT}")]
    epi = build_tail(S)
    J.head = S.out[:st[3]] + [sc(f"s_cbranch_scc1 L_close{NT}")]
    J.close = [sc(x) for x in (f"s_cmp_eq_u32 s{sRole}, 0", f"s_cselect_b32 s{sQx}, s{sK}, s{sV}", f"s_cselect_b32 s{sQx+1}, s{sK+1}, s{sV+1}",
                               f"s_add_u32 s{sQx}, s{sQx}, {3*KH + CFG['kvpf']*8192}", f"s_addc_u32 s{sQx+1}, s{sQx+1}, 0", f"s_mov_b32 s{sQx+2}, {KH - CFG['kvpf']*8192}",
                               f"s_lshl_b32 s{sU3}, s{sW}, {6 + CFG['kvsh']}",
                               f"v_mbcnt_lo_u32_b32 v{vQ6}, -1, 0", f"v_mbcnt_hi_u32_b32 v{vQ6}, -1, v{vQ6}", f"v_lshl_add_u32 v{vQ6}, v{vQ6}, {CFG['kvsh']}, s{sU3}", f"s_mov_b32 s{sLoop}, 4", f"s_mov_b32 s{sU3}, 0")]
    J.again = {m: [sc(f"s_xor_b32 s{sU3}, s{sU3}, 1"), sc(f"s_cbranch_scc0 {lab}")] + code_touch(base, size_) + [sc(f"s_mov_b32 s{sLoop}, 0"), sc(f"s_branch L_body{m}{NT}")]
               for m, lab, base, size_ in (("q", f"L_tail{NT}", sPfA, "L_end_code-L_job7"), ("o", f"L_last{NT}", sPfB, "L_final-L_end_code"))}
    J.tail = S.out[st[15]:] + epi
    J.last = build_last(NT, carry)
    return J

def grp_batch(e):
    L = []; x = ((e + 1) & 1) * 128
    for i, (srd, blk, o) in enumerate(((sK, e + 1, 0), (sK, e + 1, 128), (sV, e - 1, x), (sV, e, x))):
        if blk >= 0:
            L += [sc(f"s_add_u32 m0, s{sWoff}, {(e & 3)*16384 + i*1024 - o}", wr=M0), sc(f"s_mov_b32 s{sT0}, {blk*8192}"), dma(vDKV, srd, sT0, o, CFG["kv"[i >> 1]], ("grp", e))]
    return L
def q_batch(slot, base, o, tag):
    L = []
    hold = {int(x[1]): int(x[2:]) for x in CFG["hold"].split(",") if x}
    if tag[1] in hold:
        L += [sc("s_bitcmp1_b32 s2, 0"), sc(f"s_cbranch_scc1 L_deep{tag[1]}"), sc(f"s_waitcnt vmcnt({hold[tag[1]]})"), I(f"L_deep{tag[1]}:", "#")]
    for a in (0, 1):
        L += [sc(f"s_add_u32 m0, s{sStgB}, {slot*4096 + a*896}", wr=M0), sc(f"s_add_u32 s{sT1}, s{base}, {o}")]
        L += [dma(vQO, sQ, sT1, nn * 2048 + a * 128, CFG["q"], tag) for nn in (0, 1)]
    return L

def build_first(NT, carry, early2):
    S = Sched(NT); S.th = CFG["fth"]
    forbid = {shift(x, 2) for x in carry}
    assert all(x[1] == 2 and x[3] >= early2 for x in forbid if x[0] in ("mul", "exp", "cvt"))
    Kh = lambda p: (lambda kt, ds: ("a", (aO, aO + 32, aK)[p] + kt * 16 + ds * 4))
    V1 = lambda j, b: Oreg(4, j)
    em = lambda L: [S.emit(x) for x in L]
    fm = CFG["fm"].split(",")
    mark = lambda n: S.emit(sc(f"s_memrealtime s[{80+2*fm.index(n)}:{81+2*fm.index(n)}]")) if n in fm else None
    mark("i")
    batches = [q_batch(t, sCurO, t * 4096, ("q0", t)) for t in range(CFG["pre"], 6)]
    while len(batches) < 4: batches.append([])
    batches += [[sc(f"s_cmp_eq_u32 s{sN7c}, 1"), sc(f"s_cselect_b32 s{sU0}, s{sCurO}, {OOB:#x}")] + q_batch(1, sU0, 24576, ("q0", 6))]
    batches += [grp_batch(e) for e in (2, 3, 4)]
    kreads = lambda p: [ds128("a", Kh(p)(kt, ds)[1], vK + (ds & 1), ((p - 1) & 3) * 16384 + koff(kt, ds)) for kt, ds in KORD]
    em([I("s_waitcnt vmcnt(?)", "w", tag=("needgrp", 0)), I("s_barrier", "B")]); mark("a")
    em(batches.pop(0) + kreads(0) + kreads(1))
    em([dstr("v", V1(j, 1)[1] + 2 * kt, vV + (j >> 1), voff(j, 1, kt)) for j in range(4) for kt in (0, 1)])
    def second():
        em([I("s_waitcnt vmcnt(?)", "w", tag=("needgrp", 1)), I("s_barrier", "B")]); mark("b")
        em(batches.pop(0))
        em([dstr("a", Vreg(j, b) + 2 * kt, vV + (j >> 1), 16384 + voff(j, b, kt)) for j, b in VORD for kt in (0, 1)] + kreads(2))
        em([V(f"v_xor_b32 v{r}, 0x8000, v{r}", [r], [r]) for r in (vK, vK + 1, vV, vV + 1)])
    lastbuf = {}
    def qk(p, t, bufs):
        L = []
        war = [("pv", 2, t, 3, 0), ("pv", 1, t, 3, 1), ("sum", 1, t >> 1)] if p == 2 else []
        for kt, sb in enumerate(bufs):
            add_softmax(S, p, kt, t, sb, war)
            L += qk_chain(p, kt, t, sb, lastbuf.get(sb, []), Kh(p), None); lastbuf[sb] = [("cvt", p, kt, t, h) for h in (0, 1)]
        return L
    r1 = lambda t: pv_tile(1, t, V1, None)
    r2 = lambda t: pv_tile(2, t, None, None)
    done2 = 0; held = []
    for t in range(NT):
        if t == 4: split = len(S.out)
        end = t == NT - 1
        if t == 1: second()
        if t == 2: em([I("s_waitcnt lgkmcnt(0)", "w"), I("s_barrier", "B", tag=("bar", 1))])
        mark(f"p{t}")
        S.emit(I("s_waitcnt vmcnt(?)", "w", tag=("needq0", t))); mark(f"w{t}")
        em([q_read(t, ds, 1 if t == 6 else t) for ds in range(4)])
        while batches:
            em(batches.pop(0))
            if not end: break
        mf = held + qk(0, t, (vS, vS + 4)) + qk(1, t, (vS + 8, vS + 12)); held = []
        S.forbid = forbid
        if not end:
            own = (r1(t) if t < 5 else []) + sum_tile(1, t) + (r2(t) if t < 4 else []) + sum_tile(2, t)
            late = t < CFG["fpipe"]
            if late: held = own
            else: mf += own
            lim = min(early2 if t < 4 else min(x[3] for x in forbid if x[0] == "cvt"), (t + 1 - late) & ~1, 4, done2 + 1 if late else 4)
            while done2 < lim: mf += qk(2, done2, (vS + 8 * (done2 & 1 and not late), vS + 4 + 8 * (done2 & 1 and not late))); done2 += 1
            S.run(mf, keep=True); S.flush()
            continue
        g0 = S.gap
        for x in range(5, NT): mf += r1(x)
        mf += sum_tile(1, t)
        left = list(range(done2, NT - PHI))
        for x in range(4, NT):
            mf += r2(x) + (sum_tile(2, x) if x == t else [])
            if x == NT - 1 or len(left) > NT - 1 - x:
                while left and (x == NT - 1 or len(left) > NT - 1 - x):
                    y = left.pop(0); mf += qk(2, y, (sbuf(NT, 2, 0, y), sbuf(NT, 2, 1, y)))
        gv = g0 + [m[0] for m in mf].index(("pv", 2, NT - 1, 0, 0))
        S.add(S.scal, Op(("wb", 2), I("s_waitcnt vmcnt(?)", "w", tag=("needgrp", 2)), [], gv - 3))
        S.add(S.fixed, Op(("bar", 2), I("s_barrier", "B", tag=("bar", 2)), [("wb", 2)], gv - 2))
        prev = [("bar", 2)]
        for j, b in VORD:
            for kt in (0, 1):
                S.add(S.fixed, Op(("vr", 3, j, b, kt), v_read(3, j, b, kt), prev + [("pv", 2, NT - 1, j, b)], gv)); prev = [("vr", 3, j, b, kt)]; gv += 1
        S.run(mf, cut=True)
        while S.out[-1].k != "M": S.out.pop()
        T = []
        for j in range(0 if CFG["q4"] else 6):
            T.append([sc(f"s_mov_b32 m0, s{sStg}", wr=M0), sc(f"s_add_u32 s{sStg}, s{sStg}, 1024"), dma(vQO, sQx, None, 0, CFG["q"], ("q", 1))])
            T.append([sc(x) for x in bump(sQx, f"s{sD}") + [f"s_xor_b32 s{sD}, s{sD}, 0x700"]])
        ms = [i for i, x in enumerate(S.out) if x.k == "M"][-len(mf) + 8:][:2 * len(T):2]
        assert len(ms) == len(T)
        for i, g in reversed(list(zip(ms, T))): S.out[i + 1:i + 1] = g
    return S.out[:split], S.out[split:]

def sigma(x, d, t):
    return [f"v_bfe_u32 v{d}, v{x}, 1, 1", f"v_lshrrev_b32 v{t}, 3, v{x}", f"v_xor_b32 v{t}, v{t}, v{x}", f"v_and_b32 v{t}, 1, v{t}",
            f"v_lshl_or_b32 v{d}, v{t}, 1, v{d}", f"v_and_b32 v{t}, 4, v{x}", f"v_or_b32 v{d}, v{d}, v{t}"]
def swz_addr(row, col, d, t):
    return sigma(row, d, t) + [f"v_xor_b32 v{d}, v{d}, v{col}", f"v_lshlrev_b32 v{d}, 4, v{d}", f"v_and_b32 v{t}, 7, v{row}",
                               f"v_lshl_add_u32 v{d}, v{t}, 7, v{d}", f"v_lshrrev_b32 v{t}, 3, v{row}"]
def stg_addr(row, col, d, t):
    return [f"v_and_b32 v{t}, 7, v{row}", f"v_xor_b32 v{d}, v{t}, v{col}", f"v_lshlrev_b32 v{d}, 4, v{d}", f"v_lshl_add_u32 v{d}, v{t}, 7, v{d}"]

def stamp():
    if not CFG["stamp"]: return []
    x = vTmp + 2
    L = [sc(t) for t in (f"s_memtime s[{sTm}:{sTm+1}]", f"s_memrealtime s[{sTm+2}:{sTm+3}]", "s_waitcnt lgkmcnt(0)", "s_mov_b64 exec, 1")]
    for n, (a, b) in enumerate(((sTm, sTm + 2), (80, 82), (84, 86))):
        L += [sc(f"v_mov_b32 v{x}, s{a}"), sc(f"v_mov_b32 v{x+1}, s{b}"),
              I(f"buffer_store_dwordx2 v[{x}:{x+1}], off, s[{sDbg}:{sDbg+3}], s{sStampOff} offset:{8*n}", "S"), sc("s_nop 1")]
    return L + [sc("s_mov_b64 exec, -1"), sc(f"s_add_u32 s{sStampOff}, s{sStampOff}, 32"), sc("s_nop 3")]

def prologue():
    P = []
    A = lambda t: P.append(sc(t))
    if CFG["diag_tot"]: A("s_memrealtime s[96:97]")
    pm = lambda i: A(f"s_memrealtime s[{92+2*i}:{93+2*i}]") if CFG["stamp"] == 3 else None
    pm(0)
    A("s_cmp_ge_u32 s2, 256"); A("s_cbranch_scc1 L_exit")
    if CFG["again"]:
        A(f"s_mov_b32 s3, {CFG['again']}"); P.append(I("L_again:", "#"))
    A("s_load_dwordx4 s[80:83], s[0:1], 0"); A("s_load_dwordx4 s[84:87], s[0:1], 16")
    if CFG["stamp"]: A(f"s_load_dwordx2 s[{sDbg}:{sDbg+1}], s[0:1], 40")
    A("s_getpc_b64 s[100:101]"); P.append(I("L_pf:", "#"));
    sl = CFG["slice"]
    A(f"s_bfe_u32 s{sT0}, s2, {(sl << 16) | 3:#x}"); A(f"s_lshl_b32 s{sT0}, s{sT0}, {15 - sl}")
    A(f"v_lshrrev_b32 v{vPf}, {sl}, v0"); A(f"v_lshl_add_u32 v{vPf}, v{vPf}, 7, s{sT0}")
    A("v_lshrrev_b32 v20, 6, v0"); A("v_and_b32 v21, 63, v0")
    P += code_touch(100, "L_job7-L_pf")
    for d, lab in ((sPfA, "L_job7"), (sPfB, "L_end_code")):
        A(f"s_add_u32 s{d}, s100, {lab}-L_pf"); A(f"s_addc_u32 s{d+1}, s101, 0")
    A(f"v_readfirstlane_b32 s{sW}, v20")
    A(f"s_and_b32 s{sT0}, s2, 7"); A(f"s_lshr_b32 s{sT1}, s2, 3"); A(f"s_and_b32 s{sRole}, s{sT1}, 1"); A(f"s_lshr_b32 s{sT1}, s{sT1}, 1")
    A(f"s_lshl_b32 s{sT0}, s{sT0}, 4"); A(f"s_add_u32 s{sT0}, s{sT0}, s{sT1}")
    if CFG["samehead"]: A(f"s_mov_b32 s{sT0}, 0")
    A(f"s_mul_i32 s{sT1}, s{sT0}, {4*QH}"); A(f"s_lshl_b32 s{sT0}, s{sT0}, 19")
    A("v_lshrrev_b32 v22, 3, v21"); A("v_and_b32 v23, 7, v21")
    for x in sigma(22, 24, 25): A(x)
    A("v_xor_b32 v24, v24, v23"); A("v_lshlrev_b32 v24, 4, v24"); A(f"v_lshl_add_u32 v{vDKV}, v22, 8, v24")
    A("v_xor_b32 v24, v22, v23"); A("v_lshlrev_b32 v24, 4, v24"); A(f"v_lshl_add_u32 v{vQO}, v22, 8, v24")
    A(f"s_and_b32 s{sT2}, s{sW}, 1"); A(f"s_lshl_b32 s{sT2}, s{sT2}, 5"); A(f"s_lshl_b32 s{sT3}, s{sW}, 11"); A(f"s_lshl_b32 s{sWoff}, s{sW}, 12")
    A(f"v_xor_b32 v{vDKV}, s{sT2}, v{vDKV}"); A(f"v_add_u32 v{vDKV}, s{sT3}, v{vDKV}")
    A(f"s_mul_i32 s{sStgB}, s{sW}, 24576")
    for d, f, n7, base in ((sOffA, sN7A, CFG["split"] - 24, 0), (sOffB, sN7B, CFG["total"] - CFG["split"] - 24, CFG["split"] * 4096)):
        A(f"s_min_u32 s{d}, s{sW}, {n7}"); A(f"s_cselect_b32 s{f}, 1, 0"); A(f"s_lshl_b32 s{d}, s{d}, 12")
        A(f"s_add_u32 s{d}, s{d}, s{sStgB}"); A(f"s_add_u32 s{d}, s{d}, {base}")
    A(f"s_add_u32 s{sStgB}, s{sStgB}, 65536")
    A(f"s_mov_b32 s{sJob}, -1")
    P += params_next()
    pm(1)
    A("s_waitcnt lgkmcnt(0)")
    for srd, src, o, n in ((sK, 82, sT0, 4 * KH), (sV, 84, sT0, 4 * KH), (sQ, 80, sT1, 4 * QH), (sO, 86, sT1, 0 if CFG["nostore"] else 4 * QH)):
        same = (srd == sK and "samek" in CFG["x"]) or (srd == sV and "samev" in CFG["x"])
        A(f"s_add_u32 s{srd}, s{src}, {'0' if same else 's%d' % o}"); A(f"s_addc_u32 s{srd+1}, s{src+1}, 0"); A(f"s_mov_b32 s{srd+2}, {n}"); A(f"s_mov_b32 s{srd+3}, 0x20000")
    if CFG["stamp"]:
        A(f"s_mov_b32 s{sDbg+2}, 0x1000000"); A(f"s_mov_b32 s{sDbg+3}, 0x20000")
        A(f"s_lshl_b32 s{sStampOff}, s2, 2"); A(f"s_add_u32 s{sStampOff}, s{sStampOff}, s{sW}"); A(f"s_lshl_b32 s{sStampOff}, s{sStampOff}, 10")
    P += stamp() if CFG["stamp"] == 1 else []
    pm(2)
    ga, gb, q0 = grp_batch(-1), grp_batch(0), q_batch(0, sNxt, 0, ("q0", 0))
    if CFG["ord"] == 0: P += ga + gb + q0
    elif CFG["ord"] == 1: P += q0[:4] + ga[:3] + gb[6:] + ga[3:] + gb[:6] + q0[4:]
    elif CFG["ord"] == 2: P += q0 + gb[6:] + ga + gb[:6]
    P += grp_batch(1)
    for t in range(1, CFG["pre"]): P += q_batch(t, sNxt, t * 4096, ("q0", t))
    pm(3)
    if CFG["stamp"] == 3:
        A("s_waitcnt lgkmcnt(0)")
        for i in range(4): A(f"s_mov_b32 s{80+2*i}, s{92+2*i}")
        P += stamp()
    A("v_and_b32 v22, 15, v21"); A("v_lshrrev_b32 v23, 4, v21")
    for x in swz_addr(22, 23, 24, 25): A(x)
    A(f"v_lshl_add_u32 v{vK}, v25, 12, v24"); A(f"v_xor_b32 v{vK+1}, 64, v{vK}")
    for x in stg_addr(22, 23, 24, 25): A(x)
    A("v_lshrrev_b32 v25, 1, v22"); A("v_xor_b32 v25, v25, v22"); A("v_bfe_u32 v25, v25, 2, 1"); A("v_lshl_add_u32 v24, v25, 11, v24")
    A(f"v_add_u32 v{vSt}, s{sStgB}, v24"); A(f"v_xor_b32 v{vSt+1}, 64, v{vSt}")
    A(f"s_add_u32 s{sT2}, s{sWoff}, 49152"); A(f"v_add_u32 v{vQ6}, s{sT2}, v24"); A(f"v_xor_b32 v{vQ6+1}, 64, v{vQ6}")
    A(f"v_lshl_add_u32 v{vLin}, v21, 4, s{sStgB}"); A(f"v_add_u32 v{vLin}, 24576, v{vLin}")
    A("v_lshrrev_b32 v22, 2, v21"); A("v_and_b32 v23, 3, v21")
    for x in swz_addr(22, 23, 24, 25): A(x)
    A(f"v_lshl_add_u32 v{vV}, v25, 12, v24"); A(f"v_xor_b32 v{vV+1}, 64, v{vV}")
    if "vcf" in CFG["x"]:
        A("v_and_b32 v24, 1, v21"); A(f"v_lshl_add_u32 v{vV}, v24, 3, v{vV}"); A(f"v_lshl_add_u32 v{vV+1}, v24, 3, v{vV+1}")
    A(f"s_mov_b32 s{sC}, {f2u(1.0 if 'c1' in CFG['x'] else SCALE):#x}")
    A(f"s_mov_b32 s{sHi}, {f2u(2.0**CFG['hi']):#x}")
    A(f"s_mov_b32 s{sFlag}, {CFG['forcefb']}")
    for d, b, blk in ((sVa, sV, 4), (sVb, sV, 5), (sKx, sK, 6)):
        A(f"s_add_u32 s{d}, s{b}, {blk*8192}"); A(f"s_addc_u32 s{d+1}, s{b+1}, 0"); A(f"s_mov_b32 s{d+2}, 8192")
    for d in (sKx, sVa, sVb, sQx, sOx): A(f"s_mov_b32 s{d+3}, 0x20000")
    A(f"s_mov_b32 s{sCnt}, 6"); A(f"s_add_u32 s{sM}, s{sWoff}, 16384"); A(f"s_mov_b32 s{sCurO}, 0"); A(f"s_mov_b32 s{sOx+2}, {0 if CFG['nostore'] else 4096}")
    A("v_and_b32 v22, 1, v21"); A("v_mul_u32_u24 v22, 0xaaaa, v22"); A(f"v_add_u32 v{vIdx}, 0x4444, v22"); A(f"v_lshl_or_b32 v{vIdx}, v{vIdx}, 16, v{vIdx}")
    A("v_lshrrev_b32 v22, 4, v21"); A("v_xor_b32 v22, v22, v21"); A("v_and_b32 v23, 2, v22")
    A("v_cmp_eq_u32 vcc, 0, v23"); A("v_mov_b32 v24, 0x3f803f80"); A("s_nop 0"); A("v_cndmask_b32 v22, 0, v24, vcc")
    for i in range(4): A(f"v_mov_b32 v{vOne+i}, v22")
    for i in range(16): A(f"v_accvgpr_write_b32 a{aL+i}, 0")
    return P + advance() + [sc(f"s_mov_b32 s{sLoop}, 4"), sc(f"s_mov_b32 s{sU3}, 0")]

def job_switch(NT):
    L = []
    if CFG["diag_mark"] > 0: L = [sc(f"s_cmp_lg_u32 s{sJob}, {CFG['diag_mark']}"), sc(f"s_cbranch_scc1 L_nomark{NT}"), sc("s_memrealtime s[96:97]"), I(f"L_nomark{NT}:", "#")]
    L += stamp() + [sc(f"s_cmp_eq_u32 s{sN7c}, 1"), sc("s_cbranch_scc1 L_job7")]
    return L + ([sc("s_branch L_job6")] if NT == 6 else [])

def final():
    L = [I("L_final:", "#")]
    if CFG["diag_mark"] == 4: L.append(sc("s_memrealtime s[96:97]"))
    if CFG["stamp"]: L += stamp() + stamp() + [I("s_waitcnt vmcnt(0)", "w")] + stamp()
    return L

def fallback():
    L = []; A = L.append
    q, k, s0, pb, vf, o, lacc, m, t0, va, pa, one = 20, 36, 52, 60, 64, 72, 104, 108, 109, 112, 114, 116
    sJ, sN, sRow, sKb, sI, sU = sU0, sU1, sU2, sU3, sLoop, sD
    MF = "v_mfma_f32_16x16x32_bf16"
    A(f"s_cmp_eq_u32 s{sFlag}, 0"); A("s_cbranch_scc1 L_done")
    A("s_waitcnt vmcnt(0) lgkmcnt(0)")
    A("v_mbcnt_lo_u32_b32 v21, -1, 0"); A("v_mbcnt_hi_u32_b32 v21, -1, v21"); A("v_and_b32 v22, 15, v21"); A("v_lshrrev_b32 v23, 4, v21")
    A(f"v_lshlrev_b32 v{vDir}, 8, v22"); A(f"v_lshl_add_u32 v{vDir}, v23, 4, v{vDir}")
    A("v_lshrrev_b32 v22, 2, v21"); A("v_and_b32 v23, 3, v21")
    L += stg_addr(22, 23, 24, 25) + ["v_lshrrev_b32 v25, 3, v22"]
    A(f"v_lshl_add_u32 v{va}, v25, 11, v24"); A(f"v_add_u32 v{va}, s{sStgB}, v{va}"); A(f"v_xor_b32 v{va+1}, 64, v{va}")
    A(f"v_xor_b32 v{pa}, 16, v21"); A(f"v_lshlrev_b32 v{pa}, 2, v{pa}"); A(f"v_xor_b32 v{pa+1}, 32, v21"); A(f"v_lshlrev_b32 v{pa+1}, 2, v{pa+1}")
    for i in range(4): A(f"v_mov_b32 v{one+i}, 0x3f803f80")
    A(f"s_mov_b32 s{sJob}, -1")
    A("L_fb_job:")
    L += [x.t for x in params_next()]
    A(f"s_add_u32 s{sJob}, s{sJob}, 1"); A(f"s_cmp_eq_u32 s{sJob}, 4"); A("s_cbranch_scc1 L_done")
    A(f"s_lshr_b32 s{sJ}, s{sFlag}, s{sJob}"); A(f"s_and_b32 s{sJ}, s{sJ}, 1"); A("s_cbranch_scc0 L_fb_job")
    A(f"s_add_u32 s{sN}, s{sN7n}, 5"); A(f"s_mov_b32 s{sRow}, s{sNxt}")
    A("L_fb_tile:")
    for ds in range(4): A(f"buffer_load_dwordx4 {rs('v', q+4*ds, 4)}, v{vDir}, s[{sQ}:{sQ+3}], s{sRow} offen{off(ds*64)}")
    def scores(dst):
        for ds in range(4): A(f"buffer_load_dwordx4 {rs('v', k+4*ds, 4)}, v{vDir}, s[{sK}:{sK+3}], s{sKb} offen{off(ds*64)}")
        A("s_waitcnt vmcnt(0)")
        for ds in range(4): A(f"{MF} {rs('v', dst, 4)}, {rs('v', k+4*ds, 4)}, {rs('v', q+4*ds, 4)}, {'0' if ds == 0 else rs('v', dst, 4)}")
        A(f"s_add_u32 s{sKb}, s{sKb}, 4096"); A("s_nop 7")
    A(f"v_mov_b32 v{m}, 0xff800000"); A(f"s_lshl_b32 s{sKb}, s{sJob}, 17"); A(f"s_mov_b32 s{sI}, 31")
    A("L_fb_max:")
    scores(s0)
    A(f"v_max3_f32 v{m}, v{m}, v{s0}, v{s0+1}"); A(f"v_max3_f32 v{m}, v{m}, v{s0+2}, v{s0+3}")
    A(f"s_sub_u32 s{sI}, s{sI}, 1"); A("s_cbranch_scc0 L_fb_max")
    for i in (0, 1):
        A(f"ds_bpermute_b32 v{t0}, v{pa+i}, v{m}"); A("s_waitcnt lgkmcnt(0)"); A(f"v_max_f32 v{m}, v{m}, v{t0}")
    for i in range(36): A(f"v_mov_b32 v{o+i}, 0")
    A(f"s_lshl_b32 s{sKb}, s{sJob}, 17"); A(f"s_mov_b32 s{sI}, 15")
    A("L_fb_pv:")
    for kt in (0, 1):
        for a in (0, 1):
            A(f"s_add_u32 m0, s{sStgB}, {kt*4096 + a*896}"); A(f"s_add_u32 s{sU}, s{sKb}, {kt*4096}")
            for nn in (0, 1): A(f"buffer_load_dwordx4 v{vQO}, s[{sV}:{sV+3}], s{sU} offen{off(nn*2048 + a*128)} lds")
    scores(s0); scores(s0 + 4)
    for r in range(8): A(f"v_sub_f32 v{s0+r}, v{s0+r}, v{m}")
    for r in range(8): A(f"v_mul_f32 v{s0+r}, s{sC}, v{s0+r}")
    for r in range(8): A(f"v_exp_f32 v{s0+r}, v{s0+r}")
    A("s_nop 0")
    for r in range(4): A(f"v_cvt_pk_bf16_f32 v{pb+r}, v{s0+2*r}, v{s0+2*r+1}")
    A("s_nop 1")
    A(f"{MF} {rs('v', lacc, 4)}, {rs('v', one, 4)}, {rs('v', pb, 4)}, {rs('v', lacc, 4)}")
    for dj in range(8):
        J, h = dj >> 1, dj & 1; f = vf + 4 * (dj & 1)
        for kt in (0, 1): A(f"ds_read_b64_tr_b16 {rs('v', f+2*kt, 2)}, v{va + (J & 1)}{off(kt*4096 + (J >> 1)*1024 + 8*h)}")
        A("s_waitcnt lgkmcnt(0)")
        A(f"{MF} {rs('v', o+4*dj, 4)}, {rs('v', f, 4)}, {rs('v', pb, 4)}, {rs('v', o+4*dj, 4)}")
    A(f"s_sub_u32 s{sI}, s{sI}, 1"); A("s_cbranch_scc0 L_fb_pv")
    A("s_nop 7"); A(f"v_rcp_f32 v{t0}, v{lacc}"); A("s_nop 0")
    for i in range(32): A(f"v_mul_f32 v{o+i}, v{t0}, v{o+i}")
    for J in range(4):
        for i in range(4): A(f"v_cvt_pk_bf16_f32 v{o+8*J+i}, v{o+8*J+2*i}, v{o+8*J+2*i+1}")
        A(f"buffer_store_dwordx4 {rs('v', o+8*J, 4)}, v{vDir}, s[{sO}:{sO+3}], s{sRow} offen{off(J*64)}")
    A("s_waitcnt vmcnt(0)")
    A(f"s_add_u32 s{sRow}, s{sRow}, 4096"); A(f"s_sub_u32 s{sN}, s{sN}, 1"); A("s_cbranch_scc0 L_fb_tile")
    A("s_branch L_fb_job")
    A("L_done:")
    return [I(x, "#" if x.endswith(":") else "s") for x in L]

def resolve(pro, jobs, fin):
    best = {}
    for seqn in ([7, 7, 7, 7], [7, 6, 7, 6], [6, 7, 6, 7], [6, 6, 6, 6]):
        dyn = [(x, 0) for x in pro]
        for j, v in enumerate(seqn):
            J = jobs[v]; b = 16 * j
            dyn += [(x, b) for x in (jobs[7].fcom + J.first if j == 0 else J.head + (J.close if j == 3 else []))]
            m = ("q", "oq", "oq", "o")[j]
            for it in range(6): dyn += [(x, b + 2 * it) for x in J.body[m] + ([] if m == "oq" or it < 4 else J.again[m][:9 if it == 4 else 2])]
            dyn += [(x, b) for x in (J.tail + J.sw if j < 3 else J.last)]
        dyn += [(x, 64) for x in fin]
        vm = []; epoch = -2
        for x, b in dyn:
            if x.k == "B": epoch = (x.tag[1] + b) if x.tag else -1
            if x.k == "D" and x.tag and x.tag[0] == "ring":
                assert x.tag[1] + b == epoch, ("ring read outside its epoch", x.t, x.tag, b, epoch)
            if x.k in "XLS":
                tg = x.tag
                if tg and tg[0] in ("grp", "q"): tg = shift(tg, b)
                if tg and tg[0] == "grp": assert epoch == -2 or tg[1] - 4 < epoch, ("dma overwrites live group", x.t)
                vm.append(tg)
            if x.k == "w" and x.tag:
                want = (x.tag[0][4:],) + tuple(x.tag[1:])
                if want[0] in ("grp", "q"): want = shift(want, b)
                idx = max(i for i, t in enumerate(vm) if t == want)
                n = min(63, len(vm) - 1 - idx)
                best[id(x)] = (x, min(n, best.get(id(x), (x, 99))[1]))
        seq = [x for x, _ in dyn]
        last = None
        for x in seq:
            op = x.t.split()[0]
            if op == "s_addc_u32":
                a = int(re.match(r"s_addc_u32 s(\d+)", x.t).group(1))
                assert last.startswith(f"s_add_u32 s{a-1},"), (last, x.t)
            if op == "s_cselect_b32": assert re.match(r"s_(cmp|and_b32|or_b64|min)", last), (last, x.t)
            if x.t.startswith("s_cbranch_scc0 L_body"): assert last.startswith(f"s_sub_u32 s{sLoop},"), last
            elif op.startswith("s_cbranch_scc"): assert last.startswith(("s_cmp", "s_bitcmp", f"s_xor_b32 s{sU3},")), (last, x.t)
            if re.match(r"s_(add|sub|and|or|xor|lshl|lshr|cmp|min|max|bitcmp|bfe)", op): last = x.t
        check_lgkm(seq)
        bad = hazards(seq)
        assert not bad, bad[:5]
    for x, n in best.values():
        if CFG["less"] and x.tag[0] == "needgrp" and "lgkm" in x.t: n = max(0, n - (10 if n >= 19 else 4))
        x.t = x.t.replace("?", str(n))

def main():
    jobs = {nt: build_job(nt) for nt in (7, 6)}
    mt = lambda i: [sc(f"s_memtime s[{80+2*i}:{81+2*i}]")] if CFG["stamp"] else []
    for nt, J in jobs.items():
        J.fcom, J.first = build_first(nt, J.carry, min(x[3] for K in jobs.values() for x in K.carry if x[0] == "cvt"))
        assert [x.t for x in J.fcom] == [x.t for x in jobs[7].fcom]
        if CFG["diag_mark"] == 0: J.first.append(sc("s_memrealtime s[96:97]"))
        J.first += stamp() + mt(0) + mt(1) + [sc("s_nop 4")]
        J.sw = job_switch(nt)
    jobs[7].fcom += [sc(f"s_cmp_eq_u32 s{sN7c}, 0"), sc("s_cbranch_scc1 L_first6")]
    pro = prologue(); fin = final()
    resolve(pro, jobs, fin)
    info = []
    for nt, J in jobs.items():
        nm = lambda s: sum(x.k == "M" for x in s)
        t = " ".join(f"{n}: {cycles(s)}c iss {issue_sum(s)} pipe {nm(s)*16} |" for n, s in (("head", J.head), *J.body.items(), ("tail", J.tail), ("last", J.last), ("first", jobs[7].fcom + J.first)))
        info.append(f"NT={nt} carry={len(J.carry)} {t} total={cycles(J.head + 6 * J.body['oq'] + J.tail + J.sw)}")
    o = open("header.txt").read().rstrip("\n").split("\n")
    o += ['.amdgcn_target "amdgcn-amd-amdhsa--gfx950"', ".text", f".globl {NAME}_kernel", ".p2align 8", f".type {NAME}_kernel,@function", f"{NAME}_kernel:"]
    X = CFG["x"].split()
    def keep(x):
        if "mul" in X and x.t.startswith("v_mul_f32") and f"s{sC}," in x.t and x.k == "V": return None
        if "sum" in X and "smfmac" in x.t: return None
        if "nofb" in X and x.t == f"s_cmp_eq_u32 s{sFlag}, 0": return "s_cmp_eq_u32 0, 0"
        if "norcp" in X and x.t.startswith("v_rcp_f32") and x.k == "E": return x.t.split(",")[0].replace("v_rcp_f32", "v_sqrt_f32") + ", 1.0"
        if inbody[0]:
            if "ds" in X and x.k == "D": return "v_mov_b32 v12, v12"
            if "kvdma" in X and x.k == "X" and x.tag[0] == "grp": return "v_mov_b32 v12, v12"
            if "st" in X and x.k == "S": return "v_mov_b32 v12, v12"
            if "bar" in X and x.k == "B": return "s_nop 2"
        return x.t
    inbody = [False]; intail = [False]
    put = lambda s: o.extend(("" if x.k == "#" else "    ") + keep(x) for x in s if keep(x) is not None)
    def loop(J, mode):
        o.append(f"L_body{mode}{J.NT}:"); inbody[0] = True; put(J.body[mode]); inbody[0] = False
    put(pro); put(jobs[7].fcom)
    for nt, J in jobs.items():
        o.append(f"L_first{nt}:"); put(J.first); loop(J, "q"); put(J.again["q"])
    for nt, J in jobs.items():
        o.append(f"L_job{nt}:"); put(mt(0)); put(J.head[:-1] + mt(1) + J.head[-1:]); loop(J, "oq")
        o.append(f"L_tail{nt}:"); put(mt(2)); put(mt(3)); intail[0] = True; put(J.tail); intail[0] = False; put(J.sw)
    o.append("L_end_code:")
    for nt, J in jobs.items():
        o.append(f"L_close{nt}:"); put(J.close); loop(J, "o"); put(J.again["o"]); o.append(f"L_last{nt}:"); put(mt(2)); put(mt(3)); put(J.last)
        if nt == 7: o.append("    s_branch L_final")
    put(fin); put(fallback())
    if CFG["again"]:
        o += ["    s_waitcnt vmcnt(0) lgkmcnt(0)", "    s_barrier", "    v_mbcnt_lo_u32_b32 v0, -1, 0", "    v_mbcnt_hi_u32_b32 v0, -1, v0", f"    v_lshl_add_u32 v0, s{sW}, 6, v0", "    s_sub_u32 s3, s3, 1", "    s_cbranch_scc0 L_again"]
    if CFG["diag_tot"]:
        o += ["    s_waitcnt vmcnt(0) lgkmcnt(0)", "L_diag:", "    s_memrealtime s[94:95]", "    s_waitcnt lgkmcnt(0)",
              "    s_sub_u32 s94, s94, s96", f"    s_cmp_lt_u32 s94, {CFG['diag_tot']}", "    s_cbranch_scc1 L_diag"]
    o += ["L_exit:", "    s_endpgm", "L_code_end:"]
    while True:
        pos = 0; fixat = None
        for k in range(o.index(f"{NAME}_kernel:"), len(o)):
            t = o[k].strip()
            if fixat is None and k < o.index("L_final:"):
                if t.startswith("s_cbranch_scc0 L_body") and pos % 32 == 0: fixat = o.index(t.split()[1] + ":")
                elif ("branch" in t and pos % 32 == 0) or (t.endswith(":") and t != "L_pf:" and pos % 32 == 28): fixat = k
            if t.startswith(".p2align"): a = 1 << int(t.split()[1]); pos = (pos + a - 1) // a * a
            elif not t.endswith(":"): pos += size(t)
        if fixat is None: break
        o.insert(fixat, "    s_nop 0")
    info.append(f"code bytes {pos}")
    notes = {"L_first": "first job: key blocks 0..2 tile by tile while the queries arrive (last tiles)", "L_bodyq": "first job: main loop, two key blocks per pass",
             "L_job": "later jobs: opening key blocks", "L_bodyoq": "middle jobs: main loop, two key blocks per pass",
             "L_tail": "closing key blocks, range check of the row sums, normalisation, next job's queries", "L_close": "last job",
             "L_bodyo": "last job: main loop", "L_last": "last job: tiles finish in groups and are stored at once",
             "L_final": "jobs whose row sums left the safe window are redone below", "L_fb_job": "exact-maximum path: next recorded job",
             "L_fb_tile": "one query tile", "L_fb_max": "pass 1: true row maximum", "L_fb_pv": "pass 2: exp2((s - max) * c), row sum, P V"}
    for k in range(len(o) - 1, -1, -1):
        m = re.fullmatch(r"(L_[a-z_]+?)(\d?):", o[k])
        if m and m.group(1) in notes: o.insert(k, "; " + notes[m.group(1)] + (f" ({m.group(2)} tiles per wave)" if m.group(2) else ""))
    o += ['.section .rodata,"a"', ".p2align 6", f".amdhsa_kernel {NAME}_kernel",
          "  .amdhsa_next_free_vgpr 512", "  .amdhsa_next_free_sgpr 102", "  .amdhsa_accum_offset 256",
          "  .amdhsa_group_segment_fixed_size 0", "  .amdhsa_kernarg_size 48", "  .amdhsa_user_sgpr_count 2",
          "  .amdhsa_user_sgpr_kernarg_segment_ptr 1", "  .amdhsa_system_sgpr_workgroup_id_x 1", ".end_amdhsa_kernel"]
    open(sys.argv[1], "w").write("\n".join(o) + "\n")
    print("\n".join(info), file=sys.stderr)

main()
```

```python
import sys, math, struct, re
from asmlib import *

NAME = "standalone__gqa_softmax__near_ridge"
CFG = dict(k="", v="", lastdef=1, q="nt", o="nt", ol="nt", oe="nt", oe2="nt", th=44, hth=30, tth=20, fth=24, lth=44, sp=8, spq=7, lw=3, lb=6, lo_=12, lend=10, spodd=8, sh6=3, sroom=4, pre=2, ord=0, split=27, total=53,
           phi=2, park=1, nlazy=2, w0=12, w2=0, hold="", groups="01,23,45,6", ahead=0, now=0, lazy=1, q4=1, kvpf=12, kvsh=4, less=0, zz=1, dd=1, hdd=9, e1=0, d1=10, slice=3, fpipe=1, fm="", qo0=6, kw=3, lo=-30, hi=30,
           stamp=0, samehead=0, nostore=0, again=0, tmark=-1, x="", diag_tot=0, diag_mark=-1, forcefb=0)
for a in sys.argv[2:]:
    k, v = a.split("=", 1)
    assert k in CFG, k
    CFG[k] = int(v) if re.fullmatch(r"-?\d+", v) else v.replace("+", " ")

QH, KH = 217088, 131072
SCALE = math.log2(math.e) / math.sqrt(128.0)
def f2u(x): return struct.unpack("<I", struct.pack("<f", x))[0]

vK, vV, vDKV, vQO, vLin, vSt, vQ6 = 1, 3, 5, 6, 7, 8, 10
vTmp, vOne = 12, 16
vS = 20
vP = 36
vO = 92
vIdx, vDir = 252, 253
vPf, vPt, vSink = 253, 254, 0
aQ, aK, aV, aL, aO = 0, 112, 144, 176, 192
sQ, sK, sV, sO = 4, 8, 12, 16
(sC, sW, sJob, sCnt, sU0, sU1, sU2, sM, sU3, sD, sOp, sStg, sLoop, sCurO, sNxt, sN7c, sN7n, sFlag, sRole,
 sT0, sT1, sT2, sT3, sWoff, sStgB, sOffA, sOffB, sLo, sHi, sBit, sN7A, sN7B) = range(20, 52)
sPfA, sPfB = 52, 54
sPair = 56
sStampOff = 58
sDbg = 60
sKx, sVa, sQx, sOx, sVb = 64, 68, 72, 76, 88
sTm = 92
OOB = 0x100000

def Oreg(t, dj):
    return ("v", vO + t * 32 + dj * 4) if t < 5 else ("a", aO + (t - 5) * 32 + dj * 4)
def Preg(p, t):
    return vP + t * 4 if not p & 1 else vP + 28 + ((t + 1) % 7) * 4
def Qreg(t, ds): return aQ + (t * 4 + ds) * 4
def sbuf(NT, p, kt, t): return vS + (((p * NT + t) * 2 + kt) & 3) * 4
def pdeps(p, t): return [("cvt", p, kt, t, h) for kt in (0, 1) for h in (0, 1)]
def sc(t, rd=(), wr=()): return I(t, "s", rd=rd, wr=wr)
def fl(x): return (" " + x) if x else ""
def off(x): return f" offset:{x}" if x else ""
def V(t, rd, wr, k="V"): return I(t, k, rd=[("v", r) if isinstance(r, int) else r for r in rd], wr=[("v", r) if isinstance(r, int) else r for r in wr])
COST = {"V": 1, "E": 2, "D": 1}
M0 = [("m", 0)]

class Op:
    def __init__(self, key, ins, deps=(), target=None, rel=None):
        self.key = key; self.ins = ins; self.deps = list(deps); self.target = target; self.rel = rel

class Sched:
    def __init__(self, NT):
        self.NT = NT
        self.out = []; self.done = set(); self.pend = []
        self.valu = []; self.fixed = []; self.scal = []; self.flex = []
        self.forbid = set(); self.gap = 0
        self.bykey = {}; self.th = CFG["th"]; self.mode = "oq"; self.dd = CFG["hdd"]
    def add(self, q, op):
        q.append(op); self.bykey[op.key] = op
    def emit(self, ins, key=None):
        if ins.k == "w":
            m = re.search(r"lgkmcnt\((\d+)\)", ins.t)
            if m:
                n = int(m.group(1))
                if n < len(self.pend): self.pend = self.pend[len(self.pend) - n:] if n else []
        self.out.append(ins)
        if ins.k in "DW": self.pend.append(ins)
        if key is not None: self.done.add(key)
    def haz(self, ins):
        dist = 0; miss = 0
        for p in reversed(self.out):
            miss = max(miss, need(p, ins) - dist)
            dist += states(p)
            if dist >= 8: break
        return miss
    def lgkm_need(self, inss):
        idx = -1
        for ins in inss:
            t = set(ins.rd) | set(ins.c) | set(ins.wr)
            for i, p in enumerate(self.pend):
                if set(p.wr) & t: idx = max(idx, i)
        return None if idx < 0 else min(15, len(self.pend) - 1 - idx)
    def ready(self, op):
        return op.key not in self.forbid and all(d in self.done for d in op.deps) and \
            (op.target is None or op.target <= self.gap) and self.haz(op.ins) <= 0
    def put(self, op):
        for q in (self.valu, self.fixed, self.scal, self.flex):
            if op in q: q.remove(op)
        n = self.lgkm_need([op.ins])
        if n is not None: self.emit(I(f"s_waitcnt lgkmcnt({n})", "w"))
        m = self.haz(op.ins)
        if m > 0: self.emit(I(f"s_nop {m-1}", "s"))
        self.emit(op.ins, op.key)
    def force(self, key):
        if key in self.done: return
        op = self.bykey[key]
        assert key not in self.forbid, key
        for d in op.deps: self.force(d)
        self.put(op)
    def pick(self, kinds, n):
        r = []
        for op in self.valu[:48]:
            if op.ins.k in kinds and self.ready(op):
                r.append(op)
                if len(r) == n: break
        return r
    def backlog(self):
        return sum(COST[o.ins.k] for o in self.valu if o.rel is not None and o.rel in self.done)
    def fill(self, room):
        while room > 0:
            e = self.pick("E", 1); v = self.pick("V", 2)
            if room >= 2 and e and (len(v) < 2 or self.valu.index(e[0]) < self.valu.index(v[0])):
                self.put(e[0]); room -= 2
            elif v:
                self.put(v[0]); room -= 1
            elif e and self.backlog() > self.th - 4:
                self.put(e[0]); room -= 2
            else: break
        while self.backlog() > self.th:
            c = self.pick("EV", 1)
            if not c: break
            self.put(c[0])
    def run(self, mf, look=(), cut=False, keep=False):
        allm = list(mf) + list(look)
        for i, (key, ins, deps) in enumerate(mf):
            for d in deps: self.force(d)
            if i == len(mf) - 1 and not keep:
                if cut: self.flush()
                self.forbid = set()
                self.left = [o.key for q in (self.valu, self.fixed, self.scal) for o in q]
            n = self.lgkm_need([ins])
            if n is not None: self.emit(I(f"s_waitcnt lgkmcnt({n})", "w"))
            m = self.haz(ins)
            if m > 0: self.emit(I(f"s_nop {m-1}", "s"))
            self.emit(ins, key)
            afterw = len(self.out) > 1 and self.out[-2].k == "W"
            fx = next((o for o in self.fixed if self.ready(o) and not (afterw and o.ins.k in "DW")), None)
            slot1 = False
            nxt = [x[1] for x in allm[i + 1:i + 2]]
            if self.lgkm_need(nxt) is not None:
                nxt = [x[1] for x in allm[i + 1:i + 5]]
            if fx is not None and fx.ins.k != "B": nxt = nxt + [fx.ins]
            n = self.lgkm_need(nxt)
            if n is not None:
                self.emit(I(f"s_waitcnt lgkmcnt({n})", "w")); slot1 = True
                if fx is not None and fx.ins.k == "B": fx = None
            if fx is not None and fx.ins.k == "B":
                self.put(fx); self.fill(1)
            else:
                if not slot1 and self.scal and self.ready(self.scal[0]):
                    if not (fx is not None and fx.ins.k == "X" and ("m", 0) in self.scal[0].ins.wr): self.put(self.scal[0])
                room = 1 if "smfmac" in ins.t else 2
                if fx is not None and room == 1 and fx.ins.k != "D": fx = None
                if fx is not None:
                    self.put(fx); room = {"D": room - 1, "X": 1, "L": 1, "S": CFG["sroom"], "W": 0}[fx.ins.k]
                if fx is not None and fx.ins.k == "D" and room == 1 and len(self.pick("V", self.dd)) < self.dd and self.pick("E", 1):
                    self.gap += 1
                    f2 = next((o for o in self.fixed if o.ins.k == "D" and self.ready(o) and self.lgkm_need([o.ins]) is None), None)
                    self.gap -= 1
                    if f2 is not None: self.put(f2); room = 0
                if self.flex and fx is None and room == 2 and self.backlog() == 0 and not self.pick("E", 1) and not afterw:
                    f = next((o for o in self.flex if self.ready(o)), None)
                    if f is not None: self.put(f); room -= 1
                if room: self.fill(room)
                if self.out[-1].k in "Msw":
                    miss = [self.haz(o.ins) for o in self.valu[:16] if o.key not in self.forbid and all(d in self.done for d in o.deps)]
                    if miss and min(miss) > 1: self.emit(I(f"s_nop {min(min(miss) - 1, 3 - (self.out[-1].k != 'M')) - 1}", "s"))
            self.gap += 1
    def flush(self):
        for q in (self.fixed, self.flex, self.scal, self.valu):
            for op in list(q):
                if op.key not in self.forbid and op.key not in self.done: self.force(op.key)

def ds128(k, r, ad, o, tag=None):
    return I(f"ds_read_b128 {rs(k, r, 4)}, v{ad}{off(o)}", "D", rd=[("v", ad)], wr=R(k, r, 4), tag=tag)
def dstr(k, r, ad, o, tag=None):
    return I(f"ds_read_b64_tr_b16 {rs(k, r, 2)}, v{ad}{off(o)}", "D", rd=[("v", ad)], wr=R(k, r, 2), tag=tag)
def koff(kt, ds): return kt * 8192 + (ds >> 1) * 1024
def voff(j, b, kt): return kt * 8192 + 2048 + b * 1024 + 8 * (j & 1)
def Kreg(kt, ds): return aK + kt * 16 + ds * 4
def Vreg(j, b): return aV + (2 * j + b) * 4
def k_read(p, kt, ds): return ds128("a", Kreg(kt, ds), vK + (ds & 1), ((p - 1) & 1) * 16384 + koff(kt, ds), ("ring", p - 1))
def v_read(r, j, b, kt): return dstr("a", Vreg(j, b) + 2 * kt, vV + (j >> 1), ((r - 1) & 1) * 16384 + voff(j, b, kt), ("ring", r - 1))
def q_read(t, ds, slot=None): return ds128("a", Qreg(t, ds), vSt + (ds & 1), (t if slot is None else slot) * 4096 + (ds >> 1) * 1024)
def so_(x): return "0" if x is None else f"s{x}"
def dma(vo, srd, so, o, flags, tag):
    return I(f"buffer_load_dwordx4 v{vo}, s[{srd}:{srd+3}], {so_(so)} offen{off(o)}{fl(flags)} lds", "X", rd=[("v", vo), ("m", 0)], tag=tag)
def o_store(r, srd, so, o, flags):
    return I(f"buffer_store_dwordx4 {rs('v', r, 4)}, v{vQO}, s[{srd}:{srd+3}], {so_(so)} offen{off(o)}{fl(flags)}", "S", rd=R("v", r, 4) + [("v", vQO)])
def o_write(slot, J, b):
    ad = vSt + (J & 1)
    return I(f"ds_write_b128 v{ad}, {rs('v', b, 4)}{off(slot*4096 + (J >> 1)*1024)}", "W", rd=R("v", b, 4) + [("v", ad)])
def code_touch(base, size_):
    return [V(f"v_min_u32 v{vPt}, {size_}, v{vPf}", [vPf], [vPt]), V(f"v_mov_b32 v{vPt+1}, 0", [], [vPt + 1]),
            V(f"v_lshl_add_u64 v[{vPt}:{vPt+1}], v[{vPt}:{vPt+1}], 0, s[{base}:{base+1}]", [vPt, vPt + 1], [vPt, vPt + 1]),
            I(f"global_load_dword v{vSink}, v[{vPt}:{vPt+1}], off", "L", rd=R("v", vPt, 2))]
def bump(srd, by): return [f"s_add_u32 s{srd}, s{srd}, {by}", f"s_addc_u32 s{srd+1}, s{srd+1}, 0"]
def shift(key, p): return (key[0], key[1] + p) + tuple(key[2:])
PHI = CFG["phi"]
KORD = [(0, 0), (0, 1), (0, 2), (0, 3), (1, 3), (1, 2), (1, 1), (1, 0)]
VORD = [(0, 0), (0, 1), (1, 1), (1, 0), (2, 0), (2, 1), (3, 1), (3, 0)]
DEFER = [(t, J) for t in range(5) for J in range(4)]

def parked(t, J): return Oreg(2 * (t - 5) + (J >> 1), 2 * (J & 1) + 1)[1]
PARKED = {(2 * (t - 5) + (J >> 1), 2 * (J & 1) + 1): (("ow", 5, J) if t == 5 else ("o6s", J)) for t in (5, 6) for J in range(4)} if CFG["park"] else {}
LAZY = [(4, 0), (4, 1), (4, 2), (4, 3)][:CFG["nlazy"]]
def pv_tile(r, t, home=None, vkey="vr"):
    L = []; seen = set()
    for j, b in VORD:
        blk = r - 2 + b
        if not 0 <= blk < 16: continue
        dj = (r & 1) * 4 + j; first = r <= 2 and j not in seen; seen.add(j)
        deps = pdeps(blk, t) + ([(vkey, r, j, b, kt) for kt in (0, 1)] if vkey else [])
        if first and vkey and (t, dj >> 1) in DEFER: deps.append(("ow", t, dj >> 1))
        if first and vkey and (t, dj) in PARKED: deps.append(PARKED[(t, dj)])
        L.append((("pv", r, t, j, b), mfma(Oreg(t, dj), home(j, b) if home else ("a", Vreg(j, b)), ("v", Preg(blk, t)), c0=first), deps))
    return L
def sum_tile(r, t):
    def one(blk):
        d = aL + 4 * (t >> 1); b = Preg(blk, t - 1) if t < 6 else Preg(0, 6)
        return (("sum", blk + 1, t >> 1), I(f"v_smfmac_f32_16x16x64_bf16 {rs('a', d, 4)}, {rs('v', vOne, 4)}, {rs('v', b, 8)}, v{vIdx}", "M",
                                            rd=R("v", vOne, 4) + R("v", b, 8) + [("v", vIdx)], wr=R("a", d, 4), c=R("a", d, 4)),
                pdeps(blk, t) + (pdeps(blk, t - 1) if t < 6 else []))
    if r > 16 or not (t & 1 or t == 6): return []
    if t == 6: return [] if r & 1 else [one(r - 1)]
    if CFG["zz"]: return [] if r & 1 else [one(r - 2), one(r - 1)]
    return [one(r - 1)]
def qk_chain(p, kt, t, sb, deps0, home=None, kkey="kr"):
    return [(("qk", p, kt, t, i), mfma(("v", sb), home(kt, ds) if home else ("a", Kreg(kt, ds)), ("a", Qreg(t, ds)), c0=(i == 0)),
             ([(kkey, p, kt, ds)] if kkey else []) + (deps0 if i == 0 else []) + ([("q6r", ds)] if (p, kt, t) == (0, 0, 6) and kkey else []))
            for i, (_, ds) in enumerate(KORD[4 * kt:4 * kt + 4])]
def seg_slots(NT, k): return [divmod(s, NT) for s in range(max(0, k * NT - PHI), min(16 * NT, (k + 1) * NT - PHI))]
def seg_mf(NT, k):
    L = []; sl = dict(((p * NT + t + PHI) % NT, (p, t)) for p, t in seg_slots(NT, k))
    for tv in range(NT):
        if k >= 1: L += pv_tile(k, tv) + sum_tile(k, tv)
        if tv in sl:
            p, t = sl[tv]
            pp, tt = divmod(p * NT + t - 2, NT)
            for kt in (0, 1): L += qk_chain(p, kt, t, sbuf(NT, p, kt, t), [("cvt", pp, kt, tt, h) for h in (0, 1)] if pp >= 0 else [])
    return L

def add_softmax(S, p, kt, t, sb, war=()):
    rel = ("qk", p, kt, t, 3)
    mul = lambda r: Op(("mul", p, kt, t, r), V(f"v_mul_f32 v{sb+r}, s{sC}, v{sb+r}", [sb + r], [sb + r]), [rel], rel=rel)
    ex = lambda r: Op(("exp", p, kt, t, r), V(f"v_exp_f32 v{sb+r}, v{sb+r}", [sb + r], [sb + r], "E"), [("mul", p, kt, t, r)], rel=rel)
    def cv(h):
        d = Preg(p, t) + 2 * kt + h
        return Op(("cvt", p, kt, t, h), V(f"v_perm_b32 v{d}, v{sb+2*h+1}, v{sb+2*h}, s{sLo}" if "perm" in CFG["x"] else f"v_cvt_pk_bf16_f32 v{d}, v{sb+2*h}, v{sb+2*h+1}", [sb + 2 * h, sb + 2 * h + 1], [d]),
                  [("exp", p, kt, t, 2 * h), ("exp", p, kt, t, 2 * h + 1)] + list(war), rel=rel)
    for o in (mul(0), mul(1), ex(0), ex(1), mul(2), mul(3), ex(2), ex(3), cv(0), cv(1)): S.add(S.valu, o)

def add_seg_ops(S, k, mf):
    NT = S.NT; g0 = S.gap; keys = [m[0] for m in mf]; mode = S.mode if k >= 3 else "oq"
    at = lambda key: g0 + keys.index(key)
    for p, t in seg_slots(NT, k):
        for kt in (0, 1): add_softmax(S, p, kt, t, sbuf(NT, p, kt, t), [("sum", p - (t < 6), t >> 1)] if p >= 2 and not p & 1 else [])
    fx = []; scal = []
    new = lambda lst, key, ins, deps, g: lst.append(Op(key, ins, deps, g))
    known = lambda x: [x] if (x in S.bykey or x in S.done) else []
    def chain(name, texts, deps, g):
        for i, t in enumerate(texts):
            new(scal, (name[0], k) + tuple(name[1:]) + (i,), sc(t), deps, g)
            deps = [(name[0], k) + tuple(name[1:]) + (i,)]
        return deps
    xor = lambda r: V(f"v_xor_b32 v{r}, 0x8000, v{r}", [r], [r])
    sp = CFG["spq" if mode == "q" else "spodd" if k & 1 else "sp"]; prev = []; rd = []
    if 1 <= k <= 16:
        g = g0 + 2 + (CFG["sh6"] if NT == 6 else 0)
        if k == 1:
            new(scal, ("w6",), I("s_waitcnt vmcnt(?)", "w", tag=("needq6",)), [], g0)
            prev = [("w6",)]
            if NT == 7:
                for ds in range(4): new(fx, ("q6r", ds), ds128("a", Qreg(6, ds), vQ6 + (ds & 1), (ds >> 1) * 1024), [("w6",)], g0 + 1 + ds)
                prev = [("q6r", ds) for ds in range(4)]; g = g0 + CFG["d1"]
        x = ((k + 3) & 1) * 128
        for i, (srd, o) in enumerate(((sKx, 0), (sKx, 128), (sVa, x), (sVb, x))):
            new(scal, ("m0", k, i), sc(f"s_add_u32 m0, s{sM}, {i*1024 - o}", wr=M0), prev, max(g0, g - 3))
            new(fx, ("dma", k, i), dma(vDKV, srd, None, o, "" if mode == "o" and CFG["lastdef"] else CFG["kv"[i >> 1]], ("grp", k + 2)), [("m0", k, i)], g)
            if k == 1 and i == 0: fx[-1].ins.rd += R("a", Qreg(6, 0), 16)
            prev = [("dma", k, i)]; g += sp if k > 1 else 4
        prev = chain(("uk",), [f"s_add_u32 s{sM}, s{sM}, 16384", f"s_and_b32 s{sM}, s{sM}, 0xffff", f"s_mov_b64 s[{sVa}:{sVa+1}], s[{sVb}:{sVb+1}]",
                               f"s_mov_b32 s{sVa+2}, s{sVb+2}"] + bump(sVb, 8192) + [f"s_mov_b32 s{sVb+2}, s{sKx+2}"] + bump(sKx, 8192) +
                     [f"s_add_u32 s{sCnt}, s{sCnt}, 1", f"s_cmp_lt_u32 s{sCnt}, 64", f"s_cselect_b32 s{sKx+2}, 8192, 0"], prev, g - sp + 1)
        gk = at(("qk", k - 1, 0, NT - 1, 0))
        for n, (kt, ds) in enumerate(KORD):
            new(fx, ("kr", k, kt, ds), k_read(k, kt, ds), [("qk", k - 1, kt, NT - 1, n & 3)] + known(("xk", k - 1, ds & 1)), gk + (n * CFG["kw"]) // 2)
            rd.append(("kr", k, kt, ds))
        if k <= 14 and (k == 1 or not k & 1):
            g = max(g + 6, gk + 8 + CFG["qo0"])
            for j in range(4 if mode == "q" and CFG["q4"] else 3):
                flip = [f"s_xor_b32 s{sD}, s{sD}, 0x700"]
                if "o" in mode:
                    ready = [("ow", k - 1, J) for J in range(4)] if k <= 2 else []
                    new(fx, ("or", k, j), ds128("v", vTmp, vLin, j * 1024),
                        known(("ul", k - 2)) + known(("ul", k - 1)) + ready + ([("os", k, j - 1)] if j else []), g - 9)
                    new(fx, ("os", k, j), o_store(vTmp, sOx, None, 0, CFG["o" if "q" in mode else "ol"]), [("or", k, j)] + prev, g)
                    prev = chain(("uo", j), bump(sOx, f"s{sD}") + ([] if "q" in mode else flip), [("os", k, j)], g)
                    g += sp if k > 1 else 5
                if mode == "o":
                    step = 256 << CFG["kvsh"]
                    new(fx, ("pk", k, j), I(f"buffer_load_dword v{vSink}, v{vQ6}, s[{sQx}:{sQx+3}], 0 offen", "L", rd=[("v", vQ6)]), prev, g)
                    prev = chain(("pu", j), bump(sQx, step) + [f"s_max_u32 s{sQx+2}, s{sQx+2}, {step}", f"s_sub_u32 s{sQx+2}, s{sQx+2}, {step}"], [("pk", k, j)], g)
                    g += sp
                if "q" in mode:
                    new(scal, ("qm", k, j), sc(f"s_mov_b32 m0, s{sStg}", wr=M0), prev, g - 3)
                    new(fx, ("qd", k, j), dma(vQO, sQx, None, 0, CFG["q"], ("q", k)), [("qm", k, j)], g)
                    prev = chain(("uq", j), bump(sQx, f"s{sD}") + flip + [f"s_add_u32 s{sStg}, s{sStg}, 1024"], [("qd", k, j)], g)
                    g += sp if k > 1 else 5
            if "o" in mode: S.add(S.valu, Op(("ul", k), V(f"v_add_u32 v{vLin}, 3072, v{vLin}", [vLin], [vLin]), [("or", k, 2)] + [x_ for J in range(4) for x_ in known(("o6r", J))]))
        if not k & 1:
            for b in (0, 1):
                S.add(S.valu, Op(("xk", k, b), xor(vK + b), [x_ for x_ in rd if x_[3] & 1 == b]))
                S.add(S.valu, Op(("xv", k, b), xor(vV + b), [("vr", k, j, bb, kt) for j in (2 * b, 2 * b + 1) for bb in (0, 1) for kt in (0, 1)]))
        gv = at(next(x_ for x_ in keys if x_[:3] == ("pv", k, NT - 1)))
        gb = gv - 2 if k < 16 else gk + 20
        if k == 1 and CFG["e1"]: gb = gv - CFG["e1"]
        rd += [("vr", k, j, b, kt) for j, b in VORD for kt in (0, 1)]
        new(scal, ("wb", k), I("s_waitcnt vmcnt(?) lgkmcnt(0)", "w", tag=("needgrp", k)), rd + [("dma", k, 3)], gb - 1)
        new(fx, ("bar", k), I("s_barrier", "B", tag=("bar", k)), [("wb", k)], gb)
        order = VORD if 1 < k < 16 or (k == 1 and not CFG["e1"]) else sorted(VORD, key=lambda x_: x_[1])
        for n, (j, b, kt) in enumerate((j, b, kt) for j, b in order for kt in (0, 1)):
            war = [("pv", k, NT - 1, j, b)] if ("pv", k, NT - 1, j, b) in keys else []
            new(fx, ("vr", k + 1, j, b, kt), v_read(k + 1, j, b, kt), [("bar", k)] + war + ([] if k & 1 else [("xv", k, j >> 1)]), gv + n if k > 1 else (gb + 1 + n if CFG["e1"] else gv + (n * 3) // 4))
        if k == 2 or (3 < k < 15 and not k & 1):
            new(scal, ("lp", k), sc(f"s_sub_u32 s{sLoop}, s{sLoop}, 1" if k > 2 else f"s_cmp_eq_u32 s{sJob}, 3"), [("wb", k)] + prev, g0 + len(mf) - 5)
    if k <= 2:
        todo = [(0, 2), (0, 3), (1, 2), (1, 3), (0, 0), (0, 1), (2, 2), (2, 3), (3, 2), (3, 3), (4, 2), (4, 3), (1, 0), (1, 1), (2, 0), (2, 1), (3, 0), (3, 1), (4, 0), (4, 1)]
        if CFG["park"]:
            todo[2:2] = [(6, 0), (6, 1)]; todo[6:6] = [(6, 2), (6, 3)]; todo[18:18] = [(5, J) for J in range(4)]
        n0 = CFG["w0"] if CFG["park"] else 10
        n2 = len(todo) - CFG["w2"]
        todo = (todo[:n0], todo[n0:n2], todo[n2:])[k]
        lo, hi = ((0, len(mf) - 1), (6, len(mf) - 14), (5, 5 + 8 * CFG["w2"]))[k]
        for i, (t, J) in enumerate(todo):
            g = g0 + lo + (hi - lo) * i // len(todo)
            dep = [("lc", t, J, 3)] if (t, J) in LAZY else [("o6r", x_) for x_ in range(4)] if t == 5 else []
            new(fx, ("ow", t, J), o_write(min(t, 5), J, Oreg(t, 2 * J)[1] if t < 5 else parked(t, J)), dep, g)
            if t == 6 and J & 1:
                for nn in (0, 1):
                    r = parked(6, J - 1 + nn)
                    new(fx, ("o6r", J - 1 + nn), ds128("v", r, vLin, 5 * 4096 + nn * 2048 + (J >> 1) * 1024), [("ow", 6, J - 1), ("ow", 6, J)], g + 2)
                    new(fx, ("o6s", J - 1 + nn), o_store(r, sO, sT1, nn * 2048 + (J >> 1) * 128, CFG["o"]), [("o6r", J - 1 + nn)], g + 8 + 3 * nn)
        if k == 0:
            for t, J in LAZY:
                C = []; convert(C, Oreg(t, 2 * J)[1], 0, lambda i_: True)
                for n, c_ in enumerate(C): S.add(S.valu, Op(("lc", t, J, n), c_, [("lc", t, J, n - 1)] if n else []))
    for o in fx: S.add(S.fixed, o)
    S.fixed.sort(key=lambda o: o.target)
    scal.sort(key=lambda o: o.target)
    for o in scal: S.add(S.scal, o)
    misc = [o for o in S.valu if o.key[0] in ("xk", "xv", "ul", "ul2", "lc")]
    S.valu = misc + [o for o in S.valu if o not in misc]

def start_job(NT, mode):
    S = Sched(NT); S.mode = mode
    S.done |= {("kr", 0, kt, ds) for kt, ds in KORD} | {("vr", 1, j, b, kt) for j, b in VORD for kt in (0, 1)}
    return S
def run_segs(S, segs, carry):
    starts = {}
    for k in segs:
        starts[k] = len(S.out)
        mf = seg_mf(S.NT, k)
        S.forbid = set(); S.th = CFG["th"] if k >= 2 else CFG["hth"]; S.dd = CFG["dd"] if k >= 2 else CFG["hdd"]
        add_seg_ops(S, k, mf)
        cut = carry is not None and k >= 2 and not k & 1
        if cut: S.forbid = {shift(x, k) for x in carry}
        S.run(mf, seg_mf(S.NT, k + 1)[:4], cut)
    return starts
def find_carry(NT):
    S = start_job(NT, "oq")
    run_segs(S, range(0, 9), None)
    c = [shift(x, -8) for x in S.left]
    assert all(x[0] in ("mul", "exp", "cvt", "vr") for x in c), c
    return c

def params_next():
    return [sc(x) for x in (
        f"s_add_u32 s{sT2}, s{sJob}, 1",
        f"s_xor_b32 s{sT3}, s{sT2}, s{sRole}",
        f"s_and_b32 s{sT3}, s{sT3}, 1",
        f"s_cselect_b32 s{sNxt}, s{sOffB}, s{sOffA}",
        f"s_cselect_b32 s{sN7n}, s{sN7B}, s{sN7A}",
        f"s_mul_i32 s{sT2}, s{sT2}, {QH}",
        f"s_add_u32 s{sNxt}, s{sNxt}, s{sT2}")]

def advance():
    return [sc(x) for x in (f"s_lshl_b32 s{sBit}, 1, s{sJob}", f"s_add_u32 s{sJob}, s{sJob}, 1", f"s_mov_b32 s{sOp}, s{sCurO}",
                            f"s_mov_b32 s{sCurO}, s{sNxt}", f"s_mov_b32 s{sN7c}, s{sN7n}")] + params_next() + \
           [sc(x) for x in (f"s_add_u32 s{sQx}, s{sQ}, s{sNxt}", f"s_addc_u32 s{sQx+1}, s{sQ+1}, 0", f"s_cmp_lt_u32 s{sJob}, 3", f"s_cselect_b32 s{sQx+2}, 4096, 0",
                            f"s_add_u32 s{sOx}, s{sO}, s{sOp}", f"s_addc_u32 s{sOx+1}, s{sO+1}, 0",
                            f"s_mov_b32 s{sD}, 128", f"s_mov_b32 s{sStg}, s{sStgB}", f"s_mov_b32 s{sLoop}, 5")]

def add_rows(S, tiles, vmx, zero):
    add = lambda key, ins, deps: S.add(S.valu, Op(key, ins, deps))
    for t in tiles:
        b = Preg(0, t)
        src = [aL + 2 * t, aL + 2 * t + 1] + ([aL + 14, aL + 15] if t == 6 else [])
        dst = [b + 2, b, b + 1, b + 3]
        for a, d in zip(src, dst): add(("la", a), V(f"v_accvgpr_read_b32 v{d}, a{a}", [("a", a)], [d]), [("sum", 16, t >> 1), ("pv", 16, t, 3, 0)])
        if t == 6:
            add(("l6", 0), V(f"v_add_f32 v{dst[0]}, v{dst[0]}, v{dst[3]}", [dst[0], dst[3]], [dst[0]]), [("la", a) for a in src])
            add(("l6", 1), V(f"v_add_f32 v{dst[1]}, v{dst[1]}, v{dst[2]}", [dst[1], dst[2]], [dst[1]]), [("l6", 0)])
        add(("lr", t), V(f"v_add_f32 v{dst[0]}, v{dst[0]}, v{dst[1]}", dst[:2], [dst[0]]), [("la", a) for a in src] + ([("l6", 1)] if t == 6 else []))
        add(("rc", t), V(f"v_rcp_f32 v{b}, v{b+2}", [b + 2], [b], "E"), [("lr", t)])
        m = vmx if t else b
        add(("mx", t), V(f"v_maximum3_f32 v{vmx}, v{m}, v{b}, v{b+2}", [m, b, b + 2], [vmx]), [("rc", t)] + ([("mx", t - 1)] if t else []))
        if zero:
            for a in src: add(("lz", a), V(f"v_accvgpr_write_b32 a{a}, 0", [], [("a", a)]), [("la", a)])
    if tiles[-1] == S.NT - 1: add(("c1",), V(f"v_cmp_ngt_f32 vcc, s{sHi}, v{vmx}", [vmx], [("s", "vcc")]), [("mx", S.NT - 1)])

def convert(E, b, r, skip=lambda i: False, dst=None):
    for i in range(4):
        if not skip(i):
            E.append(V(f"v_pk_mul_f32 {rs('v', b+2*i, 2)}, {rs('v', b+2*i, 2)}, {rs('v', r, 2)} op_sel_hi:[1,0]",
                       [b + 2 * i, b + 2 * i + 1, r], [b + 2 * i, b + 2 * i + 1]))
    d = b if dst is None else dst
    for i in range(4): E.append(V(f"v_cvt_pk_bf16_f32 v{d+i}, v{b+2*i}, v{b+2*i+1}", [b + 2 * i, b + 2 * i + 1], [d + i]))
def acc_copy(dst, src): return [V(f"v_accvgpr_read_b32 v{dst+i}, a{src+i}", [("a", src + i)], [dst + i]) for i in range(8)]
def final_pv(t, J, i): return ("pv", 16, t) + ((2 * J, 1), (2 * J + 1, 0))[i >> 2] if J < 2 else ("pv", 17, t, 2 * J - 4 + (i >> 2), 0)

def build_tail(S):
    NT = S.NT
    run_segs(S, [15], None)
    g0 = S.gap; mf = seg_mf(NT, 16)
    add_seg_ops(S, 16, mf)
    mf += seg_mf(NT, 17)
    S.add(S.scal, Op(("wq",), I("s_waitcnt vmcnt(?)", "w", tag=("needq", 12)), [], g0)); S.scal.insert(0, S.scal.pop())
    nsc = [0]
    def scal(x, deps=()):
        i = nsc[0]; nsc[0] += 1
        S.add(S.scal, Op(("ts", i), x, ([("ts", i - 1)] if i else [("uk", 16, 11)]) + list(deps), g0)); return ("ts", i)
    scal(sc(f"s_mul_i32 s{sQx+2}, s{sQx+2}, s{sN7n}"))
    prev = [("bar", 16)]; gb = S.bykey[("bar", 16)].target
    for a in (0, 1):
        m = scal(sc(f"s_add_u32 m0, s{sWoff}, {49152 + a*896}", wr=M0), prev)
        for nn in (0, 1): S.add(S.fixed, Op(("q6", a, nn), dma(vQO, sQx, None, nn * 2048 + a * 128, CFG["q"], ("q6",)), [m], gb + 2 + 4 * (2 * a + nn)))
        prev = [("q6", a, 0), ("q6", a, 1)]
    ct = code_touch(sPfB, "L_final-L_end_code")
    for i, x in enumerate(ct[:3]): S.add(S.valu, Op(("pa", i), x, [("pa", i - 1)] if i else []))
    S.add(S.fixed, Op(("pf",), ct[3], [("pa", 2)] + prev, gb + 18))
    S.fixed.sort(key=lambda o: o.target)
    scal(sc(f"s_add_u32 s{sT1}, s{sCurO}, 24576" if NT == 7 else f"s_mov_b32 s{sT1}, {OOB:#x}"))
    for x in advance(): scal(x, prev); prev = []
    w5 = scal(I("s_waitcnt vmcnt(?)", "w", tag=("needq", 14)))
    for t in range(6):
        for ds in range(4): S.add(S.flex, Op(("qr", t, ds), q_read(t, ds), [("wq",) if t < 5 else w5, ("qk", 15, 1, t, 3)]))
    add = lambda key, ins, deps: S.add(S.valu, Op(key, ins, deps))
    add(("vl",), V(f"v_add_u32 v{vLin}, {(-24576) & 0xffffffff:#x}, v{vLin}", [vLin], [vLin]), [])
    add_rows(S, list(range(NT)), vTmp, True)
    for x in ("s_cmp_lg_u64 vcc, 0", f"s_cselect_b32 s{sT2}, s{sBit}, 0", f"s_or_b32 s{sFlag}, s{sFlag}, s{sT2}"): scal(sc(x), [("c1",)])
    softdone = [("cvt", 15, kt, t, h) for t in (NT - 2, NT - 1) for kt in (0, 1) for h in (0, 1)]
    early = {(NT - 1, J): vb for J, vb in enumerate((vS, vS + 8))}
    for (t, J), vb in early.items():
        for i, x in enumerate(acc_copy(vb, Oreg(t, 2 * J)[1])): add(("ar", t, J, i), x, softdone + [final_pv(t, J, i)])
    for t in range(5):
        for J in range(2):
            b = Oreg(t, 2 * J)[1]; r = Preg(0, t)
            for i in range(8):
                add(("om", t, J, i), V(f"v_mul_f32 v{b+i}, v{r}, v{b+i}", [b + i, r], [b + i]), [("rc", t), final_pv(t, J, i)] + ([("om", t, J, i - 1)] if i else []))
            for i in range(4):
                add(("oc", t, J, i), V(f"v_cvt_pk_bf16_f32 v{b+i}, v{b+2*i}, v{b+2*i+1}", [b + 2 * i, b + 2 * i + 1], [b + i]), [("oc", t, J, i - 1) if i else ("om", t, J, 7)])
    n1 = max(i for i, m in enumerate(mf) if m[0][0] == "qk") + 1
    S.run(mf[:n1], mf[n1:n1 + 4], keep=True)
    S.th = CFG["tth"]
    S.run(mf[n1:], keep=True)
    begun = {x[1:3] for x in S.done if x[0] == "om"}
    S.valu = [o for o in S.valu if o.key[0] not in ("om", "oc") or o.key[1:3] in begun]
    S.flush()
    E = []
    if CFG["tmark"] == 0: E.append(sc("s_memtime s[86:87]"))
    vC = Preg(1, 0)
    spare = iter((vC, vC + 8, vC + 16, vS, vS + 8, vC))
    def piece(t, J):
        k, b = Oreg(t, 2 * J)
        if k == "a":
            if (t, J) in early: b = early[(t, J)]
            else:
                d = next(spare); E.extend(acc_copy(d, b)); b = d
        convert(E, b, Preg(0, t))
        if (t, J) not in DEFER: E.append(o_write(t % 6, J, b))
        return b
    assert not begun & set(LAZY)
    if CFG["park"]:
        for t, J in DEFER:
            if (t, J) not in begun:
                convert(E, Oreg(t, 2 * J)[1], Preg(0, t))
                if (t, J) in LAZY: del E[-4:]
        for t in range(NT - 1, 4, -1):
            for J in range(4):
                b = early.get((t, J), vC + 8 * (J & 1))
                if (t, J) not in early: E.extend(acc_copy(b, Oreg(t, 2 * J)[1]))
                convert(E, b, Preg(0, t), dst=parked(t, J))
        E.append(I("s_waitcnt lgkmcnt(0)", "w"))
        return [I(".p2align 3", "#")] + align8(fix_hazards(E, S.out[-10:]), False)
    assert not LAZY
    plain = [x for x in DEFER if x not in begun]
    def some(n):
        for _ in range(n):
            if plain: piece(*plain.pop(0))
    if NT == 7:
        E.append(sc(f"s_add_u32 s{sT3}, s{sOp}, 24576")); regs = []
        for a in (0, 1):
            for J in (2 * a, 2 * a + 1): regs.append(piece(6, J) + 4); some(1)
            E += [ds128("v", regs[2 * a + nn], vLin, nn * 2048 + a * 1024) for nn in (0, 1)]
        for a in (0, 1):
            E.append(I(f"s_waitcnt lgkmcnt({4 - 4*a})", "w"))
            E += [o_store(regs[2 * a + nn], sO, sT3, nn * 2048 + a * 128, CFG["o"]) for nn in (0, 1)]
            some(3 - 3 * a)
    else:
        E.append(sc(f"s_mov_b32 s{sT3}, {OOB:#x}"))
        for i in range(4): E.append(o_store(vC, sO, sT3, 0, ""))
    for J in range(4): piece(5, J); some(2)
    some(20)
    E.append(I("s_waitcnt lgkmcnt(4)", "w"))
    return [I(".p2align 3", "#")] + align8(fix_hazards(E, S.out[-10:]), False)

def build_last(NT, carry):
    S = start_job(NT, "o")
    run_segs(S, range(15), carry)
    start = len(S.out)
    while S.out[start - 1].k != "M": start -= 1
    S.th = CFG["lth"]; S.dd = CFG["hdd"]; g0 = S.gap
    assert NT - PHI >= 4 and PHI <= 3
    fix = lambda key, ins, deps, g=0: S.add(S.fixed, Op(key, ins, deps, g))
    add = lambda key, ins, deps: S.add(S.valu, Op(key, ins, deps))
    nsc = [0]
    def scal(x, deps=(), g=0):
        i = nsc[0]; nsc[0] += 1
        S.add(S.scal, Op(("ts", i), x, ([("ts", i - 1)] if i else []) + list(deps), g)); return ("ts", i)
    def qk(p, t):
        pp, tt = divmod(p * NT + t - 2, NT); L = []
        for kt in (0, 1):
            add_softmax(S, p, kt, t, sbuf(NT, p, kt, t), [("pv", 15, t, 3, 0)] if p == 15 else [])
            L += qk_chain(p, kt, t, sbuf(NT, p, kt, t), [("cvt", pp, kt, tt, h) for h in (0, 1)])
        return L
    home = lambda r: (lambda j, b: ("a", Qreg(0, 0) + (2 * j + b) * 4)) if r == 16 else (lambda j, b: ("a", Qreg(2, j)))
    pv = lambda r, t: pv_tile(r, t, home(r) if r > 15 else None) + sum_tile(r, t)
    G = [[int(c) for c in g if int(c) < NT] for g in CFG["groups"].split(",")]
    G = [g for g in G if g]
    did = set()
    def work(g, ahead):
        L = []
        for t in list(range(g[-1] + 1)):
            if t not in did: L += pv(15, t) + qk(15, t); did.add(t)
        tailpv = [pv(16, t) for t in g] + [pv(17, t) for t in g]
        for t in range(g[-1] + 1, min(NT, g[-1] + 1 + ahead)):
            if t not in did: L += pv(15, t) + qk(15, t); did.add(t)
        return L + sum(tailpv, [])
    A = []
    for i, t in enumerate(range(NT - PHI, NT)): A += pv(15, i) + qk(14, t)
    for t in range(3): A += (pv(15, t + PHI) if t + PHI < 3 else []) + qk(15, t); did.add(t)
    A += work(G[0], 0)
    keys = [m[0] for m in A]
    gk = g0 + keys.index(("qk", 14, 0, NT - 1, 0))
    for n, (kt, ds) in enumerate(KORD): fix(("kr", 15, kt, ds), k_read(15, kt, ds), [("qk", 14, kt, NT - 1, n & 3)], gk + n)
    for b in (0, 1):
        add(("xv", 16, b), V(f"v_xor_b32 v{vV+b}, 0x8000, v{vV+b}", [vV + b], [vV + b]), [("vr", 16, j, bb, kt) for j in (2 * b, 2 * b + 1) for bb in (0, 1) for kt in (0, 1)])
    for r, t in ((16, 0), (17, 2)):
        g = g0 + keys.index(("qk", 15, 1, t, 0))
        fix(("bar", r - 1), I("s_barrier", "B", tag=("bar", r - 1)), [scal(I("s_waitcnt vmcnt(?)", "w", tag=("needgrp", r - 1)), [], g)], g + 1)
        for j, b in VORD:
            if r == 17 and b: continue
            for kt in (0, 1):
                owner = j >> 1 if r == 16 else 2
                fix(("vr", r, j, b, kt), dstr("a", home(r)(j, b)[1] + 2 * kt, vV + (j >> 1), ((r - 1) & 1) * 16384 + voff(j, b, kt)),
                    [("bar", r - 1), ("qk", 15, 1, owner, 3)] + ([("xv", 16, j >> 1)] if r == 17 else []))
    add(("vl",), V(f"v_add_u32 v{vLin}, {(-24576) & 0xffffffff:#x}, v{vLin}", [vLin], [vLin]), [])
    S.valu = [o for o in S.valu if o.key[0] == "xv"] + [o for o in S.valu if o.key[0] != "xv"]
    so = lambda t: (sT0, sT1, sT2, sT3, sU0, sU1, sU2)[t]
    for t in range(NT): scal(sc(f"s_add_u32 s{so(t)}, s{sCurO}, {t*4096}"))
    O = lambda t, J: Oreg(t % 5, 2 * J)[1]
    back = lambda t, a, nn: ds128("v", O(t, 2 * a + nn) + 4, vLin, (t % 6) * 4096 + nn * 2048 + a * 1024)
    out = lambda t, a, nn: o_store(O(t, 2 * a + nn) + 4, sO, so(t), nn * 2048 + a * 128, CFG["oe2" if a else "oe"])
    def mark(i):
        if CFG["tmark"] == i: S.emit(sc("s_memtime s[86:87]")); print(f"NT={NT} model at mark {i}: {cycles(S.out[start:])}", file=sys.stderr)
    parked = []; lazy = set()
    for gi, g in enumerate(G):
        end = gi == len(G) - 1
        mf = A if gi == 0 else work(g, CFG["ahead"])
        g0 = S.gap; front = []
        for i, (t, a) in enumerate(parked):
            x = g0 + int(i * (len(mf) - CFG["lend"]) / len(parked))
            for k in (0, 1):
                dep = []
                if (t, a) in lazy:
                    C = []; convert(C, O(t, 2 * a + k), 0, lambda i_: True)
                    for n, c_ in enumerate(C):
                        S.add(front, Op(("lc", t, a, k, n), c_, dep)); dep = [("lc", t, a, k, n)]
                fix(("lw", t, a, k), o_write(t, 2 * a + k, O(t, 2 * a + k)), dep, x + CFG["lw"] * k)
            for k in (0, 1): fix(("ob", t, a, k), back(t, a, k), [("lw", t, a, 0), ("lw", t, a, 1)], x + CFG["lb"] + k)
            for k in (0, 1): fix(("oo", t, a, k), out(t, a, k), [("ob", t, a, k)], x + CFG["lo_"] + 2 * k)
        S.fixed.sort(key=lambda o: o.target)
        S.valu = front + S.valu
        add_rows(S, g, vTmp, False)
        if end:
            for x in ("s_cmp_lg_u64 vcc, 0", f"s_cselect_b32 s{sBit}, 8, 0", f"s_or_b32 s{sFlag}, s{sFlag}, s{sBit}"): scal(sc(x), [("c1",)])
        for J in range(4):
            for t in g:
                if t >= 5:
                    free = [("oo", t - 5, J >> 1, J & 1)] if ("oo", t - 5, J >> 1, J & 1) in S.bykey else []
                    for i, x in enumerate(acc_copy(O(t, J), Oreg(t, 2 * J)[1])): add(("ar", t, J, i), x, free + [final_pv(t, J, i)])
        S.run(mf, keep=True)
        late = [o for o in S.valu if o.key[0] == "ar"]
        keepv = [o for o in S.valu if o.key[0] in ("mul", "exp", "cvt")]
        S.valu = [o for o in S.valu if o not in late and o not in keepv]
        S.flush(); S.valu = [o for o in keepv if o.key not in S.done]
        mark(11 + 2 * gi)
        E = []; pend = []
        def drain(n):
            if pend:
                t, a = pend.pop()
                E.append(I(f"s_waitcnt lgkmcnt({n})", "w")); E.extend(out(t, a, nn) for nn in (0, 1))
        halves = [(t, a) for a in (0, 1) for t in g] if end else [(t, a) for t in g for a in (0, 1)]
        now = len(halves) if end else CFG["now"]
        for i, (t, a) in enumerate(halves):
            for J in (2 * a, 2 * a + 1):
                E += [o.ins for o in late if o.key[1:3] == (t, J)]
                convert(E, O(t, J), Preg(0, t))
                if i >= now + CFG["lazy"]: del E[-4:]; lazy.add((t, a))
                if i < now: E.append(o_write(t % 6, J, O(t, J)))
            if i < now:
                E += [back(t, a, nn) for nn in (0, 1)]
                drain(4); pend.append((t, a))
            elif i == now: drain(0)
        drain(0)
        parked = halves[now:]
        S.emit(I(".p2align 3", "#"))
        for x in align8(fix_hazards(E, S.out[-10:]), False): S.emit(x)
        mark(12 + 2 * gi)
    return S.out[start:]

class Job: pass
def build_job(NT):
    J = Job(); J.NT = NT; J.carry = carry = find_carry(NT); J.body = {}
    for mode in ("q", "o", "oq"):
        S = start_job(NT, mode)
        st = run_segs(S, range(15), carry)
        st[15] = len(S.out)
        for k in range(3, 17, 2):
            while S.out[st[k] - 1].k != "M": st[k] -= 1
        bodies = [S.out[st[k]:st[k + 2]] for k in range(3, 15, 2)]
        for b in bodies[1:]:
            assert [x.t for x in b] == [x.t for x in bodies[0]], "loop body not periodic"
        J.body[mode] = bodies[0] + [sc(f"s_cbranch_scc0 L_body{mode}{NT}")]
    epi = build_tail(S)
    J.head = S.out[:st[3]] + [sc(f"s_cbranch_scc1 L_close{NT}")]
    J.close = [sc(x) for x in (f"s_cmp_eq_u32 s{sRole}, 0", f"s_cselect_b32 s{sQx}, s{sK}, s{sV}", f"s_cselect_b32 s{sQx+1}, s{sK+1}, s{sV+1}",
                               f"s_add_u32 s{sQx}, s{sQx}, {3*KH + CFG['kvpf']*8192}", f"s_addc_u32 s{sQx+1}, s{sQx+1}, 0", f"s_mov_b32 s{sQx+2}, {KH - CFG['kvpf']*8192}",
                               f"s_lshl_b32 s{sU3}, s{sW}, {6 + CFG['kvsh']}",
                               f"v_mbcnt_lo_u32_b32 v{vQ6}, -1, 0", f"v_mbcnt_hi_u32_b32 v{vQ6}, -1, v{vQ6}", f"v_lshl_add_u32 v{vQ6}, v{vQ6}, {CFG['kvsh']}, s{sU3}", f"s_mov_b32 s{sLoop}, 4", f"s_mov_b32 s{sU3}, 0")]
    J.again = {m: [sc(f"s_xor_b32 s{sU3}, s{sU3}, 1"), sc(f"s_cbranch_scc0 {lab}")] + code_touch(base, size_) + [sc(f"s_mov_b32 s{sLoop}, 0"), sc(f"s_branch L_body{m}{NT}")]
               for m, lab, base, size_ in (("q", f"L_tail{NT}", sPfA, "L_end_code-L_job7"), ("o", f"L_last{NT}", sPfB, "L_final-L_end_code"))}
    J.tail = S.out[st[15]:] + epi
    J.last = build_last(NT, carry)
    return J

def grp_batch(e):
    L = []; x = ((e + 1) & 1) * 128
    for i, (srd, blk, o) in enumerate(((sK, e + 1, 0), (sK, e + 1, 128), (sV, e - 1, x), (sV, e, x))):
        if blk >= 0:
            L += [sc(f"s_add_u32 m0, s{sWoff}, {(e & 3)*16384 + i*1024 - o}", wr=M0), sc(f"s_mov_b32 s{sT0}, {blk*8192}"), dma(vDKV, srd, sT0, o, CFG["kv"[i >> 1]], ("grp", e))]
    return L
def q_batch(slot, base, o, tag):
    L = []
    hold = {int(x[1]): int(x[2:]) for x in CFG["hold"].split(",") if x}
    if tag[1] in hold:
        L += [sc("s_bitcmp1_b32 s2, 0"), sc(f"s_cbranch_scc1 L_deep{tag[1]}"), sc(f"s_waitcnt vmcnt({hold[tag[1]]})"), I(f"L_deep{tag[1]}:", "#")]
    for a in (0, 1):
        L += [sc(f"s_add_u32 m0, s{sStgB}, {slot*4096 + a*896}", wr=M0), sc(f"s_add_u32 s{sT1}, s{base}, {o}")]
        L += [dma(vQO, sQ, sT1, nn * 2048 + a * 128, CFG["q"], tag) for nn in (0, 1)]
    return L

def build_first(NT, carry, early2):
    S = Sched(NT); S.th = CFG["fth"]
    forbid = {shift(x, 2) for x in carry}
    assert all(x[1] == 2 and x[3] >= early2 for x in forbid if x[0] in ("mul", "exp", "cvt"))
    Kh = lambda p: (lambda kt, ds: ("a", (aO, aO + 32, aK)[p] + kt * 16 + ds * 4))
    V1 = lambda j, b: Oreg(4, j)
    em = lambda L: [S.emit(x) for x in L]
    fm = CFG["fm"].split(",")
    mark = lambda n: S.emit(sc(f"s_memrealtime s[{80+2*fm.index(n)}:{81+2*fm.index(n)}]")) if n in fm else None
    mark("i")
    batches = [q_batch(t, sCurO, t * 4096, ("q0", t)) for t in range(CFG["pre"], 6)]
    while len(batches) < 4: batches.append([])
    batches += [[sc(f"s_cmp_eq_u32 s{sN7c}, 1"), sc(f"s_cselect_b32 s{sU0}, s{sCurO}, {OOB:#x}")] + q_batch(1, sU0, 24576, ("q0", 6))]
    batches += [grp_batch(e) for e in (2, 3, 4)]
    kreads = lambda p: [ds128("a", Kh(p)(kt, ds)[1], vK + (ds & 1), ((p - 1) & 3) * 16384 + koff(kt, ds)) for kt, ds in KORD]
    em([I("s_waitcnt vmcnt(?)", "w", tag=("needgrp", 0)), I("s_barrier", "B")]); mark("a")
    em(batches.pop(0) + kreads(0) + kreads(1))
    em([dstr("v", V1(j, 1)[1] + 2 * kt, vV + (j >> 1), voff(j, 1, kt)) for j in range(4) for kt in (0, 1)])
    def second():
        em([I("s_waitcnt vmcnt(?)", "w", tag=("needgrp", 1)), I("s_barrier", "B")]); mark("b")
        em(batches.pop(0))
        em([dstr("a", Vreg(j, b) + 2 * kt, vV + (j >> 1), 16384 + voff(j, b, kt)) for j, b in VORD for kt in (0, 1)] + kreads(2))
        em([V(f"v_xor_b32 v{r}, 0x8000, v{r}", [r], [r]) for r in (vK, vK + 1, vV, vV + 1)])
    lastbuf = {}
    def qk(p, t, bufs):
        L = []
        war = [("pv", 2, t, 3, 0), ("pv", 1, t, 3, 1), ("sum", 1, t >> 1)] if p == 2 else []
        for kt, sb in enumerate(bufs):
            add_softmax(S, p, kt, t, sb, war)
            L += qk_chain(p, kt, t, sb, lastbuf.get(sb, []), Kh(p), None); lastbuf[sb] = [("cvt", p, kt, t, h) for h in (0, 1)]
        return L
    r1 = lambda t: pv_tile(1, t, V1, None)
    r2 = lambda t: pv_tile(2, t, None, None)
    done2 = 0; held = []
    for t in range(NT):
        if t == 4: split = len(S.out)
        end = t == NT - 1
        if t == 1: second()
        if t == 2: em([I("s_waitcnt lgkmcnt(0)", "w"), I("s_barrier", "B", tag=("bar", 1))])
        mark(f"p{t}")
        S.emit(I("s_waitcnt vmcnt(?)", "w", tag=("needq0", t))); mark(f"w{t}")
        em([q_read(t, ds, 1 if t == 6 else t) for ds in range(4)])
        while batches:
            em(batches.pop(0))
            if not end: break
        mf = held + qk(0, t, (vS, vS + 4)) + qk(1, t, (vS + 8, vS + 12)); held = []
        S.forbid = forbid
        if not end:
            own = (r1(t) if t < 5 else []) + sum_tile(1, t) + (r2(t) if t < 4 else []) + sum_tile(2, t)
            late = t < CFG["fpipe"]
            if late: held = own
            else: mf += own
            lim = min(early2 if t < 4 else min(x[3] for x in forbid if x[0] == "cvt"), (t + 1 - late) & ~1, 4, done2 + 1 if late else 4)
            while done2 < lim: mf += qk(2, done2, (vS + 8 * (done2 & 1 and not late), vS + 4 + 8 * (done2 & 1 and not late))); done2 += 1
            S.run(mf, keep=True); S.flush()
            continue
        g0 = S.gap
        for x in range(5, NT): mf += r1(x)
        mf += sum_tile(1, t)
        left = list(range(done2, NT - PHI))
        for x in range(4, NT):
            mf += r2(x) + (sum_tile(2, x) if x == t else [])
            if x == NT - 1 or len(left) > NT - 1 - x:
                while left and (x == NT - 1 or len(left) > NT - 1 - x):
                    y = left.pop(0); mf += qk(2, y, (sbuf(NT, 2, 0, y), sbuf(NT, 2, 1, y)))
        gv = g0 + [m[0] for m in mf].index(("pv", 2, NT - 1, 0, 0))
        S.add(S.scal, Op(("wb", 2), I("s_waitcnt vmcnt(?)", "w", tag=("needgrp", 2)), [], gv - 3))
        S.add(S.fixed, Op(("bar", 2), I("s_barrier", "B", tag=("bar", 2)), [("wb", 2)], gv - 2))
        prev = [("bar", 2)]
        for j, b in VORD:
            for kt in (0, 1):
                S.add(S.fixed, Op(("vr", 3, j, b, kt), v_read(3, j, b, kt), prev + [("pv", 2, NT - 1, j, b)], gv)); prev = [("vr", 3, j, b, kt)]; gv += 1
        S.run(mf, cut=True)
        while S.out[-1].k != "M": S.out.pop()
        T = []
        for j in range(0 if CFG["q4"] else 6):
            T.append([sc(f"s_mov_b32 m0, s{sStg}", wr=M0), sc(f"s_add_u32 s{sStg}, s{sStg}, 1024"), dma(vQO, sQx, None, 0, CFG["q"], ("q", 1))])
            T.append([sc(x) for x in bump(sQx, f"s{sD}") + [f"s_xor_b32 s{sD}, s{sD}, 0x700"]])
        ms = [i for i, x in enumerate(S.out) if x.k == "M"][-len(mf) + 8:][:2 * len(T):2]
        assert len(ms) == len(T)
        for i, g in reversed(list(zip(ms, T))): S.out[i + 1:i + 1] = g
    return S.out[:split], S.out[split:]

def sigma(x, d, t):
    return [f"v_bfe_u32 v{d}, v{x}, 1, 1", f"v_lshrrev_b32 v{t}, 3, v{x}", f"v_xor_b32 v{t}, v{t}, v{x}", f"v_and_b32 v{t}, 1, v{t}",
            f"v_lshl_or_b32 v{d}, v{t}, 1, v{d}", f"v_and_b32 v{t}, 4, v{x}", f"v_or_b32 v{d}, v{d}, v{t}"]
def swz_addr(row, col, d, t):
    return sigma(row, d, t) + [f"v_xor_b32 v{d}, v{d}, v{col}", f"v_lshlrev_b32 v{d}, 4, v{d}", f"v_and_b32 v{t}, 7, v{row}",
                               f"v_lshl_add_u32 v{d}, v{t}, 7, v{d}", f"v_lshrrev_b32 v{t}, 3, v{row}"]
def stg_addr(row, col, d, t):
    return [f"v_and_b32 v{t}, 7, v{row}", f"v_xor_b32 v{d}, v{t}, v{col}", f"v_lshlrev_b32 v{d}, 4, v{d}", f"v_lshl_add_u32 v{d}, v{t}, 7, v{d}"]

def stamp():
    if not CFG["stamp"]: return []
    x = vTmp + 2
    L = [sc(t) for t in (f"s_memtime s[{sTm}:{sTm+1}]", f"s_memrealtime s[{sTm+2}:{sTm+3}]", "s_waitcnt lgkmcnt(0)", "s_mov_b64 exec, 1")]
    for n, (a, b) in enumerate(((sTm, sTm + 2), (80, 82), (84, 86))):
        L += [sc(f"v_mov_b32 v{x}, s{a}"), sc(f"v_mov_b32 v{x+1}, s{b}"),
              I(f"buffer_store_dwordx2 v[{x}:{x+1}], off, s[{sDbg}:{sDbg+3}], s{sStampOff} offset:{8*n}", "S"), sc("s_nop 1")]
    return L + [sc("s_mov_b64 exec, -1"), sc(f"s_add_u32 s{sStampOff}, s{sStampOff}, 32"), sc("s_nop 3")]

def prologue():
    P = []
    A = lambda t: P.append(sc(t))
    if CFG["diag_tot"]: A("s_memrealtime s[96:97]")
    pm = lambda i: A(f"s_memrealtime s[{92+2*i}:{93+2*i}]") if CFG["stamp"] == 3 else None
    pm(0)
    A("s_cmp_ge_u32 s2, 256"); A("s_cbranch_scc1 L_exit")
    if CFG["again"]:
        A(f"s_mov_b32 s3, {CFG['again']}"); P.append(I("L_again:", "#"))
    A("s_load_dwordx4 s[80:83], s[0:1], 0"); A("s_load_dwordx4 s[84:87], s[0:1], 16")
    if CFG["stamp"]: A(f"s_load_dwordx2 s[{sDbg}:{sDbg+1}], s[0:1], 40")
    A("s_getpc_b64 s[100:101]"); P.append(I("L_pf:", "#"));
    sl = CFG["slice"]
    A(f"s_bfe_u32 s{sT0}, s2, {(sl << 16) | 3:#x}"); A(f"s_lshl_b32 s{sT0}, s{sT0}, {15 - sl}")
    A(f"v_lshrrev_b32 v{vPf}, {sl}, v0"); A(f"v_lshl_add_u32 v{vPf}, v{vPf}, 7, s{sT0}")
    A("v_lshrrev_b32 v20, 6, v0"); A("v_and_b32 v21, 63, v0")
    P += code_touch(100, "L_job7-L_pf")
    for d, lab in ((sPfA, "L_job7"), (sPfB, "L_end_code")):
        A(f"s_add_u32 s{d}, s100, {lab}-L_pf"); A(f"s_addc_u32 s{d+1}, s101, 0")
    A(f"v_readfirstlane_b32 s{sW}, v20")
    A(f"s_and_b32 s{sT0}, s2, 7"); A(f"s_lshr_b32 s{sT1}, s2, 3"); A(f"s_and_b32 s{sRole}, s{sT1}, 1"); A(f"s_lshr_b32 s{sT1}, s{sT1}, 1")
    A(f"s_lshl_b32 s{sT0}, s{sT0}, 4"); A(f"s_add_u32 s{sT0}, s{sT0}, s{sT1}")
    if CFG["samehead"]: A(f"s_mov_b32 s{sT0}, 0")
    A(f"s_mul_i32 s{sT1}, s{sT0}, {4*QH}"); A(f"s_lshl_b32 s{sT0}, s{sT0}, 19")
    A("v_lshrrev_b32 v22, 3, v21"); A("v_and_b32 v23, 7, v21")
    for x in sigma(22, 24, 25): A(x)
    A("v_xor_b32 v24, v24, v23"); A("v_lshlrev_b32 v24, 4, v24"); A(f"v_lshl_add_u32 v{vDKV}, v22, 8, v24")
    A("v_xor_b32 v24, v22, v23"); A("v_lshlrev_b32 v24, 4, v24"); A(f"v_lshl_add_u32 v{vQO}, v22, 8, v24")
    A(f"s_and_b32 s{sT2}, s{sW}, 1"); A(f"s_lshl_b32 s{sT2}, s{sT2}, 5"); A(f"s_lshl_b32 s{sT3}, s{sW}, 11"); A(f"s_lshl_b32 s{sWoff}, s{sW}, 12")
    A(f"v_xor_b32 v{vDKV}, s{sT2}, v{vDKV}"); A(f"v_add_u32 v{vDKV}, s{sT3}, v{vDKV}")
    A(f"s_mul_i32 s{sStgB}, s{sW}, 24576")
    for d, f, n7, base in ((sOffA, sN7A, CFG["split"] - 24, 0), (sOffB, sN7B, CFG["total"] - CFG["split"] - 24, CFG["split"] * 4096)):
        A(f"s_min_u32 s{d}, s{sW}, {n7}"); A(f"s_cselect_b32 s{f}, 1, 0"); A(f"s_lshl_b32 s{d}, s{d}, 12")
        A(f"s_add_u32 s{d}, s{d}, s{sStgB}"); A(f"s_add_u32 s{d}, s{d}, {base}")
    A(f"s_add_u32 s{sStgB}, s{sStgB}, 65536")
    A(f"s_mov_b32 s{sJob}, -1")
    P += params_next()
    pm(1)
    A("s_waitcnt lgkmcnt(0)")
    for srd, src, o, n in ((sK, 82, sT0, 4 * KH), (sV, 84, sT0, 4 * KH), (sQ, 80, sT1, 4 * QH), (sO, 86, sT1, 0 if CFG["nostore"] else 4 * QH)):
        same = (srd == sK and "samek" in CFG["x"]) or (srd == sV and "samev" in CFG["x"])
        A(f"s_add_u32 s{srd}, s{src}, {'0' if same else 's%d' % o}"); A(f"s_addc_u32 s{srd+1}, s{src+1}, 0"); A(f"s_mov_b32 s{srd+2}, {n}"); A(f"s_mov_b32 s{srd+3}, 0x20000")
    if CFG["stamp"]:
        A(f"s_mov_b32 s{sDbg+2}, 0x1000000"); A(f"s_mov_b32 s{sDbg+3}, 0x20000")
        A(f"s_lshl_b32 s{sStampOff}, s2, 2"); A(f"s_add_u32 s{sStampOff}, s{sStampOff}, s{sW}"); A(f"s_lshl_b32 s{sStampOff}, s{sStampOff}, 10")
    P += stamp() if CFG["stamp"] == 1 else []
    pm(2)
    ga, gb, q0 = grp_batch(-1), grp_batch(0), q_batch(0, sNxt, 0, ("q0", 0))
    if CFG["ord"] == 0: P += ga + gb + q0
    elif CFG["ord"] == 1: P += q0[:4] + ga[:3] + gb[6:] + ga[3:] + gb[:6] + q0[4:]
    elif CFG["ord"] == 2: P += q0 + gb[6:] + ga + gb[:6]
    P += grp_batch(1)
    for t in range(1, CFG["pre"]): P += q_batch(t, sNxt, t * 4096, ("q0", t))
    pm(3)
    if CFG["stamp"] == 3:
        A("s_waitcnt lgkmcnt(0)")
        for i in range(4): A(f"s_mov_b32 s{80+2*i}, s{92+2*i}")
        P += stamp()
    A("v_and_b32 v22, 15, v21"); A("v_lshrrev_b32 v23, 4, v21")
    for x in swz_addr(22, 23, 24, 25): A(x)
    A(f"v_lshl_add_u32 v{vK}, v25, 12, v24"); A(f"v_xor_b32 v{vK+1}, 64, v{vK}")
    for x in stg_addr(22, 23, 24, 25): A(x)
    A("v_lshrrev_b32 v25, 1, v22"); A("v_xor_b32 v25, v25, v22"); A("v_bfe_u32 v25, v25, 2, 1"); A("v_lshl_add_u32 v24, v25, 11, v24")
    A(f"v_add_u32 v{vSt}, s{sStgB}, v24"); A(f"v_xor_b32 v{vSt+1}, 64, v{vSt}")
    A(f"s_add_u32 s{sT2}, s{sWoff}, 49152"); A(f"v_add_u32 v{vQ6}, s{sT2}, v24"); A(f"v_xor_b32 v{vQ6+1}, 64, v{vQ6}")
    A(f"v_lshl_add_u32 v{vLin}, v21, 4, s{sStgB}"); A(f"v_add_u32 v{vLin}, 24576, v{vLin}")
    A("v_lshrrev_b32 v22, 2, v21"); A("v_and_b32 v23, 3, v21")
    for x in swz_addr(22, 23, 24, 25): A(x)
    A(f"v_lshl_add_u32 v{vV}, v25, 12, v24"); A(f"v_xor_b32 v{vV+1}, 64, v{vV}")
    if "vcf" in CFG["x"]:
        A("v_and_b32 v24, 1, v21"); A(f"v_lshl_add_u32 v{vV}, v24, 3, v{vV}"); A(f"v_lshl_add_u32 v{vV+1}, v24, 3, v{vV+1}")
    A(f"s_mov_b32 s{sC}, {f2u(1.0 if 'c1' in CFG['x'] else SCALE):#x}")
    A(f"s_mov_b32 s{sHi}, {f2u(2.0**CFG['hi']):#x}")
    if "perm" in CFG["x"]: A(f"s_mov_b32 s{sLo}, 0x07060302")
    A(f"s_mov_b32 s{sFlag}, {CFG['forcefb']}")
    for d, b, blk in ((sVa, sV, 4), (sVb, sV, 5), (sKx, sK, 6)):
        A(f"s_add_u32 s{d}, s{b}, {blk*8192}"); A(f"s_addc_u32 s{d+1}, s{b+1}, 0"); A(f"s_mov_b32 s{d+2}, 8192")
    for d in (sKx, sVa, sVb, sQx, sOx): A(f"s_mov_b32 s{d+3}, 0x20000")
    A(f"s_mov_b32 s{sCnt}, 6"); A(f"s_add_u32 s{sM}, s{sWoff}, 16384"); A(f"s_mov_b32 s{sCurO}, 0"); A(f"s_mov_b32 s{sOx+2}, {0 if CFG['nostore'] else 4096}")
    A("v_and_b32 v22, 1, v21"); A("v_mul_u32_u24 v22, 0xaaaa, v22"); A(f"v_add_u32 v{vIdx}, 0x4444, v22"); A(f"v_lshl_or_b32 v{vIdx}, v{vIdx}, 16, v{vIdx}")
    A("v_lshrrev_b32 v22, 4, v21"); A("v_xor_b32 v22, v22, v21"); A("v_and_b32 v23, 2, v22")
    A("v_cmp_eq_u32 vcc, 0, v23"); A("v_mov_b32 v24, 0x3f803f80"); A("s_nop 0"); A("v_cndmask_b32 v22, 0, v24, vcc")
    for i in range(4): A(f"v_mov_b32 v{vOne+i}, v22")
    for i in range(16): A(f"v_accvgpr_write_b32 a{aL+i}, 0")
    return P + advance() + [sc(f"s_mov_b32 s{sLoop}, 4"), sc(f"s_mov_b32 s{sU3}, 0")]

def job_switch(NT):
    L = []
    if CFG["diag_mark"] > 0: L = [sc(f"s_cmp_lg_u32 s{sJob}, {CFG['diag_mark']}"), sc(f"s_cbranch_scc1 L_nomark{NT}"), sc("s_memrealtime s[96:97]"), I(f"L_nomark{NT}:", "#")]
    L += stamp() + [sc(f"s_cmp_eq_u32 s{sN7c}, 1"), sc("s_cbranch_scc1 L_job7")]
    return L + ([sc("s_branch L_job6")] if NT == 6 else [])

def final():
    L = [I("L_final:", "#")]
    if CFG["diag_mark"] == 4: L.append(sc("s_memrealtime s[96:97]"))
    if CFG["stamp"]: L += stamp() + stamp() + [I("s_waitcnt vmcnt(0)", "w")] + stamp()
    return L

def fallback():
    L = []; A = L.append
    q, k, s0, pb, vf, o, lacc, m, t0, va, pa, one = 20, 36, 52, 60, 64, 72, 104, 108, 109, 112, 114, 116
    sJ, sN, sRow, sKb, sI, sU = sU0, sU1, sU2, sU3, sLoop, sD
    MF = "v_mfma_f32_16x16x32_bf16"
    A(f"s_cmp_eq_u32 s{sFlag}, 0"); A("s_cbranch_scc1 L_done")
    A("s_waitcnt vmcnt(0) lgkmcnt(0)")
    A("v_mbcnt_lo_u32_b32 v21, -1, 0"); A("v_mbcnt_hi_u32_b32 v21, -1, v21"); A("v_and_b32 v22, 15, v21"); A("v_lshrrev_b32 v23, 4, v21")
    A(f"v_lshlrev_b32 v{vDir}, 8, v22"); A(f"v_lshl_add_u32 v{vDir}, v23, 4, v{vDir}")
    A("v_lshrrev_b32 v22, 2, v21"); A("v_and_b32 v23, 3, v21")
    L += stg_addr(22, 23, 24, 25) + ["v_lshrrev_b32 v25, 3, v22"]
    A(f"v_lshl_add_u32 v{va}, v25, 11, v24"); A(f"v_add_u32 v{va}, s{sStgB}, v{va}"); A(f"v_xor_b32 v{va+1}, 64, v{va}")
    A(f"v_xor_b32 v{pa}, 16, v21"); A(f"v_lshlrev_b32 v{pa}, 2, v{pa}"); A(f"v_xor_b32 v{pa+1}, 32, v21"); A(f"v_lshlrev_b32 v{pa+1}, 2, v{pa+1}")
    for i in range(4): A(f"v_mov_b32 v{one+i}, 0x3f803f80")
    A(f"s_mov_b32 s{sJob}, -1")
    A("L_fb_job:")
    L += [x.t for x in params_next()]
    A(f"s_add_u32 s{sJob}, s{sJob}, 1"); A(f"s_cmp_eq_u32 s{sJob}, 4"); A("s_cbranch_scc1 L_done")
    A(f"s_lshr_b32 s{sJ}, s{sFlag}, s{sJob}"); A(f"s_and_b32 s{sJ}, s{sJ}, 1"); A("s_cbranch_scc0 L_fb_job")
    A(f"s_add_u32 s{sN}, s{sN7n}, 5"); A(f"s_mov_b32 s{sRow}, s{sNxt}")
    A("L_fb_tile:")
    for ds in range(4): A(f"buffer_load_dwordx4 {rs('v', q+4*ds, 4)}, v{vDir}, s[{sQ}:{sQ+3}], s{sRow} offen{off(ds*64)}")
    def scores(dst):
        for ds in range(4): A(f"buffer_load_dwordx4 {rs('v', k+4*ds, 4)}, v{vDir}, s[{sK}:{sK+3}], s{sKb} offen{off(ds*64)}")
        A("s_waitcnt vmcnt(0)")
        for ds in range(4): A(f"{MF} {rs('v', dst, 4)}, {rs('v', k+4*ds, 4)}, {rs('v', q+4*ds, 4)}, {'0' if ds == 0 else rs('v', dst, 4)}")
        A(f"s_add_u32 s{sKb}, s{sKb}, 4096"); A("s_nop 7")
    A(f"v_mov_b32 v{m}, 0xff800000"); A(f"s_lshl_b32 s{sKb}, s{sJob}, 17"); A(f"s_mov_b32 s{sI}, 31")
    A("L_fb_max:")
    scores(s0)
    A(f"v_max3_f32 v{m}, v{m}, v{s0}, v{s0+1}"); A(f"v_max3_f32 v{m}, v{m}, v{s0+2}, v{s0+3}")
    A(f"s_sub_u32 s{sI}, s{sI}, 1"); A("s_cbranch_scc0 L_fb_max")
    for i in (0, 1):
        A(f"ds_bpermute_b32 v{t0}, v{pa+i}, v{m}"); A("s_waitcnt lgkmcnt(0)"); A(f"v_max_f32 v{m}, v{m}, v{t0}")
    for i in range(36): A(f"v_mov_b32 v{o+i}, 0")
    A(f"s_lshl_b32 s{sKb}, s{sJob}, 17"); A(f"s_mov_b32 s{sI}, 15")
    A("L_fb_pv:")
    for kt in (0, 1):
        for a in (0, 1):
            A(f"s_add_u32 m0, s{sStgB}, {kt*4096 + a*896}"); A(f"s_add_u32 s{sU}, s{sKb}, {kt*4096}")
            for nn in (0, 1): A(f"buffer_load_dwordx4 v{vQO}, s[{sV}:{sV+3}], s{sU} offen{off(nn*2048 + a*128)} lds")
    scores(s0); scores(s0 + 4)
    for r in range(8): A(f"v_sub_f32 v{s0+r}, v{s0+r}, v{m}")
    for r in range(8): A(f"v_mul_f32 v{s0+r}, s{sC}, v{s0+r}")
    for r in range(8): A(f"v_exp_f32 v{s0+r}, v{s0+r}")
    A("s_nop 0")
    for r in range(4): A(f"v_cvt_pk_bf16_f32 v{pb+r}, v{s0+2*r}, v{s0+2*r+1}")
    A("s_nop 1")
    A(f"{MF} {rs('v', lacc, 4)}, {rs('v', one, 4)}, {rs('v', pb, 4)}, {rs('v', lacc, 4)}")
    for dj in range(8):
        J, h = dj >> 1, dj & 1; f = vf + 4 * (dj & 1)
        for kt in (0, 1): A(f"ds_read_b64_tr_b16 {rs('v', f+2*kt, 2)}, v{va + (J & 1)}{off(kt*4096 + (J >> 1)*1024 + 8*h)}")
        A("s_waitcnt lgkmcnt(0)")
        A(f"{MF} {rs('v', o+4*dj, 4)}, {rs('v', f, 4)}, {rs('v', pb, 4)}, {rs('v', o+4*dj, 4)}")
    A(f"s_sub_u32 s{sI}, s{sI}, 1"); A("s_cbranch_scc0 L_fb_pv")
    A("s_nop 7"); A(f"v_rcp_f32 v{t0}, v{lacc}"); A("s_nop 0")
    for i in range(32): A(f"v_mul_f32 v{o+i}, v{t0}, v{o+i}")
    for J in range(4):
        for i in range(4): A(f"v_cvt_pk_bf16_f32 v{o+8*J+i}, v{o+8*J+2*i}, v{o+8*J+2*i+1}")
        A(f"buffer_store_dwordx4 {rs('v', o+8*J, 4)}, v{vDir}, s[{sO}:{sO+3}], s{sRow} offen{off(J*64)}")
    A("s_waitcnt vmcnt(0)")
    A(f"s_add_u32 s{sRow}, s{sRow}, 4096"); A(f"s_sub_u32 s{sN}, s{sN}, 1"); A("s_cbranch_scc0 L_fb_tile")
    A("s_branch L_fb_job")
    A("L_done:")
    return [I(x, "#" if x.endswith(":") else "s") for x in L]

def resolve(pro, jobs, fin):
    best = {}
    for seqn in ([7, 7, 7, 7], [7, 6, 7, 6], [6, 7, 6, 7], [6, 6, 6, 6]):
        dyn = [(x, 0) for x in pro]
        for j, v in enumerate(seqn):
            J = jobs[v]; b = 16 * j
            dyn += [(x, b) for x in (jobs[7].fcom + J.first if j == 0 else J.head + (J.close if j == 3 else []))]
            m = ("q", "oq", "oq", "o")[j]
            for it in range(6): dyn += [(x, b + 2 * it) for x in J.body[m] + ([] if m == "oq" or it < 4 else J.again[m][:9 if it == 4 else 2])]
            dyn += [(x, b) for x in (J.tail + J.sw if j < 3 else J.last)]
        dyn += [(x, 64) for x in fin]
        vm = []; epoch = -2
        for x, b in dyn:
            if x.k == "B": epoch = (x.tag[1] + b) if x.tag else -1
            if x.k == "D" and x.tag and x.tag[0] == "ring":
                assert x.tag[1] + b == epoch, ("ring read outside its epoch", x.t, x.tag, b, epoch)
            if x.k in "XLS":
                tg = x.tag
                if tg and tg[0] in ("grp", "q"): tg = shift(tg, b)
                if tg and tg[0] == "grp": assert epoch == -2 or tg[1] - 4 < epoch, ("dma overwrites live group", x.t)
                vm.append(tg)
            if x.k == "w" and x.tag:
                want = (x.tag[0][4:],) + tuple(x.tag[1:])
                if want[0] in ("grp", "q"): want = shift(want, b)
                idx = max(i for i, t in enumerate(vm) if t == want)
                n = min(63, len(vm) - 1 - idx)
                best[id(x)] = (x, min(n, best.get(id(x), (x, 99))[1]))
        seq = [x for x, _ in dyn]
        last = None
        for x in seq:
            op = x.t.split()[0]
            if op == "s_addc_u32":
                a = int(re.match(r"s_addc_u32 s(\d+)", x.t).group(1))
                assert last.startswith(f"s_add_u32 s{a-1},"), (last, x.t)
            if op == "s_cselect_b32": assert re.match(r"s_(cmp|and_b32|or_b64|min)", last), (last, x.t)
            if x.t.startswith("s_cbranch_scc0 L_body"): assert last.startswith(f"s_sub_u32 s{sLoop},"), last
            elif op.startswith("s_cbranch_scc"): assert last.startswith(("s_cmp", "s_bitcmp", f"s_xor_b32 s{sU3},")), (last, x.t)
            if re.match(r"s_(add|sub|and|or|xor|lshl|lshr|cmp|min|max|bitcmp|bfe)", op): last = x.t
        check_lgkm(seq)
        bad = hazards(seq)
        assert not bad, bad[:5]
    for x, n in best.values():
        if CFG["less"] and x.tag[0] == "needgrp" and "lgkm" in x.t: n = max(0, n - (10 if n >= 19 else 4))
        x.t = x.t.replace("?", str(n))

def main():
    jobs = {nt: build_job(nt) for nt in (7, 6)}
    mt = lambda i: [sc(f"s_memtime s[{80+2*i}:{81+2*i}]")] if CFG["stamp"] else []
    for nt, J in jobs.items():
        J.fcom, J.first = build_first(nt, J.carry, min(x[3] for K in jobs.values() for x in K.carry if x[0] == "cvt"))
        assert [x.t for x in J.fcom] == [x.t for x in jobs[7].fcom]
        if CFG["diag_mark"] == 0: J.first.append(sc("s_memrealtime s[96:97]"))
        J.first += stamp() + mt(0) + mt(1) + [sc("s_nop 4")]
        J.sw = job_switch(nt)
    jobs[7].fcom += [sc(f"s_cmp_eq_u32 s{sN7c}, 0"), sc("s_cbranch_scc1 L_first6")]
    pro = prologue(); fin = final()
    resolve(pro, jobs, fin)
    info = []
    for nt, J in jobs.items():
        nm = lambda s: sum(x.k == "M" for x in s)
        t = " ".join(f"{n}: {cycles(s)}c iss {issue_sum(s)} pipe {nm(s)*16} |" for n, s in (("head", J.head), *J.body.items(), ("tail", J.tail), ("last", J.last), ("first", jobs[7].fcom + J.first)))
        info.append(f"NT={nt} carry={len(J.carry)} {t} total={cycles(J.head + 6 * J.body['oq'] + J.tail + J.sw)}")
    o = open("header.txt").read().rstrip("\n").split("\n")
    o += ['.amdgcn_target "amdgcn-amd-amdhsa--gfx950"', ".text", f".globl {NAME}_kernel", ".p2align 8", f".type {NAME}_kernel,@function", f"{NAME}_kernel:"]
    X = CFG["x"].split()
    def keep(x):
        if "mul" in X and x.t.startswith("v_mul_f32") and f"s{sC}," in x.t and x.k == "V": return None
        if "sum" in X and "smfmac" in x.t: return None
        if "nofb" in X and x.t == f"s_cmp_eq_u32 s{sFlag}, 0": return "s_cmp_eq_u32 0, 0"
        if "norcp" in X and x.t.startswith("v_rcp_f32") and x.k == "E": return x.t.split(",")[0].replace("v_rcp_f32", "v_sqrt_f32") + ", 1.0"
        if inbody[0]:
            if "ds" in X and x.k == "D": return "v_mov_b32 v12, v12"
            if "kvdma" in X and x.k == "X" and x.tag[0] == "grp": return "v_mov_b32 v12, v12"
            if "st" in X and x.k == "S": return "v_mov_b32 v12, v12"
            if "bar" in X and x.k == "B": return "s_nop 2"
        return x.t
    inbody = [False]; intail = [False]
    put = lambda s: o.extend(("" if x.k == "#" else "    ") + keep(x) for x in s if keep(x) is not None)
    def loop(J, mode):
        o.append(f"L_body{mode}{J.NT}:"); inbody[0] = True; put(J.body[mode]); inbody[0] = False
    put(pro); put(jobs[7].fcom)
    for nt, J in jobs.items():
        o.append(f"L_first{nt}:"); put(J.first); loop(J, "q"); put(J.again["q"])
    for nt, J in jobs.items():
        o.append(f"L_job{nt}:"); put(mt(0)); put(J.head[:-1] + mt(1) + J.head[-1:]); loop(J, "oq")
        o.append(f"L_tail{nt}:"); put(mt(2)); put(mt(3)); intail[0] = True; put(J.tail); intail[0] = False; put(J.sw)
    o.append("L_end_code:")
    for nt, J in jobs.items():
        o.append(f"L_close{nt}:"); put(J.close); loop(J, "o"); put(J.again["o"]); o.append(f"L_last{nt}:"); put(mt(2)); put(mt(3)); put(J.last)
        if nt == 7: o.append("    s_branch L_final")
    put(fin); put(fallback())
    if CFG["again"]:
        o += ["    s_waitcnt vmcnt(0) lgkmcnt(0)", "    s_barrier", "    v_mbcnt_lo_u32_b32 v0, -1, 0", "    v_mbcnt_hi_u32_b32 v0, -1, v0", f"    v_lshl_add_u32 v0, s{sW}, 6, v0", "    s_sub_u32 s3, s3, 1", "    s_cbranch_scc0 L_again"]
    if CFG["diag_tot"]:
        o += ["    s_waitcnt vmcnt(0) lgkmcnt(0)", "L_diag:", "    s_memrealtime s[94:95]", "    s_waitcnt lgkmcnt(0)",
              "    s_sub_u32 s94, s94, s96", f"    s_cmp_lt_u32 s94, {CFG['diag_tot']}", "    s_cbranch_scc1 L_diag"]
    o += ["L_exit:", "    s_endpgm", "L_code_end:"]
    while True:
        pos = 0; fixat = None
        for k in range(o.index(f"{NAME}_kernel:"), len(o)):
            t = o[k].strip()
            if fixat is None and k < o.index("L_final:"):
                if t.startswith("s_cbranch_scc0 L_body") and pos % 32 == 0: fixat = o.index(t.split()[1] + ":")
                elif ("branch" in t and pos % 32 == 0) or (t.endswith(":") and t != "L_pf:" and pos % 32 == 28): fixat = k
            if t.startswith(".p2align"): a = 1 << int(t.split()[1]); pos = (pos + a - 1) // a * a
            elif not t.endswith(":"): pos += size(t)
        if fixat is None: break
        o.insert(fixat, "    s_nop 0")
    info.append(f"code bytes {pos}")
    notes = {"L_first": "first job: key blocks 0..2 tile by tile while the queries arrive (last tiles)", "L_bodyq": "first job: main loop, two key blocks per pass",
             "L_job": "later jobs: opening key blocks", "L_bodyoq": "middle jobs: main loop, two key blocks per pass",
             "L_tail": "closing key blocks, range check of the row sums, normalisation, next job's queries", "L_close": "last job",
             "L_bodyo": "last job: main loop", "L_last": "last job: tiles finish in groups and are stored at once",
             "L_final": "jobs whose row sums left the safe window are redone below", "L_fb_job": "exact-maximum path: next recorded job",
             "L_fb_tile": "one query tile", "L_fb_max": "pass 1: true row maximum", "L_fb_pv": "pass 2: exp2((s - max) * c), row sum, P V"}
    for k in range(len(o) - 1, -1, -1):
        m = re.fullmatch(r"(L_[a-z_]+?)(\d?):", o[k])
        if m and m.group(1) in notes: o.insert(k, "; " + notes[m.group(1)] + (f" ({m.group(2)} tiles per wave)" if m.group(2) else ""))
    o += ['.section .rodata,"a"', ".p2align 6", f".amdhsa_kernel {NAME}_kernel",
          "  .amdhsa_next_free_vgpr 512", "  .amdhsa_next_free_sgpr 102", "  .amdhsa_accum_offset 256",
          "  .amdhsa_group_segment_fixed_size 0", "  .amdhsa_kernarg_size 48", "  .amdhsa_user_sgpr_count 2",
          "  .amdhsa_user_sgpr_kernarg_segment_ptr 1", "  .amdhsa_system_sgpr_workgroup_id_x 1", ".end_amdhsa_kernel"]
    open(sys.argv[1], "w").write("\n".join(o) + "\n")
    print("\n".join(info), file=sys.stderr)

main()
```

```python
import sys, math, struct, re
from asmlib import *

NAME = "standalone__gqa_softmax__near_ridge"
CFG = dict(k="", v="", lastdef=1, q="nt", q0="nt", ntg=-9, o="nt", ol="nt", oe="nt", oe2="nt", th=44, hth=30, tth=20, fth=24, lth=44, sp=8, spq=7, lw=3, lb=6, lo_=12, lend=10, spodd=8, sh6=3, sroom=4, pre=2, ord=0, split=27, total=53,
           phi=2, g7="g", g6="g", vw=4, park=1, nlazy=2, w0=12, w2=0, hold="", groups="01,23,45,6", ahead=0, now=0, lazy=1, q4=1, kvpf=12, kvsh=4, less=0, zz=1, dd=1, hdd=9, e1=0, d1=10, slice=3, fpipe=1, fm="", qo0=6, kw=3, lo=-30, hi=30,
           stamp=0, samehead=0, nostore=0, again=0, tmark=-1, x="", diag_tot=0, diag_mark=-1, forcefb=0)
for a in sys.argv[2:]:
    k, v = a.split("=", 1)
    assert k in CFG, k
    CFG[k] = int(v) if re.fullmatch(r"-?\d+", v) else v.replace("+", " ")

QH, KH = 217088, 131072
SCALE = math.log2(math.e) / math.sqrt(128.0)
def f2u(x): return struct.unpack("<I", struct.pack("<f", x))[0]

vK, vV, vDKV, vQO, vLin, vSt, vQ6 = 1, 3, 5, 6, 7, 8, 10
vTmp, vOne = 12, 16
vS = 20
vP = 36
vO = 92
vIdx, vDir = 252, 253
vPf, vPt, vSink = 253, 254, 0
aQ, aK, aV, aL, aO = 0, 112, 144, 176, 192
sQ, sK, sV, sO = 4, 8, 12, 16
(sC, sW, sJob, sCnt, sU0, sU1, sU2, sM, sU3, sD, sOp, sStg, sLoop, sCurO, sNxt, sN7c, sN7n, sFlag, sRole,
 sT0, sT1, sT2, sT3, sWoff, sStgB, sOffA, sOffB, sLo, sHi, sBit, sN7A, sN7B) = range(20, 52)
sPfA, sPfB = 52, 54
sPair = 56
sStampOff = 58
sDbg = 60
sKx, sVa, sQx, sOx, sVb = 64, 68, 72, 76, 88
sTm = 92
OOB = 0x100000

def Oreg(t, dj):
    return ("v", vO + t * 32 + dj * 4) if t < 5 else ("a", aO + (t - 5) * 32 + dj * 4)
def Preg(p, t):
    return vP + t * 4 if not p & 1 else vP + 28 + ((t + 1) % 7) * 4
def Qreg(t, ds): return aQ + (t * 4 + ds) * 4
def sbuf(NT, p, kt, t): return vS + (((p * NT + t) * 2 + kt) & 3) * 4
def pdeps(p, t): return [("cvt", p, kt, t, h) for kt in (0, 1) for h in (0, 1)]
def sc(t, rd=(), wr=()): return I(t, "s", rd=rd, wr=wr)
def fl(x): return (" " + x) if x else ""
def off(x): return f" offset:{x}" if x else ""
def V(t, rd, wr, k="V"): return I(t, k, rd=[("v", r) if isinstance(r, int) else r for r in rd], wr=[("v", r) if isinstance(r, int) else r for r in wr])
COST = {"V": 1, "E": 2, "D": 1}
M0 = [("m", 0)]

class Op:
    def __init__(self, key, ins, deps=(), target=None, rel=None):
        self.key = key; self.ins = ins; self.deps = list(deps); self.target = target; self.rel = rel

class Sched:
    def __init__(self, NT):
        self.NT = NT
        self.out = []; self.done = set(); self.pend = []
        self.valu = []; self.fixed = []; self.scal = []; self.flex = []
        self.forbid = set(); self.gap = 0
        self.bykey = {}; self.th = CFG["th"]; self.mode = "oq"; self.dd = CFG["hdd"]
    def add(self, q, op):
        q.append(op); self.bykey[op.key] = op
    def emit(self, ins, key=None):
        if ins.k == "w":
            m = re.search(r"lgkmcnt\((\d+)\)", ins.t)
            if m:
                n = int(m.group(1))
                if n < len(self.pend): self.pend = self.pend[len(self.pend) - n:] if n else []
        self.out.append(ins)
        if ins.k in "DW": self.pend.append(ins)
        if key is not None: self.done.add(key)
    def haz(self, ins):
        dist = 0; miss = 0
        for p in reversed(self.out):
            miss = max(miss, need(p, ins) - dist)
            dist += states(p)
            if dist >= 8: break
        return miss
    def lgkm_need(self, inss):
        idx = -1
        for ins in inss:
            t = set(ins.rd) | set(ins.c) | set(ins.wr)
            for i, p in enumerate(self.pend):
                if set(p.wr) & t: idx = max(idx, i)
        return None if idx < 0 else min(15, len(self.pend) - 1 - idx)
    def ready(self, op):
        return op.key not in self.forbid and all(d in self.done for d in op.deps) and \
            (op.target is None or op.target <= self.gap) and self.haz(op.ins) <= 0
    def put(self, op):
        for q in (self.valu, self.fixed, self.scal, self.flex):
            if op in q: q.remove(op)
        n = self.lgkm_need([op.ins])
        if n is not None: self.emit(I(f"s_waitcnt lgkmcnt({n})", "w"))
        m = self.haz(op.ins)
        if m > 0: self.emit(I(f"s_nop {m-1}", "s"))
        self.emit(op.ins, op.key)
    def force(self, key):
        if key in self.done: return
        op = self.bykey[key]
        assert key not in self.forbid, key
        for d in op.deps: self.force(d)
        self.put(op)
    def pick(self, kinds, n):
        r = []
        for op in self.valu[:48]:
            if op.ins.k in kinds and self.ready(op):
                r.append(op)
                if len(r) == n: break
        return r
    def backlog(self):
        return sum(COST[o.ins.k] for o in self.valu if o.rel is not None and o.rel in self.done)
    def fill(self, room):
        while room > 0:
            e = self.pick("E", 1); v = self.pick("V", 2)
            if room >= 2 and e and (len(v) < 2 or self.valu.index(e[0]) < self.valu.index(v[0])):
                self.put(e[0]); room -= 2
            elif v:
                self.put(v[0]); room -= 1
            elif e and self.backlog() > self.th - 4:
                self.put(e[0]); room -= 2
            else: break
        while self.backlog() > self.th:
            c = self.pick("EV", 1)
            if not c: break
            self.put(c[0])
    def run(self, mf, look=(), cut=False, keep=False):
        allm = list(mf) + list(look)
        for i, (key, ins, deps) in enumerate(mf):
            for d in deps: self.force(d)
            if i == len(mf) - 1 and not keep:
                if cut: self.flush()
                self.forbid = set()
                self.left = [o.key for q in (self.valu, self.fixed, self.scal) for o in q]
            n = self.lgkm_need([ins])
            if n is not None: self.emit(I(f"s_waitcnt lgkmcnt({n})", "w"))
            m = self.haz(ins)
            if m > 0: self.emit(I(f"s_nop {m-1}", "s"))
            self.emit(ins, key)
            afterw = len(self.out) > 1 and self.out[-2].k == "W"
            fx = next((o for o in self.fixed if self.ready(o) and not (afterw and o.ins.k in "DW")), None)
            slot1 = False
            nxt = [x[1] for x in allm[i + 1:i + 2]]
            if self.lgkm_need(nxt) is not None:
                nxt = [x[1] for x in allm[i + 1:i + 5]]
            if fx is not None and fx.ins.k != "B": nxt = nxt + [fx.ins]
            n = self.lgkm_need(nxt)
            if n is not None:
                self.emit(I(f"s_waitcnt lgkmcnt({n})", "w")); slot1 = True
                if fx is not None and fx.ins.k == "B": fx = None
            if fx is not None and fx.ins.k == "B":
                self.put(fx); self.fill(1)
            else:
                if not slot1 and self.scal and self.ready(self.scal[0]):
                    if not (fx is not None and fx.ins.k == "X" and ("m", 0) in self.scal[0].ins.wr): self.put(self.scal[0])
                room = 1 if "smfmac" in ins.t else 2
                if fx is not None and room == 1 and fx.ins.k != "D": fx = None
                if fx is not None:
                    self.put(fx); room = {"D": room - 1, "X": 1, "L": 1, "S": CFG["sroom"], "W": 0}[fx.ins.k]
                if fx is not None and fx.ins.k == "D" and room == 1 and len(self.pick("V", self.dd)) < self.dd and self.pick("E", 1):
                    self.gap += 1
                    f2 = next((o for o in self.fixed if o.ins.k == "D" and self.ready(o) and self.lgkm_need([o.ins]) is None), None)
                    self.gap -= 1
                    if f2 is not None: self.put(f2); room = 0
                if self.flex and fx is None and room == 2 and self.backlog() == 0 and not self.pick("E", 1) and not afterw:
                    f = next((o for o in self.flex if self.ready(o)), None)
                    if f is not None: self.put(f); room -= 1
                if room: self.fill(room)
                if self.out[-1].k in "Msw":
                    miss = [self.haz(o.ins) for o in self.valu[:16] if o.key not in self.forbid and all(d in self.done for d in o.deps)]
                    if miss and min(miss) > 1: self.emit(I(f"s_nop {min(min(miss) - 1, 3 - (self.out[-1].k != 'M')) - 1}", "s"))
            self.gap += 1
    def flush(self):
        for q in (self.fixed, self.flex, self.scal, self.valu):
            for op in list(q):
                if op.key not in self.forbid and op.key not in self.done: self.force(op.key)

def ds128(k, r, ad, o, tag=None):
    return I(f"ds_read_b128 {rs(k, r, 4)}, v{ad}{off(o)}", "D", rd=[("v", ad)], wr=R(k, r, 4), tag=tag)
def dstr(k, r, ad, o, tag=None):
    return I(f"ds_read_b64_tr_b16 {rs(k, r, 2)}, v{ad}{off(o)}", "D", rd=[("v", ad)], wr=R(k, r, 2), tag=tag)
def koff(kt, ds): return kt * 8192 + (ds >> 1) * 1024
def voff(j, b, kt): return kt * 8192 + 2048 + b * 1024 + 8 * (j & 1)
def Kreg(kt, ds): return aK + kt * 16 + ds * 4
def Vreg(j, b): return aV + (2 * j + b) * 4
def k_read(p, kt, ds): return ds128("a", Kreg(kt, ds), vK + (ds & 1), ((p - 1) & 1) * 16384 + koff(kt, ds), ("ring", p - 1))
def v_read(r, j, b, kt): return dstr("a", Vreg(j, b) + 2 * kt, vV + (j >> 1), ((r - 1) & 1) * 16384 + voff(j, b, kt), ("ring", r - 1))
def q_read(t, ds, slot=None): return ds128("a", Qreg(t, ds), vSt + (ds & 1), (t if slot is None else slot) * 4096 + (ds >> 1) * 1024)
def so_(x): return "0" if x is None else f"s{x}"
def dma(vo, srd, so, o, flags, tag):
    return I(f"buffer_load_dwordx4 v{vo}, s[{srd}:{srd+3}], {so_(so)} offen{off(o)}{fl(flags)} lds", "X", rd=[("v", vo), ("m", 0)], tag=tag)
def o_store(r, srd, so, o, flags):
    return I(f"buffer_store_dwordx4 {rs('v', r, 4)}, v{vQO}, s[{srd}:{srd+3}], {so_(so)} offen{off(o)}{fl(flags)}", "S", rd=R("v", r, 4) + [("v", vQO)])
def o_write(slot, J, b):
    ad = vSt + (J & 1)
    return I(f"ds_write_b128 v{ad}, {rs('v', b, 4)}{off(slot*4096 + (J >> 1)*1024)}", "W", rd=R("v", b, 4) + [("v", ad)])
def code_touch(base, size_):
    return [V(f"v_min_u32 v{vPt}, {size_}, v{vPf}", [vPf], [vPt]), V(f"v_mov_b32 v{vPt+1}, 0", [], [vPt + 1]),
            V(f"v_lshl_add_u64 v[{vPt}:{vPt+1}], v[{vPt}:{vPt+1}], 0, s[{base}:{base+1}]", [vPt, vPt + 1], [vPt, vPt + 1]),
            I(f"global_load_dword v{vSink}, v[{vPt}:{vPt+1}], off", "L", rd=R("v", vPt, 2))]
def bump(srd, by): return [f"s_add_u32 s{srd}, s{srd}, {by}", f"s_addc_u32 s{srd+1}, s{srd+1}, 0"]
def shift(key, p): return (key[0], key[1] + p) + tuple(key[2:])
PHI = CFG["phi"]
KORD = [(0, 0), (0, 1), (0, 2), (0, 3), (1, 3), (1, 2), (1, 1), (1, 0)]
VORD = [(0, 0), (0, 1), (1, 1), (1, 0), (2, 0), (2, 1), (3, 1), (3, 0)]
DEFER = [(t, J) for t in range(5) for J in range(4)]

def parked(t, J): return Oreg(2 * (t - 5) + (J >> 1), 2 * (J & 1) + 1)[1]
PARKED = {(2 * (t - 5) + (J >> 1), 2 * (J & 1) + 1): (("ow", 5, J) if t == 5 else ("o6s", J)) for t in (5, 6) for J in range(4)} if CFG["park"] else {}
LAZY = [(4, 0), (4, 1), (4, 2), (4, 3)][:CFG["nlazy"]]
def pv_tile(r, t, home=None, vkey="vr"):
    L = []; seen = set()
    for j, b in VORD:
        blk = r - 2 + b
        if not 0 <= blk < 16: continue
        dj = (r & 1) * 4 + j; first = r <= 2 and j not in seen; seen.add(j)
        deps = pdeps(blk, t) + ([(vkey, r, j, b, kt) for kt in (0, 1)] if vkey else [])
        if first and vkey and (t, dj >> 1) in DEFER: deps.append(("ow", t, dj >> 1))
        if first and vkey and (t, dj) in PARKED: deps.append(PARKED[(t, dj)])
        L.append((("pv", r, t, j, b), mfma(Oreg(t, dj), home(j, b) if home else ("a", Vreg(j, b)), ("v", Preg(blk, t)), c0=first), deps))
    return L
def sum_tile(r, t):
    def one(blk):
        d = aL + 4 * (t >> 1); b = Preg(blk, t - 1) if t < 6 else Preg(0, 6)
        return (("sum", blk + 1, t >> 1), I(f"v_smfmac_f32_16x16x64_bf16 {rs('a', d, 4)}, {rs('v', vOne, 4)}, {rs('v', b, 8)}, v{vIdx}", "M",
                                            rd=R("v", vOne, 4) + R("v", b, 8) + [("v", vIdx)], wr=R("a", d, 4), c=R("a", d, 4)),
                pdeps(blk, t) + (pdeps(blk, t - 1) if t < 6 else []))
    if r > 16 or not (t & 1 or t == 6): return []
    if t == 6: return [] if r & 1 else [one(r - 1)]
    if CFG["zz"]: return [] if r & 1 else [one(r - 2), one(r - 1)]
    return [one(r - 1)]
def qk_chain(p, kt, t, sb, deps0, home=None, kkey="kr", flip=False):
    return [(("qk", p, kt, t, i), mfma(("v", sb), home(kt, ds) if home else ("a", Kreg(kt, ds)), ("a", Qreg(t, ds)), c0=(i == 0)),
             ([(kkey, p, kt, ds)] if kkey else []) + (deps0 if i == 0 else []) + ([("q6r", ds)] if (p, t) == (0, 6) and kkey else []))
            for i, (_, ds) in enumerate(KORD[4 * (kt ^ flip):4 * (kt ^ flip) + 4])]
def seg_slots(NT, k): return [divmod(s, NT) for s in range(max(0, k * NT - PHI), min(16 * NT, (k + 1) * NT - PHI))]
def seg_mf(NT, k):
    L = []; sl = dict(((p * NT + t + PHI) % NT, (p, t)) for p, t in seg_slots(NT, k))
    starts = [int(c) for c in CFG[f"g{NT}"][1:]] if 2 <= k <= 15 else []
    for grp in [[a, a + 1] if a in starts else [a] for a in range(NT) if a - 1 not in starts]:
        if k >= 1:
            pv = {m[0][2:]: m for tv in grp for m in pv_tile(k, tv)}
            if len(grp) == 1: L += list(pv.values())
            else:
                for j in range(4):
                    x, y = grp if not j & 1 else grp[::-1]
                    for n, key in enumerate(((x, j, 0), (x, j, 1), (y, j, 1), (y, j, 0))):
                        key_, ins, deps = pv[key]
                        if k == 2:
                            deps = pv[key[:2] + (0,)][2] + pv[key[:2] + (1,)][2]
                            ins = mfma(Oreg(key[0], j), ("a", Vreg(j, key[2])), ("v", Preg(key[2], key[0])), c0=not n & 1)
                        L.append((key_, ins, deps))
            for tv in grp: L += sum_tile(k, tv)
        for n, tv in enumerate(grp):
            if tv in sl:
                p, t = sl[tv]
                pp, tt = divmod(p * NT + t - 2, NT)
                for kt in ((1, 0) if n else (0, 1)):
                    L += qk_chain(p, kt, t, sbuf(NT, p, kt, t), [("cvt", pp, kt, tt, h) for h in (0, 1)] if pp >= 0 else [], flip=bool(n))
    return L

def add_softmax(S, p, kt, t, sb, war=()):
    rel = ("qk", p, kt, t, 3)
    mul = lambda r: Op(("mul", p, kt, t, r), V(f"v_mul_f32 v{sb+r}, s{sC}, v{sb+r}", [sb + r], [sb + r]), [rel], rel=rel)
    ex = lambda r: Op(("exp", p, kt, t, r), V(f"v_exp_f32 v{sb+r}, v{sb+r}", [sb + r], [sb + r], "E"), [("mul", p, kt, t, r)], rel=rel)
    def cv(h):
        d = Preg(p, t) + 2 * kt + h
        return Op(("cvt", p, kt, t, h), V(f"v_perm_b32 v{d}, v{sb+2*h+1}, v{sb+2*h}, s{sLo}" if "perm" in CFG["x"] else f"v_cvt_pk_bf16_f32 v{d}, v{sb+2*h}, v{sb+2*h+1}", [sb + 2 * h, sb + 2 * h + 1], [d]),
                  [("exp", p, kt, t, 2 * h), ("exp", p, kt, t, 2 * h + 1)] + list(war), rel=rel)
    for o in (mul(0), mul(1), ex(0), ex(1), mul(2), mul(3), ex(2), ex(3), cv(0), cv(1)): S.add(S.valu, o)

def add_seg_ops(S, k, mf):
    NT = S.NT; g0 = S.gap; keys = [m[0] for m in mf]; mode = S.mode if k >= 3 else "oq"
    at = lambda key: g0 + keys.index(key)
    for _, p, kt, t, i_ in [x_ for x_ in keys if x_[0] == "qk" and x_[4] == 0]:
        add_softmax(S, p, kt, t, sbuf(NT, p, kt, t), [("sum", p - (t < 6), t >> 1)] if p >= 2 and not p & 1 else [])
    fx = []; scal = []
    new = lambda lst, key, ins, deps, g: lst.append(Op(key, ins, deps, g))
    known = lambda x: [x] if (x in S.bykey or x in S.done) else []
    def chain(name, texts, deps, g):
        for i, t in enumerate(texts):
            new(scal, (name[0], k) + tuple(name[1:]) + (i,), sc(t), deps, g)
            deps = [(name[0], k) + tuple(name[1:]) + (i,)]
        return deps
    xor = lambda r: V(f"v_xor_b32 v{r}, 0x8000, v{r}", [r], [r])
    sp = CFG["spq" if mode == "q" else "spodd" if k & 1 else "sp"]; prev = []; rd = []
    if 1 <= k <= 16:
        g = g0 + 2 + (CFG["sh6"] if NT == 6 else 0)
        if k == 1:
            new(scal, ("w6",), I("s_waitcnt vmcnt(?)", "w", tag=("needq6",)), [], g0)
            prev = [("w6",)]
            if NT == 7:
                for ds in range(4): new(fx, ("q6r", ds), ds128("a", Qreg(6, ds), vQ6 + (ds & 1), (ds >> 1) * 1024), [("w6",)], g0 + 1 + ds)
                prev = [("q6r", ds) for ds in range(4)]; g = g0 + CFG["d1"]
        x = ((k + 3) & 1) * 128
        for i, (srd, o) in enumerate(((sKx, 0), (sKx, 128), (sVa, x), (sVb, x))):
            new(scal, ("m0", k, i), sc(f"s_add_u32 m0, s{sM}, {i*1024 - o}", wr=M0), prev, max(g0, g - 3))
            new(fx, ("dma", k, i), dma(vDKV, srd, None, o, "" if mode == "o" and CFG["lastdef"] else CFG["kv"[i >> 1]], ("grp", k + 2)), [("m0", k, i)], g)
            if k == 1 and i == 0: fx[-1].ins.rd += R("a", Qreg(6, 0), 16)
            prev = [("dma", k, i)]; g += sp if k > 1 else 4
        prev = chain(("uk",), [f"s_add_u32 s{sM}, s{sM}, 16384", f"s_and_b32 s{sM}, s{sM}, 0xffff", f"s_mov_b64 s[{sVa}:{sVa+1}], s[{sVb}:{sVb+1}]",
                               f"s_mov_b32 s{sVa+2}, s{sVb+2}"] + bump(sVb, 8192) + [f"s_mov_b32 s{sVb+2}, s{sKx+2}"] + bump(sKx, 8192) +
                     [f"s_add_u32 s{sCnt}, s{sCnt}, 1", f"s_cmp_lt_u32 s{sCnt}, 64", f"s_cselect_b32 s{sKx+2}, 8192, 0"], prev, g - sp + 1)
        lastk = [(m[0], m[1].rd[0][1]) for m in mf if m[0][0] == "qk" and m[0][1] == k - 1 and m[0][3] == NT - 1]
        gk = at(lastk[0][0])
        for n, (key, r) in enumerate(lastk):
            kt, ds = divmod((r - aK) // 4, 4)
            new(fx, ("kr", k, kt, ds), k_read(k, kt, ds), [key] + known(("xk", k - 1, ds & 1)), gk + (n * CFG["kw"]) // 2)
            rd.append(("kr", k, kt, ds))
        if k <= 14 and (k == 1 or not k & 1):
            g = max(g + 6, gk + 8 + CFG["qo0"])
            for j in range(4 if mode == "q" and CFG["q4"] else 3):
                flip = [f"s_xor_b32 s{sD}, s{sD}, 0x700"]
                if "o" in mode:
                    ready = [("ow", k - 1, J) for J in range(4)] if k <= 2 else []
                    new(fx, ("or", k, j), ds128("v", vTmp, vLin, j * 1024),
                        known(("ul", k - 2)) + known(("ul", k - 1)) + ready + ([("os", k, j - 1)] if j else []), g - 9)
                    new(fx, ("os", k, j), o_store(vTmp, sOx, None, 0, CFG["o" if "q" in mode else "ol"]), [("or", k, j)] + prev, g)
                    prev = chain(("uo", j), bump(sOx, f"s{sD}") + ([] if "q" in mode else flip), [("os", k, j)], g)
                    g += sp if k > 1 else 5
                if mode == "o":
                    step = 256 << CFG["kvsh"]
                    new(fx, ("pk", k, j), I(f"buffer_load_dword v{vSink}, v{vQ6}, s[{sQx}:{sQx+3}], 0 offen", "L", rd=[("v", vQ6)]), prev, g)
                    prev = chain(("pu", j), bump(sQx, step) + [f"s_max_u32 s{sQx+2}, s{sQx+2}, {step}", f"s_sub_u32 s{sQx+2}, s{sQx+2}, {step}"], [("pk", k, j)], g)
                    g += sp
                if "q" in mode:
                    new(scal, ("qm", k, j), sc(f"s_mov_b32 m0, s{sStg}", wr=M0), prev, g - 3)
                    new(fx, ("qd", k, j), dma(vQO, sQx, None, 0, CFG["q"], ("q", k)), [("qm", k, j)], g)
                    prev = chain(("uq", j), bump(sQx, f"s{sD}") + flip + [f"s_add_u32 s{sStg}, s{sStg}, 1024"], [("qd", k, j)], g)
                    g += sp if k > 1 else 5
            if "o" in mode: S.add(S.valu, Op(("ul", k), V(f"v_add_u32 v{vLin}, 3072, v{vLin}", [vLin], [vLin]), [("or", k, 2)] + [x_ for J in range(4) for x_ in known(("o6r", J))]))
        if not k & 1:
            for b in (0, 1):
                S.add(S.valu, Op(("xk", k, b), xor(vK + b), [x_ for x_ in rd if x_[3] & 1 == b]))
                S.add(S.valu, Op(("xv", k, b), xor(vV + b), [("vr", k, j, bb, kt) for j in (2 * b, 2 * b + 1) for bb in (0, 1) for kt in (0, 1)]))
        gv = at(next(x_ for x_ in keys if x_[:3] == ("pv", k, NT - 1)))
        gb = gv - 2 if k < 16 else gk + 20
        if k == 1 and CFG["e1"]: gb = gv - CFG["e1"]
        rd += [("vr", k, j, b, kt) for j, b in VORD for kt in (0, 1)]
        new(scal, ("wb", k), I("s_waitcnt vmcnt(?) lgkmcnt(0)", "w", tag=("needgrp", k)), rd + [("dma", k, 3)], gb - 1)
        new(fx, ("bar", k), I("s_barrier", "B", tag=("bar", k)), [("wb", k)], gb)
        order = VORD if 1 < k < 16 or (k == 1 and not CFG["e1"]) else sorted(VORD, key=lambda x_: x_[1])
        for n, (j, b, kt) in enumerate((j, b, kt) for j, b in order for kt in (0, 1)):
            war = [x_ for x_ in (("pv", k, NT - 1, j, b), ("pv", k, NT - 2, j, b)) if x_ in keys]
            new(fx, ("vr", k + 1, j, b, kt), v_read(k + 1, j, b, kt), [("bar", k)] + war + ([] if k & 1 else [("xv", k, j >> 1)]), gv + (n * (CFG["vw"] if k < 15 else 4)) // 4 if k > 1 else (gb + 1 + n if CFG["e1"] else gv + (n * 3) // 4))
        if k == 2 or (3 < k < 15 and not k & 1):
            new(scal, ("lp", k), sc(f"s_sub_u32 s{sLoop}, s{sLoop}, 1" if k > 2 else f"s_cmp_eq_u32 s{sJob}, 3"), [("wb", k)] + prev, g0 + len(mf) - 5)
    if k <= 2:
        todo = [(0, 2), (0, 3), (1, 2), (1, 3), (0, 0), (0, 1), (2, 2), (2, 3), (3, 2), (3, 3), (4, 2), (4, 3), (1, 0), (1, 1), (2, 0), (2, 1), (3, 0), (3, 1), (4, 0), (4, 1)]
        if CFG["park"]:
            todo[2:2] = [(6, 0), (6, 1)]; todo[6:6] = [(6, 2), (6, 3)]; todo[18:18] = [(5, J) for J in range(4)]
        n0 = CFG["w0"] if CFG["park"] else 10
        n2 = len(todo) - CFG["w2"]
        todo = (todo[:n0], todo[n0:n2], todo[n2:])[k]
        lo, hi = ((0, len(mf) - 1), (6, len(mf) - 14), (5, 5 + 8 * CFG["w2"]))[k]
        for i, (t, J) in enumerate(todo):
            g = g0 + lo + (hi - lo) * i // len(todo)
            dep = [("lc", t, J, 3)] if (t, J) in LAZY else [("o6r", x_) for x_ in range(4)] if t == 5 else []
            new(fx, ("ow", t, J), o_write(min(t, 5), J, Oreg(t, 2 * J)[1] if t < 5 else parked(t, J)), dep, g)
            if t == 6 and J & 1:
                for nn in (0, 1):
                    r = parked(6, J - 1 + nn)
                    new(fx, ("o6r", J - 1 + nn), ds128("v", r, vLin, 5 * 4096 + nn * 2048 + (J >> 1) * 1024), [("ow", 6, J - 1), ("ow", 6, J)], g + 2)
                    new(fx, ("o6s", J - 1 + nn), o_store(r, sO, sT1, nn * 2048 + (J >> 1) * 128, CFG["o"]), [("o6r", J - 1 + nn)], g + 8 + 3 * nn)
        if k == 0:
            for t, J in LAZY:
                C = []; convert(C, Oreg(t, 2 * J)[1], 0, lambda i_: True)
                for n, c_ in enumerate(C): S.add(S.valu, Op(("lc", t, J, n), c_, [("lc", t, J, n - 1)] if n else []))
    for o in fx: S.add(S.fixed, o)
    S.fixed.sort(key=lambda o: o.target)
    scal.sort(key=lambda o: o.target)
    for o in scal: S.add(S.scal, o)
    misc = [o for o in S.valu if o.key[0] in ("xk", "xv", "ul", "ul2", "lc")]
    S.valu = misc + [o for o in S.valu if o not in misc]

def start_job(NT, mode):
    S = Sched(NT); S.mode = mode
    S.done |= {("kr", 0, kt, ds) for kt, ds in KORD} | {("vr", 1, j, b, kt) for j, b in VORD for kt in (0, 1)}
    return S
def run_segs(S, segs, carry):
    starts = {}
    for k in segs:
        starts[k] = len(S.out)
        mf = seg_mf(S.NT, k)
        S.forbid = set(); S.th = CFG["th"] if k >= 2 else CFG["hth"]; S.dd = CFG["dd"] if k >= 2 else CFG["hdd"]
        add_seg_ops(S, k, mf)
        cut = carry is not None and k >= 2 and not k & 1
        if cut: S.forbid = {shift(x, k) for x in carry}
        S.run(mf, seg_mf(S.NT, k + 1)[:4], cut)
    return starts
def find_carry(NT):
    S = start_job(NT, "oq")
    run_segs(S, range(0, 9), None)
    c = [shift(x, -8) for x in S.left]
    assert all(x[0] in ("mul", "exp", "cvt", "vr") for x in c), c
    return c

def params_next():
    return [sc(x) for x in (
        f"s_add_u32 s{sT2}, s{sJob}, 1",
        f"s_xor_b32 s{sT3}, s{sT2}, s{sRole}",
        f"s_and_b32 s{sT3}, s{sT3}, 1",
        f"s_cselect_b32 s{sNxt}, s{sOffB}, s{sOffA}",
        f"s_cselect_b32 s{sN7n}, s{sN7B}, s{sN7A}",
        f"s_mul_i32 s{sT2}, s{sT2}, {QH}",
        f"s_add_u32 s{sNxt}, s{sNxt}, s{sT2}")]

def advance():
    return [sc(x) for x in (f"s_lshl_b32 s{sBit}, 1, s{sJob}", f"s_add_u32 s{sJob}, s{sJob}, 1", f"s_mov_b32 s{sOp}, s{sCurO}",
                            f"s_mov_b32 s{sCurO}, s{sNxt}", f"s_mov_b32 s{sN7c}, s{sN7n}")] + params_next() + \
           [sc(x) for x in (f"s_add_u32 s{sQx}, s{sQ}, s{sNxt}", f"s_addc_u32 s{sQx+1}, s{sQ+1}, 0", f"s_cmp_lt_u32 s{sJob}, 3", f"s_cselect_b32 s{sQx+2}, 4096, 0",
                            f"s_add_u32 s{sOx}, s{sO}, s{sOp}", f"s_addc_u32 s{sOx+1}, s{sO+1}, 0",
                            f"s_mov_b32 s{sD}, 128", f"s_mov_b32 s{sStg}, s{sStgB}", f"s_mov_b32 s{sLoop}, 5")]

def add_rows(S, tiles, vmx, zero):
    add = lambda key, ins, deps: S.add(S.valu, Op(key, ins, deps))
    for t in tiles:
        b = Preg(0, t)
        src = [aL + 2 * t, aL + 2 * t + 1] + ([aL + 14, aL + 15] if t == 6 else [])
        dst = [b + 2, b, b + 1, b + 3]
        for a, d in zip(src, dst): add(("la", a), V(f"v_accvgpr_read_b32 v{d}, a{a}", [("a", a)], [d]), [("sum", 16, t >> 1), ("pv", 16, t, 3, 0)])
        if t == 6:
            add(("l6", 0), V(f"v_add_f32 v{dst[0]}, v{dst[0]}, v{dst[3]}", [dst[0], dst[3]], [dst[0]]), [("la", a) for a in src])
            add(("l6", 1), V(f"v_add_f32 v{dst[1]}, v{dst[1]}, v{dst[2]}", [dst[1], dst[2]], [dst[1]]), [("l6", 0)])
        add(("lr", t), V(f"v_add_f32 v{dst[0]}, v{dst[0]}, v{dst[1]}", dst[:2], [dst[0]]), [("la", a) for a in src] + ([("l6", 1)] if t == 6 else []))
        add(("rc", t), V(f"v_rcp_f32 v{b}, v{b+2}", [b + 2], [b], "E"), [("lr", t)])
        m = vmx if t else b
        add(("mx", t), V(f"v_maximum3_f32 v{vmx}, v{m}, v{b}, v{b+2}", [m, b, b + 2], [vmx]), [("rc", t)] + ([("mx", t - 1)] if t else []))
        if zero:
            for a in src: add(("lz", a), V(f"v_accvgpr_write_b32 a{a}, 0", [], [("a", a)]), [("la", a)])
    if tiles[-1] == S.NT - 1: add(("c1",), V(f"v_cmp_ngt_f32 vcc, s{sHi}, v{vmx}", [vmx], [("s", "vcc")]), [("mx", S.NT - 1)])

def convert(E, b, r, skip=lambda i: False, dst=None):
    for i in range(4):
        if not skip(i):
            E.append(V(f"v_pk_mul_f32 {rs('v', b+2*i, 2)}, {rs('v', b+2*i, 2)}, {rs('v', r, 2)} op_sel_hi:[1,0]",
                       [b + 2 * i, b + 2 * i + 1, r], [b + 2 * i, b + 2 * i + 1]))
    d = b if dst is None else dst
    for i in range(4): E.append(V(f"v_cvt_pk_bf16_f32 v{d+i}, v{b+2*i}, v{b+2*i+1}", [b + 2 * i, b + 2 * i + 1], [d + i]))
def acc_copy(dst, src): return [V(f"v_accvgpr_read_b32 v{dst+i}, a{src+i}", [("a", src + i)], [dst + i]) for i in range(8)]
def final_pv(t, J, i): return ("pv", 16, t) + ((2 * J, 1), (2 * J + 1, 0))[i >> 2] if J < 2 else ("pv", 17, t, 2 * J - 4 + (i >> 2), 0)

def build_tail(S):
    NT = S.NT
    run_segs(S, [15], None)
    g0 = S.gap; mf = seg_mf(NT, 16)
    add_seg_ops(S, 16, mf)
    mf += seg_mf(NT, 17)
    S.add(S.scal, Op(("wq",), I("s_waitcnt vmcnt(?)", "w", tag=("needq", 12)), [], g0)); S.scal.insert(0, S.scal.pop())
    nsc = [0]
    def scal(x, deps=()):
        i = nsc[0]; nsc[0] += 1
        S.add(S.scal, Op(("ts", i), x, ([("ts", i - 1)] if i else [("uk", 16, 11)]) + list(deps), g0)); return ("ts", i)
    scal(sc(f"s_mul_i32 s{sQx+2}, s{sQx+2}, s{sN7n}"))
    prev = [("bar", 16)]; gb = S.bykey[("bar", 16)].target
    for a in (0, 1):
        m = scal(sc(f"s_add_u32 m0, s{sWoff}, {49152 + a*896}", wr=M0), prev)
        for nn in (0, 1): S.add(S.fixed, Op(("q6", a, nn), dma(vQO, sQx, None, nn * 2048 + a * 128, CFG["q"], ("q6",)), [m], gb + 2 + 4 * (2 * a + nn)))
        prev = [("q6", a, 0), ("q6", a, 1)]
    ct = code_touch(sPfB, "L_final-L_end_code")
    for i, x in enumerate(ct[:3]): S.add(S.valu, Op(("pa", i), x, [("pa", i - 1)] if i else []))
    S.add(S.fixed, Op(("pf",), ct[3], [("pa", 2)] + prev, gb + 18))
    S.fixed.sort(key=lambda o: o.target)
    scal(sc(f"s_add_u32 s{sT1}, s{sCurO}, 24576" if NT == 7 else f"s_mov_b32 s{sT1}, {OOB:#x}"))
    for x in advance(): scal(x, prev); prev = []
    w5 = scal(I("s_waitcnt vmcnt(?)", "w", tag=("needq", 14)))
    for t in range(6):
        for ds in range(4): S.add(S.flex, Op(("qr", t, ds), q_read(t, ds), [("wq",) if t < 5 else w5, ("qk", 15, 1, t, 3)]))
    add = lambda key, ins, deps: S.add(S.valu, Op(key, ins, deps))
    add(("vl",), V(f"v_add_u32 v{vLin}, {(-24576) & 0xffffffff:#x}, v{vLin}", [vLin], [vLin]), [])
    add_rows(S, list(range(NT)), vTmp, True)
    for x in ("s_cmp_lg_u64 vcc, 0", f"s_cselect_b32 s{sT2}, s{sBit}, 0", f"s_or_b32 s{sFlag}, s{sFlag}, s{sT2}"): scal(sc(x), [("c1",)])
    softdone = [("cvt", 15, kt, t, h) for t in (NT - 2, NT - 1) for kt in (0, 1) for h in (0, 1)]
    early = {(NT - 1, J): vb for J, vb in enumerate((vS, vS + 8))}
    for (t, J), vb in early.items():
        for i, x in enumerate(acc_copy(vb, Oreg(t, 2 * J)[1])): add(("ar", t, J, i), x, softdone + [final_pv(t, J, i)])
    for t in range(5):
        for J in range(2):
            b = Oreg(t, 2 * J)[1]; r = Preg(0, t)
            for i in range(8):
                add(("om", t, J, i), V(f"v_mul_f32 v{b+i}, v{r}, v{b+i}", [b + i, r], [b + i]), [("rc", t), final_pv(t, J, i)] + ([("om", t, J, i - 1)] if i else []))
            for i in range(4):
                add(("oc", t, J, i), V(f"v_cvt_pk_bf16_f32 v{b+i}, v{b+2*i}, v{b+2*i+1}", [b + 2 * i, b + 2 * i + 1], [b + i]), [("oc", t, J, i - 1) if i else ("om", t, J, 7)])
    n1 = max(i for i, m in enumerate(mf) if m[0][0] == "qk") + 1
    S.run(mf[:n1], mf[n1:n1 + 4], keep=True)
    S.th = CFG["tth"]
    S.run(mf[n1:], keep=True)
    begun = {x[1:3] for x in S.done if x[0] == "om"}
    S.valu = [o for o in S.valu if o.key[0] not in ("om", "oc") or o.key[1:3] in begun]
    S.flush()
    E = []
    if CFG["tmark"] == 0: E.append(sc("s_memtime s[86:87]"))
    vC = Preg(1, 0)
    spare = iter((vC, vC + 8, vC + 16, vS, vS + 8, vC))
    def piece(t, J):
        k, b = Oreg(t, 2 * J)
        if k == "a":
            if (t, J) in early: b = early[(t, J)]
            else:
                d = next(spare); E.extend(acc_copy(d, b)); b = d
        convert(E, b, Preg(0, t))
        if (t, J) not in DEFER: E.append(o_write(t % 6, J, b))
        return b
    assert not begun & set(LAZY)
    if CFG["park"]:
        for t, J in DEFER:
            if (t, J) not in begun:
                convert(E, Oreg(t, 2 * J)[1], Preg(0, t))
                if (t, J) in LAZY: del E[-4:]
        for t in range(NT - 1, 4, -1):
            for J in range(4):
                b = early.get((t, J), vC + 8 * (J & 1))
                if (t, J) not in early: E.extend(acc_copy(b, Oreg(t, 2 * J)[1]))
                convert(E, b, Preg(0, t), dst=parked(t, J))
        E.append(I("s_waitcnt lgkmcnt(0)", "w"))
        return [I(".p2align 3", "#")] + align8(fix_hazards(E, S.out[-10:]), False)
    assert not LAZY
    plain = [x for x in DEFER if x not in begun]
    def some(n):
        for _ in range(n):
            if plain: piece(*plain.pop(0))
    if NT == 7:
        E.append(sc(f"s_add_u32 s{sT3}, s{sOp}, 24576")); regs = []
        for a in (0, 1):
            for J in (2 * a, 2 * a + 1): regs.append(piece(6, J) + 4); some(1)
            E += [ds128("v", regs[2 * a + nn], vLin, nn * 2048 + a * 1024) for nn in (0, 1)]
        for a in (0, 1):
            E.append(I(f"s_waitcnt lgkmcnt({4 - 4*a})", "w"))
            E += [o_store(regs[2 * a + nn], sO, sT3, nn * 2048 + a * 128, CFG["o"]) for nn in (0, 1)]
            some(3 - 3 * a)
    else:
        E.append(sc(f"s_mov_b32 s{sT3}, {OOB:#x}"))
        for i in range(4): E.append(o_store(vC, sO, sT3, 0, ""))
    for J in range(4): piece(5, J); some(2)
    some(20)
    E.append(I("s_waitcnt lgkmcnt(4)", "w"))
    return [I(".p2align 3", "#")] + align8(fix_hazards(E, S.out[-10:]), False)

def build_last(NT, carry):
    S = start_job(NT, "o")
    run_segs(S, range(15), carry)
    start = len(S.out)
    while S.out[start - 1].k != "M": start -= 1
    S.th = CFG["lth"]; S.dd = CFG["hdd"]; g0 = S.gap
    assert NT - PHI >= 4 and PHI <= 3
    fix = lambda key, ins, deps, g=0: S.add(S.fixed, Op(key, ins, deps, g))
    add = lambda key, ins, deps: S.add(S.valu, Op(key, ins, deps))
    nsc = [0]
    def scal(x, deps=(), g=0):
        i = nsc[0]; nsc[0] += 1
        S.add(S.scal, Op(("ts", i), x, ([("ts", i - 1)] if i else []) + list(deps), g)); return ("ts", i)
    def qk(p, t):
        pp, tt = divmod(p * NT + t - 2, NT); L = []
        for kt in (0, 1):
            add_softmax(S, p, kt, t, sbuf(NT, p, kt, t), [("pv", 15, t, 3, 0)] if p == 15 else [])
            L += qk_chain(p, kt, t, sbuf(NT, p, kt, t), [("cvt", pp, kt, tt, h) for h in (0, 1)])
        return L
    home = lambda r: (lambda j, b: ("a", Qreg(0, 0) + (2 * j + b) * 4)) if r == 16 else (lambda j, b: ("a", Qreg(2, j)))
    pv = lambda r, t: pv_tile(r, t, home(r) if r > 15 else None) + sum_tile(r, t)
    G = [[int(c) for c in g if int(c) < NT] for g in CFG["groups"].split(",")]
    G = [g for g in G if g]
    did = set()
    def work(g, ahead):
        L = []
        for t in list(range(g[-1] + 1)):
            if t not in did: L += pv(15, t) + qk(15, t); did.add(t)
        tailpv = [pv(16, t) for t in g] + [pv(17, t) for t in g]
        for t in range(g[-1] + 1, min(NT, g[-1] + 1 + ahead)):
            if t not in did: L += pv(15, t) + qk(15, t); did.add(t)
        return L + sum(tailpv, [])
    A = []
    for i, t in enumerate(range(NT - PHI, NT)): A += pv(15, i) + qk(14, t)
    for t in range(3): A += (pv(15, t + PHI) if t + PHI < 3 else []) + qk(15, t); did.add(t)
    A += work(G[0], 0)
    keys = [m[0] for m in A]
    gk = g0 + keys.index(("qk", 14, 0, NT - 1, 0))
    for n, (kt, ds) in enumerate(KORD): fix(("kr", 15, kt, ds), k_read(15, kt, ds), [("qk", 14, kt, NT - 1, n & 3)], gk + n)
    for b in (0, 1):
        add(("xv", 16, b), V(f"v_xor_b32 v{vV+b}, 0x8000, v{vV+b}", [vV + b], [vV + b]), [("vr", 16, j, bb, kt) for j in (2 * b, 2 * b + 1) for bb in (0, 1) for kt in (0, 1)])
    for r, t in ((16, 0), (17, 2)):
        g = g0 + keys.index(("qk", 15, 1, t, 0))
        fix(("bar", r - 1), I("s_barrier", "B", tag=("bar", r - 1)), [scal(I("s_waitcnt vmcnt(?)", "w", tag=("needgrp", r - 1)), [], g)], g + 1)
        for j, b in VORD:
            if r == 17 and b: continue
            for kt in (0, 1):
                owner = j >> 1 if r == 16 else 2
                fix(("vr", r, j, b, kt), dstr("a", home(r)(j, b)[1] + 2 * kt, vV + (j >> 1), ((r - 1) & 1) * 16384 + voff(j, b, kt)),
                    [("bar", r - 1), ("qk", 15, 1, owner, 3)] + ([("xv", 16, j >> 1)] if r == 17 else []))
    add(("vl",), V(f"v_add_u32 v{vLin}, {(-24576) & 0xffffffff:#x}, v{vLin}", [vLin], [vLin]), [])
    S.valu = [o for o in S.valu if o.key[0] == "xv"] + [o for o in S.valu if o.key[0] != "xv"]
    so = lambda t: (sT0, sT1, sT2, sT3, sU0, sU1, sU2)[t]
    for t in range(NT): scal(sc(f"s_add_u32 s{so(t)}, s{sCurO}, {t*4096}"))
    O = lambda t, J: Oreg(t % 5, 2 * J)[1]
    back = lambda t, a, nn: ds128("v", O(t, 2 * a + nn) + 4, vLin, (t % 6) * 4096 + nn * 2048 + a * 1024)
    out = lambda t, a, nn: o_store(O(t, 2 * a + nn) + 4, sO, so(t), nn * 2048 + a * 128, CFG["oe2" if a else "oe"])
    def mark(i):
        if CFG["tmark"] == i: S.emit(sc("s_memtime s[86:87]")); print(f"NT={NT} model at mark {i}: {cycles(S.out[start:])}", file=sys.stderr)
    parked = []; lazy = set()
    for gi, g in enumerate(G):
        end = gi == len(G) - 1
        mf = A if gi == 0 else work(g, CFG["ahead"])
        g0 = S.gap; front = []
        for i, (t, a) in enumerate(parked):
            x = g0 + int(i * (len(mf) - CFG["lend"]) / len(parked))
            for k in (0, 1):
                dep = []
                if (t, a) in lazy:
                    C = []; convert(C, O(t, 2 * a + k), 0, lambda i_: True)
                    for n, c_ in enumerate(C):
                        S.add(front, Op(("lc", t, a, k, n), c_, dep)); dep = [("lc", t, a, k, n)]
                fix(("lw", t, a, k), o_write(t, 2 * a + k, O(t, 2 * a + k)), dep, x + CFG["lw"] * k)
            for k in (0, 1): fix(("ob", t, a, k), back(t, a, k), [("lw", t, a, 0), ("lw", t, a, 1)], x + CFG["lb"] + k)
            for k in (0, 1): fix(("oo", t, a, k), out(t, a, k), [("ob", t, a, k)], x + CFG["lo_"] + 2 * k)
        S.fixed.sort(key=lambda o: o.target)
        S.valu = front + S.valu
        add_rows(S, g, vTmp, False)
        if end:
            for x in ("s_cmp_lg_u64 vcc, 0", f"s_cselect_b32 s{sBit}, 8, 0", f"s_or_b32 s{sFlag}, s{sFlag}, s{sBit}"): scal(sc(x), [("c1",)])
        for J in range(4):
            for t in g:
                if t >= 5:
                    free = [("oo", t - 5, J >> 1, J & 1)] if ("oo", t - 5, J >> 1, J & 1) in S.bykey else []
                    for i, x in enumerate(acc_copy(O(t, J), Oreg(t, 2 * J)[1])): add(("ar", t, J, i), x, free + [final_pv(t, J, i)])
        S.run(mf, keep=True)
        late = [o for o in S.valu if o.key[0] == "ar"]
        keepv = [o for o in S.valu if o.key[0] in ("mul", "exp", "cvt")]
        S.valu = [o for o in S.valu if o not in late and o not in keepv]
        S.flush(); S.valu = [o for o in keepv if o.key not in S.done]
        mark(11 + 2 * gi)
        E = []; pend = []
        def drain(n):
            if pend:
                t, a = pend.pop()
                E.append(I(f"s_waitcnt lgkmcnt({n})", "w")); E.extend(out(t, a, nn) for nn in (0, 1))
        halves = [(t, a) for a in (0, 1) for t in g] if end else [(t, a) for t in g for a in (0, 1)]
        now = len(halves) if end else CFG["now"]
        for i, (t, a) in enumerate(halves):
            for J in (2 * a, 2 * a + 1):
                E += [o.ins for o in late if o.key[1:3] == (t, J)]
                convert(E, O(t, J), Preg(0, t))
                if i >= now + CFG["lazy"]: del E[-4:]; lazy.add((t, a))
                if i < now: E.append(o_write(t % 6, J, O(t, J)))
            if i < now:
                E += [back(t, a, nn) for nn in (0, 1)]
                drain(4); pend.append((t, a))
            elif i == now: drain(0)
        drain(0)
        parked = halves[now:]
        S.emit(I(".p2align 3", "#"))
        for x in align8(fix_hazards(E, S.out[-10:]), False): S.emit(x)
        mark(12 + 2 * gi)
    return S.out[start:]

class Job: pass
def build_job(NT):
    J = Job(); J.NT = NT; J.carry = carry = find_carry(NT); J.body = {}
    for mode in ("q", "o", "oq"):
        S = start_job(NT, mode)
        st = run_segs(S, range(15), carry)
        st[15] = len(S.out)
        for k in range(3, 17, 2):
            while S.out[st[k] - 1].k != "M": st[k] -= 1
        bodies = [S.out[st[k]:st[k + 2]] for k in range(3, 15, 2)]
        for b in bodies[1:]:
            assert [x.t for x in b] == [x.t for x in bodies[0]], "loop body not periodic"
        J.body[mode] = bodies[0] + [sc(f"s_cbranch_scc0 L_body{mode}{NT}")]
    epi = build_tail(S)
    J.head = S.out[:st[3]] + [sc(f"s_cbranch_scc1 L_close{NT}")]
    J.close = [sc(x) for x in (f"s_cmp_eq_u32 s{sRole}, 0", f"s_cselect_b32 s{sQx}, s{sK}, s{sV}", f"s_cselect_b32 s{sQx+1}, s{sK+1}, s{sV+1}",
                               f"s_add_u32 s{sQx}, s{sQx}, {3*KH + CFG['kvpf']*8192}", f"s_addc_u32 s{sQx+1}, s{sQx+1}, 0", f"s_mov_b32 s{sQx+2}, {KH - CFG['kvpf']*8192}",
                               f"s_lshl_b32 s{sU3}, s{sW}, {6 + CFG['kvsh']}",
                               f"v_mbcnt_lo_u32_b32 v{vQ6}, -1, 0", f"v_mbcnt_hi_u32_b32 v{vQ6}, -1, v{vQ6}", f"v_lshl_add_u32 v{vQ6}, v{vQ6}, {CFG['kvsh']}, s{sU3}", f"s_mov_b32 s{sLoop}, 4", f"s_mov_b32 s{sU3}, 0")]
    J.again = {m: [sc(f"s_xor_b32 s{sU3}, s{sU3}, 1"), sc(f"s_cbranch_scc0 {lab}")] + code_touch(base, size_) + [sc(f"s_mov_b32 s{sLoop}, 0"), sc(f"s_branch L_body{m}{NT}")]
               for m, lab, base, size_ in (("q", f"L_tail{NT}", sPfA, "L_end_code-L_job7"), ("o", f"L_last{NT}", sPfB, "L_final-L_end_code"))}
    J.tail = S.out[st[15]:] + epi
    J.last = build_last(NT, carry)
    return J

def grp_batch(e):
    L = []; x = ((e + 1) & 1) * 128
    for i, (srd, blk, o) in enumerate(((sK, e + 1, 0), (sK, e + 1, 128), (sV, e - 1, x), (sV, e, x))):
        if blk >= 0:
            L += [sc(f"s_add_u32 m0, s{sWoff}, {(e & 3)*16384 + i*1024 - o}", wr=M0), sc(f"s_mov_b32 s{sT0}, {blk*8192}"), dma(vDKV, srd, sT0, o, "nt" if e <= CFG["ntg"] else CFG["kv"[i >> 1]], ("grp", e))]
    return L
def q_batch(slot, base, o, tag):
    L = []
    hold = {int(x[1]): int(x[2:]) for x in CFG["hold"].split(",") if x}
    if tag[1] in hold:
        L += [sc("s_bitcmp1_b32 s2, 0"), sc(f"s_cbranch_scc1 L_deep{tag[1]}"), sc(f"s_waitcnt vmcnt({hold[tag[1]]})"), I(f"L_deep{tag[1]}:", "#")]
    for a in (0, 1):
        L += [sc(f"s_add_u32 m0, s{sStgB}, {slot*4096 + a*896}", wr=M0), sc(f"s_add_u32 s{sT1}, s{base}, {o}")]
        L += [dma(vQO, sQ, sT1, nn * 2048 + a * 128, CFG["q0"], tag) for nn in (0, 1)]
    return L

def build_first(NT, carry, early2):
    S = Sched(NT); S.th = CFG["fth"]
    forbid = {shift(x, 2) for x in carry}
    assert all(x[1] == 2 and x[3] >= early2 for x in forbid if x[0] in ("mul", "exp", "cvt"))
    Kh = lambda p: (lambda kt, ds: ("a", (aO, aO + 32, aK)[p] + kt * 16 + ds * 4))
    V1 = lambda j, b: Oreg(4, j)
    em = lambda L: [S.emit(x) for x in L]
    fm = CFG["fm"].split(",")
    mark = lambda n: S.emit(sc(f"s_memrealtime s[{80+2*fm.index(n)}:{81+2*fm.index(n)}]")) if n in fm else None
    mark("i")
    batches = [q_batch(t, sCurO, t * 4096, ("q0", t)) for t in range(CFG["pre"], 6)]
    while len(batches) < 4: batches.append([])
    batches += [[sc(f"s_cmp_eq_u32 s{sN7c}, 1"), sc(f"s_cselect_b32 s{sU0}, s{sCurO}, {OOB:#x}")] + q_batch(1, sU0, 24576, ("q0", 6))]
    batches += [grp_batch(e) for e in (2, 3, 4)]
    kreads = lambda p: [ds128("a", Kh(p)(kt, ds)[1], vK + (ds & 1), ((p - 1) & 3) * 16384 + koff(kt, ds)) for kt, ds in KORD]
    em([I("s_waitcnt vmcnt(?)", "w", tag=("needgrp", 0)), I("s_barrier", "B")]); mark("a")
    em(batches.pop(0) + kreads(0) + kreads(1))
    em([dstr("v", V1(j, 1)[1] + 2 * kt, vV + (j >> 1), voff(j, 1, kt)) for j in range(4) for kt in (0, 1)])
    def second():
        em([I("s_waitcnt vmcnt(?)", "w", tag=("needgrp", 1)), I("s_barrier", "B")]); mark("b")
        em(batches.pop(0))
        em([dstr("a", Vreg(j, b) + 2 * kt, vV + (j >> 1), 16384 + voff(j, b, kt)) for j, b in VORD for kt in (0, 1)] + kreads(2))
        em([V(f"v_xor_b32 v{r}, 0x8000, v{r}", [r], [r]) for r in (vK, vK + 1, vV, vV + 1)])
    lastbuf = {}
    def qk(p, t, bufs):
        L = []
        war = [("pv", 2, t, 3, 0), ("pv", 1, t, 3, 1), ("sum", 1, t >> 1)] if p == 2 else []
        for kt, sb in enumerate(bufs):
            add_softmax(S, p, kt, t, sb, war)
            L += qk_chain(p, kt, t, sb, lastbuf.get(sb, []), Kh(p), None); lastbuf[sb] = [("cvt", p, kt, t, h) for h in (0, 1)]
        return L
    r1 = lambda t: pv_tile(1, t, V1, None)
    r2 = lambda t: pv_tile(2, t, None, None)
    done2 = 0; held = []
    for t in range(NT):
        if t == 4: split = len(S.out)
        end = t == NT - 1
        if t == 1: second()
        if t == 2: em([I("s_waitcnt lgkmcnt(0)", "w"), I("s_barrier", "B", tag=("bar", 1))])
        mark(f"p{t}")
        S.emit(I("s_waitcnt vmcnt(?)", "w", tag=("needq0", t))); mark(f"w{t}")
        em([q_read(t, ds, 1 if t == 6 else t) for ds in range(4)])
        while batches:
            em(batches.pop(0))
            if not end: break
        mf = held + qk(0, t, (vS, vS + 4)) + qk(1, t, (vS + 8, vS + 12)); held = []
        S.forbid = forbid
        if not end:
            own = (r1(t) if t < 5 else []) + sum_tile(1, t) + (r2(t) if t < 4 else []) + sum_tile(2, t)
            late = t < CFG["fpipe"]
            if late: held = own
            else: mf += own
            lim = min(early2 if t < 4 else min(x[3] for x in forbid if x[0] == "cvt"), (t + 1 - late) & ~1, 4, done2 + 1 if late else 4)
            while done2 < lim: mf += qk(2, done2, (vS + 8 * (done2 & 1 and not late), vS + 4 + 8 * (done2 & 1 and not late))); done2 += 1
            S.run(mf, keep=True); S.flush()
            continue
        g0 = S.gap
        for x in range(5, NT): mf += r1(x)
        mf += sum_tile(1, t)
        left = list(range(done2, NT - PHI))
        for x in range(4, NT):
            mf += r2(x) + (sum_tile(2, x) if x == t else [])
            if x == NT - 1 or len(left) > NT - 1 - x:
                while left and (x == NT - 1 or len(left) > NT - 1 - x):
                    y = left.pop(0); mf += qk(2, y, (sbuf(NT, 2, 0, y), sbuf(NT, 2, 1, y)))
        gv = g0 + [m[0] for m in mf].index(("pv", 2, NT - 1, 0, 0))
        S.add(S.scal, Op(("wb", 2), I("s_waitcnt vmcnt(?)", "w", tag=("needgrp", 2)), [], gv - 3))
        S.add(S.fixed, Op(("bar", 2), I("s_barrier", "B", tag=("bar", 2)), [("wb", 2)], gv - 2))
        prev = [("bar", 2)]
        for j, b in VORD:
            for kt in (0, 1):
                S.add(S.fixed, Op(("vr", 3, j, b, kt), v_read(3, j, b, kt), prev + [("pv", 2, NT - 1, j, b)], gv)); prev = [("vr", 3, j, b, kt)]; gv += 1
        S.run(mf, cut=True)
        while S.out[-1].k != "M": S.out.pop()
        T = []
        for j in range(0 if CFG["q4"] else 6):
            T.append([sc(f"s_mov_b32 m0, s{sStg}", wr=M0), sc(f"s_add_u32 s{sStg}, s{sStg}, 1024"), dma(vQO, sQx, None, 0, CFG["q"], ("q", 1))])
            T.append([sc(x) for x in bump(sQx, f"s{sD}") + [f"s_xor_b32 s{sD}, s{sD}, 0x700"]])
        ms = [i for i, x in enumerate(S.out) if x.k == "M"][-len(mf) + 8:][:2 * len(T):2]
        assert len(ms) == len(T)
        for i, g in reversed(list(zip(ms, T))): S.out[i + 1:i + 1] = g
    return S.out[:split], S.out[split:]

def sigma(x, d, t):
    return [f"v_bfe_u32 v{d}, v{x}, 1, 1", f"v_lshrrev_b32 v{t}, 3, v{x}", f"v_xor_b32 v{t}, v{t}, v{x}", f"v_and_b32 v{t}, 1, v{t}",
            f"v_lshl_or_b32 v{d}, v{t}, 1, v{d}", f"v_and_b32 v{t}, 4, v{x}", f"v_or_b32 v{d}, v{d}, v{t}"]
def swz_addr(row, col, d, t):
    return sigma(row, d, t) + [f"v_xor_b32 v{d}, v{d}, v{col}", f"v_lshlrev_b32 v{d}, 4, v{d}", f"v_and_b32 v{t}, 7, v{row}",
                               f"v_lshl_add_u32 v{d}, v{t}, 7, v{d}", f"v_lshrrev_b32 v{t}, 3, v{row}"]
def stg_addr(row, col, d, t):
    return [f"v_and_b32 v{t}, 7, v{row}", f"v_xor_b32 v{d}, v{t}, v{col}", f"v_lshlrev_b32 v{d}, 4, v{d}", f"v_lshl_add_u32 v{d}, v{t}, 7, v{d}"]

def stamp():
    if not CFG["stamp"]: return []
    x = vTmp + 2
    L = [sc(t) for t in (f"s_memtime s[{sTm}:{sTm+1}]", f"s_memrealtime s[{sTm+2}:{sTm+3}]", "s_waitcnt lgkmcnt(0)", "s_mov_b64 exec, 1")]
    for n, (a, b) in enumerate(((sTm, sTm + 2), (80, 82), (84, 86))):
        L += [sc(f"v_mov_b32 v{x}, s{a}"), sc(f"v_mov_b32 v{x+1}, s{b}"),
              I(f"buffer_store_dwordx2 v[{x}:{x+1}], off, s[{sDbg}:{sDbg+3}], s{sStampOff} offset:{8*n}", "S"), sc("s_nop 1")]
    return L + [sc("s_mov_b64 exec, -1"), sc(f"s_add_u32 s{sStampOff}, s{sStampOff}, 32"), sc("s_nop 3")]

def prologue():
    P = []
    A = lambda t: P.append(sc(t))
    if CFG["diag_tot"]: A("s_memrealtime s[96:97]")
    pm = lambda i: A(f"s_memrealtime s[{92+2*i}:{93+2*i}]") if CFG["stamp"] == 3 else None
    pm(0)
    A("s_cmp_ge_u32 s2, 256"); A("s_cbranch_scc1 L_exit")
    if CFG["again"]:
        A(f"s_mov_b32 s3, {CFG['again']}"); P.append(I("L_again:", "#"))
    A("s_load_dwordx4 s[80:83], s[0:1], 0"); A("s_load_dwordx4 s[84:87], s[0:1], 16")
    if CFG["stamp"]: A(f"s_load_dwordx2 s[{sDbg}:{sDbg+1}], s[0:1], 40")
    A("s_getpc_b64 s[100:101]"); P.append(I("L_pf:", "#"));
    sl = CFG["slice"]
    A(f"s_bfe_u32 s{sT0}, s2, {(sl << 16) | 3:#x}"); A(f"s_lshl_b32 s{sT0}, s{sT0}, {15 - sl}")
    A(f"v_lshrrev_b32 v{vPf}, {sl}, v0"); A(f"v_lshl_add_u32 v{vPf}, v{vPf}, 7, s{sT0}")
    A("v_lshrrev_b32 v20, 6, v0"); A("v_and_b32 v21, 63, v0")
    P += code_touch(100, "L_job7-L_pf")
    for d, lab in ((sPfA, "L_job7"), (sPfB, "L_end_code")):
        A(f"s_add_u32 s{d}, s100, {lab}-L_pf"); A(f"s_addc_u32 s{d+1}, s101, 0")
    A(f"v_readfirstlane_b32 s{sW}, v20")
    A(f"s_and_b32 s{sT0}, s2, 7"); A(f"s_lshr_b32 s{sT1}, s2, 3"); A(f"s_and_b32 s{sRole}, s{sT1}, 1"); A(f"s_lshr_b32 s{sT1}, s{sT1}, 1")
    A(f"s_lshl_b32 s{sT0}, s{sT0}, 4"); A(f"s_add_u32 s{sT0}, s{sT0}, s{sT1}")
    if CFG["samehead"]: A(f"s_mov_b32 s{sT0}, 0")
    A(f"s_mul_i32 s{sT1}, s{sT0}, {4*QH}"); A(f"s_lshl_b32 s{sT0}, s{sT0}, 19")
    A("v_lshrrev_b32 v22, 3, v21"); A("v_and_b32 v23, 7, v21")
    for x in sigma(22, 24, 25): A(x)
    A("v_xor_b32 v24, v24, v23"); A("v_lshlrev_b32 v24, 4, v24"); A(f"v_lshl_add_u32 v{vDKV}, v22, 8, v24")
    A("v_xor_b32 v24, v22, v23"); A("v_lshlrev_b32 v24, 4, v24"); A(f"v_lshl_add_u32 v{vQO}, v22, 8, v24")
    A(f"s_and_b32 s{sT2}, s{sW}, 1"); A(f"s_lshl_b32 s{sT2}, s{sT2}, 5"); A(f"s_lshl_b32 s{sT3}, s{sW}, 11"); A(f"s_lshl_b32 s{sWoff}, s{sW}, 12")
    A(f"v_xor_b32 v{vDKV}, s{sT2}, v{vDKV}"); A(f"v_add_u32 v{vDKV}, s{sT3}, v{vDKV}")
    A(f"s_mul_i32 s{sStgB}, s{sW}, 24576")
    for d, f, n7, base in ((sOffA, sN7A, CFG["split"] - 24, 0), (sOffB, sN7B, CFG["total"] - CFG["split"] - 24, CFG["split"] * 4096)):
        A(f"s_min_u32 s{d}, s{sW}, {n7}"); A(f"s_cselect_b32 s{f}, 1, 0"); A(f"s_lshl_b32 s{d}, s{d}, 12")
        A(f"s_add_u32 s{d}, s{d}, s{sStgB}"); A(f"s_add_u32 s{d}, s{d}, {base}")
    A(f"s_add_u32 s{sStgB}, s{sStgB}, 65536")
    A(f"s_mov_b32 s{sJob}, -1")
    P += params_next()
    pm(1)
    A("s_waitcnt lgkmcnt(0)")
    for srd, src, o, n in ((sK, 82, sT0, 4 * KH), (sV, 84, sT0, 4 * KH), (sQ, 80, sT1, 4 * QH), (sO, 86, sT1, 0 if CFG["nostore"] else 4 * QH)):
        same = (srd == sK and "samek" in CFG["x"]) or (srd == sV and "samev" in CFG["x"])
        A(f"s_add_u32 s{srd}, s{src}, {'0' if same else 's%d' % o}"); A(f"s_addc_u32 s{srd+1}, s{src+1}, 0"); A(f"s_mov_b32 s{srd+2}, {n}"); A(f"s_mov_b32 s{srd+3}, 0x20000")
    if CFG["stamp"]:
        A(f"s_mov_b32 s{sDbg+2}, 0x1000000"); A(f"s_mov_b32 s{sDbg+3}, 0x20000")
        A(f"s_lshl_b32 s{sStampOff}, s2, 2"); A(f"s_add_u32 s{sStampOff}, s{sStampOff}, s{sW}"); A(f"s_lshl_b32 s{sStampOff}, s{sStampOff}, 10")
    P += stamp() if CFG["stamp"] == 1 else []
    pm(2)
    ga, gb, q0 = grp_batch(-1), grp_batch(0), q_batch(0, sNxt, 0, ("q0", 0))
    if CFG["ord"] == 0: P += ga + gb + q0
    elif CFG["ord"] == 1: P += q0[:4] + ga[:3] + gb[6:] + ga[3:] + gb[:6] + q0[4:]
    elif CFG["ord"] == 2: P += q0 + gb[6:] + ga + gb[:6]
    P += grp_batch(1)
    for t in range(1, CFG["pre"]): P += q_batch(t, sNxt, t * 4096, ("q0", t))
    pm(3)
    if CFG["stamp"] == 3:
        A("s_waitcnt lgkmcnt(0)")
        for i in range(4): A(f"s_mov_b32 s{80+2*i}, s{92+2*i}")
        P += stamp()
    A("v_and_b32 v22, 15, v21"); A("v_lshrrev_b32 v23, 4, v21")
    for x in swz_addr(22, 23, 24, 25): A(x)
    A(f"v_lshl_add_u32 v{vK}, v25, 12, v24"); A(f"v_xor_b32 v{vK+1}, 64, v{vK}")
    for x in stg_addr(22, 23, 24, 25): A(x)
    A("v_lshrrev_b32 v25, 1, v22"); A("v_xor_b32 v25, v25, v22"); A("v_bfe_u32 v25, v25, 2, 1"); A("v_lshl_add_u32 v24, v25, 11, v24")
    A(f"v_add_u32 v{vSt}, s{sStgB}, v24"); A(f"v_xor_b32 v{vSt+1}, 64, v{vSt}")
    A(f"s_add_u32 s{sT2}, s{sWoff}, 49152"); A(f"v_add_u32 v{vQ6}, s{sT2}, v24"); A(f"v_xor_b32 v{vQ6+1}, 64, v{vQ6}")
    A(f"v_lshl_add_u32 v{vLin}, v21, 4, s{sStgB}"); A(f"v_add_u32 v{vLin}, 24576, v{vLin}")
    A("v_lshrrev_b32 v22, 2, v21"); A("v_and_b32 v23, 3, v21")
    for x in swz_addr(22, 23, 24, 25): A(x)
    A(f"v_lshl_add_u32 v{vV}, v25, 12, v24"); A(f"v_xor_b32 v{vV+1}, 64, v{vV}")
    if "vcf" in CFG["x"]:
        A("v_and_b32 v24, 1, v21"); A(f"v_lshl_add_u32 v{vV}, v24, 3, v{vV}"); A(f"v_lshl_add_u32 v{vV+1}, v24, 3, v{vV+1}")
    A(f"s_mov_b32 s{sC}, {f2u(1.0 if 'c1' in CFG['x'] else SCALE):#x}")
    A(f"s_mov_b32 s{sHi}, {f2u(2.0**CFG['hi']):#x}")
    if "perm" in CFG["x"]: A(f"s_mov_b32 s{sLo}, 0x07060302")
    A(f"s_mov_b32 s{sFlag}, {CFG['forcefb']}")
    for d, b, blk in ((sVa, sV, 4), (sVb, sV, 5), (sKx, sK, 6)):
        A(f"s_add_u32 s{d}, s{b}, {blk*8192}"); A(f"s_addc_u32 s{d+1}, s{b+1}, 0"); A(f"s_mov_b32 s{d+2}, 8192")
    for d in (sKx, sVa, sVb, sQx, sOx): A(f"s_mov_b32 s{d+3}, 0x20000")
    A(f"s_mov_b32 s{sCnt}, 6"); A(f"s_add_u32 s{sM}, s{sWoff}, 16384"); A(f"s_mov_b32 s{sCurO}, 0"); A(f"s_mov_b32 s{sOx+2}, {0 if CFG['nostore'] else 4096}")
    A("v_and_b32 v22, 1, v21"); A("v_mul_u32_u24 v22, 0xaaaa, v22"); A(f"v_add_u32 v{vIdx}, 0x4444, v22"); A(f"v_lshl_or_b32 v{vIdx}, v{vIdx}, 16, v{vIdx}")
    A("v_lshrrev_b32 v22, 4, v21"); A("v_xor_b32 v22, v22, v21"); A("v_and_b32 v23, 2, v22")
    A("v_cmp_eq_u32 vcc, 0, v23"); A("v_mov_b32 v24, 0x3f803f80"); A("s_nop 0"); A("v_cndmask_b32 v22, 0, v24, vcc")
    for i in range(4): A(f"v_mov_b32 v{vOne+i}, v22")
    for i in range(16): A(f"v_accvgpr_write_b32 a{aL+i}, 0")
    return P + advance() + [sc(f"s_mov_b32 s{sLoop}, 4"), sc(f"s_mov_b32 s{sU3}, 0")]

def job_switch(NT):
    L = []
    if CFG["diag_mark"] > 0: L = [sc(f"s_cmp_lg_u32 s{sJob}, {CFG['diag_mark']}"), sc(f"s_cbranch_scc1 L_nomark{NT}"), sc("s_memrealtime s[96:97]"), I(f"L_nomark{NT}:", "#")]
    L += stamp() + [sc(f"s_cmp_eq_u32 s{sN7c}, 1"), sc("s_cbranch_scc1 L_job7")]
    return L + ([sc("s_branch L_job6")] if NT == 6 else [])

def final():
    L = [I("L_final:", "#")]
    if CFG["diag_mark"] == 4: L.append(sc("s_memrealtime s[96:97]"))
    if CFG["stamp"]: L += stamp() + stamp() + [I("s_waitcnt vmcnt(0)", "w")] + stamp()
    return L

def fallback():
    L = []; A = L.append
    q, k, s0, pb, vf, o, lacc, m, t0, va, pa, one = 20, 36, 52, 60, 64, 72, 104, 108, 109, 112, 114, 116
    sJ, sN, sRow, sKb, sI, sU = sU0, sU1, sU2, sU3, sLoop, sD
    MF = "v_mfma_f32_16x16x32_bf16"
    A(f"s_cmp_eq_u32 s{sFlag}, 0"); A("s_cbranch_scc1 L_done")
    A("s_waitcnt vmcnt(0) lgkmcnt(0)")
    A("v_mbcnt_lo_u32_b32 v21, -1, 0"); A("v_mbcnt_hi_u32_b32 v21, -1, v21"); A("v_and_b32 v22, 15, v21"); A("v_lshrrev_b32 v23, 4, v21")
    A(f"v_lshlrev_b32 v{vDir}, 8, v22"); A(f"v_lshl_add_u32 v{vDir}, v23, 4, v{vDir}")
    A("v_lshrrev_b32 v22, 2, v21"); A("v_and_b32 v23, 3, v21")
    L += stg_addr(22, 23, 24, 25) + ["v_lshrrev_b32 v25, 3, v22"]
    A(f"v_lshl_add_u32 v{va}, v25, 11, v24"); A(f"v_add_u32 v{va}, s{sStgB}, v{va}"); A(f"v_xor_b32 v{va+1}, 64, v{va}")
    A(f"v_xor_b32 v{pa}, 16, v21"); A(f"v_lshlrev_b32 v{pa}, 2, v{pa}"); A(f"v_xor_b32 v{pa+1}, 32, v21"); A(f"v_lshlrev_b32 v{pa+1}, 2, v{pa+1}")
    for i in range(4): A(f"v_mov_b32 v{one+i}, 0x3f803f80")
    A(f"s_mov_b32 s{sJob}, -1")
    A("L_fb_job:")
    L += [x.t for x in params_next()]
    A(f"s_add_u32 s{sJob}, s{sJob}, 1"); A(f"s_cmp_eq_u32 s{sJob}, 4"); A("s_cbranch_scc1 L_done")
    A(f"s_lshr_b32 s{sJ}, s{sFlag}, s{sJob}"); A(f"s_and_b32 s{sJ}, s{sJ}, 1"); A("s_cbranch_scc0 L_fb_job")
    A(f"s_add_u32 s{sN}, s{sN7n}, 5"); A(f"s_mov_b32 s{sRow}, s{sNxt}")
    A("L_fb_tile:")
    for ds in range(4): A(f"buffer_load_dwordx4 {rs('v', q+4*ds, 4)}, v{vDir}, s[{sQ}:{sQ+3}], s{sRow} offen{off(ds*64)}")
    def scores(dst):
        for ds in range(4): A(f"buffer_load_dwordx4 {rs('v', k+4*ds, 4)}, v{vDir}, s[{sK}:{sK+3}], s{sKb} offen{off(ds*64)}")
        A("s_waitcnt vmcnt(0)")
        for ds in range(4): A(f"{MF} {rs('v', dst, 4)}, {rs('v', k+4*ds, 4)}, {rs('v', q+4*ds, 4)}, {'0' if ds == 0 else rs('v', dst, 4)}")
        A(f"s_add_u32 s{sKb}, s{sKb}, 4096"); A("s_nop 7")
    A(f"v_mov_b32 v{m}, 0xff800000"); A(f"s_lshl_b32 s{sKb}, s{sJob}, 17"); A(f"s_mov_b32 s{sI}, 31")
    A("L_fb_max:")
    scores(s0)
    A(f"v_max3_f32 v{m}, v{m}, v{s0}, v{s0+1}"); A(f"v_max3_f32 v{m}, v{m}, v{s0+2}, v{s0+3}")
    A(f"s_sub_u32 s{sI}, s{sI}, 1"); A("s_cbranch_scc0 L_fb_max")
    for i in (0, 1):
        A(f"ds_bpermute_b32 v{t0}, v{pa+i}, v{m}"); A("s_waitcnt lgkmcnt(0)"); A(f"v_max_f32 v{m}, v{m}, v{t0}")
    for i in range(36): A(f"v_mov_b32 v{o+i}, 0")
    A(f"s_lshl_b32 s{sKb}, s{sJob}, 17"); A(f"s_mov_b32 s{sI}, 15")
    A("L_fb_pv:")
    for kt in (0, 1):
        for a in (0, 1):
            A(f"s_add_u32 m0, s{sStgB}, {kt*4096 + a*896}"); A(f"s_add_u32 s{sU}, s{sKb}, {kt*4096}")
            for nn in (0, 1): A(f"buffer_load_dwordx4 v{vQO}, s[{sV}:{sV+3}], s{sU} offen{off(nn*2048 + a*128)} lds")
    scores(s0); scores(s0 + 4)
    for r in range(8): A(f"v_sub_f32 v{s0+r}, v{s0+r}, v{m}")
    for r in range(8): A(f"v_mul_f32 v{s0+r}, s{sC}, v{s0+r}")
    for r in range(8): A(f"v_exp_f32 v{s0+r}, v{s0+r}")
    A("s_nop 0")
    for r in range(4): A(f"v_cvt_pk_bf16_f32 v{pb+r}, v{s0+2*r}, v{s0+2*r+1}")
    A("s_nop 1")
    A(f"{MF} {rs('v', lacc, 4)}, {rs('v', one, 4)}, {rs('v', pb, 4)}, {rs('v', lacc, 4)}")
    for dj in range(8):
        J, h = dj >> 1, dj & 1; f = vf + 4 * (dj & 1)
        for kt in (0, 1): A(f"ds_read_b64_tr_b16 {rs('v', f+2*kt, 2)}, v{va + (J & 1)}{off(kt*4096 + (J >> 1)*1024 + 8*h)}")
        A("s_waitcnt lgkmcnt(0)")
        A(f"{MF} {rs('v', o+4*dj, 4)}, {rs('v', f, 4)}, {rs('v', pb, 4)}, {rs('v', o+4*dj, 4)}")
    A(f"s_sub_u32 s{sI}, s{sI}, 1"); A("s_cbranch_scc0 L_fb_pv")
    A("s_nop 7"); A(f"v_rcp_f32 v{t0}, v{lacc}"); A("s_nop 0")
    for i in range(32): A(f"v_mul_f32 v{o+i}, v{t0}, v{o+i}")
    for J in range(4):
        for i in range(4): A(f"v_cvt_pk_bf16_f32 v{o+8*J+i}, v{o+8*J+2*i}, v{o+8*J+2*i+1}")
        A(f"buffer_store_dwordx4 {rs('v', o+8*J, 4)}, v{vDir}, s[{sO}:{sO+3}], s{sRow} offen{off(J*64)}")
    A("s_waitcnt vmcnt(0)")
    A(f"s_add_u32 s{sRow}, s{sRow}, 4096"); A(f"s_sub_u32 s{sN}, s{sN}, 1"); A("s_cbranch_scc0 L_fb_tile")
    A("s_branch L_fb_job")
    A("L_done:")
    return [I(x, "#" if x.endswith(":") else "s") for x in L]

def resolve(pro, jobs, fin):
    best = {}
    for seqn in ([7, 7, 7, 7], [7, 6, 7, 6], [6, 7, 6, 7], [6, 6, 6, 6]):
        dyn = [(x, 0) for x in pro]
        for j, v in enumerate(seqn):
            J = jobs[v]; b = 16 * j
            dyn += [(x, b) for x in (jobs[7].fcom + J.first if j == 0 else J.head + (J.close if j == 3 else []))]
            m = ("q", "oq", "oq", "o")[j]
            for it in range(6): dyn += [(x, b + 2 * it) for x in J.body[m] + ([] if m == "oq" or it < 4 else J.again[m][:9 if it == 4 else 2])]
            dyn += [(x, b) for x in (J.tail + J.sw if j < 3 else J.last)]
        dyn += [(x, 64) for x in fin]
        vm = []; epoch = -2
        for x, b in dyn:
            if x.k == "B": epoch = (x.tag[1] + b) if x.tag else -1
            if x.k == "D" and x.tag and x.tag[0] == "ring":
                assert x.tag[1] + b == epoch, ("ring read outside its epoch", x.t, x.tag, b, epoch)
            if x.k in "XLS":
                tg = x.tag
                if tg and tg[0] in ("grp", "q"): tg = shift(tg, b)
                if tg and tg[0] == "grp": assert epoch == -2 or tg[1] - 4 < epoch, ("dma overwrites live group", x.t)
                vm.append(tg)
            if x.k == "w" and x.tag:
                want = (x.tag[0][4:],) + tuple(x.tag[1:])
                if want[0] in ("grp", "q"): want = shift(want, b)
                idx = max(i for i, t in enumerate(vm) if t == want)
                n = min(63, len(vm) - 1 - idx)
                best[id(x)] = (x, min(n, best.get(id(x), (x, 99))[1]))
        seq = [x for x, _ in dyn]
        last = None
        for x in seq:
            op = x.t.split()[0]
            if op == "s_addc_u32":
                a = int(re.match(r"s_addc_u32 s(\d+)", x.t).group(1))
                assert last.startswith(f"s_add_u32 s{a-1},"), (last, x.t)
            if op == "s_cselect_b32": assert re.match(r"s_(cmp|and_b32|or_b64|min)", last), (last, x.t)
            if x.t.startswith("s_cbranch_scc0 L_body"): assert last.startswith(f"s_sub_u32 s{sLoop},"), last
            elif op.startswith("s_cbranch_scc"): assert last.startswith(("s_cmp", "s_bitcmp", f"s_xor_b32 s{sU3},")), (last, x.t)
            if re.match(r"s_(add|sub|and|or|xor|lshl|lshr|cmp|min|max|bitcmp|bfe)", op): last = x.t
        check_lgkm(seq)
        bad = hazards(seq)
        assert not bad, bad[:5]
    for x, n in best.values():
        if CFG["less"] and x.tag[0] == "needgrp" and "lgkm" in x.t: n = max(0, n - (10 if n >= 19 else 4))
        x.t = x.t.replace("?", str(n))

def main():
    jobs = {nt: build_job(nt) for nt in (7, 6)}
    mt = lambda i: [sc(f"s_memtime s[{80+2*i}:{81+2*i}]")] if CFG["stamp"] else []
    for nt, J in jobs.items():
        J.fcom, J.first = build_first(nt, J.carry, min(x[3] for K in jobs.values() for x in K.carry if x[0] == "cvt"))
        assert [x.t for x in J.fcom] == [x.t for x in jobs[7].fcom]
        if CFG["diag_mark"] == 0: J.first.append(sc("s_memrealtime s[96:97]"))
        J.first += stamp() + mt(0) + mt(1) + [sc("s_nop 4")]
        J.sw = job_switch(nt)
    jobs[7].fcom += [sc(f"s_cmp_eq_u32 s{sN7c}, 0"), sc("s_cbranch_scc1 L_first6")]
    pro = prologue(); fin = final()
    resolve(pro, jobs, fin)
    info = []
    for nt, J in jobs.items():
        nm = lambda s: sum(x.k == "M" for x in s)
        t = " ".join(f"{n}: {cycles(s)}c iss {issue_sum(s)} pipe {nm(s)*16} |" for n, s in (("head", J.head), *J.body.items(), ("tail", J.tail), ("last", J.last), ("first", jobs[7].fcom + J.first)))
        info.append(f"NT={nt} carry={len(J.carry)} {t} total={cycles(J.head + 6 * J.body['oq'] + J.tail + J.sw)}")
    o = open("header.txt").read().rstrip("\n").split("\n")
    o += ['.amdgcn_target "amdgcn-amd-amdhsa--gfx950"', ".text", f".globl {NAME}_kernel", ".p2align 8", f".type {NAME}_kernel,@function", f"{NAME}_kernel:"]
    X = CFG["x"].split()
    def keep(x):
        if "mul" in X and x.t.startswith("v_mul_f32") and f"s{sC}," in x.t and x.k == "V": return None
        if "sum" in X and "smfmac" in x.t: return None
        if "nofb" in X and x.t == f"s_cmp_eq_u32 s{sFlag}, 0": return "s_cmp_eq_u32 0, 0"
        if "norcp" in X and x.t.startswith("v_rcp_f32") and x.k == "E": return x.t.split(",")[0].replace("v_rcp_f32", "v_sqrt_f32") + ", 1.0"
        if inbody[0]:
            if "ds" in X and x.k == "D": return "v_mov_b32 v12, v12"
            if "kvdma" in X and x.k == "X" and x.tag[0] == "grp": return "v_mov_b32 v12, v12"
            if "st" in X and x.k == "S": return "v_mov_b32 v12, v12"
            if "bar" in X and x.k == "B": return "s_nop 2"
        return x.t
    inbody = [False]; intail = [False]
    put = lambda s: o.extend(("" if x.k == "#" else "    ") + keep(x) for x in s if keep(x) is not None)
    def loop(J, mode):
        o.append(f"L_body{mode}{J.NT}:"); inbody[0] = True; put(J.body[mode]); inbody[0] = False
    put(pro); put(jobs[7].fcom)
    for nt, J in jobs.items():
        o.append(f"L_first{nt}:"); put(J.first); loop(J, "q"); put(J.again["q"])
    for nt, J in jobs.items():
        o.append(f"L_job{nt}:"); put(mt(0)); put(J.head[:-1] + mt(1) + J.head[-1:]); loop(J, "oq")
        o.append(f"L_tail{nt}:"); put(mt(2)); put(mt(3)); intail[0] = True; put(J.tail); intail[0] = False; put(J.sw)
    o.append("L_end_code:")
    for nt, J in jobs.items():
        o.append(f"L_close{nt}:"); put(J.close); loop(J, "o"); put(J.again["o"]); o.append(f"L_last{nt}:"); put(mt(2)); put(mt(3)); put(J.last)
        if nt == 7: o.append("    s_branch L_final")
    put(fin); put(fallback())
    if CFG["again"]:
        o += ["    s_waitcnt vmcnt(0) lgkmcnt(0)", "    s_barrier", "    v_mbcnt_lo_u32_b32 v0, -1, 0", "    v_mbcnt_hi_u32_b32 v0, -1, v0", f"    v_lshl_add_u32 v0, s{sW}, 6, v0", "    s_sub_u32 s3, s3, 1", "    s_cbranch_scc0 L_again"]
    if CFG["diag_tot"]:
        o += ["    s_waitcnt vmcnt(0) lgkmcnt(0)", "L_diag:", "    s_memrealtime s[94:95]", "    s_waitcnt lgkmcnt(0)",
              "    s_sub_u32 s94, s94, s96", f"    s_cmp_lt_u32 s94, {CFG['diag_tot']}", "    s_cbranch_scc1 L_diag"]
    o += ["L_exit:", "    s_endpgm", "L_code_end:"]
    while True:
        pos = 0; fixat = None
        for k in range(o.index(f"{NAME}_kernel:"), len(o)):
            t = o[k].strip()
            if fixat is None and k < o.index("L_final:"):
                if t.startswith("s_cbranch_scc0 L_body") and pos % 32 == 0: fixat = o.index(t.split()[1] + ":")
                elif ("branch" in t and pos % 32 == 0) or (t.endswith(":") and t != "L_pf:" and pos % 32 == 28): fixat = k
            if t.startswith(".p2align"): a = 1 << int(t.split()[1]); pos = (pos + a - 1) // a * a
            elif not t.endswith(":"): pos += size(t)
        if fixat is None: break
        o.insert(fixat, "    s_nop 0")
    info.append(f"code bytes {pos}")
    notes = {"L_first": "first job: key blocks 0..2 tile by tile while the queries arrive (last tiles)", "L_bodyq": "first job: main loop, two key blocks per pass",
             "L_job": "later jobs: opening key blocks", "L_bodyoq": "middle jobs: main loop, two key blocks per pass",
             "L_tail": "closing key blocks, range check of the row sums, normalisation, next job's queries", "L_close": "last job",
             "L_bodyo": "last job: main loop", "L_last": "last job: tiles finish in groups and are stored at once",
             "L_final": "jobs whose row sums left the safe window are redone below", "L_fb_job": "exact-maximum path: next recorded job",
             "L_fb_tile": "one query tile", "L_fb_max": "pass 1: true row maximum", "L_fb_pv": "pass 2: exp2((s - max) * c), row sum, P V"}
    for k in range(len(o) - 1, -1, -1):
        m = re.fullmatch(r"(L_[a-z_]+?)(\d?):", o[k])
        if m and m.group(1) in notes: o.insert(k, "; " + notes[m.group(1)] + (f" ({m.group(2)} tiles per wave)" if m.group(2) else ""))
    o += ['.section .rodata,"a"', ".p2align 6", f".amdhsa_kernel {NAME}_kernel",
          "  .amdhsa_next_free_vgpr 512", "  .amdhsa_next_free_sgpr 102", "  .amdhsa_accum_offset 256",
          "  .amdhsa_group_segment_fixed_size 0", "  .amdhsa_kernarg_size 48", "  .amdhsa_user_sgpr_count 2",
          "  .amdhsa_user_sgpr_kernarg_segment_ptr 1", "  .amdhsa_system_sgpr_workgroup_id_x 1", ".end_amdhsa_kernel"]
    open(sys.argv[1], "w").write("\n".join(o) + "\n")
    print("\n".join(info), file=sys.stderr)

main()
```

```python
import sys
def gen(name, body_lines, iters, threads=256, lds=65536*2, nvgpr=512, accum=256, pre=None, grid=256):
    L = []
    A = L.append
    A(f"; @launch grid=({grid},1,1) block=({threads},1,1) lds={lds}")
    A('.amdgcn_target "amdgcn-amd-amdhsa--gfx950"')
    A(".text")
    A(f".globl {name}_kernel")
    A(".p2align 8")
    A(f".type {name}_kernel,@function")
    A(f"{name}_kernel:")
    A(f"s_cmp_ge_u32 s2, {grid}")
    A("s_cbranch_scc1 L_end")
    A("s_load_dwordx2 s[4:5], s[0:1], 0")
    A("s_load_dwordx2 s[6:7], s[0:1], 24")
    A("s_waitcnt lgkmcnt(0)")
    A("s_mov_b32 s8, s4"); A("s_mov_b32 s9, s5"); A("s_mov_b32 s10, 0x4000000"); A("s_mov_b32 s11, 0x20000")
    A("s_mov_b32 s12, s6"); A("s_mov_b32 s13, s7"); A("s_mov_b32 s14, 0x100000"); A("s_mov_b32 s15, 0x20000")
    A("v_lshlrev_b32 v1, 4, v0")
    A("s_lshl_b32 s3, s2, 16")
    narch = min(accum, nvgpr)
    for r in range(4, narch, 4):
        A(f"buffer_load_dwordx4 v[{r}:{r+3}], v1, s[8:11], s3 offen")
        A("s_add_u32 s3, s3, 0x2000")
        A("s_and_b32 s3, s3, 0x3ffffff")
    A("s_waitcnt vmcnt(0)")
    for r in range(0, nvgpr - accum):
        A(f"v_accvgpr_write_b32 a{r}, v{4 + (r % (narch-4))}")
    A("v_lshlrev_b32 v2, 4, v0")
    A("v_and_b32 v2, 0x3ff, v2")
    for i in range(0, 16):
        A(f"v_add_u32 v3, {i*8192}, v1")
        A(f"ds_write_b128 v3, v[{8+4*i}:{11+4*i}]")
    A("s_waitcnt lgkmcnt(0)")
    if pre:
        for l in pre: A(l)
    A("s_barrier")
    A(f"s_mov_b32 s20, {iters}")
    A("s_memtime s[16:17]")
    A("s_memrealtime s[18:19]")
    A("s_waitcnt lgkmcnt(0)")
    A(".p2align 6")
    A("L_loop:")
    for l in body_lines: A(l)
    A("s_sub_u32 s20, s20, 1")
    A("s_cmp_lg_u32 s20, 0")
    A("s_cbranch_scc1 L_loop")
    A("s_waitcnt lgkmcnt(0)")
    A("s_memtime s[22:23]")
    A("s_memrealtime s[24:25]")
    A("s_waitcnt lgkmcnt(0)")
    A("s_sub_u32 s22, s22, s16")
    A("s_sub_u32 s24, s24, s18")
    A("v_mov_b32 v4, s22")
    A("v_mov_b32 v5, s24")
    A("v_mov_b32 v6, s18")
    A("v_mov_b32 v7, s19")
    A("v_lshrrev_b32 v1, 6, v0")
    A("v_lshlrev_b32 v1, 4, v1")
    A("s_lshl_b32 s3, s2, 8")
    A("v_and_b32 v2, 63, v0")
    A("v_cmp_eq_u32 vcc, 0, v2")
    A("s_and_saveexec_b64 s[26:27], vcc")
    A("buffer_store_dwordx4 v[4:7], v1, s[12:15], s3 offen")
    A("s_waitcnt vmcnt(0)")
    A("L_end:")
    A("s_endpgm")
    A('.section .rodata,"a"')
    A(".p2align 6")
    A(f".amdhsa_kernel {name}_kernel")
    A(f"  .amdhsa_next_free_vgpr {nvgpr}")
    A("  .amdhsa_next_free_sgpr 102")
    A(f"  .amdhsa_accum_offset {accum}")
    A("  .amdhsa_group_segment_fixed_size 0")
    A("  .amdhsa_kernarg_size 48")
    A("  .amdhsa_user_sgpr_count 2")
    A("  .amdhsa_user_sgpr_kernarg_segment_ptr 1")
    A("  .amdhsa_system_sgpr_workgroup_id_x 1")
    A(".end_amdhsa_kernel")
    return "\n".join(L) + "\n"
```

```python
import sys, struct, os
import numpy as np
from mb_gen import gen

def filler(f, ei):
    d = 80 + (ei % 8)
    s = 72 + ((ei + 1) % 8)
    s2 = 72 + ((ei + 2) % 8)
    if f == 'e': return f"v_exp_f32 v{d}, v{s}"
    if f == 'a': return f"v_add_f32 v{d}, v{s}, v{s2}"
    if f == 'u': return f"v_mul_f32 v{d}, s30, v{s}"
    if f == 'f': return f"v_fma_f32 v{d}, v{s}, s30, v{s2}"
    if f == 'c': return f"v_cvt_pk_bf16_f32 v{92 + ei % 4}, v{s}, v{s2}"
    if f == 'D': return f"ds_read_b128 v[{100 + 4*(ei % 4)}:{103 + 4*(ei % 4)}], v2 offset:{(ei % 16) * 1024}"
    if f == 'G': return f"ds_read_b128 a[{100 + 4*(ei % 4)}:{103 + 4*(ei % 4)}], v2 offset:{(ei % 16) * 1024}"
    if f == 'T': return f"ds_read_b64_tr_b16 v[{116 + 2*(ei % 4)}:{117 + 2*(ei % 4)}], v124 offset:{(ei % 16) * 1024}"
    if f == 'H': return f"ds_read_b64_tr_b16 a[{116 + 2*(ei % 4)}:{117 + 2*(ei % 4)}], v124 offset:{(ei % 16) * 1024}"
    if f == 'X': return f"ds_read_b64_tr_b16 v[{116 + 2*(ei % 4)}:{117 + 2*(ei % 4)}], v2 offset:{(ei % 16) * 1024}"
    if f == 'W': return f"ds_write_b128 v2, v[100:103] offset:{(ei % 16) * 1024}"
    if f == 'n': return "s_nop 0"
    if f == 'N': return "s_nop 1"
    if f == 'w': return "s_waitcnt lgkmcnt(15)"
    if f == 'm': return "s_mov_b32 m0, 0x8000"
    if f == 'B': return "s_barrier"
    if f == 'L': return "buffer_load_dwordx4 v1, s[8:11], 0 offen lds"
    if f == 'V': return "buffer_load_dwordx4 v[104:107], v1, s[8:11], 0 offen"
    if f == 'Y': return "buffer_load_dwordx4 a[104:107], v1, s[8:11], 0 offen"
    if f == 'S': return "buffer_store_dwordx4 v[108:111], v1, s[12:15], s31 offen"
    if f == 'x': return "s_waitcnt vmcnt(8)"
    if f == 'k': return f"v_permlane16_swap_b32 v{d}, v{88 + ei % 4}"
    if f == 'Z': return f"v_smfmac_f32_16x16x64_bf16 a[200:203], a[204:207], v[8:15], v126"
    if f == 'h': return f"v_mfma_f32_16x16x16_bf16 a[{200 + 4*(ei % 4)}:{203 + 4*(ei % 4)}], a[220:221], v[8:9], a[{200 + 4*(ei % 4)}:{203 + 4*(ei % 4)}]"
    if f == 'b': return "s_cbranch_scc1 L_end"
    if f == 'R': return f"ds_write_b64 v124, v[100:101] offset:{(ei % 16) * 1024}"
    if f == '1': return "v_mul_f32 v90, s30, v72"
    if f == '2': return "v_exp_f32 v91, v90"
    if f == '3': return "v_cvt_pk_bf16_f32 v92, v91, v73"
    if f == '4': return "v_mul_f32 v93, s30, v90"
    if f == '5': return "v_exp_f32 v94, v91"
    if f == 'y': return "s_waitcnt vmcnt(12)"
    if f == 'M': return "buffer_load_dwordx4 v1, s[8:11], s33 offen lds"
    if f == 'O': return "buffer_load_dwordx4 v1, s[8:11], s33 offen offset:1024 lds"
    if f == 'P': return "buffer_load_dwordx4 v1, s[40:43], 0 offen offset:128 lds"
    if f == 'U': return "global_load_lds_dwordx4 v1, s[40:41] offset:128"
    if f == 'J': return "buffer_load_dwordx4 v1, s[40:43], 0 offen offset:128 nt lds"
    if f == 'I': return "buffer_store_dwordx4 v[108:111], v1, s[44:47], 0 offen"
    if f == 'K': return "global_store_dwordx4 v1, v[108:111], s[44:45]"
    if f == 'F': return "buffer_load_dwordx4 v[104:107], v1, s[8:11], s34 offen"
    if f == 'Q': return "buffer_load_dwordx4 v1, s[8:11], s34 offen lds"
    if f == 'z': return "s_add_u32 s33, s33, 0x8000"
    if f == '7': return "s_add_u32 s40, s40, 0x8000"
    if f == '8': return "s_addc_u32 s41, s41, 0"
    if f == '9': return "buffer_store_dwordx4 a[108:111], v1, s[44:47], 0 offen"
    if f == '0': return f"ds_write_b128 v2, a[108:111] offset:{(ei % 16) * 1024}"
    if f == '6': return "buffer_store_dwordx2 v[108:109], v1, s[44:47], 0 offen"
    raise ValueError(f)

def body(nm, fill, mode):
    L = ['s_cmp_eq_u32 s30, 0']; ei = 0
    op = "v_mfma_f32_16x16x32_bf16"
    for m in range(nm):
        a = (m % 24) * 4
        A = 8 + (m % 8) * 4; B = 40 + ((m // 4) % 8) * 4
        if mode == 0: L.append(f"{op} a[{a}:{a+3}], v[{A}:{A+3}], v[{B}:{B+3}], a[{a}:{a+3}]")
        elif mode == 1: L.append(f"{op} v[{128+a}:{128+a+3}], a[{128+A}:{128+A+3}], a[{128+B}:{128+B+3}], v[{128+a}:{128+a+3}]")
        elif mode == 2: L.append(f"{op} v[{128+a}:{128+a+3}], a[{128+A}:{128+A+3}], a[{128+B}:{128+B+3}], 0")
        for f in fill[m % len(fill)]:
            ei += 1
            L.append(filler(f, ei))
    return L

EXPS = []
def add(pat, mode=0, waves=4):
    EXPS.append((pat, mode, waves))
def phase(ops, start, sp, bar=True, n=96, post="a", fill=("e",)):
    g = [fill[k % len(fill)] for k in range(n)]
    for k, o in enumerate(ops): g[start + k * sp] = o + post
    g[n - 3] = "ze"; g[n - 5] = "7e"; g[n - 4] = "8e"
    if bar: g[n - 1] = "Ba"; g[n - 2] = "ye"
    else: g[n - 2] = "ye"
    return ",".join(g)
TAGS = []
for pat in ["I,e,e,e,e,e,e,e", "9,e,e,e,e,e,e,e", "W,e,e,e,e,e,e,e", "0,e,e,e,e,e,e,e", "6,e,e,e,e,e,e,e", "6e,e,e,e,e,e,e,e", "66,e,e,e,e,e,e,e", "eZI,e,e,e,e,e,e,e", "eZ,e,e,e,e,e,e,e", "e,e,e,e,e,e,e,e"]:
    add(pat); TAGS.append(pat)

PRE = ["v_and_b32 v124, 63, v0", "v_lshlrev_b32 v124, 3, v124", "s_mov_b32 s30, 0x3e000000", "s_mov_b32 m0, 0x8000", "s_lshl_b32 s31, s2, 12", "s_add_u32 s31, s31, 0x10000", "v_mov_b32 v126, 0x44444444", "s_mov_b32 s33, 0", "s_add_u32 s40, s8, 0x4000", "s_addc_u32 s41, s9, 0", "s_mov_b32 s42, 0x3000000", "s_mov_b32 s43, 0x20000", "v_and_b32 v3, 7, v0", "v_lshrrev_b32 v1, 3, v0", "v_lshlrev_b32 v1, 8, v1", "v_lshl_add_u32 v1, v3, 4, v1", "s_lshl_b32 s31, s2, 14", "s_add_u32 s31, s31, 0x10000", "s_mov_b32 s34, 0x4000", "s_add_u32 s44, s12, s31", "s_addc_u32 s45, s13, 0", "s_mov_b32 s46, 0x10000", "s_mov_b32 s47, 0x20000"]
def make(e, iters):
    pat, mode, waves = e
    fill = [list(x) for x in pat.split(",")]
    return gen("mb", body(192, fill, mode), iters, threads=waves * 64, nvgpr=512, accum=256, pre=PRE, grid=8)

if os.path.exists("/dev/kfd"):
    from runner import *
    din = DeviceBuffer(64 << 20); memset(din, 0)
    dout = DeviceBuffer(1 << 20)
    for e in EXPS:
        pat, mode, waves = e
        iters = 50
        open("mb.s", "w").write(make(e, iters))
        co, d = build("mb.s", "mb_kernel")
        k = AsmKernel(co, "mb_kernel")
        ka = struct.pack("<6Q", din.ptr, 0, 0, dout.ptr, 0, 0)
        for rep in range(2):
            k.launch(d[0], d[1], ka, d[2]); sync()
        o = dout.to_numpy(np.uint32, (256, 16, 4))[:8, :waves, :].astype(np.int64)
        k.unload()
        n = len(pat.split(","))
        c = o[:, :, 0].max(1).mean() / (iters * 192)
        print(f"mode={mode} [{TAGS[EXPS.index(e)]:60s}] cyc/mfma={c:6.2f}  extra/pattern={(c-16.0)*n:6.1f}", flush=True)
else:
    for e in EXPS:
        open("mb.s", "w").write(make(e, 10))
        assert os.system("clang -x assembler -target amdgcn-amd-amdhsa -mcpu=gfx950 -c mb.s -o mb.o 2>&1 | head -5 | grep . && exit 1 || exit 0") == 0, e
    print("assembled ok")
```
